```python
import torch

def _softmax(x, axis=-1):
    return torch.softmax(x, dim=axis)
def _gelu(x):
    return torch.nn.functional.gelu(x, approximate="tanh")
def _silu(x):
    return torch.nn.functional.silu(x)
def _sigmoid(x):
    return torch.sigmoid(x)
def _layernorm(x, axis=-1, eps=1e-5):
    m = x.mean(dim=axis, keepdim=True)
    v = x.var(dim=axis, keepdim=True, unbiased=False)
    return (x - m) / torch.sqrt(v + eps)
def _scatter_add(tgt, idx, src, axis=0):
    return tgt.clone().index_add_(axis, idx, src)
def _segment_sum(src, seg, n):
    out = torch.zeros((n,) + src.shape[1:], dtype=src.dtype)
    return out.index_add_(0, seg, src)
def _pad(x, pw):
    flat = tuple(v for pair in reversed(pw) for v in pair)
    return torch.nn.functional.pad(x, flat)

kernel_name = 'parallel_sum__spectral_gfnet__glu_gated_geglu__prompt'

def setup_inputs():

    _w = (lambda a: (lambda t: t.to(torch.bfloat16) if t.is_floating_point() else t)(torch.as_tensor(a)))
    def _A_setup():
        B, S, D = 1, 2048, 512
        Df = D // 2 + 1
        return {
            "x": _w((lambda *s: torch.randn(*s, dtype=torch.bfloat16) * 0.05)(B, S, D)),
            "w_r": _w((lambda *s: torch.randn(*s, dtype=torch.bfloat16) * 0.8)(S, Df) * 0.02),
            "w_i": _w((lambda *s: torch.randn(*s, dtype=torch.bfloat16) * 0.8)(S, Df) * 0.02),
        }
    _A_in = _A_setup()

    def _B_setup():
        B, S, Dm, Df = 1, 2048, 512, 1792
        return {
            "x": _w((lambda *s: torch.randn(*s, dtype=torch.bfloat16) * 0.05)(B, S, Dm)),
            "w_gate": _w((lambda *s: torch.randn(*s, dtype=torch.bfloat16) * 0.4)(Dm, Df) * (Dm ** -0.5)),
            "w_up": _w((lambda *s: torch.randn(*s, dtype=torch.bfloat16) * 0.4)(Dm, Df) * (Dm ** -0.5)),
            "w_down": _w((lambda *s: torch.randn(*s, dtype=torch.bfloat16) * 0.4)(Df, Dm) * (Df ** -0.5)),
        }
    _B_in = _B_setup()

    return {
        "A_x": _A_in["x"],
        "A_w_r": _A_in["w_r"],
        "A_w_i": _A_in["w_i"],
        "B_x": _B_in["x"],
        "B_w_gate": _B_in["w_gate"],
        "B_w_up": _B_in["w_up"],
        "B_w_down": _B_in["w_down"],
    }

def reference(A_x, A_w_r, A_w_i, B_x, B_w_gate, B_w_up, B_w_down):
    def _A_ref(x, w_r, w_i):
        B, S, D = x.shape
        X = (lambda x, axes=(-2,-1): torch.fft.rfft2(x.float(), dim=axes))(x, axes=(-2, -1))
        W = w_r + 1j * w_i
        X = X * W
        y = (lambda x, s, axes=(-2,-1): torch.fft.irfft2(x, s=s, dim=axes).to(torch.bfloat16))(X, (S, D), axes=(-2, -1))
        return y

    def _B_ref(x, w_gate, w_up, w_down):
        g = torch.einsum("bsd,df->bsf", x, w_gate)
        u = torch.einsum("bsd,df->bsf", x, w_up)
        h = _gelu(g) * u
        return torch.einsum("bsf,fd->bsd", h, w_down)

    x = A_x
    xn = _layernorm(x, axis=-1)
    return x + _A_ref(xn, A_w_r, A_w_i) + _B_ref(xn, B_w_gate, B_w_up, B_w_down)
```

```python
import re
TRANS = ('v_exp_f32','v_log_f32','v_rcp_f32','v_rsq_f32','v_sqrt_f32','v_sin_f32','v_cos_f32','v_rcp_iflag_f32')
def regs_of(tok):
    tok=tok.strip()
    neg = tok
    tok=tok.lstrip('-')
    m=re.fullmatch(r'(?:abs\(|\|)(.*?)(?:\)|\|)',tok)
    if m: tok=m.group(1)
    m=re.fullmatch(r'([vas])(\d+)',tok)
    if m: return [(m.group(1),int(m.group(2)))]
    m=re.fullmatch(r'([vas])\[(\d+):(\d+)\]',tok)
    if m: return [(m.group(1),i) for i in range(int(m.group(2)),int(m.group(3))+1)]
    if tok=='vcc': return [('s','vcc_lo'),('s','vcc_hi')]
    if tok in('vcc_lo','vcc_hi'): return [('s',tok)]
    if tok=='exec': return [('s','exec_lo'),('s','exec_hi')]
    if tok in('exec_lo','exec_hi'): return [('s',tok)]
    if tok=='m0': return [('s','m0')]
    return []
def split_ops(s):
    out=[];depth=0;cur=''
    for ch in s:
        if ch in '[(': depth+=1
        if ch in '])': depth-=1
        if ch==',' and depth==0: out.append(cur.strip());cur=''
        else: cur+=ch
    if cur.strip(): out.append(cur.strip())
    return out
class Ins:
    def __init__(s,text,skip=0):
        s.text=text; s.skip=skip
        t=text.split(';')[0].strip()
        parts=t.split(None,1)
        s.mn=parts[0]; rest=parts[1] if len(parts)>1 else ''
        ops=split_ops(rest)
        s.mods=''
        if ops:
            last=ops[-1]
            depth=0;cut=None
            for i,ch in enumerate(last):
                if ch in '[(': depth+=1
                if ch in '])': depth-=1
                if ch==' ' and depth==0: cut=i;break
            if cut is not None:
                s.mods=last[cut+1:]; ops[-1]=last[:cut]
        s.ops=ops
        mn=s.mn
        mn=re.sub(r'_(e32|e64|dpp|sdwa)$','',mn); s.base=mn
        s.w=[];s.r=[]
        s.kind='other'; s.passes=0
        R=lambda i: regs_of(ops[i]) if i<len(ops) else []
        allr=lambda a: [x for i in range(a,len(ops)) for x in R(i)]
        if mn.startswith('v_mfma'):
            s.kind='mfma'; s.w=R(0); s.A=R(1); s.B=R(2); s.C=R(3); s.r=s.A+s.B+s.C
            s.passes={'32x32x16':8,'16x16x32':4,'32x32x8':8,'16x16x16':4}[re.search(r'(\d+x\d+x\d+)',mn).group(1)]
        elif mn.startswith('v_'):
            s.kind='valu'
            if mn.startswith('v_cmp'):
                s.w=R(0); s.r=allr(1)
                if mn.startswith('v_cmpx'): s.w+=regs_of('exec')
            elif mn in('v_readfirstlane_b32','v_readlane_b32'):
                s.w=R(0); s.r=allr(1)
            elif mn.startswith('v_permlane') or mn=='v_swap_b32':
                s.w=R(0)+R(1); s.r=R(0)+R(1)
            elif mn in('v_add_co_u32','v_sub_co_u32','v_subrev_co_u32','v_addc_co_u32','v_subb_co_u32','v_mad_u64_u32'):
                s.w=R(0)+R(1); s.r=allr(2)
            elif mn.startswith('v_fmac') or mn.startswith('v_dot2c') or mn.startswith('v_mac') or mn.startswith('v_pk_fmac') or mn=='v_writelane_b32':
                s.w=R(0); s.r=R(0)+allr(1)
            elif mn=='v_cndmask_b32':
                s.w=R(0); s.r=allr(1)
                if len(ops)==3: s.r+=regs_of('vcc')
            else:
                s.w=R(0); s.r=allr(1)
            s.trans = mn in TRANS
            s.dpp = s.mn.endswith('_dpp') or 'row_' in s.mods or 'quad_perm' in s.mods
        elif mn.startswith('ds_'):
            s.kind='ds'
            if mn.startswith('ds_read') or mn.startswith('ds_bpermute') or mn.startswith('ds_permute') or mn.startswith('ds_swizzle') or '_rtn' in mn:
                s.w=R(0); s.r=allr(1)
            else: s.r=allr(0)
        elif mn.startswith('buffer_') or mn.startswith('global_'):
            s.kind='vmem'
            s.lds = ('lds' in s.mods.split()) or ('_lds_' in mn)
            if mn in('buffer_inv','buffer_wbl2'): pass
            elif 'load' in mn and not s.lds:
                s.w=R(0); s.r=allr(1)
                if 'd16' in mn: s.r+=R(0)
            elif 'load' in mn:
                s.r=allr(0)+regs_of('m0')
            elif 'store' in mn:
                s.r=allr(0)
                n={'dwordx4':4,'dwordx3':3}.get(mn.split('_')[-1],0)
                s.widestore = n>0
                s.data = (R(0) if mn.startswith('buffer_') else R(1))
            elif 'atomic' in mn:
                if 'sc0' in s.mods.split() and mn.startswith('global_'): s.w=R(0); s.r=allr(1)
                else: s.r=allr(0)
        elif mn.startswith('s_'):
            s.kind='salu'
            if mn=='s_nop': s.kind='nop'
            elif mn.startswith('s_cmp') or mn.startswith('s_bitcmp') or mn in('s_waitcnt','s_barrier','s_endpgm','s_setprio','s_sleep','s_branch') or mn.startswith('s_cbranch'):
                s.r=allr(0)
            elif mn.startswith('s_load') or mn.startswith('s_buffer_load') or mn in('s_memtime','s_memrealtime'):
                s.kind='smem'; s.w=R(0); s.r=allr(1)
            elif 'saveexec' in mn:
                s.w=R(0)+regs_of('exec'); s.r=allr(1)+regs_of('exec')
            else:
                s.w=R(0); s.r=allr(1)
    def slots(s):
        if s.kind=='nop': return int(s.ops[0],0)+1
        return 1
def isv(r): return r[0] in 'va'
def need(p,c):
    n=0
    pw=set(p.w); cr=set(c.r); cw=set(c.w)
    if p.kind=='valu':
        vw={r for r in pw if isv(r)}; sw={r for r in pw if not isv(r)}
        if c.kind=='mfma' and vw&cr: n=max(n,2)
        if p.base.startswith('v_dot') and (vw&(cr|cw)):
            if c.base!=p.base: n=max(n,3)
            else:
                ab=set()
                for o in c.ops[1:3]: ab|=set(regs_of(o))
                if vw&ab: n=max(n,3)
        if c.kind=='valu':
            if p.trans and not c.trans and vw&cr: n=max(n,1)
            if c.base in('v_readfirstlane_b32','v_readlane_b32') and vw&cr: n=max(n,1)
            if c.base.startswith('v_permlane') and vw&cr: n=max(n,2)
            if c.dpp and vw&cr: n=max(n,2)
            if sw&cr:
                n=max(n,4 if c.base in('v_readlane_b32','v_writelane_b32') else 2)
            if ('s','exec_lo') in sw and c.dpp: n=max(n,5)
        if c.kind=='mfma' and ('s','exec_lo') in sw: n=max(n,4)
        if c.kind=='vmem' and sw&cr: n=max(n,5)
        if c.kind in('salu','smem') and sw&cr: n=max(n,3)
    if p.kind=='mfma':
        P=p.passes
        if c.kind=='mfma':
            if pw&(set(c.A)|set(c.B)): n=max(n,{2:5,4:8,8:12,16:20}[P])
            if pw&set(c.C):
                if p.w==c.C and p.passes==c.passes: n=max(n,2 if P==2 else 0)
                else: n=max(n,{2:4,4:6,8:10,16:18}[P])
            if pw&cw and not (p.w==c.C): n=max(n,{2:4,4:6,8:10,16:18}[P])
        elif c.kind=='valu':
            if pw&(cr|cw): n=max(n,{2:5,4:8,8:12,16:20}[P])
            if set(p.C)&cw: n=max(n,{2:1,4:3,8:7,16:15}[P])
        elif c.kind in('ds','vmem'):
            if pw&(cr|cw): n=max(n,{2:5,4:8,8:12,16:20}[P])
    if p.kind in('salu','smem'):
        if ('s','m0') in pw and c.kind=='vmem' and getattr(c,'lds',False): n=max(n,1)
    if p.kind=='vmem' and getattr(p,'widestore',False):
        d=set(p.data)
        if d&cw: n=max(n,2 if c.kind=='valu' else 1)
    return n
class Asm:
    def __init__(s): s.items=[]; s.skip=0; s.nops=0; s.nreg=0
    def skip_begin(s): s.nreg+=1; s.skip=s.nreg
    def skip_end(s): s.skip=0
    def I(s,text):
        for line in text.strip().split('\n'):
            line=line.strip()
            if not line or line.startswith(';'):
                continue
            if line.endswith(':'): s.items.append(('label',line)); continue
            if line.startswith('.'): s.items.append(('raw',line)); continue
            s.items.append(('ins',Ins(line,s.skip)))
    def C(s,text): s.items.append(('raw','; '+text))
    def L(s,name): s.items.append(('label',name+':'))
    def raw(s,text): s.items.append(('raw',text))
    def fence(s): s.items.append(('fence',None))
    def finalize(s,window=24):
        out=[]; hist=[]
        for kind,it in s.items:
            if kind=='fence': hist=[]; continue
            if kind!='ins': out.append(it if kind=='label' else it); continue
            req=0; dist=0
            for p in reversed(hist[-window:]):
                n=need(p,it)
                if n>dist: req=max(req,n-dist)
                if p.skip==0 or p.skip==it.skip: dist+=p.slots()
                if dist>=20: break
            while req>0:
                k=min(req,16); nop=Ins('s_nop %d'%(k-1),it.skip); hist.append(nop); out.append('  '+nop.text); req-=k; s.nops+=1
            hist.append(it); out.append('  '+it.text)
        return '\n'.join(out)+'\n'
def v(a,n=1): return 'v%d'%a if n==1 else 'v[%d:%d]'%(a,a+n-1)
def sr(a,n=1): return 's%d'%a if n==1 else 's[%d:%d]'%(a,a+n-1)
```

```python
import sys, struct
from asmlib import *
OFF_HP=0; OFF_ZQ=0x700000; OFF_YQ=0x940000; OFF_WT=0xB40000; OFF_WD=0xD80000; OFF_PART=0x1000000
OFF_TS=0x2000000
STAMP=False
EXP=set()
class Stamps:
    def __init__(s): s.n=0
    def mark(s,A,real=False):
        if not STAMP: return
        A.I(f's_{"memrealtime" if real else "memtime"} s[{64+2*s.n}:{65+2*s.n}]'); s.n+=1
    def dump(s,A,swg,swave,wsbase=4,kidx=0):
        if not STAMP: return
        A.I('s_waitcnt lgkmcnt(0) vmcnt(0)')
        A.I(f's_lshl_b32 s60, s{swg}, 3\ns_add_u32 s60, s60, s{swave}\ns_lshl_b32 s60, s60, 7\ns_add_u32 s60, s60, {hex(OFF_TS+kidx*0x40000)}')
        A.I(f's_add_u32 s96, s{wsbase}, s60\ns_addc_u32 s97, s{wsbase+1}, 0')
        A.I('v_mov_b32 v250, 0')
        for i in range(s.n):
            A.I(f'v_mov_b32 v252, s{64+2*i}\nv_mov_b32 v253, s{65+2*i}')
            A.I(f'global_store_dwordx2 v250, v[252:253], s[96:97] offset:{8*i}')
            A.I('s_nop 1')
        s.n=0
ST=Stamps()
def f2u(x): return '0x%08x'%struct.unpack('<I',struct.pack('<f',x))[0]
def srd(A,dst,base,off,size):
    if off:
        A.I(f's_add_u32 s{dst}, s{base}, {hex(off)}'); A.I(f's_addc_u32 s{dst+1}, s{base+1}, 0')
    else:
        A.I(f's_mov_b32 s{dst}, s{base}'); A.I(f's_mov_b32 s{dst+1}, s{base+1}')
    A.I(f's_mov_b32 s{dst+2}, {hex(size)}'); A.I(f's_mov_b32 s{dst+3}, 0x20000')
def kernel_begin(A,name):
    A.fence()
    A.raw(f'.globl {name}\n.p2align 8\n.type {name},@function'); A.L(name)
def kd(name,vgpr,sgpr=96):
    if STAMP: vgpr=256; sgpr=100
    acc=(vgpr+3)//4*4
    return f'''.amdhsa_kernel {name}
  .amdhsa_next_free_vgpr {vgpr}
  .amdhsa_next_free_sgpr {sgpr}
  .amdhsa_accum_offset {acc}
  .amdhsa_group_segment_fixed_size 0
  .amdhsa_kernarg_size 80
  .amdhsa_user_sgpr_count 2
  .amdhsa_user_sgpr_kernarg_segment_ptr 1
  .amdhsa_system_sgpr_workgroup_id_x 1
  .amdhsa_float_denorm_mode_32 3
.end_amdhsa_kernel
'''
def mf16(A,D,a,b,first):
    A.I(f'v_mfma_f32_16x16x32_bf16 {v(D,4)}, {v(a,4)}, {v(b,4)}, {"0" if first else v(D,4)}')
def mf32(A,D,a,b,first=False):
    A.I(f'v_mfma_f32_32x32x16_bf16 {v(D,16)}, {v(a,4)}, {v(b,4)}, {"0" if first else v(D,16)}')

def s2_body(A, sk, pre=''):
    L,l,g,vY,vW,fl,fg4=1,2,3,4,5,6,7
    T=184
    Ya=16; Wv=24; C32R=32; C32I=48; C64R=64; C64I=80; T1c=96; T1s=104; T2c=112; T2s=120
    DR=128; DI=136; F=144; E=152
    A.I(f'''
    v_and_b32 v{L}, 63, v0
    v_lshrrev_b32 v{T}, 6, v0
    v_and_b32 v{l}, 15, v0
    v_readfirstlane_b32 s12, v{T}
    v_bfe_u32 v{g}, v0, 4, 2
    ''')
    srd(A,8,4,OFF_YQ,256*8192)
    srd(A,16,4,OFF_WT,257*8192)
    srd(A,20,4,OFF_ZQ,257*8192)
    A.I(f'''
    s_lshl_b32 s13, s12, 11
    v_lshlrev_b32 v{vY}, 7, v{l}
    v_lshl_add_u32 v{vY}, v{g}, 4, v{vY}
    v_add_u32 v{vY}, s13, v{vY}
    v_lshlrev_b32 v{vW}, 4, v{l}
    v_lshl_add_u32 v{vW}, v{g}, 8, v{vW}
    v_add_u32 v{vW}, s13, v{vW}
    s_and_b32 s14, s{sk}, 255
    s_lshl_b32 s14, s14, 13
    s_lshl_b32 s15, s{sk}, 13
    buffer_load_dwordx4 {v(Ya,4)}, v{vY}, s[8:11], s14 offen
    buffer_load_dwordx4 {v(Ya+4,4)}, v{vY}, s[8:11], s14 offen offset:64
    buffer_load_dwordx4 {v(Wv,4)}, v{vW}, s[16:19], s15 offen
    buffer_load_dwordx4 {v(Wv+4,4)}, v{vW}, s[16:19], s15 offen offset:1024
    s_cmp_eq_u32 s{sk}, 256
    s_cselect_b32 s24, 16, 0
    s_and_b32 s25, s{sk}, 255
    s_cmp_eq_u32 s25, 0
    s_cselect_b32 s25, 0xffff, -1
    v_cvt_f32_u32 v{fl}, v{l}
    v_lshlrev_b32 v{T}, 2, v{g}
    v_cvt_f32_u32 v{fg4}, v{T}
    s_lshl_b32 s13, s12, 4
    v_cvt_f32_u32 v{T+1}, s13
    ''')
    f16w=T+1
    A.I(f'''
    v_mul_f32 v{T+2}, {f2u(1/32)}, v{fl}
    v_add_f32 v{T+3}, 0.5, v{T+2}
    v_add_f32 v{T+4}, v{f16w}, v{fl}
    v_mul_f32 v{T+7}, {f2u(1/2048)}, v{T+4}
    v_mul_f32 v{T+4}, {f2u(1/64)}, v{T+4}
    v_mul_f32 v{T+5}, {f2u(1/2048)}, v{fl}
    v_add_f32 v{T+6}, {f2u(16/2048)}, v{T+5}
    v_add_f32 v{T+8}, v{f16w}, v{fg4}
    ''')
    a_,c_,s_=T+9,T+10,T+11
    def cs_pack(ang,R,I):
        A.I(f'''
        v_cos_f32 v{c_}, v{ang}
        v_sin_f32 v{s_}, v{ang}
        v_cvt_pk_bf16_f32 v{R}, v{c_}, v{s_}
        v_cvt_pk_bf16_f32 v{I}, -v{s_}, v{c_}
        ''')
    fa=T+12
    for t in range(2):
        for q in range(4):
            A.I(f'v_add_f32 v{fa}, {f2u(16*t+q)}, v{fg4}')
            for nt in range(2):
                A.I(f'v_mul_f32 v{a_}, v{fa}, v{T+2+nt}')
                cs_pack(a_, C32R+(t*2+nt)*4+q, C32I+(t*2+nt)*4+q)
    for tp in range(4):
        for q in range(4):
            A.I(f'v_add_f32 v{fa}, {f2u(16*tp+q)}, v{fg4}')
            A.I(f'v_mul_f32 v{a_}, v{fa}, v{T+4}')
            cs_pack(a_, C64R+tp*4+q, C64I+tp*4+q)
    for r in range(4):
        A.I(f'v_add_f32 v{fa}, {f2u(r)}, v{T+8}')
        for nt in range(2):
            A.I(f'''v_mul_f32 v{a_}, v{fa}, v{T+5+nt}
            v_cos_f32 v{T1c+nt*4+r}, v{a_}
            v_sin_f32 v{T1s+nt*4+r}, v{a_}''')
    for it in range(2):
        for r in range(4):
            A.I(f'''v_add_f32 v{fa}, {f2u(16*it+r)}, v{fg4}
            v_mul_f32 v{a_}, v{fa}, v{T+7}
            v_cos_f32 v{T2c+it*4+r}, v{a_}
            v_sin_f32 v{T2s+it*4+r}, v{a_}''')
    vLw,vLr=T+13,T+14
    A.I(f'''
    v_lshlrev_b32 v{vLr}, 4, v{L}
    s_lshl_b32 s13, s12, 11
    v_add_u32 v{vLw}, s13, v{vLr}
    s_waitcnt vmcnt(2)
    ''')
    for i in range(8):
        A.I(f'v_lshrrev_b32 v{Ya+i}, s24, v{Ya+i}')
    for i in range(8):
        A.I(f'v_and_b32 v{Ya+i}, s25, v{Ya+i}')
    for nt in range(2):
        for t in range(2): mf16(A,DR+nt*4,Ya+t*4,C32R+(t*2+nt)*4,t==0)
        for t in range(2): mf16(A,DI+nt*4,Ya+t*4,C32I+(t*2+nt)*4,t==0)
    t0,t1=T+15,T+16
    def cmul_pack(dst,xr,xi,c,s,sign):
        A.I(f'v_mul_f32 v{t0}, v{xr}, v{c}')
        A.I(f'v_mul_f32 v{t1}, v{xi}, v{c}')
        if sign<0:
            A.I(f'v_fma_f32 v{t0}, v{xi}, v{s}, v{t0}'); A.I(f'v_fma_f32 v{t1}, -v{xr}, v{s}, v{t1}')
        else:
            A.I(f'v_fma_f32 v{t0}, -v{xi}, v{s}, v{t0}'); A.I(f'v_fma_f32 v{t1}, v{xr}, v{s}, v{t1}')
        A.I(f'v_cvt_pk_bf16_f32 v{dst}, v{t0}, v{t1}')
    def exchange(base):
        for nt in range(2): A.I(f'ds_write_b128 v{vLw}, {v(F+nt*4,4)} offset:{base+nt*1024}')
        A.I('s_waitcnt lgkmcnt(0)\ns_barrier')
        for tp in range(4):
            for nt in range(2): A.I(f'ds_read_b128 {v(E+(tp*2+nt)*4,4)}, v{vLr} offset:{base+(tp*2+nt)*1024}')
    for nt in range(2):
        for r in range(4): cmul_pack(F+nt*4+r,DR+nt*4+r,DI+nt*4+r,T1c+nt*4+r,T1s+nt*4+r,-1)
    exchange(0)
    for tp in range(4):
        A.I(f's_waitcnt lgkmcnt({6-2*tp})')
        for nt in range(2):
            mf16(A,DR+nt*4,C64R+tp*4,E+(tp*2+nt)*4,tp==0)
            mf16(A,DI+nt*4,C64I+tp*4,E+(tp*2+nt)*4,tp==0)
    A.I('s_mov_b32 s26, 0x80000000\ns_mov_b32 s27, 0x8000')
    A.I('s_waitcnt vmcnt(0)')
    wr,wi=T+17,T+18
    for i in range(16):
        A.I(f'v_xor_b32 v{C32R+i}, s26, v{C32R+i}'); A.I(f'v_xor_b32 v{C32I+i}, s27, v{C32I+i}')
    for nt in range(2):
        for r in range(4):
            A.I(f'v_lshlrev_b32 v{wr}, 16, v{Wv+nt*4+r}')
            A.I(f'v_and_b32 v{wi}, 0xffff0000, v{Wv+nt*4+r}')
            cmul_pack(F+nt*4+r,DR+nt*4+r,DI+nt*4+r,wr,wi,+1)
    for i in range(16):
        A.I(f'v_xor_b32 v{C64R+i}, s26, v{C64R+i}'); A.I(f'v_xor_b32 v{C64I+i}, s27, v{C64I+i}')
    exchange(8192)
    for tp in range(4):
        A.I(f's_waitcnt lgkmcnt({6-2*tp})')
        for it in range(2):
            mf16(A,DR+it*4,E+(tp*2+it)*4,C64R+tp*4,tp==0)
            mf16(A,DI+it*4,E+(tp*2+it)*4,C64I+tp*4,tp==0)
    for it in range(2):
        for r in range(4): cmul_pack(F+it*4+r,DR+it*4+r,DI+it*4+r,T2c+it*4+r,T2s+it*4+r,+1)
    for nt in range(2):
        for t in range(2): mf16(A,DR+nt*4,C32R+(t*2+nt)*4,F+t*4,t==0)
        for t in range(2): mf16(A,DI+nt*4,C32I+(t*2+nt)*4,F+t*4,t==0)
    for nt in range(2):
        for r in range(4): A.I(f'v_cvt_pk_bf16_f32 v{E+nt*4+r}, v{DR+nt*4+r}, v{DI+nt*4+r}')
        A.I(f'buffer_store_dwordx4 {v(E+nt*4,4)}, v{vY}, s[20:23], s15 offen offset:{64*nt}')

def test_s2():
    A=Asm()
    A.raw('; @launch kernel=s2_kernel grid=(257,1,1) block=(256,1,1) lds=16384')
    A.raw('.amdgcn_target "amdgcn-amd-amdhsa--gfx950"\n.text')
    kernel_begin(A,'s2_kernel')
    A.I('s_cmp_ge_u32 s2, 257\ns_cbranch_scc1 s2_done')
    A.I('s_load_dwordx2 s[4:5], s[0:1], 72\ns_waitcnt lgkmcnt(0)')
    s2_body(A,2)
    A.L('s2_done'); A.I('s_endpgm')
    txt=A.finalize()
    txt+='.section .rodata,"a"\n.p2align 6\n'+kd('s2_kernel',204)
    return txt

def p3_body(A, sid, NS=8, nh=28, nz=9):
    L,half,l32=1,2,3
    vA,vB=4,5
    vZ=6
    vX=10; vLw=11; vLr=12
    XR=16
    ACC=32
    RING=96
    T=24
    A.I(f'''
    v_and_b32 v{L}, 63, v0
    v_lshrrev_b32 v{T}, 6, v0
    v_and_b32 v{l32}, 31, v0
    v_readfirstlane_b32 s12, v{T}
    v_bfe_u32 v{half}, v0, 5, 1
    s_and_b32 s13, s{sid}, 7
    s_lshr_b32 s14, s{sid}, 3
    s_and_b32 s15, s13, 3
    s_lshl_b32 s15, s15, 3
    s_and_b32 s30, s14, 7
    s_add_u32 s15, s15, s30          ; sb
    s_lshr_b32 s13, s13, 2
    s_lshl_b32 s13, s13, 2
    s_lshr_b32 s14, s14, 3
    s_add_u32 s13, s13, s14          ; db
    ''')
    srd(A,8,4,OFF_WD,290*8192)
    srd(A,16,4,OFF_HP,224*32768)
    srd(A,20,4,OFF_ZQ,257*8192)
    srd(A,24,6,0,2048*512*2)
    srd(A,32,28,0,2048*512*2)
    A.I(f'''
    s_and_b32 s36, s12, 1            ; w&1
    s_lshr_b32 s37, s12, 1           ; w>>1
    s_lshl_b32 s30, s13, 10
    v_lshlrev_b32 v{vA}, 13, v{half}
    v_lshl_add_u32 v{vA}, v{l32}, 4, v{vA}
    v_add_u32 v{vA}, s30, v{vA}
    s_lshl_b32 s30, s15, 10
    v_lshlrev_b32 v{vB}, 15, v{half}
    v_lshl_add_u32 v{vB}, v{l32}, 4, v{vB}
    v_add_u32 v{vB}, s30, v{vB}
    s_lshl_b32 s30, s15, 8
    v_lshlrev_b32 v{vZ}, 15, v{half}
    v_lshl_add_u32 v{vZ}, v{l32}, 2, v{vZ}
    v_add_u32 v{vZ}, s30, v{vZ}
    v_add_u32 v{vZ+1}, 0x2000, v{vZ}
    v_add_u32 v{vZ+2}, 0x4000, v{vZ}
    v_add_u32 v{vZ+3}, 0x6000, v{vZ}
    ; soffsets
    s_mul_i32 s40, s12, {nh*16384}
    s_lshl_b32 s30, s36, 9
    s_add_u32 s41, s40, 512
    s_sub_u32 s41, s41, s30
    s_add_u32 s40, s40, s30
    s_mul_i32 s42, s12, {nh*65536}
    s_lshl_b32 s30, s37, 9
    s_add_u32 s43, s42, 512
    s_sub_u32 s43, s43, s30
    s_add_u32 s42, s42, s30
    s_mul_i32 s44, s12, {nz*16384}
    s_add_u32 s44, s44, {112*16384}
    s_lshl_b32 s30, s36, 9
    s_add_u32 s45, s44, 512
    s_sub_u32 s45, s45, s30
    s_add_u32 s44, s44, s30
    s_mul_i32 s46, s12, {nz*65536}
    s_lshl_b32 s30, s37, 7
    s_add_u32 s47, s46, 128
    s_sub_u32 s47, s47, s30
    s_add_u32 s46, s46, s30
    s_lshl_b32 s30, s15, 1
    s_add_u32 s30, s30, s37
    s_lshl_b32 s30, s30, 10
    s_lshl_b32 s31, s13, 7
    s_add_u32 s30, s30, s31
    s_lshl_b32 s31, s36, 6
    s_add_u32 s30, s30, s31
    v_lshlrev_b32 v{vX}, 16, v{l32}
    v_lshl_add_u32 v{vX}, v{half}, 3, v{vX}
    v_add_u32 v{vX}, s30, v{vX}
    ''')
    q=[]
    ST.mark(A)
    for i in range(4):
        A.I(f'buffer_load_dwordx2 {v(XR+2*i,2)}, v{vX}, s[24:27], 0 offen offset:{16*i}'); q.append(-1)
    n=nh+nz
    def issue(i):
        sl=RING+(i%NS)*16
        if i<nh:
            A.I(f'buffer_load_dwordx4 {v(sl,4)}, v{vA}, s[8:11], s40 offen')
            A.I(f'buffer_load_dwordx4 {v(sl+8,4)}, v{vB}, s[16:19], s42 offen')
            A.I(f'buffer_load_dwordx4 {v(sl+4,4)}, v{vA}, s[8:11], s41 offen')
            A.I(f'buffer_load_dwordx4 {v(sl+12,4)}, v{vB}, s[16:19], s43 offen')
            q.extend([i]*4)
            A.I('s_add_u32 s40, s40, 16384\ns_add_u32 s41, s41, 16384\ns_add_u32 s42, s42, 65536\ns_add_u32 s43, s43, 65536')
        else:
            A.I(f'buffer_load_dwordx4 {v(sl,4)}, v{vA}, s[8:11], s44 offen')
            for k in range(4): A.I(f'buffer_load_dword v{sl+8+k}, v{vZ+k}, s[20:23], s46 offen')
            A.I(f'buffer_load_dwordx4 {v(sl+4,4)}, v{vA}, s[8:11], s45 offen')
            for k in range(4): A.I(f'buffer_load_dword v{sl+12+k}, v{vZ+k}, s[20:23], s47 offen')
            q.extend([i]*10)
            A.I('s_add_u32 s44, s44, 16384\ns_add_u32 s45, s45, 16384\ns_add_u32 s46, s46, 65536\ns_add_u32 s47, s47, 65536')
    D=NS-1
    nxt=0
    def can_issue(i):
        cnt=4 if i<nh else 10
        return len(q)+cnt<=62
    for i in range(n):
        while nxt<n and nxt<=i+D and can_issue(nxt):
            issue(nxt); nxt+=1
        assert nxt>i
        last=max(k for k,x in enumerate(q) if x==i)
        N=len(q)-1-last
        A.I(f's_waitcnt vmcnt({N})')
        del q[:last+1]
        if i in (0,8,16,27): ST.mark(A)
        sl=RING+(i%NS)*16
        for br in range(2):
            for ar in range(2):
                mf32(A,ACC+(ar+2*br)*16,sl+ar*4,sl+8+br*4,i==0)
    ST.mark(A)
    A.I(f'''
    v_lshlrev_b32 v{vLr}, 4, v{L}
    s_mul_i32 s30, s12, 12288
    v_add_u32 v{vLr}, s30, v{vLr}
    ''')
    for j in range(1,4):
        A.I(f'''s_xor_b32 s30, s12, {j}
        s_mul_i32 s30, s30, 12288
        s_add_u32 s30, s30, {(j-1)*4096}
        v_lshlrev_b32 v{vLw}, 4, v{L}
        v_add_u32 v{vLw}, s30, v{vLw}''')
        for c in range(4): A.I(f'ds_write_b128 v{vLw}, {v(ACC+j*16+c*4,4)} offset:{c*1024}')
    A.I('s_waitcnt lgkmcnt(0)\ns_barrier')
    for j in range(3):
        for c in range(4): A.I(f'ds_read_b128 {v(RING+j*16+c*4,4)}, v{vLr} offset:{j*4096+c*1024}')
    for j in range(3):
        A.I(f's_waitcnt lgkmcnt({8-4*j})')
        for i in range(16): A.I(f'v_add_f32 v{ACC+i}, v{ACC+i}, v{RING+j*16+i}')
    for qq in range(4):
        x0,x1=XR+2*qq,XR+2*qq+1
        A.I(f'''v_lshlrev_b32 v{T}, 16, v{x0}
        v_and_b32 v{T+1}, 0xffff0000, v{x0}
        v_lshlrev_b32 v{T+2}, 16, v{x1}
        v_and_b32 v{T+3}, 0xffff0000, v{x1}''')
        for r in range(4): A.I(f'v_add_f32 v{ACC+4*qq+r}, v{ACC+4*qq+r}, v{T+r}')
        A.I(f'v_cvt_pk_bf16_f32 v{x0}, v{ACC+4*qq}, v{ACC+4*qq+1}')
        A.I(f'v_cvt_pk_bf16_f32 v{x1}, v{ACC+4*qq+2}, v{ACC+4*qq+3}')
        A.I(f'buffer_store_dwordx2 {v(x0,2)}, v{vX}, s[32:35], 0 offen offset:{16*qq}')
    ST.mark(A)
    return RING+NS*16

def test_p3():
    A=Asm()
    A.raw('; @launch kernel=p3_kernel grid=(256,1,1) block=(256,1,1) lds=49152')
    A.raw('.amdgcn_target "amdgcn-amd-amdhsa--gfx950"\n.text')
    kernel_begin(A,'p3_kernel')
    A.I('s_cmp_ge_u32 s2, 256\ns_cbranch_scc1 p3_done')
    A.I('s_load_dwordx2 s[4:5], s[0:1], 72\ns_load_dwordx2 s[6:7], s[0:1], 0\ns_load_dwordx2 s[28:29], s[0:1], 56\ns_waitcnt lgkmcnt(0)')
    ST.mark(A,True); ST.mark(A)
    nv=p3_body(A,2)
    if STAMP: A.I('s_waitcnt vmcnt(0)')
    ST.mark(A); ST.mark(A,True)
    ST.dump(A,2,12)
    A.L('p3_done'); A.I('s_endpgm')
    txt=A.finalize()
    txt+='.section .rodata,"a"\n.p2align 6\n'+kd('p3_kernel',nv)
    return txt


import math
SLOT=49152; XS=0; GS=16384; US=32768; STAT=3*SLOT
def p1_body(A, sid):
    L,half,l32=1,2,3
    vX0,vX1,vW=4,5,6
    vAr=8
    vBr=14
    vFw=38
    fd=41; fk=42; ph=46
    cs=50; rsum=51; rsq=52
    ones=53
    vHo=54; vYo=55; vWTs=56; vWTd=57
    WTr=60
    T=76
    FR=100
    ACC=132
    A.I(f'''
    v_and_b32 v{L}, 63, v0
    v_lshrrev_b32 v{T}, 6, v0
    v_and_b32 v{l32}, 31, v0
    v_readfirstlane_b32 s32, v{T}        ; w
    v_bfe_u32 v{half}, v0, 5, 1
    s_and_b32 s33, s{sid}, 7
    s_lshr_b32 s34, s{sid}, 3
    s_and_b32 s35, s33, 1
    s_lshl_b32 s35, s35, 3
    s_and_b32 s36, s34, 7
    s_add_u32 s35, s35, s36              ; rb
    s_lshr_b32 s33, s33, 1
    s_lshl_b32 s33, s33, 2
    s_lshr_b32 s34, s34, 3
    s_add_u32 s34, s33, s34              ; cb
    s_and_b32 s36, s32, 3                ; fq
    s_lshr_b32 s37, s32, 2               ; sh
    s_lshl_b32 s38, s32, 11              ; w*2048
    ''')
    srd(A,8,6,0,2048*512*2)
    srd(A,12,28,0,512*1792*2)
    srd(A,16,30,0,512*1792*2)
    A.I(f'''
    s_and_b32 s33, s32, 1
    s_lshl_b32 s33, s33, 4               ; 16(w%2)
    v_lshrrev_b32 v{T}, 3, v{L}
    v_add_u32 v{T}, s33, v{T}            ; a (i=0)
    v_lshlrev_b32 v{T}, 16, v{T}         ; a*64*1024
    s_lshl_b32 s33, s35, 2
    s_lshr_b32 s39, s32, 1
    s_add_u32 s33, s33, s39              ; 4rb+t'
    s_lshl_b32 s33, s33, 10
    v_add_u32 v{T}, s33, v{T}
    v_and_b32 v{T+1}, 7, v{L}
    v_lshrrev_b32 v{T+2}, 4, v{L}
    v_xor_b32 v{T+1}, v{T+1}, v{T+2}     ; c (i=0)
    v_lshl_add_u32 v{vX0}, v{T+1}, 4, v{T}
    v_xor_b32 v{T+1}, 4, v{T+1}
    v_lshl_add_u32 v{vX1}, v{T+1}, 4, v{T}
    v_add_u32 v{vX1}, 0x80000, v{vX1}
    ; ---- W DMA offset: (8w + L/16)*3584 + cb*224 + c*16 ; c = (L%16) ^ ((L/16)<<2)
    v_lshrrev_b32 v{T}, 4, v{L}
    s_lshl_b32 s33, s32, 3
    v_add_u32 v{T+1}, s33, v{T}
    s_movk_i32 s39, 3584
    v_mul_lo_u32 v{T+1}, v{T+1}, s39
    v_and_b32 v{T+2}, 15, v{L}
    v_lshlrev_b32 v{T}, 2, v{T}
    v_xor_b32 v{T+2}, v{T+2}, v{T}
    v_lshl_add_u32 v{vW}, v{T+2}, 4, v{T+1}
    s_mul_i32 s33, s34, 224
    v_add_u32 v{vW}, s33, v{vW}
    ''')
    mask=0
    for Ln in range(64):
        c=(Ln%16)^((Ln//16)<<2)
        if c<14: mask|=1<<Ln
    A.I(f's_mov_b32 s50, {hex(mask&0xffffffff)}\ns_mov_b32 s51, {hex(mask>>32)}')
    def dma_x(stage,i):
        slot=stage%3
        if 'nodma' in EXP and stage>2: return
        A.I(f's_add_u32 m0, s38, {slot*SLOT+XS+i*1024}')
        A.I(f's_movk_i32 s60, {stage*128}')
        A.I(f'buffer_load_dwordx4 v{vX0+i}, s[8:11], s60 offen lds')
    def dma_w(stage,i,m):
        slot=stage%3
        if 'nodma' in EXP and stage>2: return
        A.I(f's_add_u32 m0, s38, {slot*SLOT+(US if m else GS)+i*1024}')
        A.I(f's_mov_b32 s60, {stage*64*3584+i*14336}')
        A.I('s_mov_b64 exec, s[50:51]')
        A.I(f'buffer_load_dwordx4 v{vW}, s[{12+4*m}:{15+4*m}], s60 offen lds')
        A.I('s_mov_b64 exec, -1')
    def dma(stage):
        for i in range(2): dma_x(stage,i)
        for i in range(2):
            for m in range(2): dma_w(stage,i,m)
    ST.mark(A)
    dma(0); dma(1); dma(2)
    ST.mark(A)
    srd(A,20,4,OFF_HP,224*32768)
    srd(A,24,4,OFF_YQ,256*8192)
    srd(A,40,52,0,2048*257*2)
    srd(A,44,54,0,2048*257*2)
    srd(A,56,4,OFF_WT,257*8192)
    A.I(f'''
    s_lshr_b32 s33, s{sid}, 4            ; m4
    s_and_b32 s39, s{sid}, 15            ; jp
    s_lshl_b32 s61, s33, 7
    s_lshl_b32 s62, s39, 1
    s_add_u32 s61, s61, s62              ; 2jp + 128 m4
    v_and_b32 v{T}, 1, v0
    v_add_u32 v{T}, s61, v{T}            ; j(r=0)
    s_movk_i32 s62, 257
    v_mul_lo_u32 v{T}, v{T}, s62
    v_lshrrev_b32 v{T+1}, 1, v0          ; k
    v_add_u32 v{T+2}, v{T}, v{T+1}
    v_lshlrev_b32 v{vWTs}, 1, v{T+2}
    v_add_u32 v{T}, 256, v{T}
    v_lshlrev_b32 v{T+3}, 1, v{T}
    s_lshr_b32 s62, s33, 2
    s_lshl_b32 s62, s62, 1
    s_lshr_b32 s63, s39, 3               ; nt
    s_add_u32 s62, s62, s63
    s_lshl_b32 s62, s62, 2
    s_and_b32 s63, s33, 3
    s_add_u32 s62, s62, s63
    s_lshl_b32 s62, s62, 4
    s_and_b32 s63, s39, 7
    s_lshl_b32 s63, s63, 1
    s_add_u32 s62, s62, s63
    s_lshl_b32 s62, s62, 4
    v_and_b32 v{T}, 1, v0
    v_lshlrev_b32 v{T}, 4, v{T}
    v_add_u32 v{T}, s62, v{T}
    v_lshl_add_u32 v{vWTd}, v{T+1}, 13, v{T}
    v_add_u32 v{vWTd+1}, 0x200000, v{T}
    ''')
    for r in range(4):
        A.I(f's_mov_b32 s60, {r*16448}')
        A.I(f'buffer_load_short_d16 v{WTr+r}, v{vWTs}, s[40:43], s60 offen')
        A.I(f'buffer_load_short_d16_hi v{WTr+8+r}, v{vWTs}, s[44:47], s60 offen')
    A.I(f'v_cmp_gt_u32 vcc, 2, v0\ns_and_saveexec_b64 s[62:63], vcc\ns_cbranch_execz p1_wt0')
    A.skip_begin()
    for r in range(4):
        A.I(f's_mov_b32 s60, {r*16448}')
        A.I(f'buffer_load_short_d16 v{WTr+4+r}, v{T+3}, s[40:43], s60 offen')
        A.I(f'buffer_load_short_d16_hi v{WTr+12+r}, v{T+3}, s[44:47], s60 offen')
    A.skip_end()
    A.L('p1_wt0'); A.I('s_mov_b64 exec, s[62:63]')
    A.I(f'''
    v_lshrrev_b32 v{T}, 5, v{L}          ; G/2
    v_lshlrev_b32 v{T}, 3, v{T}
    v_bfe_u32 v{T+1}, v{L}, 2, 2         ; r4
    v_add_u32 v{T}, v{T}, v{T+1}
    v_lshlrev_b32 v{T}, 8, v{T}          ; row*256
    v_bfe_u32 v{T+2}, v{L}, 4, 1         ; G%2
    v_lshlrev_b32 v{T+2}, 1, v{T+2}
    v_bfe_u32 v{T+3}, v{L}, 1, 1         ; c4/2
    v_add_u32 v{T+2}, v{T+2}, v{T+3}
    s_lshl_b32 s33, s36, 2
    v_add_u32 v{T+2}, s33, v{T+2}        ; chunk c
    v_lshlrev_b32 v{T+1}, 2, v{T+1}
    v_xor_b32 v{T+2}, v{T+2}, v{T+1}
    v_lshl_add_u32 v{T}, v{T+2}, 4, v{T}
    v_and_b32 v{T+3}, 1, v{L}
    v_lshl_add_u32 v{T}, v{T+3}, 3, v{T}
    s_lshl_b32 s33, s37, 14
    s_add_u32 s39, s33, {GS}
    s_sub_u32 s33, {US}, s33
    v_add_u32 v{vAr}, s39, v{T}
    v_add_u32 v{vAr+1}, s33, v{T}
    v_add_u32 v{vAr+2}, {SLOT}, v{vAr}
    v_add_u32 v{vAr+3}, {SLOT}, v{vAr+1}
    v_add_u32 v{vAr+4}, {2*SLOT}, v{vAr}
    v_add_u32 v{vAr+5}, {2*SLOT}, v{vAr+1}
    s_lshl_b32 s33, s37, 6
    v_add_u32 v{T}, s33, v{l32}
    v_lshlrev_b32 v{T}, 7, v{T}
    v_bfe_u32 v{T+1}, v{l32}, 1, 3
    v_xor_b32 v{T+1}, v{T+1}, v{half}
    v_lshl_add_u32 v{T}, v{T+1}, 4, v{T}
    s_and_b32 s48, s36, 1                ; fq&1
    s_lshl_b32 s33, s48, 12
    v_add_u32 v{vBr}, s33, v{T}
    ''')
    def br(slot,ks,b): return vBr+(slot*4+ks)*2+b
    A.I(f'v_xor_b32 v{br(0,0,1)}, 4096, v{br(0,0,0)}')
    for ks in range(1,4):
        for b_ in range(2): A.I(f'v_xor_b32 v{br(0,ks,b_)}, {ks*32}, v{br(0,0,b_)}')
    for sl in range(1,3):
        for ks in range(4):
            for b_ in range(2): A.I(f'v_add_u32 v{br(sl,ks,b_)}, {sl*SLOT}, v{br(0,ks,b_)}')
    A.I(f'''
    v_lshrrev_b32 v{T}, 2, v{L}
    s_lshl_b32 s33, s36, 4
    v_add_u32 v{T}, s33, v{T}            ; krow
    v_cvt_f32_u32 v{fd}, v{T}
    v_and_b32 v{T+1}, 3, v{L}            ; qq
    v_lshrrev_b32 v{T+2}, 1, v{T+1}
    v_add_u32 v{T+2}, 14, v{T+2}         ; chunk
    v_and_b32 v{T+3}, 3, v{T}
    v_lshlrev_b32 v{T+3}, 2, v{T+3}
    v_xor_b32 v{T+2}, v{T+2}, v{T+3}
    v_lshlrev_b32 v{T+2}, 4, v{T+2}
    v_lshl_add_u32 v{T+2}, v{T}, 8, v{T+2}
    v_and_b32 v{T+3}, 1, v{T+1}
    v_lshl_add_u32 v{T+2}, v{T+3}, 3, v{T+2}
    s_lshl_b32 s33, s37, 14
    s_add_u32 s33, s33, {GS}
    v_add_u32 v{vFw}, s33, v{T+2}
    v_add_u32 v{vFw+1}, {SLOT}, v{vFw}
    v_add_u32 v{vFw+2}, {2*SLOT}, v{vFw}
    s_lshl_b32 s33, s34, 4
    v_lshlrev_b32 v{T+1}, 2, v{T+1}
    v_add_u32 v{T+1}, s33, v{T+1}        ; k0
    v_cvt_f32_u32 v{T+4}, v{T+1}
    v_mul_f32 v{fk}, {f2u(1/512)}, v{T+4}
    v_add_f32 v{fk+1}, {f2u(1/512)}, v{fk}
    v_add_f32 v{fk+2}, {f2u(2/512)}, v{fk}
    v_add_f32 v{fk+3}, {f2u(3/512)}, v{fk}
    s_cmp_eq_u32 s37, 1
    s_cselect_b32 s33, {f2u(0.25)}, 0
    v_mov_b32 v{ph}, s33
    v_mov_b32 v{ph+1}, s33
    v_mov_b32 v{ph+2}, s33
    v_mov_b32 v{ph+3}, s33
    s_cselect_b32 s33, 0, -1
    v_or_b32 v{T+4}, s33, v{T+1}
    v_cmp_eq_u32 vcc, 0, v{T+4}
    v_cndmask_b32 v{fk}, v{fk}, 0.5, vcc
    v_cndmask_b32 v{ph}, v{ph}, 0, vcc
    v_mov_b32 v{ones}, 0x3f803f80
    v_mov_b32 v{cs}, 0
    v_mov_b32 v{rsum}, 0
    v_mov_b32 v{rsq}, 0
    ''')
    def fgen_parts(stage):
        slot=stage%3
        P=[]
        def p0():
            for e in range(4): A.I(f'v_fma_f32 v{T+8+e}, v{fd}, v{fk+e}, v{ph+e}')
            A.I(f'v_add_f32 v{fd}, {f2u(64.0)}, v{fd}')
        def p1():
            for e in range(2): A.I(f'v_cos_f32 v{T+8+e}, v{T+8+e}')
        def p2():
            for e in range(2,4): A.I(f'v_cos_f32 v{T+8+e}, v{T+8+e}')
            A.I(f'v_cvt_pk_bf16_f32 v{T+12}, v{T+8}, v{T+9}')
        def p3():
            A.I(f'v_cvt_pk_bf16_f32 v{T+13}, v{T+10}, v{T+11}')
            A.I(f'ds_write_b64 v{vFw+slot}, {v(T+12,2)}'); lq.append('w')
        return [p0,p1,p2,p3]
    lq=[]
    for st_ in range(3):
        for p in fgen_parts(st_): p()
    def reads(stage,ks,fs):
        slot=stage%3; f=FR+fs*16
        if 'noreads' in EXP: return
        for a_ in range(2):
            for rd in range(2):
                A.I(f'ds_read_b64_tr_b16 {v(f+a_*4+rd*2,2)}, v{vAr+slot*2+a_} offset:{ks*4096+rd*1024}'); lq.append((stage,ks))
        for b_ in range(2):
            A.I(f'ds_read_b128 {v(f+8+b_*4,4)}, v{br(slot,ks,b_)} offset:{XS}'); lq.append((stage,ks))
    def wait_frags(stage,ks):
        idx=[k for k,x in enumerate(lq) if x==(stage,ks)]
        if not idx: return
        n=len(lq)-1-max(idx)
        A.I(f's_waitcnt lgkmcnt({n})'); del lq[:max(idx)+1]
    def compute(fs,first,extra):
        f=FR+fs*16
        d=[]
        if 'nostats' not in EXP:
            for i in range(4):
                d.append(f'v_dot2c_f32_bf16 v{cs}, v{f+i}, v{ones}')
                d.append(f'v_dot2c_f32_bf16 v{rsum}, v{f+8+i}, v{ones}')
                d.append(f'v_dot2c_f32_bf16 v{rsq}, v{f+8+i}, v{f+8+i}')
        k=0
        for a_ in range(2):
            for b_ in range(2):
                if 'nomfma' not in EXP: mf32(A,ACC+(a_*2+b_)*16,f+a_*4,f+8+b_*4,first)
                for x in d[3*k:3*k+3]: A.I(x)
                for fn in extra[k]: fn()
                k+=1
    NST=8
    E0=[[],[],[],[]]
    for i in range(NST):
        N={0:12+0}.get(i, 6 if i<NST-1 else 0)
        if i==0: N=12+8
        if 'nodma' in EXP: N=0
        A.I(f's_waitcnt vmcnt({N}) lgkmcnt(0)'); lq.clear()
        A.I('s_barrier')
        if i in (0,1,4,7): ST.mark(A)
        reads(i,0,0)
        nd = (i>=1 and i+2<NST)
        if i>0:
            ex=[[lambda: dma_x(i+2,0)],[],[lambda: dma_x(i+2,1)],[]] if nd else E0
            compute(1,False,ex)
        reads(i,1,1); wait_frags(i,0)
        ex=[[lambda: dma_w(i+2,0,0)],[],[lambda: dma_w(i+2,0,1)],[]] if nd else E0
        compute(0,i==0,ex)
        reads(i,2,0); wait_frags(i,1)
        ex=[[lambda: dma_w(i+2,1,0)],[],[lambda: dma_w(i+2,1,1)],[]] if nd else E0
        compute(1,False,ex)
        reads(i,3,1); wait_frags(i,2)
        ex=[[p] for p in fgen_parts(i+2)] if nd else E0
        compute(0,False,ex)
    A.I('s_waitcnt lgkmcnt(0)'); lq.clear()
    compute(1,False,E0)
    ST.mark(A)
    for x in (cs,rsum,rsq):
        A.I(f'v_mov_b32 v{T}, v{x}')
        A.I(f'v_permlane32_swap_b32 v{x}, v{T}')
        A.I(f'v_add_f32 v{x}, v{x}, v{T}')
    A.I(f'''
    s_lshl_b32 s33, s37, 1
    s_add_u32 s33, s33, s48
    s_lshl_b32 s33, s33, 7
    v_lshl_add_u32 v{T}, v{l32}, 2, s33
    v_add_u32 v{T}, {STAT}, v{T}
    ds_write_b32 v{T}, v{rsum}
    ds_write_b32 v{T}, v{rsq} offset:512
    s_lshl_b32 s33, s37, 9
    s_lshl_b32 s39, s36, 7
    s_add_u32 s33, s33, s39
    v_lshl_add_u32 v{T+1}, v{l32}, 2, s33
    v_add_u32 v{T+1}, {STAT+1024}, v{T+1}
    ds_write_b32 v{T+1}, v{cs}
    ''')
    A.I('s_cmp_eq_u32 s37, 0\ns_cbranch_scc1 p1_nosw')
    A.skip_begin()
    for i in range(32): A.I(f'v_swap_b32 v{ACC+i}, v{ACC+32+i}')
    A.skip_end(); A.L('p1_nosw')
    A.I(f'''
    s_waitcnt lgkmcnt(0)
    s_barrier
    v_xor_b32 v{T+1}, 128, v{T}
    ds_read_b32 v{T+20}, v{T}
    ds_read_b32 v{T+21}, v{T+1}
    ds_read_b32 v{T+22}, v{T} offset:512
    ds_read_b32 v{T+23}, v{T+1} offset:512
    v_lshlrev_b32 v{T+2}, 4, v{half}
    v_add_u32 v{T+2}, s39, v{T+2}
    v_add_u32 v{T+2}, {STAT+1024}, v{T+2}
    ''')
    ST.mark(A)
    CS=FR
    for m in range(2):
        for q in range(4):
            A.I(f'ds_read_b128 {v(CS+m*16+q*4,4)}, v{T+2} offset:{m*512+q*32}')
    A.I(f'''
    s_lshl_b32 s33, s35, 7
    s_lshl_b32 s39, s37, 6
    s_add_u32 s33, s33, s39
    s_lshl_b32 s39, s48, 5
    s_add_u32 s33, s33, s39
    v_add_u32 v{T+3}, s33, v{l32}        ; s' (breg0)
    v_lshlrev_b32 v{vHo}, 4, v{T+3}
    v_lshl_add_u32 v{vHo}, v{half}, 3, v{vHo}
    v_xor_b32 v{vHo+1}, 512, v{vHo}
    v_lshlrev_b32 v{vWTs}, 2, v{T+3}
    v_lshl_add_u32 v{vWTs}, v{half}, 15, v{vWTs}
    v_xor_b32 v{vX0}, 128, v{vWTs}
    s_waitcnt lgkmcnt(8)
    ''')
    vY=[vWTs,vX0]
    vH=[vHo,vHo+1]
    mm=T+4; c1p=T+6; c2p=T+14; sd2=T+16; rr=T+18
    c1=-2*0.7978845608028654*math.log2(math.e); c2=c1*0.044715
    for st in range(2):
        A.I(f'''
        v_mul_f32 v{T+8}, {f2u(1/512)}, v{T+20+st}       ; mean
        v_mul_f32 v{T+9}, {f2u(1/512)}, v{T+22+st}
        v_fma_f32 v{T+9}, -v{T+8}, v{T+8}, v{T+9}        ; var
        v_max_f32 v{T+9}, 0, v{T+9}
        v_cvt_pk_bf16_f32 v{T+8}, v{T+8}, v{T+9}
        v_and_b32 v{T+9}, 0xffff0000, v{T+8}             ; bf(var)
        v_lshlrev_b32 v{T+8}, 16, v{T+8}               ; bf(mean)
        v_sub_f32 v{mm+st}, 0, v{T+8}                    ; -m
        v_add_f32 v{T+9}, {f2u(1e-5)}, v{T+9}
        v_cvt_pk_bf16_f32 v{T+9}, v{T+9}, v{T+9}
        v_and_b32 v{T+9}, 0xffff0000, v{T+9}
        v_sqrt_f32 v{T+9}, v{T+9}
        v_cvt_pk_bf16_f32 v{T+9}, v{T+9}, v{T+9}
        v_and_b32 v{T+9}, 0xffff0000, v{T+9}             ; sd
        v_rcp_f32 v{rr+st}, v{T+9}
        v_mul_f32 v{sd2+st}, v{T+9}, v{T+9}
        v_mul_f32 v{c1p+st}, {f2u(c1)}, v{rr+st}
        v_mul_f32 v{T+9}, v{rr+st}, v{rr+st}
        v_mul_f32 v{T+9}, v{T+9}, v{rr+st}
        v_mul_f32 v{c2p+st}, {f2u(c2)}, v{T+9}
        ''')
    A.I('s_waitcnt lgkmcnt(0)')
    ST.mark(A)
    Z=T+20
    def hq(q,st):
        g=[ACC+(0+st)*16+4*q+r for r in range(4)]; u=[ACC+(2+st)*16+4*q+r for r in range(4)]
        for r in range(4):
            A.I(f'v_fmac_f32 v{g[r]}, v{mm+st}, v{CS+q*4+r}')
            A.I(f'v_fmac_f32 v{u[r]}, v{mm+st}, v{CS+16+q*4+r}')
        for r in range(4):
            A.I(f'v_mul_f32 v{Z+r}, v{g[r]}, v{g[r]}')
            A.I(f'v_fma_f32 v{Z+r}, v{Z+r}, v{c2p+st}, v{c1p+st}')
            A.I(f'v_mul_f32 v{Z+r}, v{Z+r}, v{g[r]}')
        for r in range(4): A.I(f'v_exp_f32 v{Z+r}, v{Z+r}')
        for r in range(4):
            A.I(f'v_mul_f32 v{g[r]}, v{g[r]}, v{u[r]}')
            A.I(f'v_fma_f32 v{Z+r}, v{Z+r}, v{sd2+st}, v{sd2+st}')
        for r in range(4): A.I(f'v_rcp_f32 v{Z+r}, v{Z+r}')
        for r in range(4): A.I(f'v_mul_f32 v{g[r]}, v{g[r]}, v{Z+r}')
        p=T+10+2*(st)
        A.I(f'v_cvt_pk_bf16_f32 v{p}, v{g[0]}, v{g[1]}')
        A.I(f'v_cvt_pk_bf16_f32 v{p+1}, v{g[2]}, v{g[3]}')
        A.I(f'buffer_store_dwordx2 {v(p,2)}, v{vH[st]}, s[20:23], s60 offen')
    A.I(f's_mul_i32 s61, s34, 14\ns_lshl_b32 s33, s36, 2\ns_add_u32 s61, s61, s33\ns_lshl_b32 s61, s61, 15')
    for q in range(4):
        if q==2:
            A.I('s_cmp_eq_u32 s36, 3\ns_cbranch_scc1 p1_yout')
        A.I(f's_add_u32 s60, s61, {q*32768}')
        for st in range(2): hq(q,st)
    A.I('s_branch p1_wt')
    A.L('p1_yout')
    for q in (2,3):
        for st in range(2):
            for r in range(4):
                G=ACC+(0+st)*16+4*q+r; U=ACC+(2+st)*16+4*q+r
                A.I(f'v_fmac_f32 v{G}, v{mm+st}, v{CS+q*4+r}')
                A.I(f'v_fmac_f32 v{U}, v{mm+st}, v{CS+16+q*4+r}')
                A.I(f'v_mul_f32 v{G}, v{G}, v{rr+st}')
                A.I(f'v_mul_f32 v{U}, v{U}, v{rr+st}')
                A.I(f'v_cvt_pk_bf16_f32 v{G}, v{G}, v{U}')
                A.I(f's_lshl_b32 s60, s34, 4\ns_add_u32 s60, s60, {8*(q-2)+r}\ns_lshl_b32 s60, s60, 13')
                A.I(f'buffer_store_dword v{G}, v{vY[st]}, s[24:27], s60 offen')
    A.L('p1_wt')
    ST.mark(A)
    for r in range(4): A.I(f'v_or_b32 v{WTr+r}, v{WTr+r}, v{WTr+8+r}')
    A.I(f'buffer_store_dwordx4 {v(WTr,4)}, v{vWTd}, s[56:59], 0 offen')
    A.I(f'v_cmp_gt_u32 vcc, 2, v0\ns_and_saveexec_b64 s[62:63], vcc\ns_cbranch_execz p1_wt1')
    for r in range(4): A.I(f'v_or_b32 v{WTr+4+r}, v{WTr+4+r}, v{WTr+12+r}')
    A.I(f'buffer_store_dwordx4 {v(WTr+4,4)}, v{vWTd+1}, s[56:59], 0 offen')
    A.L('p1_wt1'); A.I('s_mov_b64 exec, s[62:63]')
    ST.mark(A)
    return 196

def p1_loads(A):
    A.I('''s_load_dwordx2 s[4:5], s[0:1], 72
    s_load_dwordx2 s[6:7], s[0:1], 0
    s_load_dwordx2 s[28:29], s[0:1], 32
    s_load_dwordx2 s[30:31], s[0:1], 40
    s_load_dwordx2 s[52:53], s[0:1], 8
    s_load_dwordx2 s[54:55], s[0:1], 16
    s_waitcnt lgkmcnt(0)''')
def test_p1():
    A=Asm()
    A.raw('; @launch kernel=p1_kernel grid=(256,1,1) block=(512,1,1) lds=%d'%(STAT+2048))
    A.raw('.amdgcn_target "amdgcn-amd-amdhsa--gfx950"\n.text')
    kernel_begin(A,'p1_kernel')
    A.I('s_cmp_ge_u32 s2, 256\ns_cbranch_scc1 p1_done')
    p1_loads(A)
    ST.mark(A,True); ST.mark(A)
    nv=p1_body(A,2)
    if STAMP: A.I('s_waitcnt vmcnt(0)')
    ST.mark(A); ST.mark(A,True)
    ST.dump(A,2,32)
    A.L('p1_done'); A.I('s_endpgm')
    txt=A.finalize()
    txt+='.section .rodata,"a"\n.p2align 6\n'+kd('p1_kernel',nv)
    return txt


def wd_job(A, su):
    srd(A,8,6,0,1792*512*2)
    srd(A,16,4,OFF_WD,290*8192)
    A.I(f'''
    v_lshlrev_b32 v1, 2, v0
    s_lshl_b32 s12, s{su}, 13          ; u*8*1024
    ''')
    for e in range(8):
        A.I(f's_add_u32 s13, s12, {e*1024}')
        A.I(f'buffer_load_dword v{8+e}, v1, s[8:11], s13 offen')
    A.I('s_mov_b32 s14, 0x05040100\ns_mov_b32 s15, 0x07060302\nv_lshlrev_b32 v2, 5, v0\ns_waitcnt vmcnt(0)')
    for p in range(4):
        A.I(f'v_perm_b32 v{16+p}, v{9+2*p}, v{8+2*p}, s14')
        A.I(f'v_perm_b32 v{20+p}, v{9+2*p}, v{8+2*p}, s15')
    A.I('buffer_store_dwordx4 v[16:19], v2, s[16:19], s12 offen')
    A.I('buffer_store_dwordx4 v[20:23], v2, s[16:19], s12 offen offset:16')
def g_job(A, sj):
    srd(A,16,4,OFF_WD+224*8192,66*8192)
    A.I(f'''
    s_lshl_b32 s12, s{sj}, 8
    v_add_u32 v1, s12, v0              ; n
    v_lshrrev_b32 v2, 9, v1            ; cu
    v_and_b32 v3, 511, v1              ; d
    v_cvt_f32_u32 v4, v3
    v_mul_f32 v4, {f2u(1/512)}, v4     ; d/512
    v_lshlrev_b32 v5, 2, v2            ; k0 = 4cu
    ''')
    sc=1.0/(2048*512)
    for q in range(4):
        A.I(f'''
        v_add_u32 v6, {q}, v5            ; k
        v_cvt_f32_u32 v7, v6
        v_mul_f32 v7, v7, v4
        v_fract_f32 v7, v7
        v_cos_f32 v8, v7
        v_sin_f32 v9, v7
        v_mov_b32 v10, {f2u(2*sc)}
        v_and_b32 v11, 255, v6
        v_cmp_eq_u32 vcc, 0, v11
        v_cndmask_b32 v10, v10, v20, vcc
        v_cmp_lt_u32 vcc, 256, v6
        v_cndmask_b32 v10, v10, v21, vcc
        v_mul_f32 v8, v8, v10
        v_mul_f32 v9, v9, v10
        v_cvt_pk_bf16_f32 v{12+q}, v8, -v9
        ''') if q>0 else A.I(f'''
        v_mov_b32 v20, {f2u(sc)}
        v_mov_b32 v21, 0
        v_add_u32 v6, {q}, v5            ; k
        v_cvt_f32_u32 v7, v6
        v_mul_f32 v7, v7, v4
        v_fract_f32 v7, v7
        v_cos_f32 v8, v7
        v_sin_f32 v9, v7
        v_mov_b32 v10, {f2u(2*sc)}
        v_and_b32 v11, 255, v6
        v_cmp_eq_u32 vcc, 0, v11
        v_cndmask_b32 v10, v10, v20, vcc
        v_cmp_lt_u32 vcc, 256, v6
        v_cndmask_b32 v10, v10, v21, vcc
        v_mul_f32 v8, v8, v10
        v_mul_f32 v9, v9, v10
        v_cvt_pk_bf16_f32 v{12+q}, v8, -v9
        ''')
    A.I('v_lshlrev_b32 v2, 4, v1\nbuffer_store_dwordx4 v[12:15], v2, s[16:19], 0 offen')

NAME='parallel_sum__spectral_gfnet__glu_gated_geglu__prompt'
HDR=open('cdna_kernels/'+NAME+'.s.ref').read().split('; Override')[0]
def full():
    A=Asm()
    A.raw(HDR.rstrip())
    A.raw('; @launch kernel=p1_kernel grid=(256,1,1) block=(512,1,1) lds=%d'%(STAT+2048))
    A.raw('; @launch kernel=p2_kernel grid=(613,1,1) block=(256,1,1) lds=16384')
    A.raw('; @launch kernel=p3_kernel grid=(256,1,1) block=(256,1,1) lds=49152')
    A.raw('.amdgcn_target "amdgcn-amd-amdhsa--gfx950"\n.text')
    kernel_begin(A,'p1_kernel')
    A.I('s_cmp_ge_u32 s2, 256\ns_cbranch_scc1 p1_done')
    p1_loads(A)
    ST.mark(A,True); ST.mark(A)
    nv1=p1_body(A,2)
    if STAMP: A.I('s_waitcnt vmcnt(0)')
    ST.mark(A); ST.mark(A,True)
    ST.dump(A,2,32,4,0)
    A.L('p1_done'); A.I('s_endpgm')
    kernel_begin(A,'p2_kernel')
    A.I('s_cmp_ge_u32 s2, 613\ns_cbranch_scc1 p2_done')
    A.I('s_load_dwordx2 s[4:5], s[0:1], 72\ns_load_dwordx2 s[6:7], s[0:1], 48\ns_waitcnt lgkmcnt(0)')
    A.I('s_cmp_ge_u32 s2, 257\ns_cbranch_scc1 p2_side')
    ST.mark(A,True); ST.mark(A)
    s2_body(A,2)
    if STAMP: A.I('s_waitcnt vmcnt(0)')
    ST.mark(A); ST.mark(A,True)
    ST.dump(A,2,12,4,1)
    A.I('s_endpgm')
    A.L('p2_side')
    A.I('s_cmp_ge_u32 s2, 481\ns_cbranch_scc1 p2_g')
    A.I('s_sub_u32 s3, s2, 257')
    wd_job(A,3)
    A.I('s_endpgm')
    A.L('p2_g')
    A.I('s_sub_u32 s3, s2, 481')
    g_job(A,3)
    A.L('p2_done'); A.I('s_endpgm')
    kernel_begin(A,'p3_kernel')
    A.I('s_cmp_ge_u32 s2, 256\ns_cbranch_scc1 p3_done')
    A.I('s_load_dwordx2 s[4:5], s[0:1], 72\ns_load_dwordx2 s[6:7], s[0:1], 0\ns_load_dwordx2 s[28:29], s[0:1], 56\ns_waitcnt lgkmcnt(0)')
    ST.mark(A,True); ST.mark(A)
    nv3=p3_body(A,2)
    if STAMP: A.I('s_waitcnt vmcnt(0)')
    ST.mark(A); ST.mark(A,True)
    ST.dump(A,2,12,4,2)
    A.L('p3_done'); A.I('s_endpgm')
    txt=A.finalize()
    txt+='.section .rodata,"a"\n'
    for n,nv in (('p1_kernel',nv1),('p2_kernel',204),('p3_kernel',nv3)):
        txt+='.p2align 6\n'+kd(n,nv)
    return txt

if __name__=='__main__':
    which=sys.argv[1]
    if len(sys.argv)>3 and sys.argv[3]=='stamp': STAMP=True
    if len(sys.argv)>4: EXP=set(sys.argv[4].split(','))
    open(sys.argv[2],'w').write(globals()[which]())
```

```python
import sys, struct, math
from asmlib import *
OFF_HP=0; OFF_ZQ=0x700000; OFF_YQ=0x940000; OFF_WT=0xB40000
OFF_CNT=0x1000000; OFF_RS=0x1018000; OFF_CSP=0x1040000; OFF_TS=0x2000000
C_RS=0; C_CS=16; C_H=32; C_Y=48; C_Z=64; ZREP=16; NCNT=64+ZREP*8
SLOT=49152; XS=0; GS=16384; US=32768
SB=[0,49152,98304]
YSCR=3*SLOT
LDS_TOTAL=163840; CTRL=LDS_TOTAL-256; STAT=CTRL-1024
NSL=17; AREG=NSL*2048
EX=4*AREG
STAMP=False; EXP=set()
SC=' sc1'
SCB=' sc1'
SCP=' sc1'
def f2u(x): return '0x%08x'%struct.unpack('<I',struct.pack('<f',x))[0]
class Stamps:
    def __init__(s): s.n=0
    def mark(s,A):
        if not STAMP or s.n>=15: return
        A.I(f's_{"memtime" if "clk" in EXP else "memrealtime"} s[{66+2*s.n}:{67+2*s.n}]'); s.n+=1
    def dump(s,A,n=None):
        if not STAMP: return
        n=s.n if n is None else n
        A.I('s_waitcnt lgkmcnt(0) vmcnt(0)')
        A.I(f's_lshl_b32 s60, s2, 3\ns_add_u32 s60, s60, s32\ns_lshl_b32 s60, s60, 7\ns_add_u32 s60, s60, {hex(OFF_TS)}')
        A.I(f's_add_u32 s96, s4, s60\ns_addc_u32 s97, s5, 0')
        A.I('v_mov_b32 v246, 0')
        for i in range(n):
            A.I(f'v_mov_b32 v244, s{66+2*i}\nv_mov_b32 v245, s{67+2*i}')
            A.I(f'global_store_dwordx2 v246, v[244:245], s[96:97] offset:{8*i}')
            A.I('s_nop 1')
ST=Stamps()
def srd(A,dst,base,off,size):
    if off:
        A.I(f's_add_u32 s{dst}, s{base}, {hex(off)}'); A.I(f's_addc_u32 s{dst+1}, s{base+1}, 0')
    else:
        A.I(f's_mov_b32 s{dst}, s{base}'); A.I(f's_mov_b32 s{dst+1}, s{base+1}')
    A.I(f's_mov_b32 s{dst+2}, {hex(size)}'); A.I(f's_mov_b32 s{dst+3}, 0x20000')
def mf16(A,D,a,b,first):
    A.I(f'v_mfma_f32_16x16x32_bf16 {v(D,4)}, {v(a,4)}, {v(b,4)}, {"0" if first else v(D,4)}')
def mf32(A,D,a,b,first=False):
    A.I(f'v_mfma_f32_32x32x16_bf16 {v(D,16)}, {v(a,4)}, {v(b,4)}, {"0" if first else v(D,16)}')
_lab=[0]
def newlab(p):
    _lab[0]+=1; return f'{p}_{_lab[0]}'
SPIN_MAX=0x20000
def lds_wait(A,vaddr,vtmp,off,val,n=1):
    l=newlab('lw'); d=newlab('ld')
    A.I('s_mov_b32 s58, 0'); A.L(l)
    if n==1:
        A.I(f'ds_read_b32 v{vtmp}, v{vaddr} offset:{off}\ns_waitcnt lgkmcnt(0)')
    else:
        A.I(f'ds_read_b128 {v(vtmp,4)}, v{vaddr} offset:{off}\ns_waitcnt lgkmcnt(0)')
        A.I(f'v_min_u32 v{vtmp}, v{vtmp}, v{vtmp+1}\nv_min_u32 v{vtmp+2}, v{vtmp+2}, v{vtmp+3}\nv_min_u32 v{vtmp}, v{vtmp}, v{vtmp+2}')
    A.I(f'v_readfirstlane_b32 s59, v{vtmp}')
    A.I(f's_cmp_ge_u32 s59, {val}\ns_cbranch_scc1 {d}')
    A.I(f's_add_u32 s58, s58, 1\ns_cmp_lt_u32 s58, {SPIN_MAX}\ns_cbranch_scc1 {l}')
    A.L(d)
def cnt_base(A):
    A.I(f's_add_u32 s62, s4, {hex(OFF_CNT)}\ns_addc_u32 s63, s5, 0')
def arrive(A,sidx,vt):
    cnt_base(A)
    A.I(f's_lshl_b32 s59, s{sidx}, 7\nv_mov_b32 v{vt}, s59\nv_mov_b32 v{vt+1}, 1\ns_mov_b64 exec, 1')
    A.I(f'global_atomic_add v{vt}, v{vt+1}, s[62:63]{SC}')
    A.I('s_mov_b64 exec, -1')
def poll_cnt(A,voff,vexp,vt,nl,first_loaded=False):
    l=newlab('pc'); d=newlab('pd'); c=newlab('pk')
    cnt_base(A)
    A.I(f's_mov_b32 s58, 0\ns_mov_b64 exec, {(1<<nl)-1}')
    if first_loaded: A.I(f's_branch {c}')
    A.L(l)
    A.I(f'global_load_dword v{vt}, v{voff}, s[62:63]{SCP}\ns_waitcnt vmcnt(0)')
    A.L(c)
    A.I(f'v_cmp_ne_u32 vcc, v{vt}, v{vexp}\ns_cbranch_vccz {d}')
    if 'sleep' in EXP: A.I('s_sleep 32')
    A.I(f's_add_u32 s58, s58, 1\ns_cmp_lt_u32 s58, {SPIN_MAX>>4}\ns_cbranch_scc1 {l}')
    A.L(d)
    A.I('s_mov_b64 exec, -1')

def p1_body(A):
    L,half,l32=1,2,3
    vD0,vD1=4,5
    vAr=8; vBr=14; vFw=38
    fu=44; kf0=45; ph0=46; kb=47; phb=48
    csA=50; csB=51; ones=53
    vHo=54; vWTs=56; vWTd=57
    WTr=60; T=76; FR=100; ACC=132
    PB=196; RSL=216; RSV=220; CSL=200; FX=212
    A.I(f"""
    v_and_b32 v{L}, 63, v0
    v_and_b32 v{l32}, 31, v0
    v_bfe_u32 v{half}, v0, 5, 1
    s_and_b32 s33, s2, 7
    s_lshr_b32 s34, s2, 3
    s_and_b32 s35, s33, 1
    s_lshl_b32 s35, s35, 3
    s_and_b32 s36, s34, 7
    s_add_u32 s35, s35, s36              ; rb
    s_lshr_b32 s33, s33, 1
    s_lshl_b32 s33, s33, 2
    s_lshr_b32 s34, s34, 3
    s_add_u32 s34, s33, s34              ; cb
    s_and_b32 s36, s32, 3                ; fq
    s_lshr_b32 s37, s32, 2               ; sh
    s_lshl_b32 s38, s32, 13
    s_lshr_b32 s49, s35, {1 if 'norot' not in EXP else 8}
    s_lshr_b32 s33, s32, 1
    s_and_b32 s39, s32, 1                ; hf
    """)
    srd(A,12,6,0,2048*512*2)
    mask=0
    for Ln in range(64):
        c=(Ln%16)^((Ln//16)<<2)
        if c<14: mask|=1<<Ln
    A.I(f"""
    s_cmp_eq_u32 s33, 1
    s_cselect_b32 s8, s28, s30
    s_cselect_b32 s9, s29, s31
    s_mov_b32 s10, {hex(512*1792*2)}
    s_mov_b32 s11, 0x20000
    s_mov_b32 s50, {hex(mask&0xffffffff)}
    s_mov_b32 s51, {hex(mask>>32)}
    s_movk_i32 s16, 14336                ; S1
    s_movk_i32 s17, 14336                ; S2-3*S1 = 57344-43008
    s_mov_b32 s18, {64*3584}
    v_lshrrev_b32 v{T}, 4, v{L}
    s_lshl_b32 s60, s39, 5
    v_add_u32 v{T+1}, s60, v{T}
    s_movk_i32 s60, 3584
    v_mul_lo_u32 v{T+1}, v{T+1}, s60
    v_and_b32 v{T+2}, 15, v{L}
    v_lshlrev_b32 v{T}, 2, v{T}
    v_xor_b32 v{T+2}, v{T+2}, v{T}
    v_lshl_add_u32 v{vD0}, v{T+2}, 4, v{T+1}
    s_mul_i32 s60, s34, 224
    v_add_u32 v{vD0}, s60, v{vD0}
    v_mov_b32 v{vD1}, v{vD0}
    s_cmp_lg_u32 s33, 0
    s_cbranch_scc1 p1_px
    s_mov_b32 s8, s12
    s_mov_b32 s9, s13
    s_mov_b32 s10, s14
    s_mov_b32 s50, -1
    s_mov_b32 s51, -1
    s_mov_b32 s16, 0x80000
    s_mov_b32 s17, {(1024-3*524288)&0xffffffff:#x}
    s_movk_i32 s18, 128
    v_lshrrev_b32 v{T}, 3, v{L}
    v_lshlrev_b32 v{T}, 16, v{T}
    s_lshl_b32 s60, s35, 2
    s_lshl_b32 s61, s39, 1
    s_add_u32 s60, s60, s61
    s_lshl_b32 s60, s60, 10
    v_add_u32 v{T}, s60, v{T}
    v_and_b32 v{T+1}, 7, v{L}
    v_lshrrev_b32 v{T+2}, 4, v{L}
    v_xor_b32 v{T+1}, v{T+1}, v{T+2}
    v_lshl_add_u32 v{vD0}, v{T+1}, 4, v{T}
    v_xor_b32 v{vD1}, 64, v{vD0}
    p1_px:
    """)
    def common_setup():
        A.I(f'v_mov_b32 v{T}, {CTRL}\nv_lshl_add_u32 v{T}, v{L}, 2, v{T}\nv_mov_b32 v{T+1}, 0\nds_write_b32 v{T}, v{T+1}')
        A.I(f"""
        v_lshrrev_b32 v{T}, 5, v{L}
        v_lshlrev_b32 v{T}, 3, v{T}
        v_bfe_u32 v{T+1}, v{L}, 2, 2
        v_add_u32 v{T}, v{T}, v{T+1}
        v_lshlrev_b32 v{T}, 8, v{T}
        v_bfe_u32 v{T+2}, v{L}, 4, 1
        v_lshlrev_b32 v{T+2}, 1, v{T+2}
        v_bfe_u32 v{T+3}, v{L}, 1, 1
        v_add_u32 v{T+2}, v{T+2}, v{T+3}
        s_lshl_b32 s33, s36, 2
        v_add_u32 v{T+2}, s33, v{T+2}
        v_lshlrev_b32 v{T+1}, 2, v{T+1}
        v_xor_b32 v{T+2}, v{T+2}, v{T+1}
        v_lshl_add_u32 v{T}, v{T+2}, 4, v{T}
        v_and_b32 v{T+3}, 1, v{L}
        v_lshl_add_u32 v{T}, v{T+3}, 3, v{T}
        s_lshl_b32 s33, s37, 14
        s_add_u32 s39, s33, {GS}
        s_sub_u32 s33, {US}, s33
        v_add_u32 v{vAr}, s39, v{T}
        v_add_u32 v{vAr+1}, s33, v{T}
        v_add_u32 v{vAr+2}, {SB[1]}, v{vAr}
        v_add_u32 v{vAr+3}, {SB[1]}, v{vAr+1}
        v_add_u32 v{vAr+4}, {SB[2]}, v{vAr}
        v_add_u32 v{vAr+5}, {SB[2]}, v{vAr+1}
        s_lshl_b32 s33, s37, 6
        v_add_u32 v{T}, s33, v{l32}
        v_lshlrev_b32 v{T}, 7, v{T}
        v_bfe_u32 v{T+1}, v{l32}, 1, 3
        v_xor_b32 v{T+1}, v{T+1}, v{half}
        v_lshl_add_u32 v{T}, v{T+1}, 4, v{T}
        s_and_b32 s48, s36, 1
        s_lshl_b32 s33, s48, 12
        v_add_u32 v{vBr}, s33, v{T}
        """)
        A.I(f'v_xor_b32 v{br(0,0,1)}, 4096, v{br(0,0,0)}')
        for ks in range(1,4):
            for b_ in range(2): A.I(f'v_xor_b32 v{br(0,ks,b_)}, {ks*32}, v{br(0,0,b_)}')
        for sl in range(1,3):
            for ks in range(4):
                for b_ in range(2): A.I(f'v_add_u32 v{br(sl,ks,b_)}, {SB[sl]}, v{br(0,ks,b_)}')
        A.I(f'v_mov_b32 v{ones}, 0x3f803f80\nv_mov_b32 v{csA}, 0\nv_mov_b32 v{csB}, 0')
    def br(slot,ks,b): return vBr+(slot*4+ks)*2+b
    def row_load(vq):
        A.I(f"""
        s_lshl_b32 s33, s34, 3
        s_add_u32 s33, s33, s32
        s_lshl_b32 s39, s35, 7
        s_add_u32 s64, s39, s33
        s_and_b32 s33, s64, 31
        s_lshl_b32 s33, s33, 6
        s_lshr_b32 s39, s64, 5
        s_add_u32 s33, s33, s39
        s_lshl_b32 s33, s33, 10
        v_lshlrev_b32 v{T}, 4, v{L}
        buffer_load_dwordx4 {v(RSL,4)}, v{T}, s[12:15], s33 offen
        """); vq.append('row')

    def main(role):
        R=role
        vq=[]; lq=[]
        lb=lambda n: f'p1{R}_{n}'
        def dma_i(stage,i):
            slot=stage%3
            if i==0: A.I(f's_add_u32 s52, s49, {stage}\ns_and_b32 s52, s52, 7\ns_mul_i32 s60, s52, s18')
            elif i==4: A.I('s_add_u32 s60, s60, s17')
            else: A.I('s_add_u32 s60, s60, s16')
            A.I(f's_add_u32 m0, s38, {SB[slot]+i*1024}')
            A.I('s_mov_b64 exec, s[50:51]')
            A.I(f'buffer_load_dwordx4 v{vD0+(i&1)}, s[8:11], s60 offen lds'); vq.append(stage)
            A.I('s_mov_b64 exec, -1')
        def dma_i2(stage,i):
            slot=stage%3
            if i==0: A.I(f's_add_u32 s52, s49, {stage if "hot" not in EXP else 0}\ns_and_b32 s52, s52, 7\ns_mul_i32 s53, s52, s18')
            elif i==4: A.I('s_add_u32 s53, s53, s17')
            else: A.I('s_add_u32 s53, s53, s16')
            A.I(f's_add_u32 m0, s38, {SB[slot]+i*1024}')
            A.I('s_mov_b64 exec, s[50:51]')
            A.I(f'buffer_load_dwordx4 v{vD0+(i&1)}, s[8:11], s53 offen lds'); vq.append(stage)
            A.I('s_mov_b64 exec, -1')
        FB=228; FO=244
        def fgen_parts(stage):
            slot=stage%3; b_=stage&1; t=(stage>>1)&3; B0=FB+8*b_; P=[]
            def wr(m,src):
                A.I(f'ds_write_b128 v{vFw+slot}, {v(src,4)} offset:{m*16384}'); lq.append('w')
            if t==0:
                P.append(lambda: wr(0,B0)); P.append(lambda: wr(1,B0+4)); return P
            if t==2:
                for m in range(2):
                    def f(m=m):
                        for j in range(4): A.I(f'v_xor_b32 v{FO+4*m+j}, 0x80000000, v{B0+4*m+j}')
                        wr(m,FO+4*m)
                    P.append(f)
                return P
            ex=0 if t==1 else 0x80000000
            for m in range(2):
                def f(m=m):
                    for j in range(4):
                        own=B0+4*m+j; oth=B0+4*(1-m)+j
                        A.I(f'v_bfi_b32 v{FO+4*m+j}, v{kf0}, v{own}, v{oth}')
                        if m==0: sg=(0 if j%2==0 else 0x80008000)
                        else: sg=(0x80000000 if j%2==0 else 0x8000)
                        sg^=ex
                        if sg: A.I(f'v_xor_b32 v{FO+4*m+j}, {hex(sg)}, v{FO+4*m+j}')
                    wr(m,FO+4*m)
                P.append(f)
            return P
        def vwait(tag,lg=False):
            idx=[k for k,x in enumerate(vq) if x==tag]
            if not idx:
                if lg: A.I('s_waitcnt lgkmcnt(0)')
                return
            N=len(vq)-1-max(idx); del vq[:max(idx)+1]
            A.I(f's_waitcnt vmcnt({N})'+(' lgkmcnt(0)' if lg else ''))
        if R=='D':
            for i in range(8): dma_i2(0,i)
            row_load(vq)
            for i in range(8): dma_i2(1,i)
            common_setup()
        else:
            row_load(vq)
            A.I(f's_cmp_lg_u32 s2, 0\ns_cbranch_scc1 {lb("non")}\ns_cmp_lg_u32 s32, 7\ns_cbranch_scc1 {lb("non")}')
            A.skip_begin()
            cnt_base(A)
            A.I(f'v_lshlrev_b32 v{T}, 7, v{L}\nv_mov_b32 v{T+1}, 0')
            for j in range(NCNT//64):
                A.I(f'global_store_dword v{T}, v{T+1}, s[62:63]{SC}\nv_add_u32 v{T}, {64*128}, v{T}')
            A.I('s_mov_b64 exec, 1')
            A.I(f's_waitcnt vmcnt(0)\nv_mov_b32 v{T}, 0\nv_mov_b32 v{T+1}, 1\nglobal_store_dword v{T}, v{T+1}, s[54:55]{SC}\ns_mov_b64 exec, -1')
            A.skip_end(); A.L(lb('non'))
            A.I('s_and_b32 s39, s32, 1')
            A.I(f"""
            s_lshl_b32 s33, s49, 6
            s_lshl_b32 s60, s39, 5
            s_add_u32 s33, s33, s60
            v_add_u32 v{T}, s33, v{l32}          ; d for b=0
            v_cvt_f32_u32 v{fu}, v{T}
            v_mul_f32 v{fu}, {f2u(1/512)}, v{fu}
            s_lshl_b32 s33, s34, 4
            v_lshlrev_b32 v{T+1}, 3, v{half}
            v_add_u32 v{T+1}, s33, v{T+1}        ; k0
            v_cvt_f32_u32 v{kb}, v{T+1}
            v_mov_b32 v{kf0}, 0xffff
            """)
            for b_ in range(2):
                if b_==1: A.I(f'v_add_f32 v{fu}, {f2u(0.125)}, v{fu}\nv_fract_f32 v{fu}, v{fu}')
                A.I(f'v_mul_f32 v{T+2}, v{fu}, v{kb}')
                for j in range(4):
                    A.I(f'v_cos_f32 v{T+4}, v{T+2}\nv_sin_f32 v{T+6}, v{T+2}\nv_add_f32 v{T+2}, v{T+2}, v{fu}')
                    A.I(f'v_cos_f32 v{T+5}, v{T+2}\nv_sin_f32 v{T+7}, v{T+2}\nv_add_f32 v{T+2}, v{T+2}, v{fu}')
                    A.I(f'v_cvt_pk_bf16_f32 v{FB+8*b_+j}, v{T+4}, v{T+5}')
                    A.I(f'v_cvt_pk_bf16_f32 v{FB+8*b_+4+j}, -v{T+6}, -v{T+7}')
                A.I(f"""v_and_b32 v{T+3}, 1, v{l32}
                v_lshlrev_b32 v{T+3}, 15, v{T+3}
                v_or_b32 v{T+3}, 0x3f80, v{T+3}
                v_bfi_b32 v{T+3}, v{kf0}, v{T+3}, v{FB+8*b_+4}
                v_cmp_eq_u32 vcc, 0, v{T+1}
                v_cndmask_b32 v{FB+8*b_+4}, v{FB+8*b_+4}, v{T+3}, vcc""")
            A.I(f"""
            s_lshl_b32 s60, s39, 5
            v_add_u32 v{T}, s60, v{l32}          ; row
            v_and_b32 v{T+1}, 3, v{T}
            v_lshlrev_b32 v{T+1}, 2, v{T+1}
            v_add_u32 v{T+2}, 14, v{half}
            v_xor_b32 v{T+1}, v{T+1}, v{T+2}
            v_lshlrev_b32 v{T+1}, 4, v{T+1}
            v_lshl_add_u32 v{T+1}, v{T}, 8, v{T+1}
            v_add_u32 v{vFw}, {GS}, v{T+1}
            v_add_u32 v{vFw+1}, {SB[1]}, v{vFw}
            v_add_u32 v{vFw+2}, {SB[2]}, v{vFw}
            """)
            for p in fgen_parts(0): p()
            for p in fgen_parts(1): p()
            common_setup()
        def wt_setup():
            C=[]
            C.append(lambda: A.I(f"""
              v_lshrrev_b32 v{vWTd}, 4, v0
              s_lshl_b32 s60, s35, 7
              v_add_u32 v{vWTs}, s60, v{vWTd}
              v_mul_u32_u24 v{vWTs}, 257, v{vWTs}"""))
            C.append(lambda: A.I(f"""
              v_and_b32 v{vWTd+1}, 15, v0
              s_lshl_b32 s60, s34, 4
              v_add_u32 v{vWTd+1}, s60, v{vWTd+1}
              v_add_u32 v{vWTs}, v{vWTs}, v{vWTd+1}
              v_lshlrev_b32 v{vWTs}, 1, v{vWTs}"""))
            C.append(lambda: A.I(f"""
              s_lshr_b32 s60, s35, 2
              s_lshl_b32 s60, s60, 11
              s_and_b32 s61, s35, 3
              s_lshl_b32 s61, s61, 8
              s_add_u32 s65, s60, s61
              v_lshrrev_b32 v{WTr}, 4, v{vWTd}
              v_lshlrev_b32 v{WTr}, 10, v{WTr}"""))
            C.append(lambda: A.I(f"""
              v_and_b32 v{vWTd}, 15, v{vWTd}
              v_lshl_add_u32 v{vWTd}, v{vWTd}, 4, v{WTr}
              v_add_u32 v{vWTd}, s65, v{vWTd}
              v_lshl_add_u32 v{vWTd}, v{vWTd+1}, 13, v{vWTd}"""))
            C.append(lambda: A.I('s_mov_b32 s42, 0x101000\ns_mov_b32 s43, 0x20000\ns_mov_b32 s46, 0x101000\ns_mov_b32 s47, 0x20000'))
            return C
        def wt_loads():
            C=[]
            for r in range(4):
                def f(r=r):
                    A.I(f's_mov_b32 s60, {r*16448}')
                    A.I(f'buffer_load_short_d16 v{WTr+r}, v{vWTs}, s[40:43], s60 offen')
                    A.I(f'buffer_load_short_d16_hi v{WTr+8+r}, v{vWTs}, s[44:47], s60 offen'); vq.extend(['wt','wt'])
                C.append(f)
            def tail():
                A.I(f's_cmp_lg_u32 s34, 0\ns_cbranch_scc1 {lb("wt0")}\ns_cmp_lg_u32 s32, 0\ns_cbranch_scc1 {lb("wt0")}')
                A.skip_begin()
                A.I(f's_lshl_b32 s60, s35, 7\nv_add_u32 v{vWTd+1}, s60, v{l32}\nv_mul_u32_u24 v{vWTd+1}, 257, v{vWTd+1}\nv_add_u32 v{vWTd+1}, 256, v{vWTd+1}\nv_lshlrev_b32 v{vWTd+1}, 1, v{vWTd+1}')
                for r in range(4):
                    A.I(f's_mov_b32 s60, {r*16448}')
                    A.I(f'buffer_load_short_d16 v{WTr+4+r}, v{vWTd+1}, s[40:43], s60 offen')
                    A.I(f'buffer_load_short_d16_hi v{WTr+12+r}, v{vWTd+1}, s[44:47], s60 offen')
                A.skip_end(); A.L(lb('wt0'))
            if R=='D': C.append(tail)
            return C
        def wt_stores():
            vwait('wt')
            srd(A,40,4,OFF_WT,257*8192)
            for r in range(4): A.I(f'v_or_b32 v{WTr+r}, v{WTr+r}, v{WTr+8+r}')
            A.I(f'buffer_store_dwordx4 {v(WTr,4)}, v{vWTd}, s[40:43], 0 offen{SC}')
            if R=='D':
                A.I(f's_cmp_lg_u32 s34, 0\ns_cbranch_scc1 {lb("wt1")}\ns_cmp_lg_u32 s32, 0\ns_cbranch_scc1 {lb("wt1")}')
                A.skip_begin()
                for r in range(4): A.I(f'v_or_b32 v{WTr+4+r}, v{WTr+4+r}, v{WTr+12+r}')
                A.I(f'v_lshrrev_b32 v{vWTs}, 4, v{l32}\nv_lshlrev_b32 v{vWTs}, 10, v{vWTs}\nv_and_b32 v{vWTd+1}, 15, v{l32}\nv_lshl_add_u32 v{vWTs}, v{vWTd+1}, 4, v{vWTs}')
                A.I(f'v_add_u32 v{vWTs}, s65, v{vWTs}\nv_add_u32 v{vWTs}, 0x200000, v{vWTs}\ns_mov_b32 exec_hi, 0')
                A.I(f'buffer_store_dwordx4 {v(WTr+4,4)}, v{vWTs}, s[40:43], 0 offen{SC}\ns_mov_b64 exec, -1')
                A.skip_end(); A.L(lb('wt1'))
        def rowstat_chunks():
            Rr=RSL; U=T+14
            def c0(): vwait('row')
            def mk(i):
                def f():
                    A.I(f'v_lshlrev_b32 v{U}, 16, v{Rr+i}')
                    A.I(f'v_and_b32 v{U+1}, 0xffff0000, v{Rr+i}')
                    if i==0:
                        A.I(f'v_add_f32 v{RSV}, v{U}, v{U+1}'); A.I(f'v_mul_f32 v{RSV+1}, v{U}, v{U}')
                    else:
                        A.I(f'v_add_f32 v{RSV}, v{RSV}, v{U}'); A.I(f'v_fmac_f32 v{RSV+1}, v{U}, v{U}')
                        A.I(f'v_add_f32 v{RSV}, v{RSV}, v{U+1}')
                    A.I(f'v_fmac_f32 v{RSV+1}, v{U+1}, v{U+1}')
                return f
            C=[c0]+[mk(i) for i in range(4)]
            def red(ror):
                def f():
                    for x in (RSV,RSV+1): A.I(f'v_add_f32_dpp v{x}, v{x}, v{x} row_ror:{ror} row_mask:0xf bank_mask:0xf')
                return f
            C+=[red(8),red(4),red(2),red(1)]
            def sw(op):
                def f():
                    for k,x in enumerate((RSV,RSV+1)): A.I(f'v_mov_b32 v{U+k}, v{x}')
                    for k,x in enumerate((RSV,RSV+1)): A.I(f'{op} v{x}, v{U+k}')
                    for k,x in enumerate((RSV,RSV+1)): A.I(f'v_add_f32 v{x}, v{x}, v{U+k}')
                return f
            C+=[sw('v_permlane16_swap_b32'),sw('v_permlane32_swap_b32')]
            C.append(lambda: A.I(f"""
                v_mul_f32 v{U}, {f2u(1/512)}, v{RSV}
                v_mul_f32 v{U+1}, {f2u(1/512)}, v{RSV+1}
                v_fma_f32 v{U+1}, -v{U}, v{U}, v{U+1}
                v_max_f32 v{U+1}, 0, v{U+1}
                v_cvt_pk_bf16_f32 v{U}, v{U}, v{U+1}"""))
            C.append(lambda: A.I(f"""
                v_and_b32 v{U+1}, 0xffff0000, v{U}
                v_lshlrev_b32 v{U}, 16, v{U}
                v_sub_f32 v{RSV}, 0, v{U}
                v_add_f32 v{U+1}, {f2u(1e-5)}, v{U+1}
                v_cvt_pk_bf16_f32 v{U+1}, v{U+1}, v{U+1}"""))
            C.append(lambda: A.I(f"""
                v_and_b32 v{U+1}, 0xffff0000, v{U+1}
                v_sqrt_f32 v{U+1}, v{U+1}
                v_cvt_pk_bf16_f32 v{U+1}, v{U+1}, v{U+1}
                v_and_b32 v{RSV+1}, 0xffff0000, v{U+1}"""))
            def fin4():
                A.I(f's_lshl_b32 s60, s64, 3\ns_add_u32 s60, s60, {OFF_RS}\ns_add_u32 s62, s4, s60\ns_addc_u32 s63, s5, 0')
                A.I(f'v_mov_b32 v{U}, 0\ns_mov_b64 exec, 1\nglobal_store_dwordx2 v{U}, {v(RSV,2)}, s[62:63]{SC}\ns_mov_b64 exec, -1'); vq.append('st')
            return C+[fin4]
        def cs_store():
            U=T+14
            A.I(f"""
            s_bitcmp1_b32 s35, 0
            s_cselect_b64 vcc, -1, 0
            v_cndmask_b32 v{U}, v{csA}, v{csB}, vcc
            v_mov_b32 v{U+1}, v{U}
            v_permlane32_swap_b32 v{U}, v{U+1}
            v_add_f32 v{U}, v{U}, v{U+1}
            s_lshl_b32 s60, s34, 4
            s_add_u32 s60, s60, s35
            s_lshl_b32 s60, s60, 10
            s_lshl_b32 s61, s37, 9
            s_add_u32 s60, s60, s61
            s_lshl_b32 s61, s36, 7
            s_add_u32 s60, s60, s61
            s_add_u32 s60, s60, {OFF_CSP}
            s_add_u32 s62, s4, s60
            s_addc_u32 s63, s5, 0
            v_lshlrev_b32 v{U+1}, 2, v{l32}
            s_mov_b32 exec_hi, 0
            global_store_dword v{U+1}, v{U}, s[62:63]{SC}
            s_mov_b64 exec, -1
            """); vq.append('st')
        def reads(stage,ks,fs):
            slot=stage%3; f=FR+fs*16
            for a_ in range(2):
                for rd in range(2):
                    A.I(f'ds_read_b64_tr_b16 {v(f+a_*4+rd*2,2)}, v{vAr+slot*2+a_} offset:{ks*4096+rd*1024}'); lq.append((stage,ks))
            for b_ in range(2):
                A.I(f'ds_read_b128 {v(f+8+b_*4,4)}, v{br(slot,ks,b_)} offset:{XS}'); lq.append((stage,ks))
        def wait_frags(stage,ks):
            idx=[k for k,x in enumerate(lq) if x==(stage,ks)]
            n=len(lq)-1-max(idx)
            A.I(f's_waitcnt lgkmcnt({n})'); del lq[:max(idx)+1]
        def compute(fs,first,extra,csacc=None):
            f=FR+fs*16; k=0
            if 'flip' in EXP:
                l=newlab('pr')
                A.I(f's_setprio {1 if fs==0 else 0}\ns_cmp_eq_u32 s37, 0\ns_cbranch_scc1 {l}\ns_setprio {0 if fs==0 else 1}'); A.L(l)
            for a_ in range(2):
                for b_ in range(2):
                    mf32(A,ACC+(a_*2+b_)*16,f+a_*4,f+8+b_*4,first)
                    if csacc is not None: A.I(f'v_dot2c_f32_bf16 v{csacc}, v{f+k}, v{ones}')
                    for fn in extra[k]: fn()
                    k+=1
        def spread_into(G,items,lo,hi):
            n=hi-lo
            for j,it in enumerate(items): G[lo+min(j*n//max(len(items),1),n-1)].append(it)
        def ready_load():
            A.I(f'v_mov_b32 v{RSV+3}, 0\ns_cmp_lg_u32 s32, 0\ns_cbranch_scc1 {lb("rl")}')
            A.skip_begin()
            A.I(f's_mov_b64 exec, 1\nglobal_load_dword v{RSV+2}, v{RSV+3}, s[54:55]{SCP}\ns_mov_b64 exec, -1')
            A.skip_end(); A.L(lb('rl'))
        def ready_check():
            l=newlab('nl'); d=newlab('nd')
            A.I(f'v_readfirstlane_b32 s3, v{RSV+2}\ns_cmp_lg_u32 s3, 0\ns_cbranch_scc1 {d}\ns_mov_b32 s58, 0')
            A.L(l)
            A.I(f'global_load_dword v{RSV+2}, v{RSV+3}, s[54:55]{SCP}\ns_waitcnt vmcnt(0)\nv_readfirstlane_b32 s3, v{RSV+2}')
            A.I(f's_cmp_lg_u32 s3, 0\ns_cbranch_scc1 {d}\ns_add_u32 s58, s58, 1\ns_cmp_lt_u32 s58, {SPIN_MAX>>4}\ns_cbranch_scc1 {l}')
            A.L(d)
        FP=RSL
        def st_poll_issue():
            A.I(f's_cmp_lg_u32 s32, 0\ns_cbranch_scc1 {lb("sp")}')
            A.skip_begin()
            A.I(f"""
            s_lshl_b32 s60, s35, 7
            s_add_u32 s61, s34, {C_CS}
            s_lshl_b32 s61, s61, 7
            v_mov_b32 v{FP+1}, s61
            v_mov_b32 v{FP}, s60
            v_cmp_eq_u32 vcc, 0, v{L}
            v_cndmask_b32 v{FP+1}, v{FP+1}, v{FP}, vcc
            v_mov_b32 v{FP+3}, 16
            """)
            cnt_base(A)
            A.I(f's_mov_b64 exec, 3\nglobal_load_dword v{FP+2}, v{FP+1}, s[62:63]{SCP}\ns_mov_b64 exec, -1')
            A.skip_end(); A.L(lb('sp'))
        def stat_chunks():
            C=[]
            C.append(lambda: (A.I(f"""
            s_lshl_b32 s60, s35, 7
            s_lshl_b32 s61, s37, 6
            s_add_u32 s60, s60, s61
            s_lshl_b32 s61, s48, 5
            s_add_u32 s60, s60, s61
            v_add_u32 v{FP}, s60, v{l32}
            v_lshlrev_b32 v{FP+1}, 3, v{FP}
            v_xor_b32 v{FP+2}, 256, v{FP+1}
            s_add_u32 s62, s4, {OFF_RS}
            s_addc_u32 s63, s5, 0
            global_load_dwordx2 {v(RSV,2)}, v{FP+1}, s[62:63]{SC}
            global_load_dwordx2 {v(RSV+2,2)}, v{FP+2}, s[62:63]{SC}
            """), vq.extend(['rs','rs'])))
            C.append(lambda: A.I(f's_lshl_b32 s60, s34, 14\ns_add_u32 s60, s60, {OFF_CSP}\ns_add_u32 s20, s4, s60\ns_addc_u32 s21, s5, 0\nv_and_b32 v{FP+3}, 255, v0\nv_lshlrev_b32 v{FP+3}, 2, v{FP+3}'))
            for j4 in range(4):
                def f(j4=j4):
                    if j4>0: A.I(f'v_add_u32 v{FP+3}, 4096, v{FP+3}')
                    for j in range(4):
                        A.I(f'global_load_dword v{CSL+4*j4+j}, v{FP+3}, s[20:21] offset:{j*1024}{SC}'); vq.append('csp')
                C.append(f)
            return C
        NST=8
        E0=[[],[],[],[]]
        for i in range(NST):
            if 'bw' in EXP and i in (2,3,4,5): ST.mark(A)
            if R=='F' and i==3: vwait('st')
            vwait(i,True); lq.clear()
            if 'bw' in EXP and i in (2,3,4,5): ST.mark(A)
            if i==6 and R=='D':
                A.I(f's_cmp_lg_u32 s32, 0\ns_cbranch_scc1 {lb("sc")}')
                A.skip_begin()
                A.I('s_waitcnt vmcnt(16)')
                poll_cnt(A,FP+1,FP+3,FP+2,2,True)
                A.skip_end(); A.L(lb('sc'))
            A.I('s_barrier')
            if i in ((0,1,2,3,4,5,6,7) if 'allB' in EXP else ((2,3,4,5) if 'bw' in EXP else (() if 'p3steps' in EXP else (0,4)))): ST.mark(A)
            if i==3 and R=='D':
                A.I(f's_cmp_lg_u32 s32, 0\ns_cbranch_scc1 {lb("f0")}')
                A.skip_begin()
                ready_check()
                arrive(A,35,T+14)
                A.I(f's_add_u32 s61, s34, {C_CS}'); arrive(A,61,T+14)
                A.skip_end(); A.L(lb('f0'))
            reads(i,0,0)
            if i==7: wt_stores()
            nd=(i+2<NST)
            ng=16 if i>0 else 12
            G=[[] for _ in range(ng)]
            if nd and R=='D' and 'nodma' not in EXP:
                for j in range(8): G[(j*3)//2 if ng==16 else j].append(lambda j=j: dma_i2(i+2,j))
            if nd and R=='F' and 'nofgen' not in EXP:
                [G[1+2*j].append(p) for j,p in enumerate(fgen_parts(i+2))]
            if i==0:
                if R=='D': G[1].append(ready_load)
                spread_into(G,rowstat_chunks(),0,12)
            if i==1: G[4].append(cs_store)
            if i==4: spread_into(G,wt_setup(),1,13)
            if i==5:
                if R=='D': G[0].insert(0,st_poll_issue)
                for j,f in enumerate(wt_loads()): G[1+2*j].append(f)
            if i==6: spread_into(G,stat_chunks(),0,12)
            gi=0
            if i>0:
                compute(1,False,G[0:4],csB if i==1 else None); gi=4
            reads(i,1,1); wait_frags(i,0)
            compute(0,i==0,G[gi:gi+4],csA if i==0 else None); gi+=4
            reads(i,2,0); wait_frags(i,1)
            compute(1,False,G[gi:gi+4],csA if i==0 else None); gi+=4
            reads(i,3,1); wait_frags(i,2)
            compute(0,False,G[gi:gi+4],csB if i==0 else None)
        A.I('s_waitcnt lgkmcnt(0)'); lq.clear()
        compute(1,False,E0)
        vwait('csp')
    n_st=ST.n
    if 'twice' in EXP: A.I('s_mov_b32 s19, 0'); A.L('p1_again')
    if 'prio' in EXP:
        A.I('s_cmp_lt_u32 s32, 4\ns_cbranch_scc1 p1_np\ns_setprio 1'); A.L('p1_np')
    A.I('s_cmp_ge_u32 s32, 6\ns_cbranch_scc1 p1_roleF')
    main('D')
    A.I('s_branch p1_join')
    A.L('p1_roleF'); A.fence()
    ST.n=n_st
    main('F')
    A.L('p1_join')
    if 'twice' in EXP: A.I('s_waitcnt vmcnt(0) lgkmcnt(0)\ns_barrier\ns_add_u32 s19, s19, 1\ns_cmp_lt_u32 s19, 2\ns_cbranch_scc1 p1_again')
    A.I('s_setprio 0')
    A.I('s_nop 7\ns_nop 7')
    ST.mark(A)
    for j in range(8): A.I(f'v_add_f32 v{CSL+j}, v{CSL+j}, v{CSL+8+j}')
    for j in range(4): A.I(f'v_add_f32 v{CSL+j}, v{CSL+j}, v{CSL+4+j}')
    A.I(f'v_add_f32 v{CSL}, v{CSL}, v{CSL+1}\nv_add_f32 v{CSL+2}, v{CSL+2}, v{CSL+3}\nv_add_f32 v{CSL}, v{CSL}, v{CSL+2}')
    A.I(f"""
    v_cvt_pk_bf16_f32 v{CSL+1}, v{CSL}, v{CSL}
    v_and_b32 v{CSL+1}, 0xffff0000, v{CSL+1}
    v_sub_f32 v{CSL+2}, v{CSL}, v{CSL+1}
    v_cvt_pk_bf16_f32 v{CSL}, v{CSL+1}, v{CSL+2}
    v_and_b32 v{T}, 255, v0
    v_lshlrev_b32 v{T}, 2, v{T}
    v_add_u32 v{T}, {STAT}, v{T}
    ds_write_b32 v{T}, v{CSL}
    """)
    mm=[RSV,RSV+2]; sd=[RSV+1,RSV+3]
    c1p=T+6; c2p=T+14; sd2=T+16; rr=T+18
    c1=-2*0.7978845608028654*math.log2(math.e); c2=c1*0.044715
    for st in range(2):
        A.I(f"""
        v_rcp_f32 v{rr+st}, v{sd[st]}
        v_mul_f32 v{sd2+st}, v{sd[st]}, v{sd[st]}
        v_mul_f32 v{c1p+st}, {f2u(c1)}, v{rr+st}
        v_mul_f32 v{T+9}, v{rr+st}, v{rr+st}
        v_mul_f32 v{T+9}, v{T+9}, v{rr+st}
        v_mul_f32 v{c2p+st}, {f2u(c2)}, v{T+9}
        """)
    srd(A,20,4,OFF_HP,224*32768)
    srd(A,24,4,OFF_YQ,256*8192)
    for k in range(16): A.I(f'v_mov_b32 v{FR+k}, 0')
    A.I(f"""
    v_cvt_pk_bf16_f32 v{T+10}, v{mm[0]}, v{mm[0]}
    v_cvt_pk_bf16_f32 v{T+11}, v{mm[1]}, v{mm[1]}
    v_cmp_gt_u32 vcc, 32, v{L}
    v_cndmask_b32 v{FR+8}, 0, v{T+10}, vcc
    v_cndmask_b32 v{FR+12}, 0, v{T+11}, vcc
    s_lshl_b32 s39, s36, 7
    s_lshl_b32 s33, s37, 9
    s_add_u32 s60, s39, s33
    s_xor_b32 s33, s33, 512
    s_add_u32 s61, s39, s33
    v_lshlrev_b32 v{T+2}, 2, v{l32}
    v_add_u32 v{T+2}, {STAT}, v{T+2}
    v_add_u32 v{T+3}, s61, v{T+2}
    v_add_u32 v{T+2}, s60, v{T+2}
    s_lshl_b32 s33, s35, 7
    s_lshl_b32 s39, s37, 6
    s_add_u32 s33, s33, s39              ; 128rb+64sh
    s_lshl_b32 s39, s48, 5
    s_add_u32 s39, s33, s39
    v_add_u32 v{T+4}, s39, v{l32}
    v_lshlrev_b32 v{vHo}, 4, v{T+4}
    v_lshl_add_u32 v{vHo}, v{half}, 15, v{vHo}
    v_xor_b32 v{vHo+1}, 512, v{vHo}
    s_waitcnt lgkmcnt(0)
    s_barrier
    ds_read_b32 v{T+10}, v{T+2}
    ds_read_b32 v{T+11}, v{T+3}
    s_waitcnt lgkmcnt(0)
    v_cndmask_b32 v{FR}, 0, v{T+10}, vcc
    v_cndmask_b32 v{FR+4}, 0, v{T+11}, vcc
    """)
    for a_ in range(2):
        for b_ in range(2): mf32(A,ACC+(a_*2+b_)*16,FR+a_*4,FR+8+b_*4)
    A.I('s_nop 7\ns_nop 4')
    Z=T+20
    vH=[vHo,vHo+1]
    def epi(gm,suf):
        GT=lambda st: ACC+(gm*2+st)*16
        UT=lambda st: ACC+((1-gm)*2+st)*16
        def hq(q,st,p):
            g=[GT(st)+4*q+r for r in range(4)]; u=[UT(st)+4*q+r for r in range(4)]
            for r in range(4):
                A.I(f'v_mul_f32 v{Z+r}, v{g[r]}, v{g[r]}')
                A.I(f'v_fma_f32 v{Z+r}, v{Z+r}, v{c2p+st}, v{c1p+st}')
                A.I(f'v_mul_f32 v{Z+r}, v{Z+r}, v{g[r]}')
            for r in range(4): A.I(f'v_exp_f32 v{Z+r}, v{Z+r}')
            for r in range(4):
                A.I(f'v_mul_f32 v{g[r]}, v{g[r]}, v{u[r]}')
                A.I(f'v_fma_f32 v{Z+r}, v{Z+r}, v{sd2+st}, v{sd2+st}')
            for r in range(4): A.I(f'v_rcp_f32 v{Z+r}, v{Z+r}')
            for r in range(4): A.I(f'v_mul_f32 v{g[r]}, v{g[r]}, v{Z+r}')
            A.I(f'v_cvt_pk_bf16_f32 v{p}, v{g[0]}, v{g[1]}')
            A.I(f'v_cvt_pk_bf16_f32 v{p+1}, v{g[2]}, v{g[3]}')
        def hpair(q,st,P):
            hq(q,st,P); hq(q+1,st,P+2)
            A.I(f'v_permlane32_swap_b32 v{P}, v{P+2}')
            A.I(f'v_permlane32_swap_b32 v{P+1}, v{P+3}')
            A.I(f'buffer_store_dwordx4 {v(P,4)}, v{vH[st]}, s[20:23], s60 offen{SC}')
        A.I(f's_mul_i32 s61, s34, 14\ns_lshl_b32 s39, s36, 2\ns_add_u32 s61, s61, s39\ns_lshl_b32 s61, s61, 15')
        A.I(f's_cmp_lg_u32 s36, 3\ns_cbranch_scc1 p1_noy{suf}')
        YT=WTr
        A.I(f"""
        s_lshl_b32 s39, s37, 12
        s_add_u32 s39, s39, {YSCR}
        v_lshlrev_b32 v{YT}, 10, v{half}
        v_lshl_add_u32 v{YT}, v{l32}, 2, v{YT}
        v_add_u32 v{YT}, s39, v{YT}
        v_lshlrev_b32 v{YT+1}, 4, v{L}
        v_add_u32 v{YT+1}, s39, v{YT+1}
        v_lshrrev_b32 v{YT+2}, 4, v{L}
        v_lshlrev_b32 v{YT+2}, 13, v{YT+2}
        v_and_b32 v{YT+3}, 15, v{L}
        v_lshl_add_u32 v{YT+2}, v{YT+3}, 4, v{YT+2}
        s_lshl_b32 s39, s33, 2
        v_add_u32 v{YT+2}, s39, v{YT+2}
        """)
        for q in (2,3):
            for st in range(2):
                for r in range(4):
                    G_=GT(st)+4*q+r; U=UT(st)+4*q+r
                    A.I(f'v_mul_f32 v{G_}, v{G_}, v{rr+st}')
                    A.I(f'v_mul_f32 v{U}, v{U}, v{rr+st}')
                    A.I(f'v_cvt_pk_bf16_f32 v{G_}, v{G_}, v{U}')
                    A.I(f'ds_write_b32 v{YT}, v{G_} offset:{(8*(q-2)+r)*256+(st^1)*128}')
        A.I('s_waitcnt lgkmcnt(0)')
        yr=lambda j: v(YT+4+4*j,4) if j<3 else v(PB+12,4)
        for j in range(4): A.I(f'ds_read_b128 {yr(j)}, v{YT+1} offset:{j*1024}')
        A.I('s_waitcnt lgkmcnt(0)')
        for j in range(4):
            A.I(f's_lshl_b32 s60, s34, 4\ns_add_u32 s60, s60, {4*j}\ns_lshl_b32 s60, s60, 13')
            A.I(f'buffer_store_dwordx4 {yr(j)}, v{YT+2}, s[24:27], s60 offen{SC}')
        A.I('s_mov_b32 s60, s61')
        for st in range(2): hpair(0,st,T+10 if st==0 else PB)
        A.I('s_branch p1_end')
        A.L(f'p1_noy{suf}')
        for q in (0,2):
            A.I(f's_add_u32 s60, s61, {q*32768}')
            for st in range(2): hpair(q,st,[T+10,PB,PB+4,PB+8][q+st])
        A.I('s_branch p1_end')
    A.I('s_cmp_lg_u32 s37, 0\ns_cbranch_scc1 p1_epi1')
    epi(0,'a')
    A.L('p1_epi1');
    epi(1,'b')
    A.L('p1_end')
    ST.mark(A)

def s2_phase(A):
    L,l,g,vY,vW,fl,fg4=1,2,3,4,5,6,7
    T=184
    Ya=16; Wv=24; C32R=32; C32I=48; C64R=64; C64I=80; T1c=96; T1s=104; T2c=112; T2s=120
    DR=128; DI=136; F=144; E=152
    vC=203
    A.I('s_waitcnt vmcnt(0)\ns_barrier')
    ST.mark(A)
    A.I(f'''
    s_sub_u32 s12, s32, 4
    v_and_b32 v{L}, 63, v0
    v_and_b32 v{l}, 15, v0
    v_bfe_u32 v{g}, v0, 4, 2
    v_mov_b32 v{vC}, {CTRL}
    s_lshl_b32 s33, s34, 4
    s_add_u32 s33, s33, s35          ; column k
    s_mov_b32 s47, 0
    ''')
    srd(A,8,4,OFF_YQ,256*8192)
    srd(A,16,4,OFF_WT,257*8192)
    srd(A,20,4,OFF_ZQ,257*8192)
    A.I(f'''
    s_lshl_b32 s13, s12, 11
    v_lshlrev_b32 v{vY}, 7, v{l}
    v_lshl_add_u32 v{vY}, v{g}, 4, v{vY}
    v_add_u32 v{vY}, s13, v{vY}
    v_lshlrev_b32 v{vW}, 4, v{l}
    v_lshl_add_u32 v{vW}, v{g}, 8, v{vW}
    v_add_u32 v{vW}, s13, v{vW}
    v_cvt_f32_u32 v{fl}, v{l}
    v_lshlrev_b32 v{T}, 2, v{g}
    v_cvt_f32_u32 v{fg4}, v{T}
    s_lshl_b32 s13, s12, 4
    v_cvt_f32_u32 v{T+1}, s13
    ''')
    f16w=T+1
    sc=1.0/(2048*512)
    A.I(f'''
    v_mul_f32 v{T+2}, {f2u(1/32)}, v{fl}
    v_add_f32 v{T+3}, 0.5, v{T+2}
    v_add_f32 v{T+4}, v{f16w}, v{fl}
    v_mul_f32 v{T+7}, {f2u(1/2048)}, v{T+4}
    v_mul_f32 v{T+4}, {f2u(1/64)}, v{T+4}
    v_mul_f32 v{T+5}, {f2u(1/2048)}, v{fl}
    v_add_f32 v{T+6}, {f2u(16/2048)}, v{T+5}
    v_add_f32 v{T+8}, v{f16w}, v{fg4}
    s_mov_b32 s46, {f2u(2*sc)}
    s_cmp_eq_u32 s33, 0
    s_cselect_b32 s46, {f2u(sc)}, s46
    v_mov_b32 v{vC+2}, s46
    ''')
    a_,c_,s_=T+9,T+10,T+11
    def cs_pack(ang,R,I):
        A.I(f'''
        v_cos_f32 v{c_}, v{ang}
        v_sin_f32 v{s_}, v{ang}
        v_cvt_pk_bf16_f32 v{R}, v{c_}, v{s_}
        v_cvt_pk_bf16_f32 v{I}, -v{s_}, v{c_}
        ''')
    fa=T+12
    for t in range(2):
        for q in range(4):
            A.I(f'v_add_f32 v{fa}, {f2u(16*t+q)}, v{fg4}')
            for nt in range(2):
                A.I(f'v_mul_f32 v{a_}, v{fa}, v{T+2+nt}')
                cs_pack(a_, C32R+(t*2+nt)*4+q, C32I+(t*2+nt)*4+q)
    for r in range(4):
        A.I(f'v_add_f32 v{fa}, {f2u(r)}, v{T+8}')
        for nt in range(2):
            A.I(f'''v_mul_f32 v{a_}, v{fa}, v{T+5+nt}
            v_cos_f32 v{T1c+nt*4+r}, v{a_}
            v_sin_f32 v{T1s+nt*4+r}, v{a_}''')
    for tp in range(4):
        for q in range(4):
            A.I(f'v_add_f32 v{fa}, {f2u(16*tp+q)}, v{fg4}')
            A.I(f'v_mul_f32 v{a_}, v{fa}, v{T+4}')
            cs_pack(a_, C64R+tp*4+q, C64I+tp*4+q)
    for it in range(2):
        for r in range(4):
            A.I(f'''v_add_f32 v{fa}, {f2u(16*it+r)}, v{fg4}
            v_mul_f32 v{a_}, v{fa}, v{T+7}
            v_cos_f32 v{T2c+it*4+r}, v{a_}
            v_sin_f32 v{T2s+it*4+r}, v{a_}
            v_mul_f32 v{T2c+it*4+r}, v{T2c+it*4+r}, v{vC+2}
            v_mul_f32 v{T2s+it*4+r}, v{T2s+it*4+r}, v{vC+2}''')
    vLw,vLr=T+13,T+14
    A.I(f'''
    v_lshlrev_b32 v{vLr}, 4, v{L}
    v_add_u32 v{vLr}, {EX}, v{vLr}
    s_lshl_b32 s13, s12, 11
    v_add_u32 v{vLw}, s13, v{vLr}
    s_lshl_b32 s13, s12, 2
    v_add_u32 v{vC+1}, s13, v{vC}
    s_mov_b32 s26, 0x80000000
    s_mov_b32 s27, 0x8000
    ''')
    if 'noprio' not in EXP: A.I('s_setprio 3')
    ST.mark(A)
    A.I('s_cmp_lg_u32 s32, 4\ns_cbranch_scc1 s2_w1')
    A.skip_begin()
    A.I(f's_add_u32 s59, s34, {C_Y}\ns_lshl_b32 s59, s59, 7\nv_mov_b32 v{E}, s59\nv_mov_b32 v{E+1}, 16')
    poll_cnt(A,E,E+1,E+2,1)
    if 'dbg' in EXP:
        A.I(f's_cmp_lg_u32 s2, 9\ns_cbranch_scc1 dbg1')
        A.I(f'v_mov_b32 v{E+4}, v{E}\nv_mov_b32 v{E+5}, v{E+1}\nv_mov_b32 v{E+6}, v{E+2}\nv_mov_b32 v{E+7}, s58\nv_mov_b32 v{E+8}, 32\ns_mov_b64 exec, 1\nglobal_store_dwordx4 v{E+8}, {v(E+4,4)}, s[54:55]\ns_mov_b64 exec, -1')
        A.L('dbg1')
    A.I(f'v_mov_b32 v{E}, 1\nds_write_b32 v{vC}, v{E} offset:8')
    A.skip_end(); A.L('s2_w1')
    lds_wait(A,vC,E,8,1)
    ST.mark(A)
    A.L('s2_col')
    if 'nos2' in EXP: A.I('s_branch s2_skip')
    A.I(f'''
    s_and_b32 s14, s33, 255
    s_lshl_b32 s14, s14, 13
    s_lshl_b32 s15, s33, 13
    buffer_load_dwordx4 {v(Ya,4)}, v{vY}, s[8:11], s14 offen{SC}
    buffer_load_dwordx4 {v(Ya+4,4)}, v{vY}, s[8:11], s14 offen offset:64{SC}
    buffer_load_dwordx4 {v(Wv,4)}, v{vW}, s[16:19], s15 offen{SC}
    buffer_load_dwordx4 {v(Wv+4,4)}, v{vW}, s[16:19], s15 offen offset:1024{SC}
    s_cmp_eq_u32 s33, 256
    s_cselect_b32 s24, 16, 0
    s_and_b32 s25, s33, 255
    s_cmp_eq_u32 s25, 0
    s_cselect_b32 s25, 0xffff, -1
    s_waitcnt vmcnt(2)
    ''')
    for i in range(8): A.I(f'v_lshrrev_b32 v{Ya+i}, s24, v{Ya+i}')
    for i in range(8): A.I(f'v_and_b32 v{Ya+i}, s25, v{Ya+i}')
    for nt in range(2):
        for t in range(2): mf16(A,DR+nt*4,Ya+t*4,C32R+(t*2+nt)*4,t==0)
        for t in range(2): mf16(A,DI+nt*4,Ya+t*4,C32I+(t*2+nt)*4,t==0)
    t0,t1=T+15,T+16
    def cmul_pack(dst,xr,xi,c,s,sign):
        A.I(f'v_mul_f32 v{t0}, v{xr}, v{c}')
        A.I(f'v_mul_f32 v{t1}, v{xi}, v{c}')
        if sign<0:
            A.I(f'v_fma_f32 v{t0}, v{xi}, v{s}, v{t0}'); A.I(f'v_fma_f32 v{t1}, -v{xr}, v{s}, v{t1}')
        else:
            A.I(f'v_fma_f32 v{t0}, -v{xi}, v{s}, v{t0}'); A.I(f'v_fma_f32 v{t1}, v{xr}, v{s}, v{t1}')
        A.I(f'v_cvt_pk_bf16_f32 v{dst}, v{t0}, v{t1}')
    def exchange(base,ph):
        for nt in range(2): A.I(f'ds_write_b128 v{vLw}, {v(F+nt*4,4)} offset:{base+nt*1024}')
        A.I(f's_add_u32 s46, s47, {ph}\nv_mov_b32 v{t0}, s46\nds_write_b32 v{vC+1}, v{t0} offset:16')
        lds_wait(A,vC,E,16,'s46',4)
        for tp in range(4):
            for nt in range(2): A.I(f'ds_read_b128 {v(E+(tp*2+nt)*4,4)}, v{vLr} offset:{base+(tp*2+nt)*1024}')
    for nt in range(2):
        for r in range(4): cmul_pack(F+nt*4+r,DR+nt*4+r,DI+nt*4+r,T1c+nt*4+r,T1s+nt*4+r,-1)
    exchange(0,1)
    for tp in range(4):
        A.I(f's_waitcnt lgkmcnt({6-2*tp})')
        for nt in range(2):
            mf16(A,DR+nt*4,C64R+tp*4,E+(tp*2+nt)*4,tp==0)
            mf16(A,DI+nt*4,C64I+tp*4,E+(tp*2+nt)*4,tp==0)
    A.I('s_waitcnt vmcnt(0)')
    wr,wi=T+17,T+18
    def conj(R,I):
        for i in range(16):
            A.I(f'v_xor_b32 v{R+i}, s26, v{R+i}'); A.I(f'v_xor_b32 v{I+i}, s27, v{I+i}')
    conj(C32R,C32I)
    for nt in range(2):
        for r in range(4):
            A.I(f'v_lshlrev_b32 v{wr}, 16, v{Wv+nt*4+r}')
            A.I(f'v_and_b32 v{wi}, 0xffff0000, v{Wv+nt*4+r}')
            cmul_pack(F+nt*4+r,DR+nt*4+r,DI+nt*4+r,wr,wi,+1)
    conj(C64R,C64I)
    exchange(8192,2)
    for tp in range(4):
        A.I(f's_waitcnt lgkmcnt({6-2*tp})')
        for it in range(2):
            mf16(A,DR+it*4,E+(tp*2+it)*4,C64R+tp*4,tp==0)
            mf16(A,DI+it*4,E+(tp*2+it)*4,C64I+tp*4,tp==0)
    for it in range(2):
        for r in range(4): cmul_pack(F+it*4+r,DR+it*4+r,DI+it*4+r,T2c+it*4+r,T2s+it*4+r,+1)
    for nt in range(2):
        for t in range(2): mf16(A,DR+nt*4,C32R+(t*2+nt)*4,F+t*4,t==0)
        for t in range(2): mf16(A,DI+nt*4,C32I+(t*2+nt)*4,F+t*4,t==0)
    for nt in range(2):
        for r in range(4): A.I(f'v_cvt_pk_bf16_f32 v{E+nt*4+r}, v{DR+nt*4+r}, v{DI+nt*4+r}')
        if 'nozst' not in EXP: A.I(f'buffer_store_dwordx4 {v(E+nt*4,4)}, v{vY}, s[20:23], s15 offen offset:{64*nt}{SC}')
    A.I('s_cmp_lg_u32 s33, 0\ns_cbranch_scc1 s2_nc')
    A.skip_begin()
    conj(C32R,C32I); conj(C64R,C64I)
    A.skip_end(); A.L('s2_nc')
    if 'nos2' in EXP: A.L('s2_skip')
    if 'one' in EXP: A.L('s2_skip2')
    A.I('s_waitcnt vmcnt(0)')
    A.I(f's_add_u32 s47, s47, 2\nv_mov_b32 v{t0}, s47\nds_write_b32 v{vC+1}, v{t0} offset:32')
    A.I('s_cmp_lg_u32 s32, 4\ns_cbranch_scc1 s2_w2')
    A.skip_begin()
    lds_wait(A,vC,E+8,32,'s47',4)
    cnt_base(A)
    A.I(f's_and_b32 s46, s33, 7\ns_add_u32 s46, s46, {C_Z}\nv_lshlrev_b32 v{E+8}, 3, v{L}\nv_add_u32 v{E+8}, s46, v{E+8}\nv_lshlrev_b32 v{E+8}, 7, v{E+8}\nv_mov_b32 v{E+9}, 1')
    A.I(f's_mov_b64 exec, {(1<<ZREP)-1}\nglobal_atomic_add v{E+8}, v{E+9}, s[62:63]{SC}\ns_mov_b64 exec, -1')
    A.skip_end(); A.L('s2_w2')
    if 'one' in EXP:
        A.I('s_cmp_lg_u32 s33, 0\ns_cbranch_scc1 s2_fin\ns_movk_i32 s33, 256\ns_branch s2_skip2')
    else:
        A.I('s_cmp_lg_u32 s33, 0\ns_cbranch_scc1 s2_fin\ns_movk_i32 s33, 256\ns_branch s2_col')
    A.L('s2_fin')
    A.I('s_setprio 0')
    ST.mark(A)
    A.I('s_cmp_lg_u32 s32, 4\ns_cbranch_scc1 s2_w3')
    A.skip_begin()
    lds_wait(A,vC,E,12,1)
    A.I(f's_and_b32 s46, s2, {ZREP-1}\ns_lshl_b32 s46, s46, 3\ns_add_u32 s46, s46, {C_Z}\nv_add_u32 v{E}, s46, v{L}\nv_lshlrev_b32 v{E}, 7, v{E}\nv_mov_b32 v{E+1}, 32\nv_cmp_eq_u32 vcc, 0, v{L}\nv_cndmask_b32 v{E+1}, v{E+1}, 33, vcc')
    poll_cnt(A,E,E+1,E+2,8)
    A.I(f'v_mov_b32 v{E}, 1\nds_write_b32 v{vC}, v{E} offset:4')
    A.skip_end(); A.L('s2_w3')
    ST.mark(A)
    A.I('s_waitcnt lgkmcnt(0)\ns_barrier')

def p3_phase(A, nh=28, nz=9, NB=8):
    L,half,l32=1,2,3
    vB=4; vZ=5; vX=9; vC=10; vAd=11; vAr=12; vLw=14; vLr=15
    XR=16; T=24; ACC=32; AF=96; BR=112; ZA=176
    A.I(f'''
    s_load_dwordx2 s[28:29], s[0:1], 56
    s_load_dwordx2 s[30:31], s[0:1], 48
    v_and_b32 v{L}, 63, v0
    v_and_b32 v{l32}, 31, v0
    v_bfe_u32 v{half}, v0, 5, 1
    v_mov_b32 v{vC}, {CTRL}
    s_mov_b32 s12, s32
    s_and_b32 s13, s2, 7
    s_lshr_b32 s14, s2, 3
    s_and_b32 s15, s13, 3
    s_lshl_b32 s15, s15, 3
    s_and_b32 s39, s14, 7
    s_add_u32 s15, s15, s39          ; sb
    s_lshr_b32 s13, s13, 2
    s_lshl_b32 s13, s13, 2
    s_lshr_b32 s14, s14, 3
    s_add_u32 s13, s13, s14          ; db
    s_and_b32 s36, s12, 1
    s_lshr_b32 s37, s12, 1
    ; A DMA voffset: (L/8)*1024 + c*16 + db*128 ; c = (L%8) ^ ((((L/8)>>1)&1)<<2)
    v_lshrrev_b32 v{T}, 3, v{L}
    v_bfe_u32 v{T+1}, v{L}, 4, 1
    v_lshlrev_b32 v{T+1}, 2, v{T+1}
    v_and_b32 v{T+2}, 7, v{L}
    v_xor_b32 v{T+2}, v{T+2}, v{T+1}
    v_lshlrev_b32 v{vAd}, 10, v{T}
    v_lshl_add_u32 v{vAd}, v{T+2}, 4, v{vAd}
    s_lshl_b32 s39, s13, 7
    v_add_u32 v{vAd}, s39, v{vAd}
    s_mul_i32 s44, s12, {nh*16*1024}
    s_mul_i32 s45, s12, {AREG}
    s_waitcnt lgkmcnt(0)
    ''')
    srd(A,8,30,0,1792*512*2)
    q=[]
    def dmaA(t):
        for j in range(2):
            A.I(f's_add_u32 m0, s45, {(t%NSL)*2048+j*1024}')
            A.I(f's_add_u32 s60, s44, {(t*16+j*8)*1024}')
            A.I(f'buffer_load_dwordx4 v{vAd}, s[8:11], s60 offen lds'); q.append(('A',t))
    srd(A,24,6,0,2048*512*2)
    srd(A,16,4,OFF_HP,224*32768)
    srd(A,20,4,OFF_ZQ,257*8192)
    srd(A,40,28,0,2048*512*2)
    A.I(f'''
    s_lshl_b32 s39, s15, 1
    s_add_u32 s39, s39, s37
    s_lshl_b32 s39, s39, 10
    s_lshl_b32 s31, s13, 7
    s_add_u32 s39, s39, s31
    s_lshl_b32 s31, s36, 6
    s_add_u32 s39, s39, s31
    v_lshlrev_b32 v{vX}, 16, v{l32}
    v_lshl_add_u32 v{vX}, v{half}, 3, v{vX}
    v_add_u32 v{vX}, s39, v{vX}
    ''')
    for i in range(4):
        A.I(f'buffer_load_dwordx2 {v(XR+2*i,2)}, v{vX}, s[24:27], 0 offen offset:{16*i}'); q.append('x')
    A.I(f's_waitcnt vmcnt({len(q)})\ns_barrier')
    ST.mark(A)
    A.I('s_cmp_lg_u32 s32, 0\ns_cbranch_scc1 p3_a1')
    A.skip_begin()
    A.I(f's_add_u32 s46, s35, {C_H}'); arrive(A,46,T)
    A.I(f's_add_u32 s46, s34, {C_Y}'); arrive(A,46,T)
    A.skip_end(); A.L('p3_a1')
    for t in range(NSL): dmaA(t)
    q.extend([])
    A.I(f'''
    s_lshl_b32 s39, s15, 10
    v_lshlrev_b32 v{vB}, 15, v{half}
    v_lshl_add_u32 v{vB}, v{l32}, 4, v{vB}
    v_add_u32 v{vB}, s39, v{vB}
    s_lshl_b32 s39, s15, 8
    v_lshlrev_b32 v{vZ}, 15, v{half}
    v_lshl_add_u32 v{vZ}, v{l32}, 2, v{vZ}
    v_add_u32 v{vZ}, s39, v{vZ}
    v_add_u32 v{vZ+1}, 0x2000, v{vZ}
    v_add_u32 v{vZ+2}, 0x4000, v{vZ}
    v_add_u32 v{vZ+3}, 0x6000, v{vZ}
    s_mul_i32 s46, s12, {nh*65536}
    s_lshl_b32 s39, s37, 9
    s_add_u32 s47, s46, 512
    s_sub_u32 s47, s47, s39
    s_add_u32 s46, s46, s39
    s_mul_i32 s52, s12, {nz*65536}
    s_lshl_b32 s39, s37, 7
    s_add_u32 s53, s52, 128
    s_sub_u32 s53, s53, s39
    s_add_u32 s52, s52, s39
    ; tr-read bases. G=L/16,l16: r4=(L>>2)&3,c4=L&3 ; row=8(G/2)+r4 ; chunk=4a+2(G%2)+c4/2 ; p=chunk^(((r4>>1)&1)<<2)
    v_lshrrev_b32 v{T}, 5, v{L}
    v_lshlrev_b32 v{T}, 3, v{T}
    v_bfe_u32 v{T+1}, v{L}, 2, 2
    v_add_u32 v{T}, v{T}, v{T+1}
    v_lshlrev_b32 v{T}, 7, v{T}              ; row*128
    v_bfe_u32 v{T+2}, v{L}, 4, 1
    v_lshlrev_b32 v{T+2}, 1, v{T+2}
    v_bfe_u32 v{T+3}, v{L}, 1, 1
    v_add_u32 v{T+2}, v{T+2}, v{T+3}
    s_lshl_b32 s39, s36, 2
    v_add_u32 v{T+2}, s39, v{T+2}
    v_bfe_u32 v{T+3}, v{L}, 3, 1             ; (r4>>1)&1
    v_lshlrev_b32 v{T+3}, 2, v{T+3}
    v_xor_b32 v{T+2}, v{T+2}, v{T+3}
    v_lshl_add_u32 v{T}, v{T+2}, 4, v{T}
    v_and_b32 v{T+3}, 1, v{L}
    v_lshl_add_u32 v{T}, v{T+3}, 3, v{T}
    v_add_u32 v{vAr}, s45, v{T}
    v_xor_b32 v{T}, 64, v{T}
    v_add_u32 v{vAr+1}, s45, v{T}
    ''')
    A.I(f'''
    s_lshl_b32 s39, s13, 6
    s_lshl_b32 s31, s36, 5
    s_add_u32 s39, s39, s31
    v_add_u32 v{T}, s39, v{l32}
    v_cvt_f32_u32 v{T}, v{T}
    v_mul_f32 v{T}, {f2u(1/512)}, v{T}
    v_xor_b32 v{T+1}, 32, v{l32}
    s_lshl_b32 s39, s13, 6
    s_xor_b32 s31, s31, 32
    s_add_u32 s39, s39, s31
    v_add_u32 v{T+1}, s39, v{l32}
    v_cvt_f32_u32 v{T+1}, v{T+1}
    v_mul_f32 v{T+1}, {f2u(1/512)}, v{T+1}
    s_mul_i32 s39, s12, {nz*8}
    v_lshlrev_b32 v{T+2}, 2, v{half}
    v_add_u32 v{T+2}, s39, v{T+2}
    v_cvt_f32_u32 v{T+2}, v{T+2}             ; k base
    ''')
    ZT=248
    A.I(f'v_mov_b32 v{ZT}, v{T}\nv_mov_b32 v{ZT+1}, v{T+1}\nv_mov_b32 v{ZT+2}, v{T+2}')
    zitems=[]
    for i in range(nz):
        for qq in range(4):
            def zf(i=i,qq=qq):
                A.I(f'v_add_f32 v{ZT+3}, {f2u(8*i+qq)}, v{ZT+2}')
                for ar in range(2):
                    A.I(f'v_mul_f32 v{ZT+4+ar}, v{ZT+3}, v{ZT+ar}\nv_fract_f32 v{ZT+4+ar}, v{ZT+4+ar}')
                for ar in range(2):
                    A.I(f'v_cos_f32 v{ZT+6}, v{ZT+4+ar}\nv_sin_f32 v{ZT+7}, v{ZT+4+ar}\nv_cvt_pk_bf16_f32 v{ZA+i*8+ar*4+qq}, v{ZT+6}, -v{ZT+7}')
            zitems.append(zf)
    ST.mark(A)
    A.I('s_cmp_lg_u32 s32, 0\ns_cbranch_scc1 p3_w1')
    A.skip_begin()
    A.I(f's_lshr_b32 s59, s15, 1\ns_add_u32 s59, s59, {C_H}\ns_lshl_b32 s59, s59, 7\nv_mov_b32 v{T}, s59\nv_mov_b32 v{T+1}, 16')
    poll_cnt(A,T,T+1,T+2,1)
    A.I(f'v_mov_b32 v{T}, 1\nds_write_b32 v{vC}, v{T}')
    A.skip_end(); A.L('p3_w1')
    lds_wait(A,vC,T,0,1)
    ST.mark(A)
    n=nh+nz
    def issueB(i):
        sl=BR+(i%NB)*8
        if i<nh:
            A.I(f'buffer_load_dwordx4 {v(sl,4)}, v{vB}, s[16:19], s46 offen{SCB}')
            A.I(f'buffer_load_dwordx4 {v(sl+4,4)}, v{vB}, s[16:19], s47 offen{SCB}')
            q.extend([('B',i)]*2)
            A.I('s_add_u32 s46, s46, 65536\ns_add_u32 s47, s47, 65536')
        else:
            if i==nh:
                if 'fine' not in EXP: ST.mark(A)
                lds_wait(A,vC,T,4,1)
                if 'fine' not in EXP: ST.mark(A)
            for k in range(4): A.I(f'buffer_load_dword v{sl+k}, v{vZ+k}, s[20:23], s52 offen{SC}')
            for k in range(4): A.I(f'buffer_load_dword v{sl+4+k}, v{vZ+k}, s[20:23], s53 offen{SC}')
            q.extend([('B',i)]*8)
            A.I('s_add_u32 s52, s52, 65536\ns_add_u32 s53, s53, 65536')
    def vwait(*tags):
        idx=[k for k,x in enumerate(q) if x in tags]
        if not idx: return
        N=len(q)-1-max(idx); del q[:max(idx)+1]
        A.I(f's_waitcnt vmcnt({min(N,63)})')
    def readsA(t):
        f=AF+(t%2)*8
        for ar in range(2):
            for rd in range(2):
                A.I(f'ds_read_b64_tr_b16 {v(f+ar*4+rd*2,2)}, v{vAr+ar} offset:{(t%NSL)*2048+rd*512}')
    nxt=0
    ZAT=nh-3; ZP=nh-8
    for k in range(NB):
        issueB(nxt); nxt+=1
    vwait(('A',0)); readsA(0)
    for i in range(n):
        vwait(('B',i),('A',i+1))
        if 'p3steps' in EXP and i in ((0,4,10,17,24) if 'fine' not in EXP else (2,4,5,6,7,8,9,10,12)): ST.mark(A)
        if i<nh: A.I('s_waitcnt lgkmcnt(0)')
        if i+1<nh: readsA(i+1)
        sl=BR+(i%NB)*8
        for brr in range(2):
            for ar in range(2):
                a=AF+(i%2)*8+ar*4 if i<nh else ZA+(i-nh)*8+ar*4
                mf32(A,ACC+(ar+2*brr)*16,a,sl+brr*4,i==0)
        if i<nh and 'nozgen' not in EXP:
            for zf in zitems[(i*len(zitems))//(nh-2) if i<nh-2 else len(zitems):((i+1)*len(zitems))//(nh-2) if i+1<=nh-2 else len(zitems)]: zf()
        if i==ZP:
            A.I(f'v_mov_b32 v{T}, 1\nds_write_b32 v{vC}, v{T} offset:12')
        if i+NSL<nh and 'noA2' not in EXP: dmaA(i+NSL)
        while nxt<n and nxt<=i+NB and not (nxt>=nh and i<ZAT) and len(q)+(2 if nxt<nh else 8)<=60:
            issueB(nxt); nxt+=1
        assert nxt>i+1 or nxt==n
    ST.mark(A)
    A.I(f'v_lshlrev_b32 v{vLw}, 4, v{L}\nv_add_u32 v{vLw}, s45, v{vLw}')
    for j in range(1,4):
        for c in range(4): A.I(f'ds_write_b128 v{vLw}, {v(ACC+j*16+c*4,4)} offset:{(j-1)*4096+c*1024}')
    A.I('s_waitcnt lgkmcnt(0)\ns_barrier')
    for j in range(1,4):
        A.I(f's_xor_b32 s39, s12, {j}\ns_mul_i32 s39, s39, {AREG}\nv_lshlrev_b32 v{vLr}, 4, v{L}\nv_add_u32 v{vLr}, s39, v{vLr}')
        for c in range(4): A.I(f'ds_read_b128 {v(BR+(j-1)*16+c*4,4)}, v{vLr} offset:{(j-1)*4096+c*1024}')
    for j in range(3):
        A.I(f's_waitcnt lgkmcnt({8-4*j})')
        for i in range(16): A.I(f'v_add_f32 v{ACC+i}, v{ACC+i}, v{BR+j*16+i}')
    for qq in range(4):
        x0,x1=XR+2*qq,XR+2*qq+1
        A.I(f'''v_lshlrev_b32 v{T}, 16, v{x0}
        v_and_b32 v{T+1}, 0xffff0000, v{x0}
        v_lshlrev_b32 v{T+2}, 16, v{x1}
        v_and_b32 v{T+3}, 0xffff0000, v{x1}''')
        for r in range(4): A.I(f'v_add_f32 v{ACC+4*qq+r}, v{ACC+4*qq+r}, v{T+r}')
        A.I(f'v_cvt_pk_bf16_f32 v{x0}, v{ACC+4*qq}, v{ACC+4*qq+1}')
        A.I(f'v_cvt_pk_bf16_f32 v{x1}, v{ACC+4*qq+2}, v{ACC+4*qq+3}')
        A.I(f'buffer_store_dwordx2 {v(x0,2)}, v{vX}, s[40:43], 0 offen offset:{16*qq}')

NAME='parallel_sum__spectral_gfnet__glu_gated_geglu__prompt'
HDR=open('cdna_kernels/'+NAME+'.s.ref').read().split('; Override')[0]
def full():
    A=Asm(); K=NAME+'_kernel'
    A.raw(HDR.rstrip())
    A.raw(f'; @launch grid=(256,1,1) block=(512,1,1) lds={LDS_TOTAL}')
    A.raw('.amdgcn_target "amdgcn-amd-amdhsa--gfx950"\n.text')
    A.raw(f'.globl {K}\n.p2align 8\n.type {K},@function'); A.L(K)
    A.I('s_cmp_ge_u32 s2, 256\ns_cbranch_scc1 k_done')
    A.I('''s_load_dwordx2 s[4:5], s[0:1], 72
    s_load_dwordx2 s[6:7], s[0:1], 0
    s_load_dwordx2 s[28:29], s[0:1], 32
    s_load_dwordx2 s[30:31], s[0:1], 40
    s_load_dwordx2 s[54:55], s[0:1], 64
    s_load_dwordx2 s[40:41], s[0:1], 8
    s_load_dwordx2 s[44:45], s[0:1], 16
    v_lshrrev_b32 v1, 6, v0
    s_nop 0
    v_readfirstlane_b32 s32, v1
    s_waitcnt lgkmcnt(0)''')
    ST.mark(A)
    p1_body(A)
    if 'p1only' in EXP:
        A.I('s_waitcnt vmcnt(0)'); ST.mark(A); ST.dump(A); A.I('s_endpgm')
    n0=ST.n
    A.I('s_cmp_ge_u32 s32, 4\ns_cbranch_scc1 k_s2')
    A.fence()
    p3_phase(A)
    if STAMP: A.I('s_waitcnt vmcnt(0)')
    ST.mark(A)
    ST.dump(A)
    A.I('s_endpgm')
    A.L('k_s2'); A.fence()
    ST.n=n0
    s2_phase(A)
    ST.mark(A)
    ST.dump(A)
    A.L('k_done'); A.I('s_endpgm')
    txt=A.finalize()
    txt+=f'''.section .rodata,"a"
.p2align 6
.amdhsa_kernel {K}
  .amdhsa_next_free_vgpr 256
  .amdhsa_next_free_sgpr 100
  .amdhsa_accum_offset 256
  .amdhsa_group_segment_fixed_size 0
  .amdhsa_kernarg_size 80
  .amdhsa_user_sgpr_count 2
  .amdhsa_user_sgpr_kernarg_segment_ptr 1
  .amdhsa_system_sgpr_workgroup_id_x 1
  .amdhsa_float_denorm_mode_32 3
.end_amdhsa_kernel
'''
    return txt
if __name__=='__main__':
    if len(sys.argv)>2 and sys.argv[2]=='stamp': STAMP=True
    if len(sys.argv)>3: EXP=set(sys.argv[3].split(','))
    if 'perm' in EXP: SB[1],SB[2]=SB[2],SB[1]
    if 'sb16' in EXP: SB[1]=49152+4096; SB[2]=98304+8192
    if 'plainB' in EXP: SCB=''
    if 'pollsc1' in EXP: SCP=' sc1'
    if 'nos2' in EXP: pass
    open(sys.argv[1],'w').write(full())
```

```python
import sys, struct, math
from asmlib import *
OFF_HP=0; OFF_ZQ=0x700000; OFF_YQ=0x940000; OFF_WT=0xB40000
OFF_CNT=0x1000000; OFF_RS=0x1018000; OFF_CSP=0x1040000; OFF_TS=0x2000000
C_RS=0; C_CS=16; C_H=32; C_Y=48; C_Z=64; ZREP=16; C_N=64+ZREP*8; NCNT=256
SLOT=49152; XS=0; GS=16384; US=32768
SB=[0,49152,98304]
YSCR=3*SLOT
LDS_TOTAL=163840; CTRL=LDS_TOTAL-256; STAT=CTRL-1024
NSL=17; AREG=NSL*2048
EX=4*AREG
STAMP=False; EXP=set(); PACE=0
SC=' sc1'
SCB=' sc1'
SCP=' sc1'
def f2u(x): return '0x%08x'%struct.unpack('<I',struct.pack('<f',x))[0]
class Stamps:
    def __init__(s): s.n=0
    def mark(s,A):
        if not STAMP or s.n>=15: return
        A.I(f's_{"memtime" if "clk" in EXP else "memrealtime"} s[{66+2*s.n}:{67+2*s.n}]'); s.n+=1
    def dump(s,A,n=None):
        if not STAMP: return
        n=s.n if n is None else n
        A.I('s_waitcnt lgkmcnt(0) vmcnt(0)')
        A.I(f's_lshl_b32 s60, s2, 3\ns_add_u32 s60, s60, s32\ns_lshl_b32 s60, s60, 7\ns_add_u32 s60, s60, {hex(OFF_TS)}')
        A.I(f's_add_u32 s96, s4, s60\ns_addc_u32 s97, s5, 0')
        A.I('v_mov_b32 v246, 0')
        for i in range(n):
            A.I(f'v_mov_b32 v244, s{66+2*i}\nv_mov_b32 v245, s{67+2*i}')
            A.I(f'global_store_dwordx2 v246, v[244:245], s[96:97] offset:{8*i}')
            A.I('s_nop 1')
ST=Stamps()
def srd(A,dst,base,off,size):
    if off:
        A.I(f's_add_u32 s{dst}, s{base}, {hex(off)}'); A.I(f's_addc_u32 s{dst+1}, s{base+1}, 0')
    else:
        A.I(f's_mov_b32 s{dst}, s{base}'); A.I(f's_mov_b32 s{dst+1}, s{base+1}')
    A.I(f's_mov_b32 s{dst+2}, {hex(size)}'); A.I(f's_mov_b32 s{dst+3}, 0x20000')
def mf16(A,D,a,b,first):
    A.I(f'v_mfma_f32_16x16x32_bf16 {v(D,4)}, {v(a,4)}, {v(b,4)}, {"0" if first else v(D,4)}')
def mf32(A,D,a,b,first=False):
    A.I(f'v_mfma_f32_32x32x16_bf16 {v(D,16)}, {v(a,4)}, {v(b,4)}, {"0" if first else v(D,16)}')
_lab=[0]
def newlab(p):
    _lab[0]+=1; return f'{p}_{_lab[0]}'
SPIN_MAX=0x20000
def lds_wait(A,vaddr,vtmp,off,val,n=1):
    l=newlab('lw'); d=newlab('ld')
    A.I('s_mov_b32 s58, 0'); A.L(l)
    if n==1:
        A.I(f'ds_read_b32 v{vtmp}, v{vaddr} offset:{off}\ns_waitcnt lgkmcnt(0)')
    else:
        A.I(f'ds_read_b128 {v(vtmp,4)}, v{vaddr} offset:{off}\ns_waitcnt lgkmcnt(0)')
        A.I(f'v_min_u32 v{vtmp}, v{vtmp}, v{vtmp+1}\nv_min_u32 v{vtmp+2}, v{vtmp+2}, v{vtmp+3}\nv_min_u32 v{vtmp}, v{vtmp}, v{vtmp+2}')
    A.I(f'v_readfirstlane_b32 s59, v{vtmp}')
    A.I(f's_cmp_ge_u32 s59, {val}\ns_cbranch_scc1 {d}')
    A.I(f's_add_u32 s58, s58, 1\ns_cmp_lt_u32 s58, {SPIN_MAX}\ns_cbranch_scc1 {l}')
    A.L(d)
def cnt_base(A):
    A.I(f's_add_u32 s62, s4, {hex(OFF_CNT)}\ns_addc_u32 s63, s5, 0')
def arrive(A,sidx,vt):
    cnt_base(A)
    A.I(f's_lshl_b32 s59, s{sidx}, 7\nv_mov_b32 v{vt}, s59\nv_mov_b32 v{vt+1}, 1\ns_mov_b64 exec, 1')
    A.I(f'global_atomic_add v{vt}, v{vt+1}, s[62:63]{SC}')
    A.I('s_mov_b64 exec, -1')
def poll_cnt(A,voff,vexp,vt,nl,first_loaded=False):
    l=newlab('pc'); d=newlab('pd'); c=newlab('pk')
    cnt_base(A)
    A.I(f's_mov_b32 s58, 0\ns_mov_b64 exec, {(1<<nl)-1}')
    if first_loaded: A.I(f's_branch {c}')
    A.L(l)
    A.I(f'global_load_dword v{vt}, v{voff}, s[62:63]{SCP}\ns_waitcnt vmcnt(0)')
    A.L(c)
    A.I(f'v_cmp_ne_u32 vcc, v{vt}, v{vexp}\ns_cbranch_vccz {d}')
    if 'sleep' in EXP: A.I('s_sleep 32')
    A.I(f's_add_u32 s58, s58, 1\ns_cmp_lt_u32 s58, {SPIN_MAX>>4}\ns_cbranch_scc1 {l}')
    A.L(d)
    A.I('s_mov_b64 exec, -1')

def p1_body(A):
    L,half,l32=1,2,3
    vX0,vX1,vW=4,5,6
    vAr=8; vBr=12
    csr=24; ones=28
    AFR=32; BFR=48
    T=80
    RSL=104; RSV=108
    vHo=112
    ACC=128
    vFw=8; fu=12; kb=13; kmask=14; FB=32; FO=48; SV=128; ST2=56; WTr=60; vWTs=76; vWTd=77; CSL=160; RD=20; FP=22
    PB=192
    tile=lambda m,st: ACC+(st>>1)*64+(m*2+(st&1))*16
    A.I(f"""
    v_and_b32 v{L}, 63, v0
    v_and_b32 v{l32}, 31, v0
    v_bfe_u32 v{half}, v0, 5, 1
    s_and_b32 s33, s2, 7
    s_lshr_b32 s34, s2, 3
    s_and_b32 s35, s33, 1
    s_lshl_b32 s35, s35, 3
    s_and_b32 s36, s34, 7
    s_add_u32 s35, s35, s36              ; rb
    s_lshr_b32 s33, s33, 1
    s_lshl_b32 s33, s33, 2
    s_lshr_b32 s34, s34, 3
    s_add_u32 s34, s33, s34              ; cb
    s_and_b32 s36, s32, 3                ; fq (C) / h (H)
    s_lshr_b32 s37, s32, 2               ; sh
    s_lshr_b32 s49, s35, 1               ; s0 (K rotation)
    s_cmp_lt_u32 s32, 4
    s_cbranch_scc1 p1_roleC
    """)
    NST=8
    def spread_into(G,items,lo,hi):
        n=hi-lo
        for j,it in enumerate(items): G[lo+min(j*n//max(len(items),1),n-1)].append(it)
    want=lambda i: i in ((0,1,2,3,4,5,6,7) if 'allB' in EXP else (1,2,3,4,5) if 'bw' in EXP else (() if ('p3steps' in EXP or 's2fine' in EXP) else (0,4)))
    n_st=ST.n
    vq=[]
    srd(A,8,6,0,2048*512*2)
    srd(A,12,28,0,512*1792*2)
    srd(A,16,30,0,512*1792*2)
    mask=0
    for Ln in range(64):
        c=(Ln%16)^((Ln//16)<<2)
        if c<14: mask|=1<<Ln
    A.I(f"""
    s_mov_b32 s50, {hex(mask&0xffffffff)}
    s_mov_b32 s51, {hex(mask>>32)}
    s_lshl_b32 s38, s36, 12              ; h*4096
    v_lshrrev_b32 v{T}, 3, v{L}
    v_lshlrev_b32 v{T}, 16, v{T}
    s_lshl_b32 s60, s35, 2
    s_add_u32 s60, s60, s36
    s_lshl_b32 s60, s60, 10
    v_add_u32 v{T}, s60, v{T}
    v_and_b32 v{T+1}, 7, v{L}
    v_lshrrev_b32 v{T+2}, 4, v{L}
    v_xor_b32 v{T+1}, v{T+1}, v{T+2}
    v_lshl_add_u32 v{vX0}, v{T+1}, 4, v{T}
    v_xor_b32 v{vX1}, 64, v{vX0}
    s_lshl_b32 s60, s36, 4
    v_add_u32 v{T+1}, s60, v{T+2}
    s_movk_i32 s60, 3584
    v_mul_lo_u32 v{T+1}, v{T+1}, s60
    v_and_b32 v{T+3}, 15, v{L}
    v_lshlrev_b32 v{T+2}, 2, v{T+2}
    v_xor_b32 v{T+3}, v{T+3}, v{T+2}
    v_lshl_add_u32 v{vW}, v{T+3}, 4, v{T+1}
    s_mul_i32 s60, s34, 224
    v_add_u32 v{vW}, s60, v{vW}
    """)
    def dma(stage):
        slot=SB[stage%3]
        A.I(f's_add_u32 s52, s49, {stage}\ns_and_b32 s52, s52, 7\ns_mul_i32 s53, s52, {64*3584}\ns_lshl_b32 s52, s52, 7')
        for i in range(4):
            A.I(f's_add_u32 m0, s38, {slot+XS+i*1024}')
            A.I(f's_add_u32 s60, s52, {i*524288}')
            A.I(f'buffer_load_dwordx4 v{vX0+(i&1)}, s[8:11], s60 offen lds'); vq.append(stage)
            if PACE and stage>1: A.I(f's_sleep {PACE}')
            A.I(f's_add_u32 s60, s53, {i*14336}\ns_mov_b64 exec, s[50:51]')
            for m in range(2):
                A.I(f's_add_u32 m0, s38, {slot+(US if m else GS)+i*1024}\ns_nop 0')
                A.I(f'buffer_load_dwordx4 v{vW}, s[{12+4*m}:{15+4*m}], s60 offen lds'); vq.append(stage)
                if PACE and stage>1: A.I(f's_sleep {PACE}')
            A.I('s_mov_b64 exec, -1')
    def vwait(tag,lg=False):
        idx=[k for k,x in enumerate(vq) if x==tag]
        if not idx:
            if lg: A.I('s_waitcnt lgkmcnt(0)')
            return
        N=len(vq)-1-max(idx); del vq[:max(idx)+1]
        A.I(f's_waitcnt vmcnt({min(N,63)})'+(' lgkmcnt(0)' if lg else ''))
    dma(0)
    A.I(f"""
    s_lshl_b32 s33, s34, 3
    s_lshl_b32 s60, s36, 1
    s_add_u32 s33, s33, s60
    s_lshl_b32 s60, s35, 7
    s_add_u32 s64, s60, s33
    v_lshlrev_b32 v{T}, 4, v{L}
    """)
    for n in range(2):
        A.I(f"""s_add_u32 s60, s64, {n}
        s_and_b32 s61, s60, 31
        s_lshl_b32 s61, s61, 6
        s_lshr_b32 s60, s60, 5
        s_add_u32 s60, s60, s61
        s_lshl_b32 s60, s60, 10
        buffer_load_dwordx4 {v(SV+4*n,4)}, v{T}, s[8:11], s60 offen"""); vq.append('row')
    dma(1)
    A.I('s_cmp_lt_u32 s32, 6\ns_cbranch_scc1 p1H_nf')
    A.skip_begin()
    A.I(f"""
    s_and_b32 s39, s32, 1
    s_lshl_b32 s33, s49, 6
    s_lshl_b32 s60, s39, 5
    s_add_u32 s33, s33, s60
    v_add_u32 v{T+2}, s33, v{l32}
    v_cvt_f32_u32 v{fu}, v{T+2}
    v_mul_f32 v{fu}, {f2u(1/512)}, v{fu}
    s_lshl_b32 s33, s34, 4
    v_lshlrev_b32 v{T+3}, 3, v{half}
    v_add_u32 v{T+3}, s33, v{T+3}
    v_cvt_f32_u32 v{kb}, v{T+3}
    v_mov_b32 v{kmask}, 0xffff
    """)
    for b_ in range(2):
        if b_==1: A.I(f'v_add_f32 v{fu}, {f2u(0.125)}, v{fu}\nv_fract_f32 v{fu}, v{fu}')
        A.I(f'v_mul_f32 v{T+4}, v{fu}, v{kb}')
        for j in range(4):
            A.I(f'v_cos_f32 v{T+6}, v{T+4}\nv_sin_f32 v{T+8}, v{T+4}\nv_add_f32 v{T+4}, v{T+4}, v{fu}')
            A.I(f'v_cos_f32 v{T+7}, v{T+4}\nv_sin_f32 v{T+9}, v{T+4}\nv_add_f32 v{T+4}, v{T+4}, v{fu}')
            A.I(f'v_cvt_pk_bf16_f32 v{FB+8*b_+j}, v{T+6}, v{T+7}')
            A.I(f'v_cvt_pk_bf16_f32 v{FB+8*b_+4+j}, -v{T+8}, -v{T+9}')
        A.I(f"""v_and_b32 v{T+5}, 1, v{l32}
        v_lshlrev_b32 v{T+5}, 15, v{T+5}
        v_or_b32 v{T+5}, 0x3f80, v{T+5}
        v_bfi_b32 v{T+5}, v{kmask}, v{T+5}, v{FB+8*b_+4}
        v_cmp_eq_u32 vcc, 0, v{T+3}
        v_cndmask_b32 v{FB+8*b_+4}, v{FB+8*b_+4}, v{T+5}, vcc""")
    A.I(f"""
    s_lshl_b32 s60, s39, 5
    v_add_u32 v{T+2}, s60, v{l32}
    v_and_b32 v{T+3}, 3, v{T+2}
    v_lshlrev_b32 v{T+3}, 2, v{T+3}
    v_add_u32 v{T+4}, 14, v{half}
    v_xor_b32 v{T+3}, v{T+3}, v{T+4}
    v_lshlrev_b32 v{T+3}, 4, v{T+3}
    v_lshl_add_u32 v{T+3}, v{T+2}, 8, v{T+3}
    v_add_u32 v{vFw}, {GS+SB[0]}, v{T+3}
    v_add_u32 v{vFw+1}, {GS+SB[1]}, v{T+3}
    v_add_u32 v{vFw+2}, {GS+SB[2]}, v{T+3}
    """)
    A.skip_end(); A.L('p1H_nf')
    flab=[0]
    def fgen(stage):
        flab[0]+=1; l=f'p1H_fg{flab[0]}'
        A.I(f's_cmp_lt_u32 s32, 6\ns_cbranch_scc1 {l}')
        A.skip_begin()
        slot=stage%3; b_=stage&1; t=(stage>>1)&3; B0=FB+8*b_
        def wr(m,src): A.I(f'ds_write_b128 v{vFw+slot}, {v(src,4)} offset:{m*16384}')
        if t==0:
            wr(0,B0); wr(1,B0+4)
        elif t==2:
            for m in range(2):
                for j in range(4): A.I(f'v_xor_b32 v{FO+4*m+j}, 0x80000000, v{B0+4*m+j}')
                wr(m,FO+4*m)
        else:
            ex=0 if t==1 else 0x80000000
            for m in range(2):
                for j in range(4):
                    own=B0+4*m+j; oth=B0+4*(1-m)+j
                    A.I(f'v_bfi_b32 v{FO+4*m+j}, v{kmask}, v{own}, v{oth}')
                    if m==0: sg=(0 if j%2==0 else 0x80008000)
                    else: sg=(0x80000000 if j%2==0 else 0x8000)
                    sg^=ex
                    if sg: A.I(f'v_xor_b32 v{FO+4*m+j}, {hex(sg)}, v{FO+4*m+j}')
                wr(m,FO+4*m)
        A.skip_end(); A.L(l)
    A.I('s_cmp_lg_u32 s2, 0\ns_cbranch_scc1 p1H_non\ns_cmp_lg_u32 s32, 7\ns_cbranch_scc1 p1H_non')
    A.skip_begin()
    cnt_base(A)
    A.I(f'v_lshlrev_b32 v{T}, 7, v{L}\nv_mov_b32 v{T+1}, 0')
    for j in range(NCNT//64):
        A.I(f'global_store_dword v{T}, v{T+1}, s[62:63]{SC}\nv_add_u32 v{T}, {64*128}, v{T}')
    A.I('s_mov_b64 exec, 1')
    A.I(f's_waitcnt vmcnt(0)\nv_mov_b32 v{T}, 0\nv_mov_b32 v{T+1}, 1\nglobal_store_dword v{T}, v{T+1}, s[54:55]{SC}\ns_mov_b64 exec, -1')
    A.skip_end(); A.L('p1H_non')
    def rowstats():
        U=T+14; S=ST2
        vwait('row')
        for i in range(4):
            for n in range(2):
                u=U+2*n
                A.I(f'v_lshlrev_b32 v{u}, 16, v{SV+4*n+i}\nv_and_b32 v{u+1}, 0xffff0000, v{SV+4*n+i}')
                if i==0: A.I(f'v_add_f32 v{S+2*n}, v{u}, v{u+1}\nv_mul_f32 v{S+2*n+1}, v{u}, v{u}')
                else: A.I(f'v_add_f32 v{S+2*n}, v{S+2*n}, v{u}\nv_fmac_f32 v{S+2*n+1}, v{u}, v{u}\nv_add_f32 v{S+2*n}, v{S+2*n}, v{u+1}')
                A.I(f'v_fmac_f32 v{S+2*n+1}, v{u+1}, v{u+1}')
        for ror in (8,4,2,1):
            for x in range(S,S+4): A.I(f'v_add_f32_dpp v{x}, v{x}, v{x} row_ror:{ror} row_mask:0xf bank_mask:0xf')
        for op in ('v_permlane16_swap_b32','v_permlane32_swap_b32'):
            for k in range(4): A.I(f'v_mov_b32 v{U+k}, v{S+k}')
            for k in range(4): A.I(f'{op} v{S+k}, v{U+k}')
            for k in range(4): A.I(f'v_add_f32 v{S+k}, v{S+k}, v{U+k}')
        A.I(f"""
        v_and_b32 v{U}, 1, v{L}
        v_cmp_eq_u32 vcc, 1, v{U}
        v_cndmask_b32 v{S}, v{S}, v{S+2}, vcc
        v_cndmask_b32 v{S+1}, v{S+1}, v{S+3}, vcc
        v_mul_f32 v{U}, {f2u(1/512)}, v{S}
        v_mul_f32 v{U+1}, {f2u(1/512)}, v{S+1}
        v_fma_f32 v{U+1}, -v{U}, v{U}, v{U+1}
        v_max_f32 v{U+1}, 0, v{U+1}
        v_cvt_pk_bf16_f32 v{U}, v{U}, v{U+1}
        v_and_b32 v{U+1}, 0xffff0000, v{U}
        v_lshlrev_b32 v{U}, 16, v{U}
        v_sub_f32 v{S}, 0, v{U}
        v_add_f32 v{U+1}, {f2u(1e-5)}, v{U+1}
        v_cvt_pk_bf16_f32 v{U+1}, v{U+1}, v{U+1}
        v_and_b32 v{U+1}, 0xffff0000, v{U+1}
        v_sqrt_f32 v{U+1}, v{U+1}
        v_cvt_pk_bf16_f32 v{U+1}, v{U+1}, v{U+1}
        v_and_b32 v{S+1}, 0xffff0000, v{U+1}
        s_lshl_b32 s60, s64, 3
        s_add_u32 s60, s60, {OFF_RS}
        s_add_u32 s62, s4, s60
        s_addc_u32 s63, s5, 0
        v_lshlrev_b32 v{U}, 3, v{L}
        s_mov_b64 exec, 3
        global_store_dwordx2 v{U}, {v(S,2)}, s[62:63]{SC}
        s_mov_b64 exec, -1
        """); vq.append('st')
    WV=128
    wS=76; wD=77
    def wt_job_loads():
        A.I(f"""
        v_and_b32 v{wD}, 255, v0
        v_lshrrev_b32 v{wD}, 4, v{wD}
        s_lshl_b32 s60, s35, 7
        v_add_u32 v{wS}, s60, v{wD}
        v_mul_u32_u24 v{wS}, 257, v{wS}
        v_and_b32 v{wD+1}, 15, v0
        s_lshl_b32 s60, s34, 4
        v_add_u32 v{wD+1}, s60, v{wD+1}
        v_add_u32 v{wS}, v{wS}, v{wD+1}
        v_lshlrev_b32 v{wS}, 1, v{wS}
        s_lshr_b32 s60, s35, 2
        s_lshl_b32 s60, s60, 11
        s_and_b32 s61, s35, 3
        s_lshl_b32 s61, s61, 8
        s_add_u32 s65, s60, s61
        v_lshlrev_b32 v{wD}, 4, v{wD}
        v_add_u32 v{wD}, s65, v{wD}
        v_lshl_add_u32 v{wD}, v{wD+1}, 13, v{wD}
        s_mov_b32 s42, 0x101000
        s_mov_b32 s43, 0x20000
        s_mov_b32 s46, 0x101000
        s_mov_b32 s47, 0x20000
        """)
        for n in range(2):
            for r in range(4):
                A.I(f's_mov_b32 s60, {r*16448+n*8224}')
                A.I(f'buffer_load_short_d16 v{WV+4*n+r}, v{wS}, s[40:43], s60 offen')
                A.I(f'buffer_load_short_d16_hi v{WV+8+4*n+r}, v{wS}, s[44:47], s60 offen'); vq.extend(['wt','wt'])
        A.I('s_cmp_lg_u32 s34, 0\ns_cbranch_scc1 p1H_wt0\ns_cmp_lg_u32 s32, 4\ns_cbranch_scc1 p1H_wt0')
        A.skip_begin()
        A.I(f's_lshl_b32 s60, s35, 7\nv_add_u32 v{wD+1}, s60, v{l32}\nv_mul_u32_u24 v{wD+1}, 257, v{wD+1}\nv_add_u32 v{wD+1}, 256, v{wD+1}\nv_lshlrev_b32 v{wD+1}, 1, v{wD+1}')
        for r in range(4):
            A.I(f's_mov_b32 s60, {r*16448}')
            A.I(f'buffer_load_short_d16 v{WV+16+r}, v{wD+1}, s[40:43], s60 offen')
            A.I(f'buffer_load_short_d16_hi v{WV+20+r}, v{wD+1}, s[44:47], s60 offen')
        A.skip_end(); A.L('p1H_wt0')
    def wt_job_stores():
        vwait('wt')
        srd(A,40,4,OFF_WT,257*8192)
        for n in range(2):
            for r in range(4): A.I(f'v_or_b32 v{WV+4*n+r}, v{WV+4*n+r}, v{WV+8+4*n+r}')
            A.I(f'buffer_store_dwordx4 {v(WV+4*n,4)}, v{wD}, s[40:43], 0 offen offset:{n*1024}{SC}'); vq.append('wst')
        A.I('s_cmp_lg_u32 s34, 0\ns_cbranch_scc1 p1H_wt1\ns_cmp_lg_u32 s32, 4\ns_cbranch_scc1 p1H_wt1')
        A.skip_begin()
        for r in range(4): A.I(f'v_or_b32 v{WV+16+r}, v{WV+16+r}, v{WV+20+r}')
        A.I(f'v_lshrrev_b32 v{wS}, 4, v{l32}\nv_lshlrev_b32 v{wS}, 10, v{wS}\nv_and_b32 v{wD+1}, 15, v{l32}\nv_lshl_add_u32 v{wS}, v{wD+1}, 4, v{wS}')
        A.I(f'v_add_u32 v{wS}, s65, v{wS}\nv_add_u32 v{wS}, 0x200000, v{wS}\ns_mov_b32 exec_hi, 0')
        A.I(f'buffer_store_dwordx4 {v(WV+16,4)}, v{wS}, s[40:43], 0 offen{SC}\ns_mov_b64 exec, -1')
        A.skip_end(); A.L('p1H_wt1')
    def ready_load():
        A.I(f'v_mov_b32 v{RD+1}, 0\ns_mov_b64 exec, 1\nglobal_load_dword v{RD}, v{RD+1}, s[54:55]{SCP}\ns_mov_b64 exec, -1'); vq.append('non')
    def ready_check():
        l=newlab('nl'); d=newlab('nd')
        A.I(f'v_readfirstlane_b32 s3, v{RD}\ns_cmp_lg_u32 s3, 0\ns_cbranch_scc1 {d}\ns_mov_b32 s58, 0')
        A.L(l)
        A.I(f'global_load_dword v{RD}, v{RD+1}, s[54:55]{SCP}\ns_waitcnt vmcnt(0)\nv_readfirstlane_b32 s3, v{RD}')
        A.I(f's_cmp_lg_u32 s3, 0\ns_cbranch_scc1 {d}\ns_add_u32 s58, s58, 1\ns_cmp_lt_u32 s58, {SPIN_MAX>>4}\ns_cbranch_scc1 {l}')
        A.L(d)
    def rs_loads(q):
        A.I(f"""
        s_lshl_b32 s60, s35, 7
        s_lshl_b32 s61, s37, 6
        s_add_u32 s60, s60, s61
        v_add_u32 v{RSL}, s60, v{l32}
        v_lshlrev_b32 v{RSL+1}, 3, v{RSL}
        s_add_u32 s62, s4, {OFF_RS}
        s_addc_u32 s63, s5, 0
        global_load_dwordx2 {v(RSV,2)}, v{RSL+1}, s[62:63]{SC}
        global_load_dwordx2 {v(RSV+2,2)}, v{RSL+1}, s[62:63] offset:256{SC}
        """); q.extend(['rs','rs'])
    for i in range(NST):
        if 'bw' in EXP and i in (1,2,3,4,5): ST.mark(A)
        vwait(i,True)
        if 'bw' in EXP and i in (1,2,3,4,5): ST.mark(A)
        if i==6:
            A.I('s_cmp_lg_u32 s32, 4\ns_cbranch_scc1 p1H_sq')
            A.skip_begin()
            A.I('s_waitcnt vmcnt(12)')
            poll_cnt(A,FP+1,FP+3,FP+2,2,True)
            A.skip_end(); A.L('p1H_sq')
        A.I('s_barrier')
        if want(i): ST.mark(A)
        if i==5:
            A.I(f"""
            s_lshl_b32 s60, s35, 7
            s_add_u32 s61, s34, {C_CS}
            s_lshl_b32 s61, s61, 7
            v_mov_b32 v{FP+1}, s61
            v_mov_b32 v{FP}, s60
            v_cmp_eq_u32 vcc, 0, v{L}
            v_cndmask_b32 v{FP+1}, v{FP+1}, v{FP}, vcc
            v_mov_b32 v{FP+3}, 16
            s_cmp_lg_u32 s32, 4
            s_cbranch_scc1 p1H_sp
            """)
            A.skip_begin()
            cnt_base(A)
            A.I(f's_mov_b64 exec, 3\nglobal_load_dword v{FP+2}, v{FP+1}, s[62:63]{SCP}\ns_mov_b64 exec, -1')
            A.skip_end(); A.L('p1H_sp')
        if i==0: ready_load()
        if i==3:
            A.I('s_cmp_lg_u32 s32, 4\ns_cbranch_scc1 p1H_f0')
            A.skip_begin()
            ready_check()
            arrive(A,35,T+14)
            A.I(f's_add_u32 s61, s34, {C_CS}'); arrive(A,61,T+14)
            A.skip_end(); A.L('p1H_f0')
        if i+2<NST: fgen(i+2)
        if i+2<NST: dma(i+2)
        if i==0: rowstats()
        if i==6:
            wt_job_loads()
            rs_loads(vq)
            A.I(f's_lshl_b32 s60, s34, 14\ns_add_u32 s60, s60, {OFF_CSP}\ns_add_u32 s20, s4, s60\ns_addc_u32 s21, s5, 0\nv_and_b32 v{FP}, 255, v0\nv_lshlrev_b32 v{FP}, 2, v{FP}')
            for j4 in range(4):
                if j4>0: A.I(f'v_add_u32 v{FP}, 4096, v{FP}')
                for j in range(4):
                    A.I(f'global_load_dword v{CSL+4*j4+j}, v{FP}, s[20:21] offset:{j*1024}{SC}'); vq.append('csp')
    vwait('csp')
    wt_job_stores()
    X=CSL
    for j in range(8): A.I(f'v_add_f32 v{X+j}, v{X+j}, v{X+8+j}')
    for j in range(4): A.I(f'v_add_f32 v{X+j}, v{X+j}, v{X+4+j}')
    A.I(f'v_add_f32 v{X}, v{X}, v{X+1}\nv_add_f32 v{X+2}, v{X+2}, v{X+3}\nv_add_f32 v{X}, v{X}, v{X+2}')
    A.I(f"""
    v_cvt_pk_bf16_f32 v{X+1}, v{X}, v{X}
    v_and_b32 v{X+1}, 0xffff0000, v{X+1}
    v_sub_f32 v{X+2}, v{X}, v{X+1}
    v_cvt_pk_bf16_f32 v{X}, v{X+1}, v{X+2}
    v_and_b32 v{T}, 255, v0
    v_lshlrev_b32 v{T}, 2, v{T}
    v_add_u32 v{T}, {STAT}, v{T}
    ds_write_b32 v{T}, v{X}
    """)
    ST.mark(A)
    A.I(f"""
    s_lshl_b32 s60, s36, 14
    s_cmp_eq_u32 s36, 3
    s_cselect_b32 s60, {SB[2]}, s60
    v_lshlrev_b32 v{T}, 4, v{L}
    v_add_u32 v{T}, s60, v{T}
    s_waitcnt lgkmcnt(0)
    s_barrier
    """)
    for k in range(16): A.I(f'ds_read_b128 {v(ACC+4*k,4)}, v{T} offset:{k*1024}')
    A.I('s_branch p1_join')
    A.L('p1_roleC'); A.fence()
    ST.n=n_st
    cq=[]; lq=[]
    A.I(f"""
    v_lshrrev_b32 v{T}, 5, v{L}
    v_lshlrev_b32 v{T}, 3, v{T}
    v_bfe_u32 v{T+1}, v{L}, 2, 2
    v_add_u32 v{T}, v{T}, v{T+1}
    v_lshlrev_b32 v{T}, 8, v{T}
    v_bfe_u32 v{T+2}, v{L}, 4, 1
    v_lshlrev_b32 v{T+2}, 1, v{T+2}
    v_bfe_u32 v{T+3}, v{L}, 1, 1
    v_add_u32 v{T+2}, v{T+2}, v{T+3}
    s_lshl_b32 s33, s36, 2
    v_add_u32 v{T+2}, s33, v{T+2}
    v_lshlrev_b32 v{T+1}, 2, v{T+1}
    v_xor_b32 v{T+2}, v{T+2}, v{T+1}
    v_lshl_add_u32 v{T}, v{T+2}, 4, v{T}
    v_and_b32 v{T+3}, 1, v{L}
    v_lshl_add_u32 v{T}, v{T+3}, 3, v{T}
    v_add_u32 v{vAr}, {GS+SB[0]}, v{T}
    v_add_u32 v{vAr+1}, {GS+SB[1]}, v{T}
    v_add_u32 v{vAr+2}, {GS+SB[2]}, v{T}
    v_lshlrev_b32 v{T}, 7, v{l32}
    v_bfe_u32 v{T+1}, v{l32}, 1, 3
    v_xor_b32 v{T+1}, v{T+1}, v{half}
    v_lshl_add_u32 v{T}, v{T+1}, 4, v{T}
    v_mov_b32 v{ones}, 0x3f803f80
    """)
    for sl in range(3):
        for ks in range(4):
            if ks==0: A.I(f'v_add_u32 v{vBr+sl*4}, {SB[sl]+XS}, v{T}')
            else: A.I(f'v_xor_b32 v{vBr+sl*4+ks}, {ks*32}, v{vBr+sl*4}')
    for k in range(4): A.I(f'v_mov_b32 v{csr+k}, 0')
    A.I(f'v_mov_b32 v{T}, {CTRL}\nv_lshl_add_u32 v{T}, v{L}, 2, v{T}\nv_mov_b32 v{T+1}, 0\nds_write_b32 v{T}, v{T+1}')
    A.I(f"""
    s_lshl_b32 s60, s36, 4
    v_and_b32 v{T}, 15, v{L}
    v_add_u32 v{T}, s60, v{T}              ; row
    s_lshl_b32 s60, s49, 6
    v_lshlrev_b32 v{T+1}, 6, v{half}
    v_add_u32 v{T+1}, v{T+1}, v{T}
    v_add_u32 v{T+1}, s60, v{T+1}
    v_and_b32 v{T+1}, 511, v{T+1}          ; d
    v_cvt_f32_u32 v{T+2}, v{T+1}
    v_mul_f32 v{T+2}, {f2u(1/512)}, v{T+2} ; u
    v_bfe_u32 v{T+3}, v{L}, 4, 1           ; ch
    s_lshl_b32 s60, s34, 4
    v_lshlrev_b32 v{T+4}, 3, v{T+3}
    v_add_u32 v{T+4}, s60, v{T+4}          ; k0
    v_cvt_f32_u32 v{T+5}, v{T+4}
    v_mul_f32 v{T+5}, v{T+5}, v{T+2}       ; angle
    """)
    for j in range(4):
        A.I(f'v_cos_f32 v{T+6}, v{T+5}\nv_sin_f32 v{T+8}, v{T+5}\nv_add_f32 v{T+5}, v{T+5}, v{T+2}')
        A.I(f'v_cos_f32 v{T+7}, v{T+5}\nv_sin_f32 v{T+9}, v{T+5}\nv_add_f32 v{T+5}, v{T+5}, v{T+2}')
        A.I(f'v_cvt_pk_bf16_f32 v{AFR+j}, v{T+6}, v{T+7}')
        A.I(f'v_cvt_pk_bf16_f32 v{AFR+4+j}, -v{T+8}, -v{T+9}')
    A.I(f"""
    v_and_b32 v{T+6}, 1, v{T}
    v_lshlrev_b32 v{T+6}, 15, v{T+6}
    v_or_b32 v{T+6}, 0x3f80, v{T+6}
    v_mov_b32 v{T+7}, 0xffff
    v_bfi_b32 v{T+6}, v{T+7}, v{T+6}, v{AFR+4}
    v_cmp_eq_u32 vcc, 0, v{T+4}
    v_cndmask_b32 v{AFR+4}, v{AFR+4}, v{T+6}, vcc
    v_and_b32 v{T+6}, 3, v{T}
    v_lshlrev_b32 v{T+6}, 2, v{T+6}
    v_add_u32 v{T+7}, 14, v{T+3}
    v_xor_b32 v{T+6}, v{T+6}, v{T+7}
    v_lshlrev_b32 v{T+6}, 4, v{T+6}
    v_lshl_add_u32 v{T+6}, v{T}, 8, v{T+6}
    v_mul_u32_u24 v{T+7}, {SB[1]-SB[0]}, v{half}
    v_add_u32 v{T+6}, v{T+6}, v{T+7}
    v_add_u32 v{T+6}, {GS+SB[0]}, v{T+6}
    ds_write_b128 v{T+6}, {v(AFR,4)}
    ds_write_b128 v{T+6}, {v(AFR+4,4)} offset:16384
    """)
    def read_items(stage,ks,fs):
        slot=stage%3; a=AFR+fs*8; bb=BFR+fs*16
        def ra(m):
            def f():
                for rd in range(2):
                    A.I(f'ds_read_b64_tr_b16 {v(a+m*4+rd*2,2)}, v{vAr+slot} offset:{m*16384+ks*4096+rd*1024}'); lq.append(('A',m,stage,ks))
            return f
        def rb(st):
            def f():
                A.I(f'ds_read_b128 {v(bb+st*4,4)}, v{vBr+slot*4+ks} offset:{st*4096}'); lq.append(('B',st,stage,ks))
            return f
        return [ra(0),rb(0),ra(1),rb(1),rb(2),rb(3)]
    def lwait(tags):
        idx=[k for k,x in enumerate(lq) if x in tags]
        if not idx: return
        n=len(lq)-1-max(idx); del lq[:max(idx)+1]
        A.I(f's_waitcnt lgkmcnt({n})')
    def compute(stage,ks,fs,first,nxt,extra=None,cs=None):
        a=AFR+fs*8; bb=BFR+fs*16; k=0
        for st in range(4):
            for m in range(2):
                lwait([('A',m,stage,ks),('B',st,stage,ks)])
                mf32(A,tile(m,st),a+m*4,bb+st*4,first)
                if k<len(nxt): nxt[k]()
                if cs is not None: A.I(f'v_dot2c_f32_bf16 v{csr+cs*2+(k>>2)}, v{a+(k>>2)*4+(k&3)}, v{ones}')
                if extra and k in extra: extra[k]()
                k+=1
    def cs_store():
        U=T+14
        for m in range(2):
            A.I(f"""
            s_bitcmp1_b32 s35, 0
            s_cselect_b64 vcc, -1, 0
            v_cndmask_b32 v{U}, v{csr+m}, v{csr+2+m}, vcc
            v_mov_b32 v{U+1}, v{U}
            v_permlane32_swap_b32 v{U}, v{U+1}
            v_add_f32 v{U}, v{U}, v{U+1}
            s_lshl_b32 s60, s34, 4
            s_add_u32 s60, s60, s35
            s_lshl_b32 s60, s60, 10
            s_lshl_b32 s61, s36, 7
            s_add_u32 s60, s60, s61
            s_add_u32 s60, s60, {OFF_CSP+m*512}
            s_add_u32 s62, s4, s60
            s_addc_u32 s63, s5, 0
            v_lshlrev_b32 v{U+1}, 2, v{l32}
            s_mov_b32 exec_hi, 0
            global_store_dword v{U+1}, v{U}, s[62:63]{SC}
            s_mov_b64 exec, -1
            """); cq.append('st')
    for i in range(NST):
        if 'bw' in EXP and i in (1,2,3,4,5): ST.mark(A)
        if i==3: A.I('s_waitcnt vmcnt(0)')
        A.I('s_waitcnt lgkmcnt(0)'); lq.clear()
        if 'bw' in EXP and i in (1,2,3,4,5): ST.mark(A)
        A.I('s_barrier')
        if want(i): ST.mark(A)
        r0=read_items(i,0,0)
        if i==0:
            for f in r0: f()
        else:
            compute(i-1,3,1,False,r0,None,1 if i==1 else None)
            if i==1: cs_store()
        compute(i,0,0,i==0,read_items(i,1,1),({6:lambda: rs_loads(cq)} if i==6 else None),0 if i==0 else None)
        compute(i,1,1,False,read_items(i,2,0),None,0 if i==0 else None)
        compute(i,2,0,False,read_items(i,3,1),None,1 if i==0 else None)
    A.I('s_waitcnt lgkmcnt(0)'); lq.clear()
    compute(7,3,1,False,[])
    ST.mark(A)
    A.I(f"""
    s_lshl_b32 s60, s36, 14
    s_cmp_eq_u32 s36, 3
    s_cselect_b32 s60, {SB[2]}, s60
    v_lshlrev_b32 v{T}, 4, v{L}
    v_add_u32 v{T}, s60, v{T}
    """)
    for k in range(16): A.I(f'ds_write_b128 v{T}, {v(ACC+64+4*k,4)} offset:{k*1024}')
    A.I('s_waitcnt vmcnt(0) lgkmcnt(0)\ns_barrier')
    A.L('p1_join')
    mm=[RSV,RSV+2]; sd=[RSV+1,RSV+3]
    c1p=T+6; c2p=T+14; sd2=T+16; rr=T+18
    c1=-2*0.7978845608028654*math.log2(math.e); c2=c1*0.044715
    FRK=32
    A.I(f"""
    s_lshl_b32 s39, s36, 7
    v_lshlrev_b32 v{T+2}, 2, v{l32}
    v_add_u32 v{T+2}, s39, v{T+2}
    v_add_u32 v{T+2}, {STAT}, v{T+2}
    ds_read_b32 v{T+10}, v{T+2}
    ds_read_b32 v{T+11}, v{T+2} offset:512
    """)
    for k in range(16): A.I(f'v_mov_b32 v{FRK+k}, 0')
    for st in range(2):
        A.I(f"""
        v_rcp_f32 v{rr+st}, v{sd[st]}
        v_mul_f32 v{sd2+st}, v{sd[st]}, v{sd[st]}
        v_mul_f32 v{c1p+st}, {f2u(c1)}, v{rr+st}
        v_mul_f32 v{T+9}, v{rr+st}, v{rr+st}
        v_mul_f32 v{T+9}, v{T+9}, v{rr+st}
        v_mul_f32 v{c2p+st}, {f2u(c2)}, v{T+9}
        """)
    srd(A,20,4,OFF_HP,224*32768)
    srd(A,24,4,OFF_YQ,256*8192)
    A.I(f"""
    v_cvt_pk_bf16_f32 v{T+12}, v{mm[0]}, v{mm[0]}
    v_cvt_pk_bf16_f32 v{T+13}, v{mm[1]}, v{mm[1]}
    v_cmp_gt_u32 vcc, 32, v{L}
    v_cndmask_b32 v{FRK+8}, 0, v{T+12}, vcc
    v_cndmask_b32 v{FRK+12}, 0, v{T+13}, vcc
    s_lshl_b32 s33, s35, 7
    s_lshl_b32 s39, s37, 6
    s_add_u32 s33, s33, s39              ; 128rb+64sh
    v_add_u32 v{T+4}, s33, v{l32}
    v_lshlrev_b32 v{vHo}, 4, v{T+4}
    v_lshl_add_u32 v{vHo}, v{half}, 15, v{vHo}
    v_add_u32 v{vHo+1}, 512, v{vHo}
    s_waitcnt lgkmcnt(0)
    v_cndmask_b32 v{FRK}, 0, v{T+10}, vcc
    v_cndmask_b32 v{FRK+4}, 0, v{T+11}, vcc
    """)
    for m in range(2):
        for b_ in range(2): mf32(A,ACC+(m*2+b_)*16,FRK+m*4,FRK+8+b_*4)
    vPf=114
    A.I('s_cmp_eq_u32 s37, 0\ns_cbranch_scc1 p1_pfC')
    A.I(f's_lshl_b32 s39, s36, 2\nv_mov_b32 v{vPf}, {CTRL}\nv_add_u32 v{vPf}, s39, v{vPf}\nv_mov_b32 v{vPf+1}, 1\nds_write_b32 v{vPf}, v{vPf+1} offset:64')
    A.I('s_branch p1_pfE')
    A.L('p1_pfC')
    srd(A,8,56,0,1792*512*2)
    A.I(f"""
    s_and_b32 s13, s2, 7
    s_lshr_b32 s14, s2, 3
    s_lshr_b32 s13, s13, 2
    s_lshl_b32 s13, s13, 2
    s_lshr_b32 s14, s14, 3
    s_add_u32 s13, s13, s14          ; db
    v_lshrrev_b32 v{vPf+1}, 3, v{L}
    v_bfe_u32 v{vPf+2}, v{L}, 4, 1
    v_lshlrev_b32 v{vPf+2}, 2, v{vPf+2}
    v_and_b32 v{vPf}, 7, v{L}
    v_xor_b32 v{vPf}, v{vPf}, v{vPf+2}
    v_lshlrev_b32 v{vPf}, 4, v{vPf}
    v_lshl_add_u32 v{vPf}, v{vPf+1}, 10, v{vPf}
    s_lshl_b32 s39, s13, 7
    v_add_u32 v{vPf}, s39, v{vPf}
    s_mul_i32 s44, s32, {28*16*1024}
    s_mul_i32 s45, s32, {AREG}
    v_mov_b32 v{vPf+1}, {CTRL}
    """)
    if 'epf' in EXP: lds_wait(A,vPf+1,116,64,1,4)
    A.L('p1_pfE')
    pfl=[0]
    def prefetch(lo,hi):
        if lo>=hi or 'epf' not in EXP: return
        pfl[0]+=1; l=f'p1_pf{pfl[0]}'
        A.I(f's_cmp_lg_u32 s37, 0\ns_cbranch_scc1 {l}')
        A.skip_begin()
        for t in range(lo,hi):
            for j in range(2):
                A.I(f's_add_u32 m0, s45, {t*2048+j*1024}')
                A.I(f's_add_u32 s39, s44, {(t*16+j*8)*1024}')
                A.I(f'buffer_load_dwordx4 v{vPf}, s[8:11], s39 offen lds')
        A.skip_end(); A.L(l)
    A.I('s_nop 7\ns_nop 4')
    Z=T+20
    vH=[vHo,vHo+1]
    GT=lambda st: ACC+st*16
    UT=lambda st: ACC+(2+st)*16
    def hq(q,st,p):
        g=[GT(st)+4*q+r for r in range(4)]; u=[UT(st)+4*q+r for r in range(4)]
        for r in range(4):
            A.I(f'v_mul_f32 v{Z+r}, v{g[r]}, v{g[r]}')
            A.I(f'v_fma_f32 v{Z+r}, v{Z+r}, v{c2p+st}, v{c1p+st}')
            A.I(f'v_mul_f32 v{Z+r}, v{Z+r}, v{g[r]}')
        for r in range(4): A.I(f'v_exp_f32 v{Z+r}, v{Z+r}')
        for r in range(4):
            A.I(f'v_mul_f32 v{g[r]}, v{g[r]}, v{u[r]}')
            A.I(f'v_fma_f32 v{Z+r}, v{Z+r}, v{sd2+st}, v{sd2+st}')
        for r in range(4): A.I(f'v_rcp_f32 v{Z+r}, v{Z+r}')
        for r in range(4): A.I(f'v_mul_f32 v{g[r]}, v{g[r]}, v{Z+r}')
        A.I(f'v_cvt_pk_bf16_f32 v{p}, v{g[0]}, v{g[1]}')
        A.I(f'v_cvt_pk_bf16_f32 v{p+1}, v{g[2]}, v{g[3]}')
    def hpair(q,st,P):
        hq(q,st,P); hq(q+1,st,P+2)
        A.I(f'v_permlane32_swap_b32 v{P}, v{P+2}')
        A.I(f'v_permlane32_swap_b32 v{P+1}, v{P+3}')
        A.I(f'buffer_store_dwordx4 {v(P,4)}, v{vH[st]}, s[20:23], s60 offen{SC}')
    A.I(f's_mul_i32 s61, s34, 14\ns_lshl_b32 s39, s36, 2\ns_add_u32 s61, s61, s39\ns_lshl_b32 s61, s61, 15')
    YT=208
    A.I('s_cmp_lg_u32 s36, 3\ns_cbranch_scc1 p1_noy')
    A.I(f"""
    s_lshl_b32 s39, s37, 12
    s_add_u32 s39, s39, {YSCR}
    v_lshlrev_b32 v{YT}, 10, v{half}
    v_lshl_add_u32 v{YT}, v{l32}, 2, v{YT}
    v_add_u32 v{YT}, s39, v{YT}
    v_lshlrev_b32 v{YT+1}, 4, v{L}
    v_add_u32 v{YT+1}, s39, v{YT+1}
    v_lshrrev_b32 v{YT+2}, 4, v{L}
    v_lshlrev_b32 v{YT+2}, 13, v{YT+2}
    v_and_b32 v{YT+3}, 15, v{L}
    v_lshl_add_u32 v{YT+2}, v{YT+3}, 4, v{YT+2}
    s_lshl_b32 s39, s33, 2
    v_add_u32 v{YT+2}, s39, v{YT+2}
    """)
    for q in (2,3):
        for st in range(2):
            for r in range(4):
                G_=GT(st)+4*q+r; U=UT(st)+4*q+r
                A.I(f'v_mul_f32 v{G_}, v{G_}, v{rr+st}')
                A.I(f'v_mul_f32 v{U}, v{U}, v{rr+st}')
                A.I(f'v_cvt_pk_bf16_f32 v{G_}, v{G_}, v{U}')
                A.I(f'ds_write_b32 v{YT}, v{G_} offset:{(8*(q-2)+r)*256+st*128}')
    A.I('s_waitcnt lgkmcnt(0)')
    for j in range(4): A.I(f'ds_read_b128 {v(YT+4+4*j,4)}, v{YT+1} offset:{j*1024}')
    A.I('s_waitcnt lgkmcnt(0)')
    for j in range(4):
        A.I(f's_lshl_b32 s60, s34, 4\ns_add_u32 s60, s60, {4*j}\ns_lshl_b32 s60, s60, 13')
        A.I(f'buffer_store_dwordx4 {v(YT+4+4*j,4)}, v{YT+2}, s[24:27], s60 offen{SC}')
    A.I('s_mov_b32 s60, s61')
    A.I('s_cmp_lg_u32 s37, 0\ns_cbranch_scc1 p1_y7')
    prefetch(0,9); hpair(0,0,PB); prefetch(9,17); hpair(0,1,PB+4)
    A.I(f's_waitcnt vmcnt({36 if "epf" in EXP else 2})\nv_mov_b32 v{YT}, {CTRL}\nv_mov_b32 v{YT+1}, 1\nds_write_b32 v{YT}, v{YT+1} offset:80')
    A.I('s_branch p1_end')
    A.L('p1_y7')
    hpair(0,0,PB); hpair(0,1,PB+4)
    A.I(f's_waitcnt vmcnt(2)\nv_mov_b32 v{YT}, {CTRL}')
    lds_wait(A,YT,YT+4,80,1,4)
    A.I(f's_add_u32 s61, s34, {C_Y}'); arrive(A,61,YT+2)
    A.I('s_branch p1_end')
    A.L('p1_noy')
    k=0; cuts=[0,6,12,17,17]
    for q in (0,2):
        A.I(f's_add_u32 s60, s61, {q*32768}')
        for st in range(2):
            hpair(q,st,PB+4*(q+st))
            prefetch(cuts[k],cuts[k+1]); k+=1
            if k==2:
                A.I('s_cmp_eq_u32 s37, 0\ns_cbranch_scc1 p1_wf')
                A.I(f's_waitcnt vmcnt(2)\ns_lshl_b32 s39, s36, 2\nv_mov_b32 v{YT}, {CTRL}\nv_add_u32 v{YT}, s39, v{YT}\nv_mov_b32 v{YT+1}, 1\nds_write_b32 v{YT}, v{YT+1} offset:84')
                A.L('p1_wf')
    A.L('p1_end')
    ST.mark(A)

def s2_phase(A):
    L,l,g,vY,vW,fl,fg4=1,2,3,4,5,6,7
    T=184
    Ya=16; Wv=24; C32R=32; C32I=48; C64R=64; C64I=80; T1c=96; T1s=104; T2c=112; T2s=120
    DR=128; DI=136; F=144; E=152
    vC=203
    A.I(f'''
    s_sub_u32 s12, s32, 4
    v_and_b32 v{L}, 63, v0
    v_and_b32 v{l}, 15, v0
    v_bfe_u32 v{g}, v0, 4, 2
    v_mov_b32 v{vC}, {CTRL}
    s_lshl_b32 s33, s34, 4
    s_add_u32 s33, s33, s35          ; column k
    s_mov_b32 s47, 0
    ''')
    srd(A,8,4,OFF_YQ,256*8192)
    srd(A,16,4,OFF_WT,257*8192)
    srd(A,20,4,OFF_ZQ,514*4096)
    A.I(f'''
    s_lshl_b32 s13, s12, 11
    v_lshlrev_b32 v{vY}, 7, v{l}
    v_lshl_add_u32 v{vY}, v{g}, 4, v{vY}
    v_add_u32 v{vY}, s13, v{vY}
    v_lshlrev_b32 v{vW}, 4, v{l}
    v_lshl_add_u32 v{vW}, v{g}, 8, v{vW}
    v_add_u32 v{vW}, s13, v{vW}
    v_cvt_f32_u32 v{fl}, v{l}
    v_lshlrev_b32 v{T}, 2, v{g}
    v_cvt_f32_u32 v{fg4}, v{T}
    s_lshl_b32 s13, s12, 4
    v_cvt_f32_u32 v{T+1}, s13
    ''')
    f16w=T+1
    sc=1.0/(2048*512)
    A.I(f'''
    v_mul_f32 v{T+2}, {f2u(1/32)}, v{fl}
    v_add_f32 v{T+3}, 0.5, v{T+2}
    v_add_f32 v{T+4}, v{f16w}, v{fl}
    v_mul_f32 v{T+7}, {f2u(1/2048)}, v{T+4}
    v_mul_f32 v{T+4}, {f2u(1/64)}, v{T+4}
    v_mul_f32 v{T+5}, {f2u(1/2048)}, v{fl}
    v_add_f32 v{T+6}, {f2u(16/2048)}, v{T+5}
    v_add_f32 v{T+8}, v{f16w}, v{fg4}
    s_mov_b32 s46, {f2u(2*sc)}
    s_cmp_eq_u32 s33, 0
    s_cselect_b32 s46, {f2u(sc)}, s46
    v_mov_b32 v{vC+2}, s46
    ''')
    a_,c_,s_=T+9,T+10,T+11
    def cs_pack(ang,R,I):
        A.I(f'''
        v_cos_f32 v{c_}, v{ang}
        v_sin_f32 v{s_}, v{ang}
        v_cvt_pk_bf16_f32 v{R}, v{c_}, v{s_}
        v_cvt_pk_bf16_f32 v{I}, -v{s_}, v{c_}
        ''')
    fa=T+12
    for t in range(2):
        for q in range(4):
            A.I(f'v_add_f32 v{fa}, {f2u(16*t+q)}, v{fg4}')
            for nt in range(2):
                A.I(f'v_mul_f32 v{a_}, v{fa}, v{T+2+nt}')
                cs_pack(a_, C32R+(t*2+nt)*4+q, C32I+(t*2+nt)*4+q)
    for r in range(4):
        A.I(f'v_add_f32 v{fa}, {f2u(r)}, v{T+8}')
        for nt in range(2):
            A.I(f'''v_mul_f32 v{a_}, v{fa}, v{T+5+nt}
            v_cos_f32 v{T1c+nt*4+r}, v{a_}
            v_sin_f32 v{T1s+nt*4+r}, v{a_}''')
    for tp in range(4):
        for q in range(4):
            A.I(f'v_add_f32 v{fa}, {f2u(16*tp+q)}, v{fg4}')
            A.I(f'v_mul_f32 v{a_}, v{fa}, v{T+4}')
            cs_pack(a_, C64R+tp*4+q, C64I+tp*4+q)
    for it in range(2):
        for r in range(4):
            A.I(f'''v_add_f32 v{fa}, {f2u(16*it+r)}, v{fg4}
            v_mul_f32 v{a_}, v{fa}, v{T+7}
            v_cos_f32 v{T2c+it*4+r}, v{a_}
            v_sin_f32 v{T2s+it*4+r}, v{a_}
            v_mul_f32 v{T2c+it*4+r}, v{T2c+it*4+r}, v{vC+2}
            v_mul_f32 v{T2s+it*4+r}, v{T2s+it*4+r}, v{vC+2}''')
    vLw,vLr=T+13,T+14
    A.I(f'''
    v_lshlrev_b32 v{vLr}, 4, v{L}
    v_add_u32 v{vLr}, {EX}, v{vLr}
    s_lshl_b32 s13, s12, 11
    v_add_u32 v{vLw}, s13, v{vLr}
    s_lshl_b32 s13, s12, 2
    v_add_u32 v{vC+1}, s13, v{vC}
    s_mov_b32 s26, 0x80000000
    s_mov_b32 s27, 0x8000
    ''')
    ST.mark(A)
    A.I('s_waitcnt vmcnt(0)\ns_barrier')
    if 'noprio' not in EXP: A.I('s_setprio 3')
    ST.mark(A)
    A.I('s_cmp_lg_u32 s32, 4\ns_cbranch_scc1 s2_w1')
    A.skip_begin()
    A.I(f's_add_u32 s59, s34, {C_Y}\ns_lshl_b32 s59, s59, 7\nv_mov_b32 v{E}, s59\nv_mov_b32 v{E+1}, 16')
    poll_cnt(A,E,E+1,E+2,1)
    if 'dbg' in EXP:
        A.I(f's_cmp_lg_u32 s2, 9\ns_cbranch_scc1 dbg1')
        A.I(f'v_mov_b32 v{E+4}, v{E}\nv_mov_b32 v{E+5}, v{E+1}\nv_mov_b32 v{E+6}, v{E+2}\nv_mov_b32 v{E+7}, s58\nv_mov_b32 v{E+8}, 32\ns_mov_b64 exec, 1\nglobal_store_dwordx4 v{E+8}, {v(E+4,4)}, s[54:55]\ns_mov_b64 exec, -1')
        A.L('dbg1')
    A.I(f'v_mov_b32 v{E}, 1\nds_write_b32 v{vC}, v{E} offset:8')
    A.skip_end(); A.L('s2_w1')
    lds_wait(A,vC,E,8,1)
    ST.mark(A)
    A.L('s2_col')
    if 'nos2' in EXP: A.I('s_branch s2_skip')
    A.I(f'''
    s_and_b32 s14, s33, 255
    s_lshl_b32 s14, s14, 13
    s_lshl_b32 s15, s33, 13
    s_add_u32 s29, s15, 4096
    buffer_load_dwordx4 {v(Ya,4)}, v{vY}, s[8:11], s14 offen{SC}
    buffer_load_dwordx4 {v(Ya+4,4)}, v{vY}, s[8:11], s14 offen offset:64{SC}
    buffer_load_dwordx4 {v(Wv,4)}, v{vW}, s[16:19], s15 offen{SC}
    buffer_load_dwordx4 {v(Wv+4,4)}, v{vW}, s[16:19], s15 offen offset:1024{SC}
    s_cmp_eq_u32 s33, 256
    s_cselect_b32 s24, 16, 0
    s_and_b32 s25, s33, 255
    s_cmp_eq_u32 s25, 0
    s_cselect_b32 s25, 0xffff, -1
    s_cmp_lg_u32 s33, 0
    s_cbranch_scc1 s2_nx
    s_mov_b32 s60, 0x200000
    buffer_load_dwordx4 {v(208,4)}, v{vW}, s[16:19], s60 offen{SC}
    buffer_load_dwordx4 {v(212,4)}, v{vW}, s[16:19], s60 offen offset:1024{SC}
    s_waitcnt vmcnt(4)
    s_branch s2_ld
    s2_nx:
    s_waitcnt vmcnt(2)
    s2_ld:
    ''')
    for i in range(8): A.I(f'v_mov_b32 v{216+i}, v{Ya+i}')
    A.L('s2_cmp')
    if 's2fine' in EXP: ST.mark(A)
    for i in range(8): A.I(f'v_lshrrev_b32 v{Ya+i}, s24, v{Ya+i}')
    for i in range(8): A.I(f'v_and_b32 v{Ya+i}, s25, v{Ya+i}')
    for nt in range(2):
        for t in range(2): mf16(A,DR+nt*4,Ya+t*4,C32R+(t*2+nt)*4,t==0)
        for t in range(2): mf16(A,DI+nt*4,Ya+t*4,C32I+(t*2+nt)*4,t==0)
    t0,t1=T+15,T+16
    def cmul_pack(dst,xr,xi,c,s,sign):
        A.I(f'v_mul_f32 v{t0}, v{xr}, v{c}')
        A.I(f'v_mul_f32 v{t1}, v{xi}, v{c}')
        if sign<0:
            A.I(f'v_fma_f32 v{t0}, v{xi}, v{s}, v{t0}'); A.I(f'v_fma_f32 v{t1}, -v{xr}, v{s}, v{t1}')
        else:
            A.I(f'v_fma_f32 v{t0}, -v{xi}, v{s}, v{t0}'); A.I(f'v_fma_f32 v{t1}, v{xr}, v{s}, v{t1}')
        A.I(f'v_cvt_pk_bf16_f32 v{dst}, v{t0}, v{t1}')
    def exchange(base,ph):
        for nt in range(2): A.I(f'ds_write_b128 v{vLw}, {v(F+nt*4,4)} offset:{base+nt*1024}')
        A.I(f's_add_u32 s46, s47, {ph}\nv_mov_b32 v{t0}, s46\nds_write_b32 v{vC+1}, v{t0} offset:16')
        lds_wait(A,vC,E,16,'s46',4)
        for tp in range(4):
            for nt in range(2): A.I(f'ds_read_b128 {v(E+(tp*2+nt)*4,4)}, v{vLr} offset:{base+(tp*2+nt)*1024}')
    for nt in range(2):
        for r in range(4): cmul_pack(F+nt*4+r,DR+nt*4+r,DI+nt*4+r,T1c+nt*4+r,T1s+nt*4+r,-1)
    if 's2fine' in EXP: ST.mark(A)
    exchange(0,1)
    if 's2fine' in EXP: ST.mark(A)
    for tp in range(4):
        A.I(f's_waitcnt lgkmcnt({6-2*tp})')
        for nt in range(2):
            mf16(A,DR+nt*4,C64R+tp*4,E+(tp*2+nt)*4,tp==0)
            mf16(A,DI+nt*4,C64I+tp*4,E+(tp*2+nt)*4,tp==0)
    if 's2fine' in EXP: ST.mark(A)
    A.I('s_cmp_eq_u32 s33, 256\ns_cbranch_scc1 s2_nw\ns_waitcnt vmcnt(0)')
    A.L('s2_nw')
    wr,wi=T+17,T+18
    def conj(R,I):
        for i in range(16):
            A.I(f'v_xor_b32 v{R+i}, s26, v{R+i}'); A.I(f'v_xor_b32 v{I+i}, s27, v{I+i}')
    conj(C32R,C32I)
    for nt in range(2):
        for r in range(4):
            A.I(f'v_lshlrev_b32 v{wr}, 16, v{Wv+nt*4+r}')
            A.I(f'v_and_b32 v{wi}, 0xffff0000, v{Wv+nt*4+r}')
            cmul_pack(F+nt*4+r,DR+nt*4+r,DI+nt*4+r,wr,wi,+1)
    conj(C64R,C64I)
    if 's2fine' in EXP: ST.mark(A)
    exchange(8192,2)
    if 's2fine' in EXP: ST.mark(A)
    for tp in range(4):
        A.I(f's_waitcnt lgkmcnt({6-2*tp})')
        for it in range(2):
            mf16(A,DR+it*4,E+(tp*2+it)*4,C64R+tp*4,tp==0)
            mf16(A,DI+it*4,E+(tp*2+it)*4,C64I+tp*4,tp==0)
    for it in range(2):
        for r in range(4): cmul_pack(F+it*4+r,DR+it*4+r,DI+it*4+r,T2c+it*4+r,T2s+it*4+r,+1)
    for nt in range(2):
        for t in range(2): mf16(A,DR+nt*4,C32R+(t*2+nt)*4,F+t*4,t==0)
        for t in range(2): mf16(A,DI+nt*4,C32I+(t*2+nt)*4,F+t*4,t==0)
    if 's2fine' in EXP: ST.mark(A)
    A.I(f'v_lshrrev_b32 v{t0}, 1, v{vY}')
    for nt in range(2):
        for part,D in ((0,DR),(1,DI)):
            e=E+nt*4+part*2
            A.I(f'v_cvt_pk_bf16_f32 v{e}, v{D+nt*4}, v{D+nt*4+1}\nv_cvt_pk_bf16_f32 v{e+1}, v{D+nt*4+2}, v{D+nt*4+3}')
            A.I(f'buffer_store_dwordx2 {v(e,2)}, v{t0}, s[20:23], s15 offen offset:{32*nt}{SC}' if part==0 else f'buffer_store_dwordx2 {v(e,2)}, v{t0}, s[20:23], s29 offen offset:{32*nt}{SC}')
    A.I('s_waitcnt vmcnt(0)')
    A.I(f's_add_u32 s47, s47, 2\nv_mov_b32 v{t0}, s47\nds_write_b32 v{vC+1}, v{t0} offset:32')
    A.I('s_cmp_lg_u32 s32, 4\ns_cbranch_scc1 s2_w2')
    A.skip_begin()
    lds_wait(A,vC,E+8,32,'s47',4)
    cnt_base(A)
    A.I(f's_and_b32 s46, s33, 7\ns_add_u32 s46, s46, {C_Z}\nv_lshlrev_b32 v{E+8}, 3, v{L}\nv_add_u32 v{E+8}, s46, v{E+8}')
    A.I(f's_cmp_lg_u32 s33, 256\ns_cbranch_scc1 s2_w2n\nv_add_u32 v{E+8}, {C_N}, v{L}')
    A.L('s2_w2n')
    A.I(f'v_lshlrev_b32 v{E+8}, 7, v{E+8}\nv_mov_b32 v{E+9}, 1')
    A.I(f's_mov_b64 exec, {(1<<ZREP)-1}\nglobal_atomic_add v{E+8}, v{E+9}, s[62:63]{SC}\ns_mov_b64 exec, -1')
    A.skip_end(); A.L('s2_w2')
    A.I('s_cmp_lg_u32 s33, 0\ns_cbranch_scc1 s2_fin')
    conj(C32R,C32I); conj(C64R,C64I)
    for i in range(8): A.I(f'v_mov_b32 v{Ya+i}, v{216+i}')
    for i in range(8): A.I(f'v_mov_b32 v{Wv+i}, v{208+i}')
    A.I('s_movk_i32 s33, 256\ns_mov_b32 s15, 0x200000\ns_add_u32 s29, s15, 4096\ns_mov_b32 s24, 16\ns_mov_b32 s25, 0xffff\ns_branch s2_cmp')
    A.L('s2_fin')
    A.I('s_setprio 0')
    ST.mark(A)
    A.I('s_cmp_lg_u32 s32, 4\ns_cbranch_scc1 s2_w3')
    A.skip_begin()
    lds_wait(A,vC,E,12,1)
    A.I(f's_and_b32 s46, s2, {ZREP-1}\ns_lshl_b32 s46, s46, 3\ns_add_u32 s46, s46, {C_Z}\nv_add_u32 v{E}, s46, v{L}\nv_lshlrev_b32 v{E}, 7, v{E}\nv_mov_b32 v{E+1}, 32')
    poll_cnt(A,E,E+1,E+2,8)
    A.I(f'v_mov_b32 v{E}, 1\nds_write_b32 v{vC}, v{E} offset:4')
    A.I(f's_and_b32 s46, s2, {ZREP-1}\ns_add_u32 s46, s46, {C_N}\ns_lshl_b32 s46, s46, 7\nv_mov_b32 v{E}, s46\nv_mov_b32 v{E+1}, 1')
    poll_cnt(A,E,E+1,E+2,1)
    A.I(f'v_mov_b32 v{E}, 1\nds_write_b32 v{vC}, v{E} offset:48')
    A.skip_end(); A.L('s2_w3')
    ST.mark(A)
    A.I('s_waitcnt lgkmcnt(0)\ns_barrier')

def p3_phase(A, nh=28, nz=8, NB=8):
    L,half,l32=1,2,3
    vB=4; vZd=5; vZr=6; vX=9; vC=10; vAd=11; vAr=12; vLw=14; vLr=15
    XR=16; T=24; ACC=32; AF=96; BR=112; ZA=176
    A.I(f"""
    s_load_dwordx2 s[28:29], s[0:1], 56
    s_load_dwordx2 s[30:31], s[0:1], 48
    v_and_b32 v{L}, 63, v0
    v_and_b32 v{l32}, 31, v0
    v_bfe_u32 v{half}, v0, 5, 1
    v_mov_b32 v{vC}, {CTRL}
    s_mov_b32 s12, s32
    s_and_b32 s13, s2, 7
    s_lshr_b32 s14, s2, 3
    s_and_b32 s15, s13, 3
    s_lshl_b32 s15, s15, 3
    s_and_b32 s39, s14, 7
    s_add_u32 s15, s15, s39          ; sb
    s_lshr_b32 s13, s13, 2
    s_lshl_b32 s13, s13, 2
    s_lshr_b32 s14, s14, 3
    s_add_u32 s13, s13, s14          ; db
    s_and_b32 s36, s12, 1
    s_lshr_b32 s37, s12, 1
    v_lshrrev_b32 v{T}, 3, v{L}
    v_bfe_u32 v{T+1}, v{L}, 4, 1
    v_lshlrev_b32 v{T+1}, 2, v{T+1}
    v_and_b32 v{T+2}, 7, v{L}
    v_xor_b32 v{T+2}, v{T+2}, v{T+1}
    v_lshlrev_b32 v{T+2}, 4, v{T+2}           ; c*16
    v_lshl_add_u32 v{vAd}, v{T}, 10, v{T+2}
    s_lshl_b32 s39, s13, 7
    v_add_u32 v{vAd}, s39, v{vAd}
    v_lshl_add_u32 v{vZd}, v{T}, 12, v{T+2}
    s_lshl_b32 s39, s15, 7
    v_add_u32 v{vZd}, s39, v{vZd}
    s_mul_i32 s44, s12, {nh*16*1024}
    s_mul_i32 s45, s12, {AREG}
    s_mul_i32 s52, s12, {nz*16*4096}
    s_waitcnt lgkmcnt(0)
    """)
    srd(A,8,30,0,1792*512*2)
    q=[]
    def dmaA(t):
        for j in range(2):
            A.I(f's_add_u32 m0, s45, {(t%NSL)*2048+j*1024}')
            A.I(f's_add_u32 s60, s44, {(t*16+j*8)*1024}')
            A.I(f'buffer_load_dwordx4 v{vAd}, s[8:11], s60 offen lds'); q.append(('A',t))
    def dmaZ(i):
        t=nh+i
        for j in range(2):
            A.I(f's_add_u32 m0, s45, {(t%NSL)*2048+j*1024}')
            A.I(f's_add_u32 s60, s52, {(i*16+j*8)*4096}')
            A.I(f'buffer_load_dwordx4 v{vZd}, s[20:23], s60 offen{SC} lds'); q.append(('A',t))
    srd(A,24,6,0,2048*512*2)
    srd(A,16,4,OFF_HP,224*32768)
    srd(A,20,4,OFF_ZQ,514*4096)
    srd(A,40,28,0,2048*512*2)
    A.I(f"""
    s_lshl_b32 s39, s15, 1
    s_add_u32 s39, s39, s37
    s_lshl_b32 s39, s39, 10
    s_lshl_b32 s31, s13, 7
    s_add_u32 s39, s39, s31
    s_lshl_b32 s31, s36, 6
    s_add_u32 s39, s39, s31
    v_lshlrev_b32 v{vX}, 16, v{l32}
    v_lshl_add_u32 v{vX}, v{half}, 3, v{vX}
    v_add_u32 v{vX}, s39, v{vX}
    """)
    for i in range(4):
        A.I(f'buffer_load_dwordx2 {v(XR+2*i,2)}, v{vX}, s[24:27], 0 offen offset:{16*i}'); q.append('x')
    ZT=248
    A.I(f"""
    s_lshl_b32 s39, s15, 10
    v_lshlrev_b32 v{vB}, 15, v{half}
    v_lshl_add_u32 v{vB}, v{l32}, 4, v{vB}
    v_add_u32 v{vB}, s39, v{vB}
    s_mul_i32 s46, s12, {nh*65536}
    s_lshl_b32 s39, s37, 9
    s_add_u32 s47, s46, 512
    s_sub_u32 s47, s47, s39
    s_add_u32 s46, s46, s39
    v_lshrrev_b32 v{T}, 5, v{L}
    v_lshlrev_b32 v{T}, 3, v{T}
    v_bfe_u32 v{T+1}, v{L}, 2, 2
    v_add_u32 v{T}, v{T}, v{T+1}
    v_lshlrev_b32 v{T}, 7, v{T}              ; row*128
    v_bfe_u32 v{T+2}, v{L}, 4, 1
    v_lshlrev_b32 v{T+2}, 1, v{T+2}
    v_bfe_u32 v{T+3}, v{L}, 1, 1
    v_add_u32 v{T+2}, v{T+2}, v{T+3}
    v_bfe_u32 v{T+3}, v{L}, 3, 1
    v_lshlrev_b32 v{T+3}, 2, v{T+3}
    v_xor_b32 v{T+2}, v{T+2}, v{T+3}
    v_lshl_add_u32 v{T}, v{T+2}, 4, v{T}
    v_and_b32 v{T+3}, 1, v{L}
    v_lshl_add_u32 v{T}, v{T+3}, 3, v{T}
    v_add_u32 v{T}, s45, v{T}
    s_lshl_b32 s39, s36, 6
    v_xor_b32 v{vAr}, s39, v{T}
    v_xor_b32 v{vAr+1}, 64, v{vAr}
    s_lshl_b32 s39, s37, 6
    v_xor_b32 v{vZr}, s39, v{T}
    v_xor_b32 v{vZr+1}, 64, v{vZr}
    s_lshl_b32 s39, s13, 6
    s_lshl_b32 s31, s36, 5
    s_add_u32 s39, s39, s31
    v_add_u32 v{T}, s39, v{l32}
    v_cvt_f32_u32 v{T}, v{T}
    v_mul_f32 v{ZT}, {f2u(1/512)}, v{T}
    s_lshl_b32 s39, s13, 6
    s_xor_b32 s31, s31, 32
    s_add_u32 s39, s39, s31
    v_add_u32 v{T+1}, s39, v{l32}
    v_cvt_f32_u32 v{T+1}, v{T+1}
    v_mul_f32 v{ZT+1}, {f2u(1/512)}, v{T+1}
    s_mul_i32 s39, s12, {nz*8}
    v_lshlrev_b32 v{T+2}, 2, v{half}
    v_add_u32 v{T+2}, s39, v{T+2}
    v_cvt_f32_u32 v{ZT+2}, v{T+2}
    """)
    zitems=[]
    for i in range(nz):
        for qq in range(4):
            def zf(i=i,qq=qq):
                A.I(f'v_add_f32 v{ZT+3}, {f2u(8*i+qq)}, v{ZT+2}')
                for ar in range(2):
                    A.I(f'v_mul_f32 v{ZT+4+ar}, v{ZT+3}, v{ZT+ar}\nv_fract_f32 v{ZT+4+ar}, v{ZT+4+ar}')
                for ar in range(2):
                    A.I(f'v_cos_f32 v{ZT+6}, v{ZT+4+ar}\nv_sin_f32 v{ZT+7}, v{ZT+4+ar}\nv_cvt_pk_bf16_f32 v{ZA+i*8+ar*4+qq}, v{ZT+6}, -v{ZT+7}')
            zitems.append(zf)
    NZ0=10 if 'z0' not in EXP else 0
    for zf in zitems[:NZ0]: zf()
    A.I(f's_waitcnt vmcnt({len(q)})\ns_barrier')
    ST.mark(A)
    A.I('s_cmp_lg_u32 s32, 0\ns_cbranch_scc1 p3_a1')
    A.skip_begin()
    A.I(f's_add_u32 s59, s35, {C_H}'); A.I('s_mov_b32 s61, s59'); arrive(A,61,T)
    A.skip_end(); A.L('p3_a1')
    rest=zitems[NZ0:]
    if 'epf' in EXP:
        for zf in rest: zf()
    else:
        for t in range(NSL):
            dmaA(t)
            for zf in rest[(t*len(rest))//NSL:((t+1)*len(rest))//NSL]: zf()
    ST.mark(A)
    A.I('s_cmp_lg_u32 s32, 0\ns_cbranch_scc1 p3_w1')
    A.skip_begin()
    A.I(f's_lshr_b32 s59, s15, 1\ns_add_u32 s59, s59, {C_H}\ns_lshl_b32 s59, s59, 7\nv_mov_b32 v{T}, s59\nv_mov_b32 v{T+1}, 16')
    poll_cnt(A,T,T+1,T+2,1)
    A.I(f'v_mov_b32 v{T}, 1\nds_write_b32 v{vC}, v{T}')
    A.skip_end(); A.L('p3_w1')
    lds_wait(A,vC,T,0,1)
    ST.mark(A)
    n=nh+nz
    def issueB(i):
        sl=BR+(i%NB)*8
        A.I(f'buffer_load_dwordx4 {v(sl,4)}, v{vB}, s[16:19], s46 offen{SCB}')
        A.I(f'buffer_load_dwordx4 {v(sl+4,4)}, v{vB}, s[16:19], s47 offen{SCB}')
        q.extend([('B',i)]*2)
        A.I('s_add_u32 s46, s46, 65536\ns_add_u32 s47, s47, 65536')
    def vwait(*tags):
        idx=[k for k,x in enumerate(q) if x in tags]
        if not idx: return
        N=len(q)-1-max(idx); del q[:max(idx)+1]
        A.I(f's_waitcnt vmcnt({min(N,63)})')
    def reads(t):
        f=AF+(t%2)*8
        if t<nh:
            for ar in range(2):
                for rd in range(2):
                    A.I(f'ds_read_b64_tr_b16 {v(f+ar*4+rd*2,2)}, v{vAr+ar} offset:{(t%NSL)*2048+rd*512}')
        else:
            for b_ in range(2):
                for rd in range(2):
                    A.I(f'ds_read_b64_tr_b16 {v(f+b_*4+rd*2,2)}, v{vZr+b_} offset:{(t%NSL)*2048+rd*512}')
    nxt=0
    ZAT=nh-4; ZP=nh-10
    for k in range(NB):
        issueB(nxt); nxt+=1
    vwait(('A',0)); reads(0)
    for i in range(n):
        if i<nh: vwait(('B',i),('A',i+1))
        else: vwait(('A',i+1))
        if 'p3steps' in EXP and i in (0,4,10,17,24): ST.mark(A)
        A.I('s_waitcnt lgkmcnt(0)')
        if i==ZAT:
            ST.mark(A); lds_wait(A,vC,T,4,1); ST.mark(A)
            for z in range(nz): dmaZ(z)
        if i+1<n and not (i+1==nh): reads(i+1)
        if i+1==nh:
            vwait(('A',nh)); reads(nh)
        for brr in range(2):
            for ar in range(2):
                if i<nh: a=AF+(i%2)*8+ar*4; b_=BR+(i%NB)*8+brr*4
                else: a=ZA+(i-nh)*8+ar*4; b_=AF+(i%2)*8+brr*4
                mf32(A,ACC+(ar+2*brr)*16,a,b_,i==0)
        if i==ZP:
            A.I(f'v_mov_b32 v{T}, 1\nds_write_b32 v{vC}, v{T} offset:12')
        if i+NSL<nh: dmaA(i+NSL)
        while nxt<nh and nxt<=i+NB:
            issueB(nxt); nxt+=1
    ST.mark(A)
    lds_wait(A,vC,T,48,1)
    A.I(f's_lshl_b32 s39, s15, 6\ns_lshl_b32 s31, s37, 5\ns_add_u32 s39, s39, s31\nv_add_u32 v{T+6}, s39, v{l32}\nv_lshlrev_b32 v{T+6}, 1, v{T+6}\ns_mov_b32 s39, {512*4096}')
    A.I(f'buffer_load_ushort v{T+7}, v{T+6}, s[20:23], s39 offen{SC}')
    A.I(f'v_lshlrev_b32 v{vLw}, 4, v{L}\nv_add_u32 v{vLw}, s45, v{vLw}')
    for j in range(1,4):
        for c in range(4): A.I(f'ds_write_b128 v{vLw}, {v(ACC+j*16+c*4,4)} offset:{(j-1)*4096+c*1024}')
    A.I('s_waitcnt lgkmcnt(0)\ns_barrier')
    for j in range(1,4):
        A.I(f's_xor_b32 s39, s12, {j}\ns_mul_i32 s39, s39, {AREG}\nv_lshlrev_b32 v{vLr}, 4, v{L}\nv_add_u32 v{vLr}, s39, v{vLr}')
        for c in range(4): A.I(f'ds_read_b128 {v(BR+(j-1)*16+c*4,4)}, v{vLr} offset:{(j-1)*4096+c*1024}')
    for j in range(3):
        A.I(f's_waitcnt lgkmcnt({8-4*j})')
        for i in range(16): A.I(f'v_add_f32 v{ACC+i}, v{ACC+i}, v{BR+j*16+i}')
    A.I(f's_waitcnt vmcnt(0)\nv_lshlrev_b32 v{T+7}, 16, v{T+7}')
    for i in range(16): A.I(f'v_{"add" if i%2==0 else "sub"}_f32 v{ACC+i}, v{ACC+i}, v{T+7}')
    for qq in range(4):
        x0,x1=XR+2*qq,XR+2*qq+1
        A.I(f"""v_lshlrev_b32 v{T}, 16, v{x0}
        v_and_b32 v{T+1}, 0xffff0000, v{x0}
        v_lshlrev_b32 v{T+2}, 16, v{x1}
        v_and_b32 v{T+3}, 0xffff0000, v{x1}""")
        for r in range(4): A.I(f'v_add_f32 v{ACC+4*qq+r}, v{ACC+4*qq+r}, v{T+r}')
        A.I(f'v_cvt_pk_bf16_f32 v{x0}, v{ACC+4*qq}, v{ACC+4*qq+1}')
        A.I(f'v_cvt_pk_bf16_f32 v{x1}, v{ACC+4*qq+2}, v{ACC+4*qq+3}')
        A.I(f'buffer_store_dwordx2 {v(x0,2)}, v{vX}, s[40:43], 0 offen offset:{16*qq}')

NAME='parallel_sum__spectral_gfnet__glu_gated_geglu__prompt'
HDR=open('cdna_kernels/'+NAME+'.s.ref').read().split('; Override')[0]
def full():
    A=Asm(); K=NAME+'_kernel'
    A.raw(HDR.rstrip())
    A.raw(f'; @launch grid=(256,1,1) block=(512,1,1) lds={LDS_TOTAL}')
    A.raw('.amdgcn_target "amdgcn-amd-amdhsa--gfx950"\n.text')
    A.raw(f'.globl {K}\n.p2align 8\n.type {K},@function'); A.L(K)
    A.I('s_cmp_ge_u32 s2, 256\ns_cbranch_scc1 k_done')
    if 'scram' in EXP: A.I('s_and_b32 s3, s2, 7\ns_lshl_b32 s3, s3, 5\ns_lshr_b32 s2, s2, 3\ns_or_b32 s2, s2, s3')
    A.I('''s_load_dwordx2 s[4:5], s[0:1], 72
    s_load_dwordx2 s[6:7], s[0:1], 0
    s_load_dwordx2 s[28:29], s[0:1], 32
    s_load_dwordx2 s[30:31], s[0:1], 40
    s_load_dwordx2 s[54:55], s[0:1], 64
    s_load_dwordx2 s[40:41], s[0:1], 8
    s_load_dwordx2 s[44:45], s[0:1], 16
    s_load_dwordx2 s[56:57], s[0:1], 48
    v_lshrrev_b32 v1, 6, v0
    s_nop 0
    v_readfirstlane_b32 s32, v1
    s_waitcnt lgkmcnt(0)''')
    ST.mark(A)
    p1_body(A)
    if 'p1only' in EXP:
        A.I('s_waitcnt vmcnt(0)'); ST.mark(A); ST.dump(A); A.I('s_endpgm')
    n0=ST.n
    A.I('s_cmp_ge_u32 s32, 4\ns_cbranch_scc1 k_s2')
    A.fence()
    p3_phase(A)
    if STAMP: A.I('s_waitcnt vmcnt(0)')
    ST.mark(A)
    ST.dump(A)
    A.I('s_endpgm')
    A.L('k_s2'); A.fence()
    ST.n=n0
    s2_phase(A)
    ST.mark(A)
    ST.dump(A)
    A.L('k_done'); A.I('s_endpgm')
    txt=A.finalize()
    txt+=f'''.section .rodata,"a"
.p2align 6
.amdhsa_kernel {K}
  .amdhsa_next_free_vgpr 256
  .amdhsa_next_free_sgpr 100
  .amdhsa_accum_offset 256
  .amdhsa_group_segment_fixed_size 0
  .amdhsa_kernarg_size 80
  .amdhsa_user_sgpr_count 2
  .amdhsa_user_sgpr_kernarg_segment_ptr 1
  .amdhsa_system_sgpr_workgroup_id_x 1
  .amdhsa_float_denorm_mode_32 3
.end_amdhsa_kernel
'''
    return txt
if __name__=='__main__':
    if len(sys.argv)>2 and sys.argv[2]=='stamp': STAMP=True
    if len(sys.argv)>3: EXP=set(sys.argv[3].split(','))
    if 'pace1' in EXP: PACE=1
    if 'pace2' in EXP: PACE=2
    if 'perm' in EXP: SB[1],SB[2]=SB[2],SB[1]
    if 'sb16' in EXP: SB[1]=49152+4096; SB[2]=98304+8192
    if 'plainB' in EXP: SCB=''
    if 'pollsc1' in EXP: SCP=' sc1'
    if 'nos2' in EXP: pass
    open(sys.argv[1],'w').write(full())
```

```python
import sys, struct, math
from asmlib import *
OFF_HP=0; OFF_ZQ=0x700000; OFF_YQ=0x940000; OFF_WT=0xB40000
OFF_CNT=0x1000000; OFF_RS=0x1018000; OFF_CSP=0x1040000; OFF_TS=0x2000000
C_RS=0; C_CS=16; C_H=32; C_Y=48; C_Z=64; ZREP=16; C_N=64+ZREP*8; NCNT=256
SLOT=49152; XS=0; GS=16384; US=32768
SB=[0,49152,98304]
YSCR=3*SLOT
LDS_TOTAL=163840; CTRL=LDS_TOTAL-256; STAT=CTRL-1024
NSL=17; AREG=NSL*2048
EX=4*AREG
STAMP=False; EXP=set(); PACE=0
SC=' sc1'
SCB=' sc1'
SCP=' sc1'
def f2u(x): return '0x%08x'%struct.unpack('<I',struct.pack('<f',x))[0]
class Stamps:
    def __init__(s): s.n=0
    def mark(s,A):
        if not STAMP or s.n>=15: return
        A.I(f's_{"memtime" if "clk" in EXP else "memrealtime"} s[{66+2*s.n}:{67+2*s.n}]'); s.n+=1
    def dump(s,A,n=None):
        if not STAMP: return
        n=s.n if n is None else n
        A.I('s_waitcnt lgkmcnt(0) vmcnt(0)')
        A.I(f's_lshl_b32 s60, s2, 3\ns_add_u32 s60, s60, s32\ns_lshl_b32 s60, s60, 7\ns_add_u32 s60, s60, {hex(OFF_TS)}')
        A.I(f's_add_u32 s96, s4, s60\ns_addc_u32 s97, s5, 0')
        A.I('v_mov_b32 v246, 0')
        for i in range(n):
            A.I(f'v_mov_b32 v244, s{66+2*i}\nv_mov_b32 v245, s{67+2*i}')
            A.I(f'global_store_dwordx2 v246, v[244:245], s[96:97] offset:{8*i}')
            A.I('s_nop 1')
ST=Stamps()
def srd(A,dst,base,off,size):
    if off:
        A.I(f's_add_u32 s{dst}, s{base}, {hex(off)}'); A.I(f's_addc_u32 s{dst+1}, s{base+1}, 0')
    else:
        A.I(f's_mov_b32 s{dst}, s{base}'); A.I(f's_mov_b32 s{dst+1}, s{base+1}')
    A.I(f's_mov_b32 s{dst+2}, {hex(size)}'); A.I(f's_mov_b32 s{dst+3}, 0x20000')
def mf16(A,D,a,b,first):
    A.I(f'v_mfma_f32_16x16x32_bf16 {v(D,4)}, {v(a,4)}, {v(b,4)}, {"0" if first else v(D,4)}')
def mf32(A,D,a,b,first=False):
    A.I(f'v_mfma_f32_32x32x16_bf16 {v(D,16)}, {v(a,4)}, {v(b,4)}, {"0" if first else v(D,16)}')
_lab=[0]
def newlab(p):
    _lab[0]+=1; return f'{p}_{_lab[0]}'
SPIN_MAX=0x20000
def lds_wait(A,vaddr,vtmp,off,val,n=1):
    l=newlab('lw'); d=newlab('ld')
    A.I('s_mov_b32 s58, 0'); A.L(l)
    if n==1:
        A.I(f'ds_read_b32 v{vtmp}, v{vaddr} offset:{off}\ns_waitcnt lgkmcnt(0)')
    else:
        A.I(f'ds_read_b128 {v(vtmp,4)}, v{vaddr} offset:{off}\ns_waitcnt lgkmcnt(0)')
        A.I(f'v_min_u32 v{vtmp}, v{vtmp}, v{vtmp+1}\nv_min_u32 v{vtmp+2}, v{vtmp+2}, v{vtmp+3}\nv_min_u32 v{vtmp}, v{vtmp}, v{vtmp+2}')
    A.I(f'v_readfirstlane_b32 s59, v{vtmp}')
    A.I(f's_cmp_ge_u32 s59, {val}\ns_cbranch_scc1 {d}')
    A.I(f's_add_u32 s58, s58, 1\ns_cmp_lt_u32 s58, {SPIN_MAX}\ns_cbranch_scc1 {l}')
    A.L(d)
def cnt_base(A):
    A.I(f's_add_u32 s62, s4, {hex(OFF_CNT)}\ns_addc_u32 s63, s5, 0')
def arrive(A,sidx,vt):
    cnt_base(A)
    A.I(f's_lshl_b32 s59, s{sidx}, 7\nv_mov_b32 v{vt}, s59\nv_mov_b32 v{vt+1}, 1\ns_mov_b64 exec, 1')
    A.I(f'global_atomic_add v{vt}, v{vt+1}, s[62:63]{SC}')
    A.I('s_mov_b64 exec, -1')
def poll_cnt(A,voff,vexp,vt,nl,first_loaded=False):
    l=newlab('pc'); d=newlab('pd'); c=newlab('pk')
    cnt_base(A)
    A.I(f's_mov_b32 s58, 0\ns_mov_b64 exec, {(1<<nl)-1}')
    if first_loaded: A.I(f's_branch {c}')
    A.L(l)
    A.I(f'global_load_dword v{vt}, v{voff}, s[62:63]{SCP}\ns_waitcnt vmcnt(0)')
    A.L(c)
    A.I(f'v_cmp_ne_u32 vcc, v{vt}, v{vexp}\ns_cbranch_vccz {d}')
    if 'sleep' in EXP: A.I('s_sleep 32')
    A.I(f's_add_u32 s58, s58, 1\ns_cmp_lt_u32 s58, {SPIN_MAX>>4}\ns_cbranch_scc1 {l}')
    A.L(d)
    A.I('s_mov_b64 exec, -1')

def p1_body(A):
    L,half,l32=1,2,3
    vX0,vX1,vW=4,5,6
    vAr=8; vBr=12
    csr=24; ones=28
    AFR=32; BFR=48
    T=80
    RSL=104; RSV=108
    vHo=112
    ACC=128
    vFw=8; fu=12; kb=13; kmask=14; FB=32; FO=48; SV=128; ST2=56; WTr=60; vWTs=76; vWTd=77; CSL=160; RD=20; FP=22
    PB=192
    tile=lambda m,st: ACC+(st>>1)*64+(m*2+(st&1))*16
    A.I(f"""
    v_and_b32 v{L}, 63, v0
    v_and_b32 v{l32}, 31, v0
    v_bfe_u32 v{half}, v0, 5, 1
    s_and_b32 s33, s2, 7
    s_lshr_b32 s34, s2, 3
    s_and_b32 s35, s33, 1
    s_lshl_b32 s35, s35, 3
    s_and_b32 s36, s34, 7
    s_add_u32 s35, s35, s36              ; rb
    s_lshr_b32 s33, s33, 1
    s_lshl_b32 s33, s33, 2
    s_lshr_b32 s34, s34, 3
    s_add_u32 s34, s33, s34              ; cb
    s_and_b32 s36, s32, 3                ; fq (C) / h (H)
    s_lshr_b32 s37, s32, 2               ; sh
    s_lshr_b32 s49, s35, 1               ; s0 (K rotation)
    s_cmp_lt_u32 s32, 4
    s_cbranch_scc1 p1_roleC
    """)
    NST=8
    def spread_into(G,items,lo,hi):
        n=hi-lo
        for j,it in enumerate(items): G[lo+min(j*n//max(len(items),1),n-1)].append(it)
    want=lambda i: i in ((0,1,2,3,4,5,6,7) if 'allB' in EXP else (1,2,3,4,5) if 'bw' in EXP else (() if ('p3steps' in EXP or 's2fine' in EXP) else (0,4)))
    n_st=ST.n
    vq=[]
    srd(A,8,6,0,2048*512*2)
    srd(A,12,28,0,512*1792*2)
    srd(A,16,30,0,512*1792*2)
    mask=0
    for Ln in range(64):
        c=(Ln%16)^((Ln//16)<<2)
        if c<14: mask|=1<<Ln
    A.I(f"""
    s_mov_b32 s50, {hex(mask&0xffffffff)}
    s_mov_b32 s51, {hex(mask>>32)}
    s_lshl_b32 s38, s36, 12              ; h*4096
    v_lshrrev_b32 v{T}, 3, v{L}
    v_lshlrev_b32 v{T}, 16, v{T}
    s_lshl_b32 s60, s35, 2
    s_add_u32 s60, s60, s36
    s_lshl_b32 s60, s60, 10
    v_add_u32 v{T}, s60, v{T}
    v_and_b32 v{T+1}, 7, v{L}
    v_lshrrev_b32 v{T+2}, 4, v{L}
    v_xor_b32 v{T+1}, v{T+1}, v{T+2}
    v_lshl_add_u32 v{vX0}, v{T+1}, 4, v{T}
    v_xor_b32 v{vX1}, 64, v{vX0}
    s_lshl_b32 s60, s36, 4
    v_add_u32 v{T+1}, s60, v{T+2}
    s_movk_i32 s60, 3584
    v_mul_lo_u32 v{T+1}, v{T+1}, s60
    v_and_b32 v{T+3}, 15, v{L}
    v_lshlrev_b32 v{T+2}, 2, v{T+2}
    v_xor_b32 v{T+3}, v{T+3}, v{T+2}
    v_lshl_add_u32 v{vW}, v{T+3}, 4, v{T+1}
    s_mul_i32 s60, s34, 224
    v_add_u32 v{vW}, s60, v{vW}
    """)
    def dma(stage):
        slot=SB[stage%3]
        A.I(f's_add_u32 s52, s49, {stage}\ns_and_b32 s52, s52, 7\ns_mul_i32 s53, s52, {64*3584}\ns_lshl_b32 s52, s52, 7')
        for i in range(4):
            A.I(f's_add_u32 m0, s38, {slot+XS+i*1024}')
            A.I(f's_add_u32 s60, s52, {i*524288}')
            A.I(f'buffer_load_dwordx4 v{vX0+(i&1)}, s[8:11], s60 offen lds'); vq.append(stage)
            if PACE and stage>1: A.I(f's_sleep {PACE}')
            A.I(f's_add_u32 s60, s53, {i*14336}\ns_mov_b64 exec, s[50:51]')
            for m in range(2):
                A.I(f's_add_u32 m0, s38, {slot+(US if m else GS)+i*1024}\ns_nop 0')
                A.I(f'buffer_load_dwordx4 v{vW}, s[{12+4*m}:{15+4*m}], s60 offen lds'); vq.append(stage)
                if PACE and stage>1: A.I(f's_sleep {PACE}')
            A.I('s_mov_b64 exec, -1')
    def vwait(tag,lg=False):
        idx=[k for k,x in enumerate(vq) if x==tag]
        if not idx:
            if lg: A.I('s_waitcnt lgkmcnt(0)')
            return
        N=len(vq)-1-max(idx); del vq[:max(idx)+1]
        A.I(f's_waitcnt vmcnt({min(N,63)})'+(' lgkmcnt(0)' if lg else ''))
    dma(0)
    A.I(f"""
    s_lshl_b32 s33, s34, 3
    s_lshl_b32 s60, s36, 1
    s_add_u32 s33, s33, s60
    s_lshl_b32 s60, s35, 7
    s_add_u32 s64, s60, s33
    v_lshlrev_b32 v{T}, 4, v{L}
    """)
    for n in range(2):
        A.I(f"""s_add_u32 s60, s64, {n}
        s_and_b32 s61, s60, 31
        s_lshl_b32 s61, s61, 6
        s_lshr_b32 s60, s60, 5
        s_add_u32 s60, s60, s61
        s_lshl_b32 s60, s60, 10
        buffer_load_dwordx4 {v(SV+4*n,4)}, v{T}, s[8:11], s60 offen"""); vq.append('row')
    dma(1)
    A.I('s_cmp_lt_u32 s32, 6\ns_cbranch_scc1 p1H_nf')
    A.skip_begin()
    A.I(f"""
    s_and_b32 s39, s32, 1
    s_lshl_b32 s33, s49, 6
    s_lshl_b32 s60, s39, 5
    s_add_u32 s33, s33, s60
    v_add_u32 v{T+2}, s33, v{l32}
    v_cvt_f32_u32 v{fu}, v{T+2}
    v_mul_f32 v{fu}, {f2u(1/512)}, v{fu}
    s_lshl_b32 s33, s34, 4
    v_lshlrev_b32 v{T+3}, 3, v{half}
    v_add_u32 v{T+3}, s33, v{T+3}
    v_cvt_f32_u32 v{kb}, v{T+3}
    v_mov_b32 v{kmask}, 0xffff
    """)
    for b_ in range(2):
        if b_==1: A.I(f'v_add_f32 v{fu}, {f2u(0.125)}, v{fu}\nv_fract_f32 v{fu}, v{fu}')
        A.I(f'v_mul_f32 v{T+4}, v{fu}, v{kb}')
        for j in range(4):
            A.I(f'v_cos_f32 v{T+6}, v{T+4}\nv_sin_f32 v{T+8}, v{T+4}\nv_add_f32 v{T+4}, v{T+4}, v{fu}')
            A.I(f'v_cos_f32 v{T+7}, v{T+4}\nv_sin_f32 v{T+9}, v{T+4}\nv_add_f32 v{T+4}, v{T+4}, v{fu}')
            A.I(f'v_cvt_pk_bf16_f32 v{FB+8*b_+j}, v{T+6}, v{T+7}')
            A.I(f'v_cvt_pk_bf16_f32 v{FB+8*b_+4+j}, -v{T+8}, -v{T+9}')
        A.I(f"""v_and_b32 v{T+5}, 1, v{l32}
        v_lshlrev_b32 v{T+5}, 15, v{T+5}
        v_or_b32 v{T+5}, 0x3f80, v{T+5}
        v_bfi_b32 v{T+5}, v{kmask}, v{T+5}, v{FB+8*b_+4}
        v_cmp_eq_u32 vcc, 0, v{T+3}
        v_cndmask_b32 v{FB+8*b_+4}, v{FB+8*b_+4}, v{T+5}, vcc""")
    A.I(f"""
    s_lshl_b32 s60, s39, 5
    v_add_u32 v{T+2}, s60, v{l32}
    v_and_b32 v{T+3}, 3, v{T+2}
    v_lshlrev_b32 v{T+3}, 2, v{T+3}
    v_add_u32 v{T+4}, 14, v{half}
    v_xor_b32 v{T+3}, v{T+3}, v{T+4}
    v_lshlrev_b32 v{T+3}, 4, v{T+3}
    v_lshl_add_u32 v{T+3}, v{T+2}, 8, v{T+3}
    v_add_u32 v{vFw}, {GS+SB[0]}, v{T+3}
    v_add_u32 v{vFw+1}, {GS+SB[1]}, v{T+3}
    v_add_u32 v{vFw+2}, {GS+SB[2]}, v{T+3}
    """)
    A.skip_end(); A.L('p1H_nf')
    flab=[0]
    def fgen(stage):
        flab[0]+=1; l=f'p1H_fg{flab[0]}'
        A.I(f's_cmp_lt_u32 s32, 6\ns_cbranch_scc1 {l}')
        A.skip_begin()
        slot=stage%3; b_=stage&1; t=(stage>>1)&3; B0=FB+8*b_
        def wr(m,src): A.I(f'ds_write_b128 v{vFw+slot}, {v(src,4)} offset:{m*16384}')
        if t==0:
            wr(0,B0); wr(1,B0+4)
        elif t==2:
            for m in range(2):
                for j in range(4): A.I(f'v_xor_b32 v{FO+4*m+j}, 0x80000000, v{B0+4*m+j}')
                wr(m,FO+4*m)
        else:
            ex=0 if t==1 else 0x80000000
            for m in range(2):
                for j in range(4):
                    own=B0+4*m+j; oth=B0+4*(1-m)+j
                    A.I(f'v_bfi_b32 v{FO+4*m+j}, v{kmask}, v{own}, v{oth}')
                    if m==0: sg=(0 if j%2==0 else 0x80008000)
                    else: sg=(0x80000000 if j%2==0 else 0x8000)
                    sg^=ex
                    if sg: A.I(f'v_xor_b32 v{FO+4*m+j}, {hex(sg)}, v{FO+4*m+j}')
                wr(m,FO+4*m)
        A.skip_end(); A.L(l)
    A.I('s_cmp_lg_u32 s2, 0\ns_cbranch_scc1 p1H_non\ns_cmp_lg_u32 s32, 7\ns_cbranch_scc1 p1H_non')
    A.skip_begin()
    cnt_base(A)
    A.I(f'v_lshlrev_b32 v{T}, 7, v{L}\nv_mov_b32 v{T+1}, 0')
    for j in range(NCNT//64):
        A.I(f'global_store_dword v{T}, v{T+1}, s[62:63]{SC}\nv_add_u32 v{T}, {64*128}, v{T}')
    A.I('s_mov_b64 exec, 1')
    A.I(f's_waitcnt vmcnt(0)\nv_mov_b32 v{T}, 0\nv_mov_b32 v{T+1}, 1\nglobal_store_dword v{T}, v{T+1}, s[54:55]{SC}\ns_mov_b64 exec, -1')
    A.skip_end(); A.L('p1H_non')
    def rowstats():
        U=T+14; S=ST2
        vwait('row')
        for i in range(4):
            for n in range(2):
                u=U+2*n
                A.I(f'v_lshlrev_b32 v{u}, 16, v{SV+4*n+i}\nv_and_b32 v{u+1}, 0xffff0000, v{SV+4*n+i}')
                if i==0: A.I(f'v_add_f32 v{S+2*n}, v{u}, v{u+1}\nv_mul_f32 v{S+2*n+1}, v{u}, v{u}')
                else: A.I(f'v_add_f32 v{S+2*n}, v{S+2*n}, v{u}\nv_fmac_f32 v{S+2*n+1}, v{u}, v{u}\nv_add_f32 v{S+2*n}, v{S+2*n}, v{u+1}')
                A.I(f'v_fmac_f32 v{S+2*n+1}, v{u+1}, v{u+1}')
        for ror in (8,4,2,1):
            for x in range(S,S+4): A.I(f'v_add_f32_dpp v{x}, v{x}, v{x} row_ror:{ror} row_mask:0xf bank_mask:0xf')
        for op in ('v_permlane16_swap_b32','v_permlane32_swap_b32'):
            for k in range(4): A.I(f'v_mov_b32 v{U+k}, v{S+k}')
            for k in range(4): A.I(f'{op} v{S+k}, v{U+k}')
            for k in range(4): A.I(f'v_add_f32 v{S+k}, v{S+k}, v{U+k}')
        A.I(f"""
        v_and_b32 v{U}, 1, v{L}
        v_cmp_eq_u32 vcc, 1, v{U}
        v_cndmask_b32 v{S}, v{S}, v{S+2}, vcc
        v_cndmask_b32 v{S+1}, v{S+1}, v{S+3}, vcc
        v_mul_f32 v{U}, {f2u(1/512)}, v{S}
        v_mul_f32 v{U+1}, {f2u(1/512)}, v{S+1}
        v_fma_f32 v{U+1}, -v{U}, v{U}, v{U+1}
        v_max_f32 v{U+1}, 0, v{U+1}
        v_cvt_pk_bf16_f32 v{U}, v{U}, v{U+1}
        v_and_b32 v{U+1}, 0xffff0000, v{U}
        v_lshlrev_b32 v{U}, 16, v{U}
        v_sub_f32 v{S}, 0, v{U}
        v_add_f32 v{U+1}, {f2u(1e-5)}, v{U+1}
        v_cvt_pk_bf16_f32 v{U+1}, v{U+1}, v{U+1}
        v_and_b32 v{U+1}, 0xffff0000, v{U+1}
        v_sqrt_f32 v{U+1}, v{U+1}
        v_cvt_pk_bf16_f32 v{U+1}, v{U+1}, v{U+1}
        v_and_b32 v{S+1}, 0xffff0000, v{U+1}
        s_lshl_b32 s60, s64, 3
        s_add_u32 s60, s60, {OFF_RS}
        s_add_u32 s62, s4, s60
        s_addc_u32 s63, s5, 0
        v_lshlrev_b32 v{U}, 3, v{L}
        s_mov_b64 exec, 3
        global_store_dwordx2 v{U}, {v(S,2)}, s[62:63]{SC}
        s_mov_b64 exec, -1
        """); vq.append('st')
    WV=128
    wS=76; wD=77
    def wt_job_loads():
        A.I(f"""
        v_and_b32 v{wD}, 255, v0
        v_lshrrev_b32 v{wD}, 4, v{wD}
        s_lshl_b32 s60, s35, 7
        v_add_u32 v{wS}, s60, v{wD}
        v_mul_u32_u24 v{wS}, 257, v{wS}
        v_and_b32 v{wD+1}, 15, v0
        s_lshl_b32 s60, s34, 4
        v_add_u32 v{wD+1}, s60, v{wD+1}
        v_add_u32 v{wS}, v{wS}, v{wD+1}
        v_lshlrev_b32 v{wS}, 1, v{wS}
        s_lshr_b32 s60, s35, 2
        s_lshl_b32 s60, s60, 11
        s_and_b32 s61, s35, 3
        s_lshl_b32 s61, s61, 8
        s_add_u32 s65, s60, s61
        v_lshlrev_b32 v{wD}, 4, v{wD}
        v_add_u32 v{wD}, s65, v{wD}
        v_lshl_add_u32 v{wD}, v{wD+1}, 13, v{wD}
        s_mov_b32 s42, 0x101000
        s_mov_b32 s43, 0x20000
        s_mov_b32 s46, 0x101000
        s_mov_b32 s47, 0x20000
        """)
        for n in range(2):
            for r in range(4):
                A.I(f's_mov_b32 s60, {r*16448+n*8224}')
                A.I(f'buffer_load_short_d16 v{WV+4*n+r}, v{wS}, s[40:43], s60 offen')
                A.I(f'buffer_load_short_d16_hi v{WV+8+4*n+r}, v{wS}, s[44:47], s60 offen'); vq.extend(['wt','wt'])
        A.I('s_cmp_lg_u32 s34, 0\ns_cbranch_scc1 p1H_wt0\ns_cmp_lg_u32 s32, 4\ns_cbranch_scc1 p1H_wt0')
        A.skip_begin()
        A.I(f's_lshl_b32 s60, s35, 7\nv_add_u32 v{wD+1}, s60, v{l32}\nv_mul_u32_u24 v{wD+1}, 257, v{wD+1}\nv_add_u32 v{wD+1}, 256, v{wD+1}\nv_lshlrev_b32 v{wD+1}, 1, v{wD+1}')
        for r in range(4):
            A.I(f's_mov_b32 s60, {r*16448}')
            A.I(f'buffer_load_short_d16 v{WV+16+r}, v{wD+1}, s[40:43], s60 offen')
            A.I(f'buffer_load_short_d16_hi v{WV+20+r}, v{wD+1}, s[44:47], s60 offen')
        A.skip_end(); A.L('p1H_wt0')
    def wt_job_stores():
        vwait('wt')
        srd(A,40,4,OFF_WT,257*8192)
        for n in range(2):
            for r in range(4): A.I(f'v_or_b32 v{WV+4*n+r}, v{WV+4*n+r}, v{WV+8+4*n+r}')
            A.I(f'buffer_store_dwordx4 {v(WV+4*n,4)}, v{wD}, s[40:43], 0 offen offset:{n*1024}{SC}'); vq.append('wst')
        A.I('s_cmp_lg_u32 s34, 0\ns_cbranch_scc1 p1H_wt1\ns_cmp_lg_u32 s32, 4\ns_cbranch_scc1 p1H_wt1')
        A.skip_begin()
        for r in range(4): A.I(f'v_or_b32 v{WV+16+r}, v{WV+16+r}, v{WV+20+r}')
        A.I(f'v_lshrrev_b32 v{wS}, 4, v{l32}\nv_lshlrev_b32 v{wS}, 10, v{wS}\nv_and_b32 v{wD+1}, 15, v{l32}\nv_lshl_add_u32 v{wS}, v{wD+1}, 4, v{wS}')
        A.I(f'v_add_u32 v{wS}, s65, v{wS}\nv_add_u32 v{wS}, 0x200000, v{wS}\ns_mov_b32 exec_hi, 0')
        A.I(f'buffer_store_dwordx4 {v(WV+16,4)}, v{wS}, s[40:43], 0 offen{SC}\ns_mov_b64 exec, -1')
        A.skip_end(); A.L('p1H_wt1')
    def warmup():
        A.I(f"""
        s_bfe_u32 s60, s2, 0x30003            ; n&7
        s_mul_i32 s60, s60, 224
        s_mul_i32 s61, s36, 56
        s_add_u32 s60, s60, s61
        v_add_u32 v{T}, s60, v{L}
        v_lshlrev_b32 v{T}, 10, v{T}
        s_bfe_u32 s60, s2, 0x10002            ; x>>2
        s_lshl_b32 s60, s60, 2
        s_lshr_b32 s61, s2, 6
        s_add_u32 s60, s60, s61               ; db
        s_lshl_b32 s60, s60, 7
        v_add_u32 v{T}, s60, v{T}
        s_mov_b32 s20, s56
        s_mov_b32 s21, s57
        s_mov_b32 s22, {hex(1792*512*2)}
        s_mov_b32 s23, 0x20000
        buffer_load_dword v{T+2}, v{T}, s[20:23], 0 offen
        s_getpc_b64 s[60:61]
        p1H_pc:
        s_add_u32 s60, s60, p1_join-p1H_pc
        s_addc_u32 s61, s61, 0
        s_lshl_b32 s62, s36, 13
        v_lshlrev_b32 v{T+4}, 7, v{L}
        v_add_u32 v{T+4}, s62, v{T+4}
        v_min_u32 v{T+4}, k_done-p1_join, v{T+4}
        v_mov_b32 v{T+5}, s61
        v_add_co_u32 v{T+4}, vcc, s60, v{T+4}
        v_addc_co_u32 v{T+5}, vcc, 0, v{T+5}, vcc
        global_load_dword v{T+3}, v[{T+4}:{T+5}], off
        """)
        vq.extend(['pf','pf'])
    def ready_load():
        A.I(f'v_mov_b32 v{RD+1}, 0\ns_mov_b64 exec, 1\nglobal_load_dword v{RD}, v{RD+1}, s[54:55]{SCP}\ns_mov_b64 exec, -1'); vq.append('non')
    def ready_check():
        l=newlab('nl'); d=newlab('nd')
        A.I(f'v_readfirstlane_b32 s3, v{RD}\ns_cmp_lg_u32 s3, 0\ns_cbranch_scc1 {d}\ns_mov_b32 s58, 0')
        A.L(l)
        A.I(f'global_load_dword v{RD}, v{RD+1}, s[54:55]{SCP}\ns_waitcnt vmcnt(0)\nv_readfirstlane_b32 s3, v{RD}')
        A.I(f's_cmp_lg_u32 s3, 0\ns_cbranch_scc1 {d}\ns_add_u32 s58, s58, 1\ns_cmp_lt_u32 s58, {SPIN_MAX>>4}\ns_cbranch_scc1 {l}')
        A.L(d)
    def rs_loads(q):
        A.I(f"""
        s_lshl_b32 s60, s35, 7
        s_lshl_b32 s61, s37, 6
        s_add_u32 s60, s60, s61
        v_add_u32 v{RSL}, s60, v{l32}
        v_lshlrev_b32 v{RSL+1}, 3, v{RSL}
        s_add_u32 s62, s4, {OFF_RS}
        s_addc_u32 s63, s5, 0
        global_load_dwordx2 {v(RSV,2)}, v{RSL+1}, s[62:63]{SC}
        global_load_dwordx2 {v(RSV+2,2)}, v{RSL+1}, s[62:63] offset:256{SC}
        """); q.extend(['rs','rs'])
    for i in range(NST):
        if 'bw' in EXP and i in (1,2,3,4,5): ST.mark(A)
        vwait(i,True)
        if 'bw' in EXP and i in (1,2,3,4,5): ST.mark(A)
        if i==6:
            A.I('s_cmp_lg_u32 s32, 4\ns_cbranch_scc1 p1H_sq')
            A.skip_begin()
            A.I('s_waitcnt vmcnt(12)')
            poll_cnt(A,FP+1,FP+3,FP+2,2,True)
            A.skip_end(); A.L('p1H_sq')
        A.I('s_barrier')
        if want(i): ST.mark(A)
        if i==5:
            A.I(f"""
            s_lshl_b32 s60, s35, 7
            s_add_u32 s61, s34, {C_CS}
            s_lshl_b32 s61, s61, 7
            v_mov_b32 v{FP+1}, s61
            v_mov_b32 v{FP}, s60
            v_cmp_eq_u32 vcc, 0, v{L}
            v_cndmask_b32 v{FP+1}, v{FP+1}, v{FP}, vcc
            v_mov_b32 v{FP+3}, 16
            s_cmp_lg_u32 s32, 4
            s_cbranch_scc1 p1H_sp
            """)
            A.skip_begin()
            cnt_base(A)
            A.I(f's_mov_b64 exec, 3\nglobal_load_dword v{FP+2}, v{FP+1}, s[62:63]{SCP}\ns_mov_b64 exec, -1')
            A.skip_end(); A.L('p1H_sp')
        if i==0: ready_load()
        if i==3:
            A.I('s_cmp_lg_u32 s32, 4\ns_cbranch_scc1 p1H_f0')
            A.skip_begin()
            ready_check()
            arrive(A,35,T+14)
            A.I(f's_add_u32 s61, s34, {C_CS}'); arrive(A,61,T+14)
            A.skip_end(); A.L('p1H_f0')
        if i+2<NST: fgen(i+2)
        if i+2<NST: dma(i+2)
        if i==0: rowstats()
        if i==4 and 'nopf' not in EXP: warmup()
        if i==6:
            wt_job_loads()
            rs_loads(vq)
            A.I(f's_lshl_b32 s60, s34, 14\ns_add_u32 s60, s60, {OFF_CSP}\ns_add_u32 s20, s4, s60\ns_addc_u32 s21, s5, 0\nv_and_b32 v{FP}, 255, v0\nv_lshlrev_b32 v{FP}, 2, v{FP}')
            for j4 in range(4):
                if j4>0: A.I(f'v_add_u32 v{FP}, 4096, v{FP}')
                for j in range(4):
                    A.I(f'global_load_dword v{CSL+4*j4+j}, v{FP}, s[20:21] offset:{j*1024}{SC}'); vq.append('csp')
    vwait('csp')
    wt_job_stores()
    X=CSL
    for j in range(8): A.I(f'v_add_f32 v{X+j}, v{X+j}, v{X+8+j}')
    for j in range(4): A.I(f'v_add_f32 v{X+j}, v{X+j}, v{X+4+j}')
    A.I(f'v_add_f32 v{X}, v{X}, v{X+1}\nv_add_f32 v{X+2}, v{X+2}, v{X+3}\nv_add_f32 v{X}, v{X}, v{X+2}')
    A.I(f"""
    v_cvt_pk_bf16_f32 v{X+1}, v{X}, v{X}
    v_and_b32 v{X+1}, 0xffff0000, v{X+1}
    v_sub_f32 v{X+2}, v{X}, v{X+1}
    v_cvt_pk_bf16_f32 v{X}, v{X+1}, v{X+2}
    v_and_b32 v{T}, 255, v0
    v_lshlrev_b32 v{T}, 2, v{T}
    v_add_u32 v{T}, {STAT}, v{T}
    ds_write_b32 v{T}, v{X}
    """)
    ST.mark(A)
    A.I(f"""
    s_lshl_b32 s60, s36, 14
    s_cmp_eq_u32 s36, 3
    s_cselect_b32 s60, {SB[2]}, s60
    v_lshlrev_b32 v{T}, 4, v{L}
    v_add_u32 v{T}, s60, v{T}
    s_waitcnt lgkmcnt(0)
    s_barrier
    """)
    for k in range(16): A.I(f'ds_read_b128 {v(ACC+4*k,4)}, v{T} offset:{k*1024}')
    A.I('s_branch p1_join')
    A.L('p1_roleC'); A.fence()
    ST.n=n_st
    cq=[]; lq=[]
    A.I(f"""
    v_lshrrev_b32 v{T}, 5, v{L}
    v_lshlrev_b32 v{T}, 3, v{T}
    v_bfe_u32 v{T+1}, v{L}, 2, 2
    v_add_u32 v{T}, v{T}, v{T+1}
    v_lshlrev_b32 v{T}, 8, v{T}
    v_bfe_u32 v{T+2}, v{L}, 4, 1
    v_lshlrev_b32 v{T+2}, 1, v{T+2}
    v_bfe_u32 v{T+3}, v{L}, 1, 1
    v_add_u32 v{T+2}, v{T+2}, v{T+3}
    s_lshl_b32 s33, s36, 2
    v_add_u32 v{T+2}, s33, v{T+2}
    v_lshlrev_b32 v{T+1}, 2, v{T+1}
    v_xor_b32 v{T+2}, v{T+2}, v{T+1}
    v_lshl_add_u32 v{T}, v{T+2}, 4, v{T}
    v_and_b32 v{T+3}, 1, v{L}
    v_lshl_add_u32 v{T}, v{T+3}, 3, v{T}
    v_add_u32 v{vAr}, {GS+SB[0]}, v{T}
    v_add_u32 v{vAr+1}, {GS+SB[1]}, v{T}
    v_add_u32 v{vAr+2}, {GS+SB[2]}, v{T}
    v_lshlrev_b32 v{T}, 7, v{l32}
    v_bfe_u32 v{T+1}, v{l32}, 1, 3
    v_xor_b32 v{T+1}, v{T+1}, v{half}
    v_lshl_add_u32 v{T}, v{T+1}, 4, v{T}
    v_mov_b32 v{ones}, 0x3f803f80
    """)
    for sl in range(3):
        for ks in range(4):
            if ks==0: A.I(f'v_add_u32 v{vBr+sl*4}, {SB[sl]+XS}, v{T}')
            else: A.I(f'v_xor_b32 v{vBr+sl*4+ks}, {ks*32}, v{vBr+sl*4}')
    for k in range(4): A.I(f'v_mov_b32 v{csr+k}, 0')
    A.I(f'v_mov_b32 v{T}, {CTRL}\nv_lshl_add_u32 v{T}, v{L}, 2, v{T}\nv_mov_b32 v{T+1}, 0\nds_write_b32 v{T}, v{T+1}')
    A.I(f"""
    s_lshl_b32 s60, s36, 4
    v_and_b32 v{T}, 15, v{L}
    v_add_u32 v{T}, s60, v{T}              ; row
    s_lshl_b32 s60, s49, 6
    v_lshlrev_b32 v{T+1}, 6, v{half}
    v_add_u32 v{T+1}, v{T+1}, v{T}
    v_add_u32 v{T+1}, s60, v{T+1}
    v_and_b32 v{T+1}, 511, v{T+1}          ; d
    v_cvt_f32_u32 v{T+2}, v{T+1}
    v_mul_f32 v{T+2}, {f2u(1/512)}, v{T+2} ; u
    v_bfe_u32 v{T+3}, v{L}, 4, 1           ; ch
    s_lshl_b32 s60, s34, 4
    v_lshlrev_b32 v{T+4}, 3, v{T+3}
    v_add_u32 v{T+4}, s60, v{T+4}          ; k0
    v_cvt_f32_u32 v{T+5}, v{T+4}
    v_mul_f32 v{T+5}, v{T+5}, v{T+2}       ; angle
    """)
    for j in range(4):
        A.I(f'v_cos_f32 v{T+6}, v{T+5}\nv_sin_f32 v{T+8}, v{T+5}\nv_add_f32 v{T+5}, v{T+5}, v{T+2}')
        A.I(f'v_cos_f32 v{T+7}, v{T+5}\nv_sin_f32 v{T+9}, v{T+5}\nv_add_f32 v{T+5}, v{T+5}, v{T+2}')
        A.I(f'v_cvt_pk_bf16_f32 v{AFR+j}, v{T+6}, v{T+7}')
        A.I(f'v_cvt_pk_bf16_f32 v{AFR+4+j}, -v{T+8}, -v{T+9}')
    A.I(f"""
    v_and_b32 v{T+6}, 1, v{T}
    v_lshlrev_b32 v{T+6}, 15, v{T+6}
    v_or_b32 v{T+6}, 0x3f80, v{T+6}
    v_mov_b32 v{T+7}, 0xffff
    v_bfi_b32 v{T+6}, v{T+7}, v{T+6}, v{AFR+4}
    v_cmp_eq_u32 vcc, 0, v{T+4}
    v_cndmask_b32 v{AFR+4}, v{AFR+4}, v{T+6}, vcc
    v_and_b32 v{T+6}, 3, v{T}
    v_lshlrev_b32 v{T+6}, 2, v{T+6}
    v_add_u32 v{T+7}, 14, v{T+3}
    v_xor_b32 v{T+6}, v{T+6}, v{T+7}
    v_lshlrev_b32 v{T+6}, 4, v{T+6}
    v_lshl_add_u32 v{T+6}, v{T}, 8, v{T+6}
    v_mul_u32_u24 v{T+7}, {SB[1]-SB[0]}, v{half}
    v_add_u32 v{T+6}, v{T+6}, v{T+7}
    v_add_u32 v{T+6}, {GS+SB[0]}, v{T+6}
    ds_write_b128 v{T+6}, {v(AFR,4)}
    ds_write_b128 v{T+6}, {v(AFR+4,4)} offset:16384
    """)
    def read_items(stage,ks,fs):
        slot=stage%3; a=AFR+fs*8; bb=BFR+fs*16
        def ra(m):
            def f():
                for rd in range(2):
                    A.I(f'ds_read_b64_tr_b16 {v(a+m*4+rd*2,2)}, v{vAr+slot} offset:{m*16384+ks*4096+rd*1024}'); lq.append(('A',m,stage,ks))
            return f
        def rb(st):
            def f():
                A.I(f'ds_read_b128 {v(bb+st*4,4)}, v{vBr+slot*4+ks} offset:{st*4096}'); lq.append(('B',st,stage,ks))
            return f
        return [ra(0),rb(0),ra(1),rb(1),rb(2),rb(3)]
    def lwait(tags):
        idx=[k for k,x in enumerate(lq) if x in tags]
        if not idx: return
        n=len(lq)-1-max(idx); del lq[:max(idx)+1]
        A.I(f's_waitcnt lgkmcnt({n})')
    def compute(stage,ks,fs,first,nxt,extra=None,cs=None):
        a=AFR+fs*8; bb=BFR+fs*16; k=0
        for st in range(4):
            for m in range(2):
                lwait([('A',m,stage,ks),('B',st,stage,ks)])
                mf32(A,tile(m,st),a+m*4,bb+st*4,first)
                if k<len(nxt): nxt[k]()
                if cs is not None: A.I(f'v_dot2c_f32_bf16 v{csr+cs*2+(k>>2)}, v{a+(k>>2)*4+(k&3)}, v{ones}')
                if extra and k in extra: extra[k]()
                k+=1
    def cs_chunks():
        U=T+14; C=[]
        C.append(lambda: A.I(f"""s_bitcmp1_b32 s35, 0
            s_cselect_b64 vcc, -1, 0
            v_cndmask_b32 v{U}, v{csr}, v{csr+2}, vcc
            v_cndmask_b32 v{U+2}, v{csr+1}, v{csr+3}, vcc"""))
        C.append(lambda: A.I(f"""v_mov_b32 v{U+1}, v{U}
            v_mov_b32 v{U+3}, v{U+2}
            s_lshl_b32 s60, s34, 4
            s_add_u32 s60, s60, s35"""))
        C.append(lambda: A.I(f"""v_permlane32_swap_b32 v{U}, v{U+1}
            v_permlane32_swap_b32 v{U+2}, v{U+3}
            s_lshl_b32 s60, s60, 10
            s_lshl_b32 s61, s36, 7"""))
        C.append(lambda: A.I(f"""v_add_f32 v{U}, v{U}, v{U+1}
            v_add_f32 v{U+2}, v{U+2}, v{U+3}
            s_add_u32 s60, s60, s61
            s_add_u32 s60, s60, {OFF_CSP}"""))
        C.append(lambda: A.I(f"""s_add_u32 s62, s4, s60
            s_addc_u32 s63, s5, 0
            v_lshlrev_b32 v{U+1}, 2, v{l32}
            s_mov_b32 exec_hi, 0
            global_store_dword v{U+1}, v{U}, s[62:63]{SC}
            s_mov_b64 exec, -1"""))
        C.append(lambda: A.I(f"""s_mov_b32 exec_hi, 0
            global_store_dword v{U+1}, v{U+2}, s[62:63] offset:512{SC}
            s_mov_b64 exec, -1"""))
        return C
    for i in range(NST):
        if 'bw' in EXP and i in (1,2,3,4,5): ST.mark(A)
        if i==3: A.I('s_waitcnt vmcnt(0)')
        A.I('s_waitcnt lgkmcnt(0)'); lq.clear()
        if 'bw' in EXP and i in (1,2,3,4,5): ST.mark(A)
        A.I('s_barrier')
        if want(i): ST.mark(A)
        r0=read_items(i,0,0)
        if i==0:
            for f in r0: f()
        else:
            compute(i-1,3,1,False,r0,None,1 if i==1 else None)
            pass
        compute(i,0,0,i==0,read_items(i,1,1),({6:lambda: rs_loads(cq)} if i==6 else (dict(zip((1,2,3,4,6,7),cs_chunks())) if i==1 else None)),0 if i==0 else None)
        compute(i,1,1,False,read_items(i,2,0),None,0 if i==0 else None)
        compute(i,2,0,False,read_items(i,3,1),None,1 if i==0 else None)
    A.I('s_waitcnt lgkmcnt(0)'); lq.clear()
    compute(7,3,1,False,[])
    ST.mark(A)
    A.I(f"""
    s_lshl_b32 s60, s36, 14
    s_cmp_eq_u32 s36, 3
    s_cselect_b32 s60, {SB[2]}, s60
    v_lshlrev_b32 v{T}, 4, v{L}
    v_add_u32 v{T}, s60, v{T}
    """)
    for k in range(16): A.I(f'ds_write_b128 v{T}, {v(ACC+64+4*k,4)} offset:{k*1024}')
    A.I('s_waitcnt vmcnt(0) lgkmcnt(0)\ns_barrier')
    A.L('p1_join')
    mm=[RSV,RSV+2]; sd=[RSV+1,RSV+3]
    c1p=T+6; c2p=T+14; sd2=T+16; rr=T+18
    c1=-2*0.7978845608028654*math.log2(math.e); c2=c1*0.044715
    FRK=32
    A.I(f"""
    s_lshl_b32 s39, s36, 7
    v_lshlrev_b32 v{T+2}, 2, v{l32}
    v_add_u32 v{T+2}, s39, v{T+2}
    v_add_u32 v{T+2}, {STAT}, v{T+2}
    ds_read_b32 v{T+10}, v{T+2}
    ds_read_b32 v{T+11}, v{T+2} offset:512
    """)
    for k in range(16): A.I(f'v_mov_b32 v{FRK+k}, 0')
    for st in range(2):
        A.I(f"""
        v_rcp_f32 v{rr+st}, v{sd[st]}
        v_mul_f32 v{sd2+st}, v{sd[st]}, v{sd[st]}
        v_mul_f32 v{c1p+st}, {f2u(c1)}, v{rr+st}
        v_mul_f32 v{T+9}, v{rr+st}, v{rr+st}
        v_mul_f32 v{T+9}, v{T+9}, v{rr+st}
        v_mul_f32 v{c2p+st}, {f2u(c2)}, v{T+9}
        """)
    srd(A,20,4,OFF_HP,224*32768)
    srd(A,24,4,OFF_YQ,256*8192)
    A.I(f"""
    v_cvt_pk_bf16_f32 v{T+12}, v{mm[0]}, v{mm[0]}
    v_cvt_pk_bf16_f32 v{T+13}, v{mm[1]}, v{mm[1]}
    v_cmp_gt_u32 vcc, 32, v{L}
    v_cndmask_b32 v{FRK+8}, 0, v{T+12}, vcc
    v_cndmask_b32 v{FRK+12}, 0, v{T+13}, vcc
    s_lshl_b32 s33, s35, 7
    s_lshl_b32 s39, s37, 6
    s_add_u32 s33, s33, s39              ; 128rb+64sh
    v_add_u32 v{T+4}, s33, v{l32}
    v_lshlrev_b32 v{vHo}, 4, v{T+4}
    v_lshl_add_u32 v{vHo}, v{half}, 15, v{vHo}
    v_add_u32 v{vHo+1}, 512, v{vHo}
    s_waitcnt lgkmcnt(0)
    v_cndmask_b32 v{FRK}, 0, v{T+10}, vcc
    v_cndmask_b32 v{FRK+4}, 0, v{T+11}, vcc
    """)
    for m in range(2):
        for b_ in range(2): mf32(A,ACC+(m*2+b_)*16,FRK+m*4,FRK+8+b_*4)
    vPf=114
    A.I('s_cmp_eq_u32 s37, 0\ns_cbranch_scc1 p1_pfC')
    A.I(f's_lshl_b32 s39, s36, 2\nv_mov_b32 v{vPf}, {CTRL}\nv_add_u32 v{vPf}, s39, v{vPf}\nv_mov_b32 v{vPf+1}, 1\nds_write_b32 v{vPf}, v{vPf+1} offset:64')
    A.I('s_branch p1_pfE')
    A.L('p1_pfC')
    srd(A,8,56,0,1792*512*2)
    A.I(f"""
    s_and_b32 s13, s2, 7
    s_lshr_b32 s14, s2, 3
    s_lshr_b32 s13, s13, 2
    s_lshl_b32 s13, s13, 2
    s_lshr_b32 s14, s14, 3
    s_add_u32 s13, s13, s14          ; db
    v_lshrrev_b32 v{vPf+1}, 3, v{L}
    v_bfe_u32 v{vPf+2}, v{L}, 4, 1
    v_lshlrev_b32 v{vPf+2}, 2, v{vPf+2}
    v_and_b32 v{vPf}, 7, v{L}
    v_xor_b32 v{vPf}, v{vPf}, v{vPf+2}
    v_lshlrev_b32 v{vPf}, 4, v{vPf}
    v_lshl_add_u32 v{vPf}, v{vPf+1}, 10, v{vPf}
    s_lshl_b32 s39, s13, 7
    v_add_u32 v{vPf}, s39, v{vPf}
    s_mul_i32 s44, s32, {28*16*1024}
    s_mul_i32 s45, s32, {AREG}
    v_mov_b32 v{vPf+1}, {CTRL}
    """)
    if 'epf' in EXP: lds_wait(A,vPf+1,116,64,1,4)
    A.L('p1_pfE')
    pfl=[0]
    def prefetch(lo,hi):
        if lo>=hi or 'epf' not in EXP: return
        pfl[0]+=1; l=f'p1_pf{pfl[0]}'
        A.I(f's_cmp_lg_u32 s37, 0\ns_cbranch_scc1 {l}')
        A.skip_begin()
        for t in range(lo,hi):
            for j in range(2):
                A.I(f's_add_u32 m0, s45, {t*2048+j*1024}')
                A.I(f's_add_u32 s39, s44, {(t*16+j*8)*1024}')
                A.I(f'buffer_load_dwordx4 v{vPf}, s[8:11], s39 offen lds')
        A.skip_end(); A.L(l)
    A.I('s_nop 7\ns_nop 4')
    Z=T+20
    vH=[vHo,vHo+1]
    GT=lambda st: ACC+st*16
    UT=lambda st: ACC+(2+st)*16
    def hq(q,st,p):
        g=[GT(st)+4*q+r for r in range(4)]; u=[UT(st)+4*q+r for r in range(4)]
        for r in range(4):
            A.I(f'v_mul_f32 v{Z+r}, v{g[r]}, v{g[r]}')
            A.I(f'v_fma_f32 v{Z+r}, v{Z+r}, v{c2p+st}, v{c1p+st}')
            A.I(f'v_mul_f32 v{Z+r}, v{Z+r}, v{g[r]}')
        for r in range(4): A.I(f'v_exp_f32 v{Z+r}, v{Z+r}')
        for r in range(4):
            A.I(f'v_mul_f32 v{g[r]}, v{g[r]}, v{u[r]}')
            A.I(f'v_fma_f32 v{Z+r}, v{Z+r}, v{sd2+st}, v{sd2+st}')
        for r in range(4): A.I(f'v_rcp_f32 v{Z+r}, v{Z+r}')
        for r in range(4): A.I(f'v_mul_f32 v{g[r]}, v{g[r]}, v{Z+r}')
        A.I(f'v_cvt_pk_bf16_f32 v{p}, v{g[0]}, v{g[1]}')
        A.I(f'v_cvt_pk_bf16_f32 v{p+1}, v{g[2]}, v{g[3]}')
    def hpair(q,st,P):
        hq(q,st,P); hq(q+1,st,P+2)
        A.I(f'v_permlane32_swap_b32 v{P}, v{P+2}')
        A.I(f'v_permlane32_swap_b32 v{P+1}, v{P+3}')
        A.I(f'buffer_store_dwordx4 {v(P,4)}, v{vH[st]}, s[20:23], s60 offen{SC}')
    A.I(f's_mul_i32 s61, s34, 14\ns_lshl_b32 s39, s36, 2\ns_add_u32 s61, s61, s39\ns_lshl_b32 s61, s61, 15')
    YT=208
    A.I('s_cmp_lg_u32 s36, 3\ns_cbranch_scc1 p1_noy')
    A.I(f"""
    s_lshl_b32 s39, s37, 12
    s_add_u32 s39, s39, {YSCR}
    v_lshlrev_b32 v{YT}, 10, v{half}
    v_lshl_add_u32 v{YT}, v{l32}, 2, v{YT}
    v_add_u32 v{YT}, s39, v{YT}
    v_lshlrev_b32 v{YT+1}, 4, v{L}
    v_add_u32 v{YT+1}, s39, v{YT+1}
    v_lshrrev_b32 v{YT+2}, 4, v{L}
    v_lshlrev_b32 v{YT+2}, 13, v{YT+2}
    v_and_b32 v{YT+3}, 15, v{L}
    v_lshl_add_u32 v{YT+2}, v{YT+3}, 4, v{YT+2}
    s_lshl_b32 s39, s33, 2
    v_add_u32 v{YT+2}, s39, v{YT+2}
    """)
    for q in (2,3):
        for st in range(2):
            for r in range(4):
                G_=GT(st)+4*q+r; U=UT(st)+4*q+r
                A.I(f'v_mul_f32 v{G_}, v{G_}, v{rr+st}')
                A.I(f'v_mul_f32 v{U}, v{U}, v{rr+st}')
                A.I(f'v_cvt_pk_bf16_f32 v{G_}, v{G_}, v{U}')
                A.I(f'ds_write_b32 v{YT}, v{G_} offset:{(8*(q-2)+r)*256+st*128}')
    A.I('s_waitcnt lgkmcnt(0)')
    for j in range(4): A.I(f'ds_read_b128 {v(YT+4+4*j,4)}, v{YT+1} offset:{j*1024}')
    A.I('s_waitcnt lgkmcnt(0)')
    for j in range(4):
        A.I(f's_lshl_b32 s60, s34, 4\ns_add_u32 s60, s60, {4*j}\ns_lshl_b32 s60, s60, 13')
        A.I(f'buffer_store_dwordx4 {v(YT+4+4*j,4)}, v{YT+2}, s[24:27], s60 offen{SC}')
    A.I('s_mov_b32 s60, s61')
    A.I('s_cmp_lg_u32 s37, 0\ns_cbranch_scc1 p1_y7')
    prefetch(0,9); hpair(0,0,PB); prefetch(9,17); hpair(0,1,PB+4)
    A.I(f's_waitcnt vmcnt({36 if "epf" in EXP else 2})\nv_mov_b32 v{YT}, {CTRL}\nv_mov_b32 v{YT+1}, 1\nds_write_b32 v{YT}, v{YT+1} offset:80')
    A.I('s_branch p1_end')
    A.L('p1_y7')
    hpair(0,0,PB); hpair(0,1,PB+4)
    A.I(f's_waitcnt vmcnt(2)\nv_mov_b32 v{YT}, {CTRL}')
    lds_wait(A,YT,YT+4,80,1,4)
    A.I(f's_add_u32 s61, s34, {C_Y}'); arrive(A,61,YT+2)
    A.I('s_branch p1_end')
    A.L('p1_noy')
    k=0; cuts=[0,6,12,17,17]
    for q in (0,2):
        A.I(f's_add_u32 s60, s61, {q*32768}')
        for st in range(2):
            hpair(q,st,PB+4*(q+st))
            prefetch(cuts[k],cuts[k+1]); k+=1
            if k==2:
                A.I('s_cmp_eq_u32 s37, 0\ns_cbranch_scc1 p1_wf')
                A.I(f's_waitcnt vmcnt(2)\ns_lshl_b32 s39, s36, 2\nv_mov_b32 v{YT}, {CTRL}\nv_add_u32 v{YT}, s39, v{YT}\nv_mov_b32 v{YT+1}, 1\nds_write_b32 v{YT}, v{YT+1} offset:84')
                A.L('p1_wf')
    A.L('p1_end')
    ST.mark(A)

def s2_phase(A):
    L,l,g,vY,vW,fl,fg4=1,2,3,4,5,6,7
    T=184
    Ya=16; Wv=24; C32R=32; C32I=48; C64R=64; C64I=80; T1c=96; T1s=104; T2c=112; T2s=120
    DR=128; DI=136; F=144; E=152
    vC=203
    A.I(f'''
    s_sub_u32 s12, s32, 4
    v_and_b32 v{L}, 63, v0
    v_and_b32 v{l}, 15, v0
    v_bfe_u32 v{g}, v0, 4, 2
    v_mov_b32 v{vC}, {CTRL}
    s_lshl_b32 s33, s34, 4
    s_add_u32 s33, s33, s35          ; column k
    s_mov_b32 s47, 0
    ''')
    srd(A,8,4,OFF_YQ,256*8192)
    srd(A,16,4,OFF_WT,257*8192)
    srd(A,20,4,OFF_ZQ,514*4096)
    A.I(f'''
    s_lshl_b32 s13, s12, 11
    v_lshlrev_b32 v{vY}, 7, v{l}
    v_lshl_add_u32 v{vY}, v{g}, 4, v{vY}
    v_add_u32 v{vY}, s13, v{vY}
    v_lshlrev_b32 v{vW}, 4, v{l}
    v_lshl_add_u32 v{vW}, v{g}, 8, v{vW}
    v_add_u32 v{vW}, s13, v{vW}
    v_cvt_f32_u32 v{fl}, v{l}
    v_lshlrev_b32 v{T}, 2, v{g}
    v_cvt_f32_u32 v{fg4}, v{T}
    s_lshl_b32 s13, s12, 4
    v_cvt_f32_u32 v{T+1}, s13
    ''')
    f16w=T+1
    sc=1.0/(2048*512)
    A.I(f'''
    v_mul_f32 v{T+2}, {f2u(1/32)}, v{fl}
    v_add_f32 v{T+3}, 0.5, v{T+2}
    v_add_f32 v{T+4}, v{f16w}, v{fl}
    v_mul_f32 v{T+7}, {f2u(1/2048)}, v{T+4}
    v_mul_f32 v{T+4}, {f2u(1/64)}, v{T+4}
    v_mul_f32 v{T+5}, {f2u(1/2048)}, v{fl}
    v_add_f32 v{T+6}, {f2u(16/2048)}, v{T+5}
    v_add_f32 v{T+8}, v{f16w}, v{fg4}
    s_mov_b32 s46, {f2u(2*sc)}
    s_cmp_eq_u32 s33, 0
    s_cselect_b32 s46, {f2u(sc)}, s46
    v_mov_b32 v{vC+2}, s46
    ''')
    a_,c_,s_=T+9,T+10,T+11
    def cs_pack(ang,R,I):
        A.I(f'''
        v_cos_f32 v{c_}, v{ang}
        v_sin_f32 v{s_}, v{ang}
        v_cvt_pk_bf16_f32 v{R}, v{c_}, v{s_}
        v_cvt_pk_bf16_f32 v{I}, -v{s_}, v{c_}
        ''')
    fa=T+12
    for t in range(2):
        for q in range(4):
            A.I(f'v_add_f32 v{fa}, {f2u(16*t+q)}, v{fg4}')
            for nt in range(2):
                A.I(f'v_mul_f32 v{a_}, v{fa}, v{T+2+nt}')
                cs_pack(a_, C32R+(t*2+nt)*4+q, C32I+(t*2+nt)*4+q)
    for r in range(4):
        A.I(f'v_add_f32 v{fa}, {f2u(r)}, v{T+8}')
        for nt in range(2):
            A.I(f'''v_mul_f32 v{a_}, v{fa}, v{T+5+nt}
            v_cos_f32 v{T1c+nt*4+r}, v{a_}
            v_sin_f32 v{T1s+nt*4+r}, v{a_}''')
    for tp in range(4):
        for q in range(4):
            A.I(f'v_add_f32 v{fa}, {f2u(16*tp+q)}, v{fg4}')
            A.I(f'v_mul_f32 v{a_}, v{fa}, v{T+4}')
            cs_pack(a_, C64R+tp*4+q, C64I+tp*4+q)
    for it in range(2):
        for r in range(4):
            A.I(f'''v_add_f32 v{fa}, {f2u(16*it+r)}, v{fg4}
            v_mul_f32 v{a_}, v{fa}, v{T+7}
            v_cos_f32 v{T2c+it*4+r}, v{a_}
            v_sin_f32 v{T2s+it*4+r}, v{a_}
            v_mul_f32 v{T2c+it*4+r}, v{T2c+it*4+r}, v{vC+2}
            v_mul_f32 v{T2s+it*4+r}, v{T2s+it*4+r}, v{vC+2}''')
    vLw,vLr=T+13,T+14
    A.I(f'''
    v_lshlrev_b32 v{vLr}, 4, v{L}
    v_add_u32 v{vLr}, {EX}, v{vLr}
    s_lshl_b32 s13, s12, 11
    v_add_u32 v{vLw}, s13, v{vLr}
    s_lshl_b32 s13, s12, 2
    v_add_u32 v{vC+1}, s13, v{vC}
    s_mov_b32 s26, 0x80000000
    s_mov_b32 s27, 0x8000
    ''')
    ST.mark(A)
    A.I('s_waitcnt vmcnt(0)\ns_barrier')
    if 'noprio' not in EXP: A.I('s_setprio 3')
    ST.mark(A)
    A.I('s_cmp_lg_u32 s32, 4\ns_cbranch_scc1 s2_w1')
    A.skip_begin()
    A.I(f's_add_u32 s59, s34, {C_Y}\ns_lshl_b32 s59, s59, 7\nv_mov_b32 v{E}, s59\nv_mov_b32 v{E+1}, 16')
    poll_cnt(A,E,E+1,E+2,1)
    if 'dbg' in EXP:
        A.I(f's_cmp_lg_u32 s2, 9\ns_cbranch_scc1 dbg1')
        A.I(f'v_mov_b32 v{E+4}, v{E}\nv_mov_b32 v{E+5}, v{E+1}\nv_mov_b32 v{E+6}, v{E+2}\nv_mov_b32 v{E+7}, s58\nv_mov_b32 v{E+8}, 32\ns_mov_b64 exec, 1\nglobal_store_dwordx4 v{E+8}, {v(E+4,4)}, s[54:55]\ns_mov_b64 exec, -1')
        A.L('dbg1')
    A.I(f'v_mov_b32 v{E}, 1\nds_write_b32 v{vC}, v{E} offset:8')
    A.skip_end(); A.L('s2_w1')
    lds_wait(A,vC,E,8,1)
    ST.mark(A)
    A.L('s2_col')
    if 'nos2' in EXP: A.I('s_branch s2_skip')
    A.I(f'''
    s_and_b32 s14, s33, 255
    s_lshl_b32 s14, s14, 13
    s_lshl_b32 s15, s33, 13
    s_add_u32 s29, s15, 4096
    buffer_load_dwordx4 {v(Ya,4)}, v{vY}, s[8:11], s14 offen{SC}
    buffer_load_dwordx4 {v(Ya+4,4)}, v{vY}, s[8:11], s14 offen offset:64{SC}
    buffer_load_dwordx4 {v(Wv,4)}, v{vW}, s[16:19], s15 offen{SC}
    buffer_load_dwordx4 {v(Wv+4,4)}, v{vW}, s[16:19], s15 offen offset:1024{SC}
    s_cmp_eq_u32 s33, 256
    s_cselect_b32 s24, 16, 0
    s_and_b32 s25, s33, 255
    s_cmp_eq_u32 s25, 0
    s_cselect_b32 s25, 0xffff, -1
    s_cmp_lg_u32 s33, 0
    s_cbranch_scc1 s2_nx
    s_mov_b32 s60, 0x200000
    buffer_load_dwordx4 {v(208,4)}, v{vW}, s[16:19], s60 offen{SC}
    buffer_load_dwordx4 {v(212,4)}, v{vW}, s[16:19], s60 offen offset:1024{SC}
    s_waitcnt vmcnt(4)
    s_branch s2_ld
    s2_nx:
    s_waitcnt vmcnt(2)
    s2_ld:
    ''')
    for i in range(8): A.I(f'v_mov_b32 v{216+i}, v{Ya+i}')
    A.L('s2_cmp')
    if 's2fine' in EXP: ST.mark(A)
    for i in range(8): A.I(f'v_lshrrev_b32 v{Ya+i}, s24, v{Ya+i}')
    for i in range(8): A.I(f'v_and_b32 v{Ya+i}, s25, v{Ya+i}')
    for nt in range(2):
        for t in range(2): mf16(A,DR+nt*4,Ya+t*4,C32R+(t*2+nt)*4,t==0)
        for t in range(2): mf16(A,DI+nt*4,Ya+t*4,C32I+(t*2+nt)*4,t==0)
    t0,t1=T+15,T+16
    def cmul_pack(dst,xr,xi,c,s,sign):
        A.I(f'v_mul_f32 v{t0}, v{xr}, v{c}')
        A.I(f'v_mul_f32 v{t1}, v{xi}, v{c}')
        if sign<0:
            A.I(f'v_fma_f32 v{t0}, v{xi}, v{s}, v{t0}'); A.I(f'v_fma_f32 v{t1}, -v{xr}, v{s}, v{t1}')
        else:
            A.I(f'v_fma_f32 v{t0}, -v{xi}, v{s}, v{t0}'); A.I(f'v_fma_f32 v{t1}, v{xr}, v{s}, v{t1}')
        A.I(f'v_cvt_pk_bf16_f32 v{dst}, v{t0}, v{t1}')
    def exchange(base,ph):
        for nt in range(2): A.I(f'ds_write_b128 v{vLw}, {v(F+nt*4,4)} offset:{base+nt*1024}')
        A.I(f's_add_u32 s46, s47, {ph}\nv_mov_b32 v{t0}, s46\nds_write_b32 v{vC+1}, v{t0} offset:16')
        lds_wait(A,vC,E,16,'s46',4)
        for tp in range(4):
            for nt in range(2): A.I(f'ds_read_b128 {v(E+(tp*2+nt)*4,4)}, v{vLr} offset:{base+(tp*2+nt)*1024}')
    for nt in range(2):
        for r in range(4): cmul_pack(F+nt*4+r,DR+nt*4+r,DI+nt*4+r,T1c+nt*4+r,T1s+nt*4+r,-1)
    if 's2fine' in EXP: ST.mark(A)
    exchange(0,1)
    if 's2fine' in EXP: ST.mark(A)
    for tp in range(4):
        A.I(f's_waitcnt lgkmcnt({6-2*tp})')
        for nt in range(2):
            mf16(A,DR+nt*4,C64R+tp*4,E+(tp*2+nt)*4,tp==0)
            mf16(A,DI+nt*4,C64I+tp*4,E+(tp*2+nt)*4,tp==0)
    if 's2fine' in EXP: ST.mark(A)
    A.I('s_cmp_eq_u32 s33, 256\ns_cbranch_scc1 s2_nw\ns_waitcnt vmcnt(0)')
    A.L('s2_nw')
    wr,wi=T+17,T+18
    def conj(R,I):
        for i in range(16):
            A.I(f'v_xor_b32 v{R+i}, s26, v{R+i}'); A.I(f'v_xor_b32 v{I+i}, s27, v{I+i}')
    conj(C32R,C32I)
    for nt in range(2):
        for r in range(4):
            A.I(f'v_lshlrev_b32 v{wr}, 16, v{Wv+nt*4+r}')
            A.I(f'v_and_b32 v{wi}, 0xffff0000, v{Wv+nt*4+r}')
            cmul_pack(F+nt*4+r,DR+nt*4+r,DI+nt*4+r,wr,wi,+1)
    conj(C64R,C64I)
    if 's2fine' in EXP: ST.mark(A)
    def publish(kreg_is_256,suf,xd):
        A.I('s_waitcnt vmcnt(0)')
        A.I(f'v_mov_b32 v{t1}, {xd}\nds_write_b32 v{vC+1}, v{t1} offset:32')
        A.I(f's_cmp_lg_u32 s32, 4\ns_cbranch_scc1 s2_w2{suf}')
        A.skip_begin()
        lds_wait(A,vC,224,32,xd,4)
        cnt_base(A)
        if kreg_is_256=='n': A.I(f'v_add_u32 v228, {C_N}, v{L}')
        elif kreg_is_256=='0': A.I(f'v_lshlrev_b32 v228, 3, v{L}\nv_add_u32 v228, {C_Z}, v228')
        else: A.I(f's_and_b32 s46, s33, 7\ns_add_u32 s46, s46, {C_Z}\nv_lshlrev_b32 v228, 3, v{L}\nv_add_u32 v228, s46, v228')
        A.I(f'v_lshlrev_b32 v228, 7, v228\nv_mov_b32 v229, 1')
        A.I(f's_mov_b64 exec, {(1<<ZREP)-1}\nglobal_atomic_add v228, v229, s[62:63]{SC}\ns_mov_b64 exec, -1')
        A.skip_end(); A.L(f's2_w2{suf}')
    exchange(8192,2)
    A.I('s_cmp_lg_u32 s33, 256\ns_cbranch_scc1 s2_np')
    publish('0','c',1)
    A.L('s2_np')
    if 's2fine' in EXP: ST.mark(A)
    for tp in range(4):
        A.I(f's_waitcnt lgkmcnt({6-2*tp})')
        for it in range(2):
            mf16(A,DR+it*4,E+(tp*2+it)*4,C64R+tp*4,tp==0)
            mf16(A,DI+it*4,E+(tp*2+it)*4,C64I+tp*4,tp==0)
    for it in range(2):
        for r in range(4): cmul_pack(F+it*4+r,DR+it*4+r,DI+it*4+r,T2c+it*4+r,T2s+it*4+r,+1)
    for nt in range(2):
        for t in range(2): mf16(A,DR+nt*4,C32R+(t*2+nt)*4,F+t*4,t==0)
        for t in range(2): mf16(A,DI+nt*4,C32I+(t*2+nt)*4,F+t*4,t==0)
    if 's2fine' in EXP: ST.mark(A)
    A.I(f'v_lshrrev_b32 v{t0}, 1, v{vY}')
    for nt in range(2):
        for part,D in ((0,DR),(1,DI)):
            e=E+nt*4+part*2
            A.I(f'v_cvt_pk_bf16_f32 v{e}, v{D+nt*4}, v{D+nt*4+1}\nv_cvt_pk_bf16_f32 v{e+1}, v{D+nt*4+2}, v{D+nt*4+3}')
            A.I(f'buffer_store_dwordx2 {v(e,2)}, v{t0}, s[20:23], s15 offen offset:{32*nt}{SC}' if part==0 else f'buffer_store_dwordx2 {v(e,2)}, v{t0}, s[20:23], s29 offen offset:{32*nt}{SC}')
    A.I('s_cmp_eq_u32 s33, 0\ns_cbranch_scc1 s2_second')
    A.I('s_cmp_eq_u32 s33, 256\ns_cbranch_scc1 s2_pubn')
    publish('k','a',1)
    A.I('s_branch s2_fin')
    A.L('s2_pubn')
    publish('n','b',2)
    A.I('s_branch s2_fin')
    A.L('s2_second')
    conj(C32R,C32I); conj(C64R,C64I)
    for i in range(8): A.I(f'v_mov_b32 v{Ya+i}, v{216+i}')
    for i in range(8): A.I(f'v_mov_b32 v{Wv+i}, v{208+i}')
    A.I('s_movk_i32 s33, 256\ns_mov_b32 s15, 0x200000\ns_add_u32 s29, s15, 4096\ns_mov_b32 s24, 16\ns_mov_b32 s25, 0xffff\ns_add_u32 s47, s47, 2\ns_branch s2_cmp')
    A.L('s2_fin')
    A.I('s_setprio 0')
    ST.mark(A)
    A.I('s_cmp_lg_u32 s32, 4\ns_cbranch_scc1 s2_w3')
    A.skip_begin()
    lds_wait(A,vC,E,12,1)
    A.I(f's_and_b32 s46, s2, {ZREP-1}\ns_lshl_b32 s46, s46, 3\ns_add_u32 s46, s46, {C_Z}\nv_add_u32 v{E}, s46, v{L}\nv_lshlrev_b32 v{E}, 7, v{E}\nv_mov_b32 v{E+1}, 32')
    poll_cnt(A,E,E+1,E+2,8)
    A.I(f'v_mov_b32 v{E}, 1\nds_write_b32 v{vC}, v{E} offset:4')
    A.I(f's_and_b32 s46, s2, {ZREP-1}\ns_add_u32 s46, s46, {C_N}\ns_lshl_b32 s46, s46, 7\nv_mov_b32 v{E}, s46\nv_mov_b32 v{E+1}, 1')
    poll_cnt(A,E,E+1,E+2,1)
    A.I(f'v_mov_b32 v{E}, 1\nds_write_b32 v{vC}, v{E} offset:48')
    A.skip_end(); A.L('s2_w3')
    ST.mark(A)
    A.I('s_waitcnt lgkmcnt(0)\ns_barrier')

def p3_phase(A, nh=28, nz=8, NB=8):
    L,half,l32=1,2,3
    vB=4; vZd=5; vZr=6; vX=9; vC=10; vAd=11; vAr=12; vLw=14; vLr=15
    XR=16; T=24; ACC=32; AF=96; BR=112; ZA=176
    A.I(f"""
    s_load_dwordx2 s[28:29], s[0:1], 56
    s_load_dwordx2 s[30:31], s[0:1], 48
    v_and_b32 v{L}, 63, v0
    v_and_b32 v{l32}, 31, v0
    v_bfe_u32 v{half}, v0, 5, 1
    v_mov_b32 v{vC}, {CTRL}
    s_mov_b32 s12, s32
    s_and_b32 s13, s2, 7
    s_lshr_b32 s14, s2, 3
    s_and_b32 s15, s13, 3
    s_lshl_b32 s15, s15, 3
    s_and_b32 s39, s14, 7
    s_add_u32 s15, s15, s39          ; sb
    s_lshr_b32 s13, s13, 2
    s_lshl_b32 s13, s13, 2
    s_lshr_b32 s14, s14, 3
    s_add_u32 s13, s13, s14          ; db
    s_and_b32 s36, s12, 1
    s_lshr_b32 s37, s12, 1
    v_lshrrev_b32 v{T}, 3, v{L}
    v_bfe_u32 v{T+1}, v{L}, 4, 1
    v_lshlrev_b32 v{T+1}, 2, v{T+1}
    v_and_b32 v{T+2}, 7, v{L}
    v_xor_b32 v{T+2}, v{T+2}, v{T+1}
    v_lshlrev_b32 v{T+2}, 4, v{T+2}           ; c*16
    v_lshl_add_u32 v{vAd}, v{T}, 10, v{T+2}
    s_lshl_b32 s39, s13, 7
    v_add_u32 v{vAd}, s39, v{vAd}
    v_lshl_add_u32 v{vZd}, v{T}, 12, v{T+2}
    s_lshl_b32 s39, s15, 7
    v_add_u32 v{vZd}, s39, v{vZd}
    s_mul_i32 s44, s12, {nh*16*1024}
    s_mul_i32 s45, s12, {AREG}
    s_mul_i32 s52, s12, {nz*16*4096}
    s_waitcnt lgkmcnt(0)
    """)
    srd(A,8,30,0,1792*512*2)
    q=[]
    def dmaA(t):
        for j in range(2):
            A.I(f's_add_u32 m0, s45, {(t%NSL)*2048+j*1024}')
            A.I(f's_add_u32 s60, s44, {(t*16+j*8)*1024}')
            A.I(f'buffer_load_dwordx4 v{vAd}, s[8:11], s60 offen lds'); q.append(('A',t))
    def dmaZ(i):
        t=nh+i
        for j in range(2):
            A.I(f's_add_u32 m0, s45, {(t%NSL)*2048+j*1024}')
            A.I(f's_add_u32 s60, s52, {(i*16+j*8)*4096}')
            A.I(f'buffer_load_dwordx4 v{vZd}, s[20:23], s60 offen{SC} lds'); q.append(('A',t))
    srd(A,24,6,0,2048*512*2)
    srd(A,16,4,OFF_HP,224*32768)
    srd(A,20,4,OFF_ZQ,514*4096)
    srd(A,40,28,0,2048*512*2)
    A.I(f"""
    s_lshl_b32 s39, s15, 1
    s_add_u32 s39, s39, s37
    s_lshl_b32 s39, s39, 10
    s_lshl_b32 s31, s13, 7
    s_add_u32 s39, s39, s31
    s_lshl_b32 s31, s36, 6
    s_add_u32 s39, s39, s31
    v_lshlrev_b32 v{vX}, 16, v{l32}
    v_lshl_add_u32 v{vX}, v{half}, 3, v{vX}
    v_add_u32 v{vX}, s39, v{vX}
    """)
    for i in range(4):
        A.I(f'buffer_load_dwordx2 {v(XR+2*i,2)}, v{vX}, s[24:27], 0 offen offset:{16*i}'); q.append('x')
    ZT=248
    A.I(f"""
    s_lshl_b32 s39, s15, 10
    v_lshlrev_b32 v{vB}, 15, v{half}
    v_lshl_add_u32 v{vB}, v{l32}, 4, v{vB}
    v_add_u32 v{vB}, s39, v{vB}
    s_mul_i32 s46, s12, {nh*65536}
    s_lshl_b32 s39, s37, 9
    s_add_u32 s47, s46, 512
    s_sub_u32 s47, s47, s39
    s_add_u32 s46, s46, s39
    v_lshrrev_b32 v{T}, 5, v{L}
    v_lshlrev_b32 v{T}, 3, v{T}
    v_bfe_u32 v{T+1}, v{L}, 2, 2
    v_add_u32 v{T}, v{T}, v{T+1}
    v_lshlrev_b32 v{T}, 7, v{T}              ; row*128
    v_bfe_u32 v{T+2}, v{L}, 4, 1
    v_lshlrev_b32 v{T+2}, 1, v{T+2}
    v_bfe_u32 v{T+3}, v{L}, 1, 1
    v_add_u32 v{T+2}, v{T+2}, v{T+3}
    v_bfe_u32 v{T+3}, v{L}, 3, 1
    v_lshlrev_b32 v{T+3}, 2, v{T+3}
    v_xor_b32 v{T+2}, v{T+2}, v{T+3}
    v_lshl_add_u32 v{T}, v{T+2}, 4, v{T}
    v_and_b32 v{T+3}, 1, v{L}
    v_lshl_add_u32 v{T}, v{T+3}, 3, v{T}
    v_add_u32 v{T}, s45, v{T}
    s_lshl_b32 s39, s36, 6
    v_xor_b32 v{vAr}, s39, v{T}
    v_xor_b32 v{vAr+1}, 64, v{vAr}
    s_lshl_b32 s39, s37, 6
    v_xor_b32 v{vZr}, s39, v{T}
    v_xor_b32 v{vZr+1}, 64, v{vZr}
    s_lshl_b32 s39, s13, 6
    s_lshl_b32 s31, s36, 5
    s_add_u32 s39, s39, s31
    v_add_u32 v{T}, s39, v{l32}
    v_cvt_f32_u32 v{T}, v{T}
    v_mul_f32 v{ZT}, {f2u(1/512)}, v{T}
    s_lshl_b32 s39, s13, 6
    s_xor_b32 s31, s31, 32
    s_add_u32 s39, s39, s31
    v_add_u32 v{T+1}, s39, v{l32}
    v_cvt_f32_u32 v{T+1}, v{T+1}
    v_mul_f32 v{ZT+1}, {f2u(1/512)}, v{T+1}
    s_mul_i32 s39, s12, {nz*8}
    v_lshlrev_b32 v{T+2}, 2, v{half}
    v_add_u32 v{T+2}, s39, v{T+2}
    v_cvt_f32_u32 v{ZT+2}, v{T+2}
    """)
    zitems=[]
    for i in range(nz):
        for qq in range(4):
            def zf(i=i,qq=qq):
                A.I(f'v_add_f32 v{ZT+3}, {f2u(8*i+qq)}, v{ZT+2}')
                for ar in range(2):
                    A.I(f'v_mul_f32 v{ZT+4+ar}, v{ZT+3}, v{ZT+ar}\nv_fract_f32 v{ZT+4+ar}, v{ZT+4+ar}')
                for ar in range(2):
                    A.I(f'v_cos_f32 v{ZT+6}, v{ZT+4+ar}\nv_sin_f32 v{ZT+7}, v{ZT+4+ar}\nv_cvt_pk_bf16_f32 v{ZA+i*8+ar*4+qq}, v{ZT+6}, -v{ZT+7}')
            zitems.append(zf)
    NZ0=10 if 'z0' not in EXP else 0
    for zf in zitems[:NZ0]: zf()
    A.I(f's_waitcnt vmcnt({len(q)})\ns_barrier')
    ST.mark(A)
    A.I('s_cmp_lg_u32 s32, 0\ns_cbranch_scc1 p3_a1')
    A.skip_begin()
    A.I(f's_add_u32 s59, s35, {C_H}'); A.I('s_mov_b32 s61, s59'); arrive(A,61,T)
    A.skip_end(); A.L('p3_a1')
    rest=zitems[NZ0:]
    if 'epf' in EXP:
        for zf in rest: zf()
    else:
        for t in range(NSL):
            dmaA(t)
            for zf in rest[(t*len(rest))//NSL:((t+1)*len(rest))//NSL]: zf()
    ST.mark(A)
    A.I('s_cmp_lg_u32 s32, 0\ns_cbranch_scc1 p3_w1')
    A.skip_begin()
    A.I(f's_lshr_b32 s59, s15, 1\ns_add_u32 s59, s59, {C_H}\ns_lshl_b32 s59, s59, 7\nv_mov_b32 v{T}, s59\nv_mov_b32 v{T+1}, 16')
    poll_cnt(A,T,T+1,T+2,1)
    A.I(f'v_mov_b32 v{T}, 1\nds_write_b32 v{vC}, v{T}')
    A.skip_end(); A.L('p3_w1')
    lds_wait(A,vC,T,0,1)
    ST.mark(A)
    n=nh+nz
    def issueB(i):
        sl=BR+(i%NB)*8
        A.I(f'buffer_load_dwordx4 {v(sl,4)}, v{vB}, s[16:19], s46 offen{SCB}')
        A.I(f'buffer_load_dwordx4 {v(sl+4,4)}, v{vB}, s[16:19], s47 offen{SCB}')
        q.extend([('B',i)]*2)
        A.I('s_add_u32 s46, s46, 65536\ns_add_u32 s47, s47, 65536')
    def vwait(*tags):
        idx=[k for k,x in enumerate(q) if x in tags]
        if not idx: return
        N=len(q)-1-max(idx); del q[:max(idx)+1]
        A.I(f's_waitcnt vmcnt({min(N,63)})')
    def reads(t):
        f=AF+(t%2)*8
        if t<nh:
            for ar in range(2):
                for rd in range(2):
                    A.I(f'ds_read_b64_tr_b16 {v(f+ar*4+rd*2,2)}, v{vAr+ar} offset:{(t%NSL)*2048+rd*512}')
        else:
            for b_ in range(2):
                for rd in range(2):
                    A.I(f'ds_read_b64_tr_b16 {v(f+b_*4+rd*2,2)}, v{vZr+b_} offset:{(t%NSL)*2048+rd*512}')
    nxt=0
    ZAT=nh-4; ZP=nh-10
    for k in range(NB):
        issueB(nxt); nxt+=1
    vwait(('A',0)); reads(0)
    for i in range(n):
        if i<nh: vwait(('B',i),('A',i+1))
        else: vwait(('A',i+1))
        if 'p3steps' in EXP and i in (0,4,10,17,24): ST.mark(A)
        A.I('s_waitcnt lgkmcnt(0)')
        if i==ZAT:
            ST.mark(A); lds_wait(A,vC,T,4,1); ST.mark(A)
            for z in range(nz): dmaZ(z)
        if i+1<n and not (i+1==nh): reads(i+1)
        if i+1==nh:
            vwait(('A',nh)); reads(nh)
        for brr in range(2):
            for ar in range(2):
                if i<nh: a=AF+(i%2)*8+ar*4; b_=BR+(i%NB)*8+brr*4
                else: a=ZA+(i-nh)*8+ar*4; b_=AF+(i%2)*8+brr*4
                mf32(A,ACC+(ar+2*brr)*16,a,b_,i==0)
        if i==ZP:
            A.I(f'v_mov_b32 v{T}, 1\nds_write_b32 v{vC}, v{T} offset:12')
        if i+NSL<nh: dmaA(i+NSL)
        while nxt<nh and nxt<=i+NB:
            issueB(nxt); nxt+=1
    ST.mark(A)
    lds_wait(A,vC,T,48,1)
    A.I(f's_lshl_b32 s39, s15, 6\ns_lshl_b32 s31, s37, 5\ns_add_u32 s39, s39, s31\nv_add_u32 v{T+6}, s39, v{l32}\nv_lshlrev_b32 v{T+6}, 1, v{T+6}\ns_mov_b32 s39, {512*4096}')
    A.I(f'buffer_load_ushort v{T+7}, v{T+6}, s[20:23], s39 offen{SC}')
    A.I(f'v_lshlrev_b32 v{vLw}, 4, v{L}\nv_add_u32 v{vLw}, s45, v{vLw}')
    for j in range(1,4):
        for c in range(4): A.I(f'ds_write_b128 v{vLw}, {v(ACC+j*16+c*4,4)} offset:{(j-1)*4096+c*1024}')
    A.I('s_waitcnt lgkmcnt(0)\ns_barrier')
    for j in range(1,4):
        A.I(f's_xor_b32 s39, s12, {j}\ns_mul_i32 s39, s39, {AREG}\nv_lshlrev_b32 v{vLr}, 4, v{L}\nv_add_u32 v{vLr}, s39, v{vLr}')
        for c in range(4): A.I(f'ds_read_b128 {v(BR+(j-1)*16+c*4,4)}, v{vLr} offset:{(j-1)*4096+c*1024}')
    for j in range(3):
        A.I(f's_waitcnt lgkmcnt({8-4*j})')
        for i in range(16): A.I(f'v_add_f32 v{ACC+i}, v{ACC+i}, v{BR+j*16+i}')
    A.I(f's_waitcnt vmcnt(0)\nv_lshlrev_b32 v{T+7}, 16, v{T+7}')
    for i in range(16): A.I(f'v_{"add" if i%2==0 else "sub"}_f32 v{ACC+i}, v{ACC+i}, v{T+7}')
    for qq in range(4):
        x0,x1=XR+2*qq,XR+2*qq+1
        A.I(f"""v_lshlrev_b32 v{T}, 16, v{x0}
        v_and_b32 v{T+1}, 0xffff0000, v{x0}
        v_lshlrev_b32 v{T+2}, 16, v{x1}
        v_and_b32 v{T+3}, 0xffff0000, v{x1}""")
        for r in range(4): A.I(f'v_add_f32 v{ACC+4*qq+r}, v{ACC+4*qq+r}, v{T+r}')
        A.I(f'v_cvt_pk_bf16_f32 v{x0}, v{ACC+4*qq}, v{ACC+4*qq+1}')
        A.I(f'v_cvt_pk_bf16_f32 v{x1}, v{ACC+4*qq+2}, v{ACC+4*qq+3}')
        A.I(f'buffer_store_dwordx2 {v(x0,2)}, v{vX}, s[40:43], 0 offen offset:{16*qq}')

NAME='parallel_sum__spectral_gfnet__glu_gated_geglu__prompt'
HDR=open('cdna_kernels/'+NAME+'.s.ref').read().split('; Override')[0]
def full():
    A=Asm(); K=NAME+'_kernel'
    A.raw(HDR.rstrip())
    A.raw(f'; @launch grid=(256,1,1) block=(512,1,1) lds={LDS_TOTAL}')
    A.raw('.amdgcn_target "amdgcn-amd-amdhsa--gfx950"\n.text')
    A.raw(f'.globl {K}\n.p2align 8\n.type {K},@function'); A.L(K)
    A.I('s_cmp_ge_u32 s2, 256\ns_cbranch_scc1 k_done')
    if 'scram' in EXP: A.I('s_and_b32 s3, s2, 7\ns_lshl_b32 s3, s3, 5\ns_lshr_b32 s2, s2, 3\ns_or_b32 s2, s2, s3')
    A.I('''s_load_dwordx2 s[4:5], s[0:1], 72
    s_load_dwordx2 s[6:7], s[0:1], 0
    s_load_dwordx2 s[28:29], s[0:1], 32
    s_load_dwordx2 s[30:31], s[0:1], 40
    s_load_dwordx2 s[54:55], s[0:1], 64
    s_load_dwordx2 s[40:41], s[0:1], 8
    s_load_dwordx2 s[44:45], s[0:1], 16
    s_load_dwordx2 s[56:57], s[0:1], 48
    v_lshrrev_b32 v1, 6, v0
    s_nop 0
    v_readfirstlane_b32 s32, v1
    s_waitcnt lgkmcnt(0)''')
    ST.mark(A)
    p1_body(A)
    if 'p1only' in EXP:
        A.I('s_waitcnt vmcnt(0)'); ST.mark(A); ST.dump(A); A.I('s_endpgm')
    n0=ST.n
    A.I('s_cmp_ge_u32 s32, 4\ns_cbranch_scc1 k_s2')
    A.fence()
    p3_phase(A)
    if STAMP: A.I('s_waitcnt vmcnt(0)')
    ST.mark(A)
    ST.dump(A)
    A.I('s_endpgm')
    A.L('k_s2'); A.fence()
    ST.n=n0
    s2_phase(A)
    ST.mark(A)
    ST.dump(A)
    A.L('k_done'); A.I('s_endpgm')
    txt=A.finalize()
    txt+=f'''.section .rodata,"a"
.p2align 6
.amdhsa_kernel {K}
  .amdhsa_next_free_vgpr 256
  .amdhsa_next_free_sgpr 100
  .amdhsa_accum_offset 256
  .amdhsa_group_segment_fixed_size 0
  .amdhsa_kernarg_size 80
  .amdhsa_user_sgpr_count 2
  .amdhsa_user_sgpr_kernarg_segment_ptr 1
  .amdhsa_system_sgpr_workgroup_id_x 1
  .amdhsa_float_denorm_mode_32 3
.end_amdhsa_kernel
'''
    return txt
if __name__=='__main__':
    if len(sys.argv)>2 and sys.argv[2]=='stamp': STAMP=True
    if len(sys.argv)>3: EXP=set(sys.argv[3].split(','))
    if 'pace1' in EXP: PACE=1
    if 'pace2' in EXP: PACE=2
    if 'perm' in EXP: SB[1],SB[2]=SB[2],SB[1]
    if 'sb16' in EXP: SB[1]=49152+4096; SB[2]=98304+8192
    if 'plainB' in EXP: SCB=''
    if 'pollsc1' in EXP: SCP=' sc1'
    if 'nos2' in EXP: pass
    open(sys.argv[1],'w').write(full())
```

```python
import sys, struct, math
from asmlib import *
OFF_HP=0; OFF_ZQ=0x700000; OFF_YQ=0x940000; OFF_WT=0xB40000
OFF_CNT=0x1000000; OFF_RS=0x1018000; OFF_CSP=0x1040000; OFF_TS=0x2000000
C_RS=0; C_CS=16; C_H=32; C_Y=48; C_Z=64; ZREP=16; C_N=64+ZREP*8; NCNT=256
SLOT=49152; XS=0; GS=16384; US=32768
SB=[0,49152,98304]
YSCR=3*SLOT
LDS_TOTAL=163840; CTRL=LDS_TOTAL-256; STAT=CTRL-1024
NSL=17; AREG=NSL*2048
EX=4*AREG
STAMP=False; EXP=set(); PACE=0
SC=' sc1'
SCB=' sc1'
SCP=' sc1'
def f2u(x): return '0x%08x'%struct.unpack('<I',struct.pack('<f',x))[0]
class Stamps:
    def __init__(s): s.n=0
    def mark(s,A):
        if not STAMP or s.n>=15: return
        A.I(f's_{"memtime" if "clk" in EXP else "memrealtime"} s[{66+2*s.n}:{67+2*s.n}]'); s.n+=1
    def dump(s,A,n=None):
        if not STAMP: return
        n=s.n if n is None else n
        if 'diag' in EXP:
            A.I('s_waitcnt lgkmcnt(0) vmcnt(0)')
            l=newlab('dg')
            A.I(f's_cmp_lg_u32 s32, 0\ns_cbranch_scc1 {l}')
            A.I('s_load_dwordx2 s[96:97], s[0:1], 64\ns_waitcnt lgkmcnt(0)\ns_mov_b64 exec, 1')
            A.I('s_not_b32 s60, s66\nv_mov_b32 v244, 4\nv_mov_b32 v245, s60\nglobal_atomic_umax v244, v245, s[96:97]')
            for i in range(1,min(n,13)):
                A.I(f'v_mov_b32 v244, {4+4*i}\nv_mov_b32 v245, s{66+2*i}\nglobal_atomic_umax v244, v245, s[96:97]')
            A.I('s_mov_b64 exec, -1')
            A.L(l)
            return
        A.I('s_waitcnt lgkmcnt(0) vmcnt(0)')
        A.I(f's_lshl_b32 s60, s2, 3\ns_add_u32 s60, s60, s32\ns_lshl_b32 s60, s60, 7\ns_add_u32 s60, s60, {hex(OFF_TS)}')
        A.I(f's_add_u32 s96, s4, s60\ns_addc_u32 s97, s5, 0')
        A.I('v_mov_b32 v246, 0')
        for i in range(n):
            A.I(f'v_mov_b32 v244, s{66+2*i}\nv_mov_b32 v245, s{67+2*i}')
            A.I(f'global_store_dwordx2 v246, v[244:245], s[96:97] offset:{8*i}')
            A.I('s_nop 1')
ST=Stamps()
def srd(A,dst,base,off,size):
    if off:
        A.I(f's_add_u32 s{dst}, s{base}, {hex(off)}'); A.I(f's_addc_u32 s{dst+1}, s{base+1}, 0')
    else:
        A.I(f's_mov_b32 s{dst}, s{base}'); A.I(f's_mov_b32 s{dst+1}, s{base+1}')
    A.I(f's_mov_b32 s{dst+2}, {hex(size)}'); A.I(f's_mov_b32 s{dst+3}, 0x20000')
def mf16(A,D,a,b,first):
    A.I(f'v_mfma_f32_16x16x32_bf16 {v(D,4)}, {v(a,4)}, {v(b,4)}, {"0" if first else v(D,4)}')
def mf32(A,D,a,b,first=False):
    A.I(f'v_mfma_f32_32x32x16_bf16 {v(D,16)}, {v(a,4)}, {v(b,4)}, {"0" if first else v(D,16)}')
_lab=[0]
def newlab(p):
    _lab[0]+=1; return f'{p}_{_lab[0]}'
SPIN_MAX=0x20000
def lds_wait(A,vaddr,vtmp,off,val,n=1):
    l=newlab('lw'); d=newlab('ld')
    A.I('s_mov_b32 s58, 0'); A.L(l)
    if n==1:
        A.I(f'ds_read_b32 v{vtmp}, v{vaddr} offset:{off}\ns_waitcnt lgkmcnt(0)')
    else:
        A.I(f'ds_read_b128 {v(vtmp,4)}, v{vaddr} offset:{off}\ns_waitcnt lgkmcnt(0)')
        A.I(f'v_min_u32 v{vtmp}, v{vtmp}, v{vtmp+1}\nv_min_u32 v{vtmp+2}, v{vtmp+2}, v{vtmp+3}\nv_min_u32 v{vtmp}, v{vtmp}, v{vtmp+2}')
    A.I(f'v_readfirstlane_b32 s59, v{vtmp}')
    A.I(f's_cmp_ge_u32 s59, {val}\ns_cbranch_scc1 {d}')
    A.I(f's_add_u32 s58, s58, 1\ns_cmp_lt_u32 s58, {SPIN_MAX}\ns_cbranch_scc1 {l}')
    A.L(d)
def cnt_base(A):
    A.I(f's_add_u32 s62, s4, {hex(OFF_CNT)}\ns_addc_u32 s63, s5, 0')
def arrive(A,sidx,vt):
    cnt_base(A)
    A.I(f's_lshl_b32 s59, s{sidx}, 7\nv_mov_b32 v{vt}, s59\nv_mov_b32 v{vt+1}, 1\ns_mov_b64 exec, 1')
    A.I(f'global_atomic_add v{vt}, v{vt+1}, s[62:63]{SC}')
    A.I('s_mov_b64 exec, -1')
def poll_cnt(A,voff,vexp,vt,nl,first_loaded=False):
    l=newlab('pc'); d=newlab('pd'); c=newlab('pk')
    cnt_base(A)
    A.I(f's_mov_b32 s58, 0\ns_mov_b64 exec, {(1<<nl)-1}')
    if first_loaded: A.I(f's_branch {c}')
    A.L(l)
    A.I(f'global_load_dword v{vt}, v{voff}, s[62:63]{SCP}\ns_waitcnt vmcnt(0)')
    A.L(c)
    A.I(f'v_cmp_ne_u32 vcc, v{vt}, v{vexp}\ns_cbranch_vccz {d}')
    if 'sleep' in EXP: A.I('s_sleep 32')
    A.I(f's_add_u32 s58, s58, 1\ns_cmp_lt_u32 s58, {SPIN_MAX>>4}\ns_cbranch_scc1 {l}')
    A.L(d)
    A.I('s_mov_b64 exec, -1')

def p1_body(A):
    L,half,l32=1,2,3
    vX0,vX1,vW=4,5,6
    vAr=8; vBr=12
    csr=24; ones=28
    AFR=32; BFR=48
    T=80
    RSL=104; RSV=108
    vHo=112
    ACC=128
    vFw=8; fu=12; kb=13; kmask=14; FB=32; FO=48; SV=128; ST2=56; WTr=60; vWTs=76; vWTd=77; CSL=160; RD=20; FP=22
    PB=192
    tile=lambda m,st: ACC+(st>>1)*64+(m*2+(st&1))*16
    A.I(f"""
    v_and_b32 v{L}, 63, v0
    v_and_b32 v{l32}, 31, v0
    v_bfe_u32 v{half}, v0, 5, 1
    s_and_b32 s33, s2, 7
    s_lshr_b32 s34, s2, 3
    s_and_b32 s35, s33, 1
    s_lshl_b32 s35, s35, 3
    s_and_b32 s36, s34, 7
    s_add_u32 s35, s35, s36              ; rb
    s_lshr_b32 s33, s33, 1
    s_lshl_b32 s33, s33, 2
    s_lshr_b32 s34, s34, 3
    s_add_u32 s34, s33, s34              ; cb
    s_and_b32 s36, s32, 3                ; fq (C) / h (H)
    s_lshr_b32 s37, s32, 2               ; sh
    s_lshr_b32 s49, s35, 1               ; s0 (K rotation)
    s_cmp_lt_u32 s32, 4
    s_cbranch_scc1 p1_roleC
    """)
    NST=8
    def spread_into(G,items,lo,hi):
        n=hi-lo
        for j,it in enumerate(items): G[lo+min(j*n//max(len(items),1),n-1)].append(it)
    want=lambda i: i in ((0,1,2,3,4,5,6,7) if 'allB' in EXP else (1,2,3,4,5) if 'bw' in EXP else (() if ('p3steps' in EXP or 's2fine' in EXP) else (0,4)))
    n_st=ST.n
    vq=[]
    srd(A,8,6,0,2048*512*2)
    srd(A,12,28,0,512*1792*2)
    srd(A,16,30,0,512*1792*2)
    mask=0
    for Ln in range(64):
        c=(Ln%16)^((Ln//16)<<2)
        if c<14: mask|=1<<Ln
    A.I(f"""
    s_mov_b32 s50, {hex(mask&0xffffffff)}
    s_mov_b32 s51, {hex(mask>>32)}
    s_lshl_b32 s38, s36, 12              ; h*4096
    v_lshrrev_b32 v{T}, 3, v{L}
    v_lshlrev_b32 v{T}, 16, v{T}
    s_lshl_b32 s60, s35, 2
    s_add_u32 s60, s60, s36
    s_lshl_b32 s60, s60, 10
    v_add_u32 v{T}, s60, v{T}
    v_and_b32 v{T+1}, 7, v{L}
    v_lshrrev_b32 v{T+2}, 4, v{L}
    v_xor_b32 v{T+1}, v{T+1}, v{T+2}
    v_lshl_add_u32 v{vX0}, v{T+1}, 4, v{T}
    v_xor_b32 v{vX1}, 64, v{vX0}
    s_lshl_b32 s60, s36, 4
    v_add_u32 v{T+1}, s60, v{T+2}
    s_movk_i32 s60, 3584
    v_mul_lo_u32 v{T+1}, v{T+1}, s60
    v_and_b32 v{T+3}, 15, v{L}
    v_lshlrev_b32 v{T+2}, 2, v{T+2}
    v_xor_b32 v{T+3}, v{T+3}, v{T+2}
    v_lshl_add_u32 v{vW}, v{T+3}, 4, v{T+1}
    s_mul_i32 s60, s34, 224
    v_add_u32 v{vW}, s60, v{vW}
    """)
    def dma(stage):
        slot=SB[stage%3]
        A.I(f's_add_u32 s52, s49, {stage}\ns_and_b32 s52, s52, 7\ns_mul_i32 s53, s52, {64*3584}\ns_lshl_b32 s52, s52, 7')
        for i in range(4):
            A.I(f's_add_u32 m0, s38, {slot+XS+i*1024}')
            A.I(f's_add_u32 s60, s52, {i*524288}')
            A.I(f'buffer_load_dwordx4 v{vX0+(i&1)}, s[8:11], s60 offen lds'); vq.append(stage)
            if PACE and stage>1: A.I(f's_sleep {PACE}')
            A.I(f's_add_u32 s60, s53, {i*14336}\ns_mov_b64 exec, s[50:51]')
            for m in range(2):
                A.I(f's_add_u32 m0, s38, {slot+(US if m else GS)+i*1024}\ns_nop 0')
                A.I(f'buffer_load_dwordx4 v{vW}, s[{12+4*m}:{15+4*m}], s60 offen lds'); vq.append(stage)
                if PACE and stage>1: A.I(f's_sleep {PACE}')
            A.I('s_mov_b64 exec, -1')
    def vwait(tag,lg=False):
        idx=[k for k,x in enumerate(vq) if x==tag]
        if not idx:
            if lg: A.I('s_waitcnt lgkmcnt(0)')
            return
        N=len(vq)-1-max(idx); del vq[:max(idx)+1]
        A.I(f's_waitcnt vmcnt({min(N,63)})'+(' lgkmcnt(0)' if lg else ''))
    dma(0)
    A.I(f"""
    s_lshl_b32 s33, s34, 3
    s_lshl_b32 s60, s36, 1
    s_add_u32 s33, s33, s60
    s_lshl_b32 s60, s35, 7
    s_add_u32 s64, s60, s33
    v_lshlrev_b32 v{T}, 4, v{L}
    """)
    for n in range(2):
        A.I(f"""s_add_u32 s60, s64, {n}
        s_and_b32 s61, s60, 31
        s_lshl_b32 s61, s61, 6
        s_lshr_b32 s60, s60, 5
        s_add_u32 s60, s60, s61
        s_lshl_b32 s60, s60, 10
        buffer_load_dwordx4 {v(SV+4*n,4)}, v{T}, s[8:11], s60 offen"""); vq.append('row')
    dma(1)
    A.I('s_cmp_lt_u32 s32, 6\ns_cbranch_scc1 p1H_nf')
    A.skip_begin()
    A.I(f"""
    s_and_b32 s39, s32, 1
    s_lshl_b32 s33, s49, 6
    s_lshl_b32 s60, s39, 5
    s_add_u32 s33, s33, s60
    v_add_u32 v{T+2}, s33, v{l32}
    v_cvt_f32_u32 v{fu}, v{T+2}
    v_mul_f32 v{fu}, {f2u(1/512)}, v{fu}
    s_lshl_b32 s33, s34, 4
    v_lshlrev_b32 v{T+3}, 3, v{half}
    v_add_u32 v{T+3}, s33, v{T+3}
    v_cvt_f32_u32 v{kb}, v{T+3}
    v_mov_b32 v{kmask}, 0xffff
    """)
    for b_ in range(2):
        if b_==1: A.I(f'v_add_f32 v{fu}, {f2u(0.125)}, v{fu}\nv_fract_f32 v{fu}, v{fu}')
        A.I(f'v_mul_f32 v{T+4}, v{fu}, v{kb}')
        for j in range(4):
            A.I(f'v_cos_f32 v{T+6}, v{T+4}\nv_sin_f32 v{T+8}, v{T+4}\nv_add_f32 v{T+4}, v{T+4}, v{fu}')
            A.I(f'v_cos_f32 v{T+7}, v{T+4}\nv_sin_f32 v{T+9}, v{T+4}\nv_add_f32 v{T+4}, v{T+4}, v{fu}')
            A.I(f'v_cvt_pk_bf16_f32 v{FB+8*b_+j}, v{T+6}, v{T+7}')
            A.I(f'v_cvt_pk_bf16_f32 v{FB+8*b_+4+j}, -v{T+8}, -v{T+9}')
        A.I(f"""v_and_b32 v{T+5}, 1, v{l32}
        v_lshlrev_b32 v{T+5}, 15, v{T+5}
        v_or_b32 v{T+5}, 0x3f80, v{T+5}
        v_bfi_b32 v{T+5}, v{kmask}, v{T+5}, v{FB+8*b_+4}
        v_cmp_eq_u32 vcc, 0, v{T+3}
        v_cndmask_b32 v{FB+8*b_+4}, v{FB+8*b_+4}, v{T+5}, vcc""")
    A.I(f"""
    s_lshl_b32 s60, s39, 5
    v_add_u32 v{T+2}, s60, v{l32}
    v_and_b32 v{T+3}, 3, v{T+2}
    v_lshlrev_b32 v{T+3}, 2, v{T+3}
    v_add_u32 v{T+4}, 14, v{half}
    v_xor_b32 v{T+3}, v{T+3}, v{T+4}
    v_lshlrev_b32 v{T+3}, 4, v{T+3}
    v_lshl_add_u32 v{T+3}, v{T+2}, 8, v{T+3}
    v_add_u32 v{vFw}, {GS+SB[0]}, v{T+3}
    v_add_u32 v{vFw+1}, {GS+SB[1]}, v{T+3}
    v_add_u32 v{vFw+2}, {GS+SB[2]}, v{T+3}
    """)
    A.skip_end(); A.L('p1H_nf')
    flab=[0]
    def fgen(stage):
        flab[0]+=1; l=f'p1H_fg{flab[0]}'
        A.I(f's_cmp_lt_u32 s32, 6\ns_cbranch_scc1 {l}')
        A.skip_begin()
        slot=stage%3; b_=stage&1; t=(stage>>1)&3; B0=FB+8*b_
        def wr(m,src): A.I(f'ds_write_b128 v{vFw+slot}, {v(src,4)} offset:{m*16384}')
        if t==0:
            wr(0,B0); wr(1,B0+4)
        elif t==2:
            for m in range(2):
                for j in range(4): A.I(f'v_xor_b32 v{FO+4*m+j}, 0x80000000, v{B0+4*m+j}')
                wr(m,FO+4*m)
        else:
            ex=0 if t==1 else 0x80000000
            for m in range(2):
                for j in range(4):
                    own=B0+4*m+j; oth=B0+4*(1-m)+j
                    A.I(f'v_bfi_b32 v{FO+4*m+j}, v{kmask}, v{own}, v{oth}')
                    if m==0: sg=(0 if j%2==0 else 0x80008000)
                    else: sg=(0x80000000 if j%2==0 else 0x8000)
                    sg^=ex
                    if sg: A.I(f'v_xor_b32 v{FO+4*m+j}, {hex(sg)}, v{FO+4*m+j}')
                wr(m,FO+4*m)
        A.skip_end(); A.L(l)
    A.I('s_cmp_lg_u32 s2, 0\ns_cbranch_scc1 p1H_non\ns_cmp_lg_u32 s32, 7\ns_cbranch_scc1 p1H_non')
    A.skip_begin()
    cnt_base(A)
    A.I(f'v_lshlrev_b32 v{T}, 7, v{L}\nv_mov_b32 v{T+1}, 0')
    for j in range(NCNT//64):
        A.I(f'global_store_dword v{T}, v{T+1}, s[62:63]{SC}\nv_add_u32 v{T}, {64*128}, v{T}')
    A.I('s_mov_b64 exec, 1')
    A.I(f's_waitcnt vmcnt(0)\nv_mov_b32 v{T}, 0\nv_mov_b32 v{T+1}, 1\nglobal_store_dword v{T}, v{T+1}, s[54:55]{SC}\ns_mov_b64 exec, -1')
    A.skip_end(); A.L('p1H_non')
    def rowstats():
        U=T+14; S=ST2
        vwait('row')
        for i in range(4):
            for n in range(2):
                u=U+2*n
                A.I(f'v_lshlrev_b32 v{u}, 16, v{SV+4*n+i}\nv_and_b32 v{u+1}, 0xffff0000, v{SV+4*n+i}')
                if i==0: A.I(f'v_add_f32 v{S+2*n}, v{u}, v{u+1}\nv_mul_f32 v{S+2*n+1}, v{u}, v{u}')
                else: A.I(f'v_add_f32 v{S+2*n}, v{S+2*n}, v{u}\nv_fmac_f32 v{S+2*n+1}, v{u}, v{u}\nv_add_f32 v{S+2*n}, v{S+2*n}, v{u+1}')
                A.I(f'v_fmac_f32 v{S+2*n+1}, v{u+1}, v{u+1}')
        for ror in (8,4,2,1):
            for x in range(S,S+4): A.I(f'v_add_f32_dpp v{x}, v{x}, v{x} row_ror:{ror} row_mask:0xf bank_mask:0xf')
        for op in ('v_permlane16_swap_b32','v_permlane32_swap_b32'):
            for k in range(4): A.I(f'v_mov_b32 v{U+k}, v{S+k}')
            for k in range(4): A.I(f'{op} v{S+k}, v{U+k}')
            for k in range(4): A.I(f'v_add_f32 v{S+k}, v{S+k}, v{U+k}')
        A.I(f"""
        v_and_b32 v{U}, 1, v{L}
        v_cmp_eq_u32 vcc, 1, v{U}
        v_cndmask_b32 v{S}, v{S}, v{S+2}, vcc
        v_cndmask_b32 v{S+1}, v{S+1}, v{S+3}, vcc
        v_mul_f32 v{U}, {f2u(1/512)}, v{S}
        v_mul_f32 v{U+1}, {f2u(1/512)}, v{S+1}
        v_fma_f32 v{U+1}, -v{U}, v{U}, v{U+1}
        v_max_f32 v{U+1}, 0, v{U+1}
        v_cvt_pk_bf16_f32 v{U}, v{U}, v{U+1}
        v_and_b32 v{U+1}, 0xffff0000, v{U}
        v_lshlrev_b32 v{U}, 16, v{U}
        v_sub_f32 v{S}, 0, v{U}
        v_add_f32 v{U+1}, {f2u(1e-5)}, v{U+1}
        v_cvt_pk_bf16_f32 v{U+1}, v{U+1}, v{U+1}
        v_and_b32 v{U+1}, 0xffff0000, v{U+1}
        v_sqrt_f32 v{U+1}, v{U+1}
        v_cvt_pk_bf16_f32 v{U+1}, v{U+1}, v{U+1}
        v_and_b32 v{S+1}, 0xffff0000, v{U+1}
        s_lshl_b32 s60, s64, 3
        s_add_u32 s60, s60, {OFF_RS}
        s_add_u32 s62, s4, s60
        s_addc_u32 s63, s5, 0
        v_lshlrev_b32 v{U}, 3, v{L}
        s_mov_b64 exec, 3
        global_store_dwordx2 v{U}, {v(S,2)}, s[62:63]{SC}
        s_mov_b64 exec, -1
        """); vq.append('st')
    WV=128
    wS=76; wD=77
    def wt_job_loads():
        A.I(f"""
        v_and_b32 v{wD}, 255, v0
        v_lshrrev_b32 v{wD}, 4, v{wD}
        s_lshl_b32 s60, s35, 7
        v_add_u32 v{wS}, s60, v{wD}
        v_mul_u32_u24 v{wS}, 257, v{wS}
        v_and_b32 v{wD+1}, 15, v0
        s_lshl_b32 s60, s34, 4
        v_add_u32 v{wD+1}, s60, v{wD+1}
        v_add_u32 v{wS}, v{wS}, v{wD+1}
        v_lshlrev_b32 v{wS}, 1, v{wS}
        s_lshr_b32 s60, s35, 2
        s_lshl_b32 s60, s60, 11
        s_and_b32 s61, s35, 3
        s_lshl_b32 s61, s61, 8
        s_add_u32 s65, s60, s61
        v_lshlrev_b32 v{wD}, 4, v{wD}
        v_add_u32 v{wD}, s65, v{wD}
        v_lshl_add_u32 v{wD}, v{wD+1}, 13, v{wD}
        s_mov_b32 s42, 0x101000
        s_mov_b32 s43, 0x20000
        s_mov_b32 s46, 0x101000
        s_mov_b32 s47, 0x20000
        """)
        for n in range(2):
            for r in range(4):
                A.I(f's_mov_b32 s60, {r*16448+n*8224}')
                A.I(f'buffer_load_short_d16 v{WV+4*n+r}, v{wS}, s[40:43], s60 offen')
                A.I(f'buffer_load_short_d16_hi v{WV+8+4*n+r}, v{wS}, s[44:47], s60 offen'); vq.extend(['wt','wt'])
        A.I('s_cmp_lg_u32 s34, 0\ns_cbranch_scc1 p1H_wt0\ns_cmp_lg_u32 s32, 4\ns_cbranch_scc1 p1H_wt0')
        A.skip_begin()
        A.I(f's_lshl_b32 s60, s35, 7\nv_add_u32 v{wD+1}, s60, v{l32}\nv_mul_u32_u24 v{wD+1}, 257, v{wD+1}\nv_add_u32 v{wD+1}, 256, v{wD+1}\nv_lshlrev_b32 v{wD+1}, 1, v{wD+1}')
        for r in range(4):
            A.I(f's_mov_b32 s60, {r*16448}')
            A.I(f'buffer_load_short_d16 v{WV+16+r}, v{wD+1}, s[40:43], s60 offen')
            A.I(f'buffer_load_short_d16_hi v{WV+20+r}, v{wD+1}, s[44:47], s60 offen')
        A.skip_end(); A.L('p1H_wt0')
    def wt_job_stores():
        vwait('wt')
        srd(A,40,4,OFF_WT,257*8192)
        for n in range(2):
            for r in range(4): A.I(f'v_or_b32 v{WV+4*n+r}, v{WV+4*n+r}, v{WV+8+4*n+r}')
            A.I(f'buffer_store_dwordx4 {v(WV+4*n,4)}, v{wD}, s[40:43], 0 offen offset:{n*1024}{SC}'); vq.append('wst')
        A.I('s_cmp_lg_u32 s34, 0\ns_cbranch_scc1 p1H_wt1\ns_cmp_lg_u32 s32, 4\ns_cbranch_scc1 p1H_wt1')
        A.skip_begin()
        for r in range(4): A.I(f'v_or_b32 v{WV+16+r}, v{WV+16+r}, v{WV+20+r}')
        A.I(f'v_lshrrev_b32 v{wS}, 4, v{l32}\nv_lshlrev_b32 v{wS}, 10, v{wS}\nv_and_b32 v{wD+1}, 15, v{l32}\nv_lshl_add_u32 v{wS}, v{wD+1}, 4, v{wS}')
        A.I(f'v_add_u32 v{wS}, s65, v{wS}\nv_add_u32 v{wS}, 0x200000, v{wS}\ns_mov_b32 exec_hi, 0')
        A.I(f'buffer_store_dwordx4 {v(WV+16,4)}, v{wS}, s[40:43], 0 offen{SC}\ns_mov_b64 exec, -1')
        A.skip_end(); A.L('p1H_wt1')
    def warmup():
        A.I(f"""
        s_bfe_u32 s60, s2, 0x30003            ; n&7
        s_mul_i32 s60, s60, 224
        s_mul_i32 s61, s36, 56
        s_add_u32 s60, s60, s61
        v_add_u32 v{T}, s60, v{L}
        v_lshlrev_b32 v{T}, 10, v{T}
        s_bfe_u32 s60, s2, 0x10002            ; x>>2
        s_lshl_b32 s60, s60, 2
        s_lshr_b32 s61, s2, 6
        s_add_u32 s60, s60, s61               ; db
        s_lshl_b32 s60, s60, 7
        v_add_u32 v{T}, s60, v{T}
        s_mov_b32 s20, s56
        s_mov_b32 s21, s57
        s_mov_b32 s22, {hex(1792*512*2)}
        s_mov_b32 s23, 0x20000
        buffer_load_dword v{T+2}, v{T}, s[20:23], 0 offen
        s_getpc_b64 s[60:61]
        p1H_pc:
        s_add_u32 s60, s60, p1_join-p1H_pc
        s_addc_u32 s61, s61, 0
        s_lshl_b32 s62, s36, 13
        v_lshlrev_b32 v{T+4}, 7, v{L}
        v_add_u32 v{T+4}, s62, v{T+4}
        v_min_u32 v{T+4}, k_done-p1_join, v{T+4}
        v_mov_b32 v{T+5}, s61
        v_add_co_u32 v{T+4}, vcc, s60, v{T+4}
        v_addc_co_u32 v{T+5}, vcc, 0, v{T+5}, vcc
        global_load_dword v{T+3}, v[{T+4}:{T+5}], off
        """)
        vq.extend(['pf','pf'])
    def ready_load():
        A.I(f'v_mov_b32 v{RD+1}, 0\ns_mov_b64 exec, 1\nglobal_load_dword v{RD}, v{RD+1}, s[54:55]{SCP}\ns_mov_b64 exec, -1'); vq.append('non')
    def ready_check():
        l=newlab('nl'); d=newlab('nd')
        A.I(f'v_readfirstlane_b32 s3, v{RD}\ns_cmp_lg_u32 s3, 0\ns_cbranch_scc1 {d}\ns_mov_b32 s58, 0')
        A.L(l)
        A.I(f'global_load_dword v{RD}, v{RD+1}, s[54:55]{SCP}\ns_waitcnt vmcnt(0)\nv_readfirstlane_b32 s3, v{RD}')
        A.I(f's_cmp_lg_u32 s3, 0\ns_cbranch_scc1 {d}\ns_add_u32 s58, s58, 1\ns_cmp_lt_u32 s58, {SPIN_MAX>>4}\ns_cbranch_scc1 {l}')
        A.L(d)
    def rs_loads(q):
        A.I(f"""
        s_lshl_b32 s60, s35, 7
        s_lshl_b32 s61, s37, 6
        s_add_u32 s60, s60, s61
        v_add_u32 v{RSL}, s60, v{l32}
        v_lshlrev_b32 v{RSL+1}, 3, v{RSL}
        s_add_u32 s62, s4, {OFF_RS}
        s_addc_u32 s63, s5, 0
        global_load_dwordx2 {v(RSV,2)}, v{RSL+1}, s[62:63]{SC}
        global_load_dwordx2 {v(RSV+2,2)}, v{RSL+1}, s[62:63] offset:256{SC}
        """); q.extend(['rs','rs'])
    for i in range(NST):
        if 'bw' in EXP and i in (1,2,3,4,5): ST.mark(A)
        vwait(i,True)
        if 'bw' in EXP and i in (1,2,3,4,5): ST.mark(A)
        if i==6:
            A.I('s_cmp_lg_u32 s32, 4\ns_cbranch_scc1 p1H_sq')
            A.skip_begin()
            A.I('s_waitcnt vmcnt(12)')
            poll_cnt(A,FP+1,FP+3,FP+2,2,True)
            A.skip_end(); A.L('p1H_sq')
        A.I('s_barrier')
        if want(i): ST.mark(A)
        if i==5:
            A.I(f"""
            s_lshl_b32 s60, s35, 7
            s_add_u32 s61, s34, {C_CS}
            s_lshl_b32 s61, s61, 7
            v_mov_b32 v{FP+1}, s61
            v_mov_b32 v{FP}, s60
            v_cmp_eq_u32 vcc, 0, v{L}
            v_cndmask_b32 v{FP+1}, v{FP+1}, v{FP}, vcc
            v_mov_b32 v{FP+3}, 16
            s_cmp_lg_u32 s32, 4
            s_cbranch_scc1 p1H_sp
            """)
            A.skip_begin()
            cnt_base(A)
            A.I(f's_mov_b64 exec, 3\nglobal_load_dword v{FP+2}, v{FP+1}, s[62:63]{SCP}\ns_mov_b64 exec, -1')
            A.skip_end(); A.L('p1H_sp')
        if i==0: ready_load()
        if i==3:
            A.I('s_cmp_lg_u32 s32, 4\ns_cbranch_scc1 p1H_f0')
            A.skip_begin()
            ready_check()
            arrive(A,35,T+14)
            A.I(f's_add_u32 s61, s34, {C_CS}'); arrive(A,61,T+14)
            A.skip_end(); A.L('p1H_f0')
        if i+2<NST: fgen(i+2)
        if i+2<NST: dma(i+2)
        if i==0: rowstats()
        if i==4 and 'nopf' not in EXP: warmup()
        if i==6:
            wt_job_loads()
            rs_loads(vq)
            A.I(f's_lshl_b32 s60, s34, 14\ns_add_u32 s60, s60, {OFF_CSP}\ns_add_u32 s20, s4, s60\ns_addc_u32 s21, s5, 0\nv_and_b32 v{FP}, 255, v0\nv_lshlrev_b32 v{FP}, 2, v{FP}')
            for j4 in range(4):
                if j4>0: A.I(f'v_add_u32 v{FP}, 4096, v{FP}')
                for j in range(4):
                    A.I(f'global_load_dword v{CSL+4*j4+j}, v{FP}, s[20:21] offset:{j*1024}{SC}'); vq.append('csp')
    vwait('csp')
    wt_job_stores()
    X=CSL
    for j in range(8): A.I(f'v_add_f32 v{X+j}, v{X+j}, v{X+8+j}')
    for j in range(4): A.I(f'v_add_f32 v{X+j}, v{X+j}, v{X+4+j}')
    A.I(f'v_add_f32 v{X}, v{X}, v{X+1}\nv_add_f32 v{X+2}, v{X+2}, v{X+3}\nv_add_f32 v{X}, v{X}, v{X+2}')
    A.I(f"""
    v_cvt_pk_bf16_f32 v{X+1}, v{X}, v{X}
    v_and_b32 v{X+1}, 0xffff0000, v{X+1}
    v_sub_f32 v{X+2}, v{X}, v{X+1}
    v_cvt_pk_bf16_f32 v{X}, v{X+1}, v{X+2}
    v_and_b32 v{T}, 255, v0
    v_lshlrev_b32 v{T}, 2, v{T}
    v_add_u32 v{T}, {STAT}, v{T}
    ds_write_b32 v{T}, v{X}
    """)
    ST.mark(A)
    A.I(f"""
    s_lshl_b32 s60, s36, 14
    s_cmp_eq_u32 s36, 3
    s_cselect_b32 s60, {SB[2]}, s60
    v_lshlrev_b32 v{T}, 4, v{L}
    v_add_u32 v{T}, s60, v{T}
    s_waitcnt lgkmcnt(0)
    s_barrier
    """)
    for k in range(16): A.I(f'ds_read_b128 {v(ACC+4*k,4)}, v{T} offset:{k*1024}')
    A.I('s_branch p1_join')
    A.L('p1_roleC'); A.fence()
    ST.n=n_st
    cq=[]; lq=[]
    A.I(f"""
    v_lshrrev_b32 v{T}, 5, v{L}
    v_lshlrev_b32 v{T}, 3, v{T}
    v_bfe_u32 v{T+1}, v{L}, 2, 2
    v_add_u32 v{T}, v{T}, v{T+1}
    v_lshlrev_b32 v{T}, 8, v{T}
    v_bfe_u32 v{T+2}, v{L}, 4, 1
    v_lshlrev_b32 v{T+2}, 1, v{T+2}
    v_bfe_u32 v{T+3}, v{L}, 1, 1
    v_add_u32 v{T+2}, v{T+2}, v{T+3}
    s_lshl_b32 s33, s36, 2
    v_add_u32 v{T+2}, s33, v{T+2}
    v_lshlrev_b32 v{T+1}, 2, v{T+1}
    v_xor_b32 v{T+2}, v{T+2}, v{T+1}
    v_lshl_add_u32 v{T}, v{T+2}, 4, v{T}
    v_and_b32 v{T+3}, 1, v{L}
    v_lshl_add_u32 v{T}, v{T+3}, 3, v{T}
    v_add_u32 v{vAr}, {GS+SB[0]}, v{T}
    v_add_u32 v{vAr+1}, {GS+SB[1]}, v{T}
    v_add_u32 v{vAr+2}, {GS+SB[2]}, v{T}
    v_lshlrev_b32 v{T}, 7, v{l32}
    v_bfe_u32 v{T+1}, v{l32}, 1, 3
    v_xor_b32 v{T+1}, v{T+1}, v{half}
    v_lshl_add_u32 v{T}, v{T+1}, 4, v{T}
    v_mov_b32 v{ones}, 0x3f803f80
    """)
    for sl in range(3):
        for ks in range(4):
            if ks==0: A.I(f'v_add_u32 v{vBr+sl*4}, {SB[sl]+XS}, v{T}')
            else: A.I(f'v_xor_b32 v{vBr+sl*4+ks}, {ks*32}, v{vBr+sl*4}')
    for k in range(4): A.I(f'v_mov_b32 v{csr+k}, 0')
    A.I(f'v_mov_b32 v{T}, {CTRL}\nv_lshl_add_u32 v{T}, v{L}, 2, v{T}\nv_mov_b32 v{T+1}, 0\nds_write_b32 v{T}, v{T+1}')
    A.I(f"""
    s_lshl_b32 s60, s36, 4
    v_and_b32 v{T}, 15, v{L}
    v_add_u32 v{T}, s60, v{T}              ; row
    s_lshl_b32 s60, s49, 6
    v_lshlrev_b32 v{T+1}, 6, v{half}
    v_add_u32 v{T+1}, v{T+1}, v{T}
    v_add_u32 v{T+1}, s60, v{T+1}
    v_and_b32 v{T+1}, 511, v{T+1}          ; d
    v_cvt_f32_u32 v{T+2}, v{T+1}
    v_mul_f32 v{T+2}, {f2u(1/512)}, v{T+2} ; u
    v_bfe_u32 v{T+3}, v{L}, 4, 1           ; ch
    s_lshl_b32 s60, s34, 4
    v_lshlrev_b32 v{T+4}, 3, v{T+3}
    v_add_u32 v{T+4}, s60, v{T+4}          ; k0
    v_cvt_f32_u32 v{T+5}, v{T+4}
    v_mul_f32 v{T+5}, v{T+5}, v{T+2}       ; angle
    """)
    for j in range(4):
        A.I(f'v_cos_f32 v{T+6}, v{T+5}\nv_sin_f32 v{T+8}, v{T+5}\nv_add_f32 v{T+5}, v{T+5}, v{T+2}')
        A.I(f'v_cos_f32 v{T+7}, v{T+5}\nv_sin_f32 v{T+9}, v{T+5}\nv_add_f32 v{T+5}, v{T+5}, v{T+2}')
        A.I(f'v_cvt_pk_bf16_f32 v{AFR+j}, v{T+6}, v{T+7}')
        A.I(f'v_cvt_pk_bf16_f32 v{AFR+4+j}, -v{T+8}, -v{T+9}')
    A.I(f"""
    v_and_b32 v{T+6}, 1, v{T}
    v_lshlrev_b32 v{T+6}, 15, v{T+6}
    v_or_b32 v{T+6}, 0x3f80, v{T+6}
    v_mov_b32 v{T+7}, 0xffff
    v_bfi_b32 v{T+6}, v{T+7}, v{T+6}, v{AFR+4}
    v_cmp_eq_u32 vcc, 0, v{T+4}
    v_cndmask_b32 v{AFR+4}, v{AFR+4}, v{T+6}, vcc
    v_and_b32 v{T+6}, 3, v{T}
    v_lshlrev_b32 v{T+6}, 2, v{T+6}
    v_add_u32 v{T+7}, 14, v{T+3}
    v_xor_b32 v{T+6}, v{T+6}, v{T+7}
    v_lshlrev_b32 v{T+6}, 4, v{T+6}
    v_lshl_add_u32 v{T+6}, v{T}, 8, v{T+6}
    v_mul_u32_u24 v{T+7}, {SB[1]-SB[0]}, v{half}
    v_add_u32 v{T+6}, v{T+6}, v{T+7}
    v_add_u32 v{T+6}, {GS+SB[0]}, v{T+6}
    ds_write_b128 v{T+6}, {v(AFR,4)}
    ds_write_b128 v{T+6}, {v(AFR+4,4)} offset:16384
    """)
    def read_items(stage,ks,fs):
        slot=stage%3; a=AFR+fs*8; bb=BFR+fs*16
        def ra(m):
            def f():
                for rd in range(2):
                    A.I(f'ds_read_b64_tr_b16 {v(a+m*4+rd*2,2)}, v{vAr+slot} offset:{m*16384+ks*4096+rd*1024}'); lq.append(('A',m,stage,ks))
            return f
        def rb(st):
            def f():
                A.I(f'ds_read_b128 {v(bb+st*4,4)}, v{vBr+slot*4+ks} offset:{st*4096}'); lq.append(('B',st,stage,ks))
            return f
        return [ra(0),rb(0),ra(1),rb(1),rb(2),rb(3)]
    def lwait(tags):
        idx=[k for k,x in enumerate(lq) if x in tags]
        if not idx: return
        n=len(lq)-1-max(idx); del lq[:max(idx)+1]
        A.I(f's_waitcnt lgkmcnt({n})')
    def compute(stage,ks,fs,first,nxt,extra=None,cs=None):
        a=AFR+fs*8; bb=BFR+fs*16; k=0
        for st in range(4):
            for m in range(2):
                lwait([('A',m,stage,ks),('B',st,stage,ks)])
                mf32(A,tile(m,st),a+m*4,bb+st*4,first)
                if k<len(nxt): nxt[k]()
                if cs is not None: A.I(f'v_dot2c_f32_bf16 v{csr+cs*2+(k>>2)}, v{a+(k>>2)*4+(k&3)}, v{ones}')
                if extra and k in extra: extra[k]()
                k+=1
    def cs_chunks():
        U=T+14; C=[]
        C.append(lambda: A.I(f"""s_bitcmp1_b32 s35, 0
            s_cselect_b64 vcc, -1, 0
            v_cndmask_b32 v{U}, v{csr}, v{csr+2}, vcc
            v_cndmask_b32 v{U+2}, v{csr+1}, v{csr+3}, vcc"""))
        C.append(lambda: A.I(f"""v_mov_b32 v{U+1}, v{U}
            v_mov_b32 v{U+3}, v{U+2}
            s_lshl_b32 s60, s34, 4
            s_add_u32 s60, s60, s35"""))
        C.append(lambda: A.I(f"""v_permlane32_swap_b32 v{U}, v{U+1}
            v_permlane32_swap_b32 v{U+2}, v{U+3}
            s_lshl_b32 s60, s60, 10
            s_lshl_b32 s61, s36, 7"""))
        C.append(lambda: A.I(f"""v_add_f32 v{U}, v{U}, v{U+1}
            v_add_f32 v{U+2}, v{U+2}, v{U+3}
            s_add_u32 s60, s60, s61
            s_add_u32 s60, s60, {OFF_CSP}"""))
        C.append(lambda: A.I(f"""s_add_u32 s62, s4, s60
            s_addc_u32 s63, s5, 0
            v_lshlrev_b32 v{U+1}, 2, v{l32}
            s_mov_b32 exec_hi, 0
            global_store_dword v{U+1}, v{U}, s[62:63]{SC}
            s_mov_b64 exec, -1"""))
        C.append(lambda: A.I(f"""s_mov_b32 exec_hi, 0
            global_store_dword v{U+1}, v{U+2}, s[62:63] offset:512{SC}
            s_mov_b64 exec, -1"""))
        return C
    for i in range(NST):
        if 'bw' in EXP and i in (1,2,3,4,5): ST.mark(A)
        if i==3: A.I('s_waitcnt vmcnt(0)')
        A.I('s_waitcnt lgkmcnt(0)'); lq.clear()
        if 'bw' in EXP and i in (1,2,3,4,5): ST.mark(A)
        A.I('s_barrier')
        if want(i): ST.mark(A)
        r0=read_items(i,0,0)
        if i==0:
            for f in r0: f()
        else:
            compute(i-1,3,1,False,r0,None,1 if i==1 else None)
            pass
        compute(i,0,0,i==0,read_items(i,1,1),({6:lambda: rs_loads(cq)} if i==6 else (dict(zip((1,2,3,4,6,7),cs_chunks())) if i==1 else None)),0 if i==0 else None)
        compute(i,1,1,False,read_items(i,2,0),None,0 if i==0 else None)
        compute(i,2,0,False,read_items(i,3,1),None,1 if i==0 else None)
    A.I('s_waitcnt lgkmcnt(0)'); lq.clear()
    compute(7,3,1,False,[])
    ST.mark(A)
    A.I(f"""
    s_lshl_b32 s60, s36, 14
    s_cmp_eq_u32 s36, 3
    s_cselect_b32 s60, {SB[2]}, s60
    v_lshlrev_b32 v{T}, 4, v{L}
    v_add_u32 v{T}, s60, v{T}
    """)
    for k in range(16): A.I(f'ds_write_b128 v{T}, {v(ACC+64+4*k,4)} offset:{k*1024}')
    A.I('s_waitcnt vmcnt(0) lgkmcnt(0)\ns_barrier')
    A.L('p1_join')
    mm=[RSV,RSV+2]; sd=[RSV+1,RSV+3]
    c1p=T+6; c2p=T+14; sd2=T+16; rr=T+18
    c1=-2*0.7978845608028654*math.log2(math.e); c2=c1*0.044715
    FRK=32
    A.I(f"""
    s_lshl_b32 s39, s36, 7
    v_lshlrev_b32 v{T+2}, 2, v{l32}
    v_add_u32 v{T+2}, s39, v{T+2}
    v_add_u32 v{T+2}, {STAT}, v{T+2}
    ds_read_b32 v{T+10}, v{T+2}
    ds_read_b32 v{T+11}, v{T+2} offset:512
    """)
    for k in range(16): A.I(f'v_mov_b32 v{FRK+k}, 0')
    for st in range(2):
        A.I(f"""
        v_rcp_f32 v{rr+st}, v{sd[st]}
        v_mul_f32 v{sd2+st}, v{sd[st]}, v{sd[st]}
        v_mul_f32 v{c1p+st}, {f2u(c1)}, v{rr+st}
        v_mul_f32 v{T+9}, v{rr+st}, v{rr+st}
        v_mul_f32 v{T+9}, v{T+9}, v{rr+st}
        v_mul_f32 v{c2p+st}, {f2u(c2)}, v{T+9}
        """)
    srd(A,20,4,OFF_HP,224*32768)
    srd(A,24,4,OFF_YQ,256*8192)
    A.I(f"""
    v_cvt_pk_bf16_f32 v{T+12}, v{mm[0]}, v{mm[0]}
    v_cvt_pk_bf16_f32 v{T+13}, v{mm[1]}, v{mm[1]}
    v_cmp_gt_u32 vcc, 32, v{L}
    v_cndmask_b32 v{FRK+8}, 0, v{T+12}, vcc
    v_cndmask_b32 v{FRK+12}, 0, v{T+13}, vcc
    s_lshl_b32 s33, s35, 7
    s_lshl_b32 s39, s37, 6
    s_add_u32 s33, s33, s39              ; 128rb+64sh
    v_add_u32 v{T+4}, s33, v{l32}
    v_lshlrev_b32 v{vHo}, 4, v{T+4}
    v_lshl_add_u32 v{vHo}, v{half}, 15, v{vHo}
    v_add_u32 v{vHo+1}, 512, v{vHo}
    s_waitcnt lgkmcnt(0)
    v_cndmask_b32 v{FRK}, 0, v{T+10}, vcc
    v_cndmask_b32 v{FRK+4}, 0, v{T+11}, vcc
    """)
    for m in range(2):
        for b_ in range(2): mf32(A,ACC+(m*2+b_)*16,FRK+m*4,FRK+8+b_*4)
    vPf=114
    A.I('s_cmp_eq_u32 s37, 0\ns_cbranch_scc1 p1_pfC')
    A.I(f's_lshl_b32 s39, s36, 2\nv_mov_b32 v{vPf}, {CTRL}\nv_add_u32 v{vPf}, s39, v{vPf}\nv_mov_b32 v{vPf+1}, 1\nds_write_b32 v{vPf}, v{vPf+1} offset:64')
    A.I('s_branch p1_pfE')
    A.L('p1_pfC')
    srd(A,8,56,0,1792*512*2)
    A.I(f"""
    s_and_b32 s13, s2, 7
    s_lshr_b32 s14, s2, 3
    s_lshr_b32 s13, s13, 2
    s_lshl_b32 s13, s13, 2
    s_lshr_b32 s14, s14, 3
    s_add_u32 s13, s13, s14          ; db
    v_lshrrev_b32 v{vPf+1}, 3, v{L}
    v_bfe_u32 v{vPf+2}, v{L}, 4, 1
    v_lshlrev_b32 v{vPf+2}, 2, v{vPf+2}
    v_and_b32 v{vPf}, 7, v{L}
    v_xor_b32 v{vPf}, v{vPf}, v{vPf+2}
    v_lshlrev_b32 v{vPf}, 4, v{vPf}
    v_lshl_add_u32 v{vPf}, v{vPf+1}, 10, v{vPf}
    s_lshl_b32 s39, s13, 7
    v_add_u32 v{vPf}, s39, v{vPf}
    s_mul_i32 s44, s32, {28*16*1024}
    s_mul_i32 s45, s32, {AREG}
    v_mov_b32 v{vPf+1}, {CTRL}
    """)
    if 'epf' in EXP: lds_wait(A,vPf+1,116,64,1,4)
    A.L('p1_pfE')
    pfl=[0]
    def prefetch(lo,hi):
        if lo>=hi or 'epf' not in EXP: return
        pfl[0]+=1; l=f'p1_pf{pfl[0]}'
        A.I(f's_cmp_lg_u32 s37, 0\ns_cbranch_scc1 {l}')
        A.skip_begin()
        for t in range(lo,hi):
            for j in range(2):
                A.I(f's_add_u32 m0, s45, {t*2048+j*1024}')
                A.I(f's_add_u32 s39, s44, {(t*16+j*8)*1024}')
                A.I(f'buffer_load_dwordx4 v{vPf}, s[8:11], s39 offen lds')
        A.skip_end(); A.L(l)
    A.I('s_nop 7\ns_nop 4')
    Z=T+20
    vH=[vHo,vHo+1]
    GT=lambda st: ACC+st*16
    UT=lambda st: ACC+(2+st)*16
    def hq(q,st,p):
        g=[GT(st)+4*q+r for r in range(4)]; u=[UT(st)+4*q+r for r in range(4)]
        for r in range(4):
            A.I(f'v_mul_f32 v{Z+r}, v{g[r]}, v{g[r]}')
            A.I(f'v_fma_f32 v{Z+r}, v{Z+r}, v{c2p+st}, v{c1p+st}')
            A.I(f'v_mul_f32 v{Z+r}, v{Z+r}, v{g[r]}')
        for r in range(4): A.I(f'v_exp_f32 v{Z+r}, v{Z+r}')
        for r in range(4):
            A.I(f'v_mul_f32 v{g[r]}, v{g[r]}, v{u[r]}')
            A.I(f'v_fma_f32 v{Z+r}, v{Z+r}, v{sd2+st}, v{sd2+st}')
        for r in range(4): A.I(f'v_rcp_f32 v{Z+r}, v{Z+r}')
        for r in range(4): A.I(f'v_mul_f32 v{g[r]}, v{g[r]}, v{Z+r}')
        A.I(f'v_cvt_pk_bf16_f32 v{p}, v{g[0]}, v{g[1]}')
        A.I(f'v_cvt_pk_bf16_f32 v{p+1}, v{g[2]}, v{g[3]}')
    def hpair(q,st,P):
        hq(q,st,P); hq(q+1,st,P+2)
        A.I(f'v_permlane32_swap_b32 v{P}, v{P+2}')
        A.I(f'v_permlane32_swap_b32 v{P+1}, v{P+3}')
        A.I(f'buffer_store_dwordx4 {v(P,4)}, v{vH[st]}, s[20:23], s60 offen{SC}')
    A.I(f's_mul_i32 s61, s34, 14\ns_lshl_b32 s39, s36, 2\ns_add_u32 s61, s61, s39\ns_lshl_b32 s61, s61, 15')
    YT=208
    A.I('s_cmp_lg_u32 s36, 3\ns_cbranch_scc1 p1_noy')
    A.I(f"""
    s_lshl_b32 s39, s37, 12
    s_add_u32 s39, s39, {YSCR}
    v_lshlrev_b32 v{YT}, 10, v{half}
    v_lshl_add_u32 v{YT}, v{l32}, 2, v{YT}
    v_add_u32 v{YT}, s39, v{YT}
    v_lshlrev_b32 v{YT+1}, 4, v{L}
    v_add_u32 v{YT+1}, s39, v{YT+1}
    v_lshrrev_b32 v{YT+2}, 4, v{L}
    v_lshlrev_b32 v{YT+2}, 13, v{YT+2}
    v_and_b32 v{YT+3}, 15, v{L}
    v_lshl_add_u32 v{YT+2}, v{YT+3}, 4, v{YT+2}
    s_lshl_b32 s39, s33, 2
    v_add_u32 v{YT+2}, s39, v{YT+2}
    """)
    for q in (2,3):
        for st in range(2):
            for r in range(4):
                G_=GT(st)+4*q+r; U=UT(st)+4*q+r
                A.I(f'v_mul_f32 v{G_}, v{G_}, v{rr+st}')
                A.I(f'v_mul_f32 v{U}, v{U}, v{rr+st}')
                A.I(f'v_cvt_pk_bf16_f32 v{G_}, v{G_}, v{U}')
                A.I(f'ds_write_b32 v{YT}, v{G_} offset:{(8*(q-2)+r)*256+st*128}')
    A.I('s_waitcnt lgkmcnt(0)')
    for j in range(4): A.I(f'ds_read_b128 {v(YT+4+4*j,4)}, v{YT+1} offset:{j*1024}')
    A.I('s_waitcnt lgkmcnt(0)')
    for j in range(4):
        A.I(f's_lshl_b32 s60, s34, 4\ns_add_u32 s60, s60, {4*j}\ns_lshl_b32 s60, s60, 13')
        A.I(f'buffer_store_dwordx4 {v(YT+4+4*j,4)}, v{YT+2}, s[24:27], s60 offen{SC}')
    A.I('s_mov_b32 s60, s61')
    A.I('s_cmp_lg_u32 s37, 0\ns_cbranch_scc1 p1_y7')
    prefetch(0,9); hpair(0,0,PB); prefetch(9,17); hpair(0,1,PB+4)
    A.I(f's_waitcnt vmcnt({36 if "epf" in EXP else 2})\nv_mov_b32 v{YT}, {CTRL}\nv_mov_b32 v{YT+1}, 1\nds_write_b32 v{YT}, v{YT+1} offset:80')
    A.I('s_branch p1_end')
    A.L('p1_y7')
    hpair(0,0,PB); hpair(0,1,PB+4)
    A.I(f's_waitcnt vmcnt(2)\nv_mov_b32 v{YT}, {CTRL}')
    lds_wait(A,YT,YT+4,80,1,4)
    A.I(f's_add_u32 s61, s34, {C_Y}'); arrive(A,61,YT+2)
    A.I('s_branch p1_end')
    A.L('p1_noy')
    k=0; cuts=[0,6,12,17,17]
    for q in (0,2):
        A.I(f's_add_u32 s60, s61, {q*32768}')
        for st in range(2):
            hpair(q,st,PB+4*(q+st))
            prefetch(cuts[k],cuts[k+1]); k+=1
            if k==2:
                A.I('s_cmp_eq_u32 s37, 0\ns_cbranch_scc1 p1_wf')
                A.I(f's_waitcnt vmcnt(2)\ns_lshl_b32 s39, s36, 2\nv_mov_b32 v{YT}, {CTRL}\nv_add_u32 v{YT}, s39, v{YT}\nv_mov_b32 v{YT+1}, 1\nds_write_b32 v{YT}, v{YT+1} offset:84')
                A.L('p1_wf')
    A.L('p1_end')
    ST.mark(A)

def s2_phase(A):
    L,l,g,vY,vW,fl,fg4=1,2,3,4,5,6,7
    T=184
    Ya=16; Wv=24; C32R=32; C32I=48; C64R=64; C64I=80; T1c=96; T1s=104; T2c=112; T2s=120
    DR=128; DI=136; F=144; E=152
    vC=203
    A.I(f'''
    s_sub_u32 s12, s32, 4
    v_and_b32 v{L}, 63, v0
    v_and_b32 v{l}, 15, v0
    v_bfe_u32 v{g}, v0, 4, 2
    v_mov_b32 v{vC}, {CTRL}
    s_lshl_b32 s33, s34, 4
    s_add_u32 s33, s33, s35          ; column k
    s_mov_b32 s47, 0
    ''')
    srd(A,8,4,OFF_YQ,256*8192)
    srd(A,16,4,OFF_WT,257*8192)
    srd(A,20,4,OFF_ZQ,514*4096)
    A.I(f'''
    s_lshl_b32 s13, s12, 11
    v_lshlrev_b32 v{vY}, 7, v{l}
    v_lshl_add_u32 v{vY}, v{g}, 4, v{vY}
    v_add_u32 v{vY}, s13, v{vY}
    v_lshlrev_b32 v{vW}, 4, v{l}
    v_lshl_add_u32 v{vW}, v{g}, 8, v{vW}
    v_add_u32 v{vW}, s13, v{vW}
    v_cvt_f32_u32 v{fl}, v{l}
    v_lshlrev_b32 v{T}, 2, v{g}
    v_cvt_f32_u32 v{fg4}, v{T}
    s_lshl_b32 s13, s12, 4
    v_cvt_f32_u32 v{T+1}, s13
    ''')
    f16w=T+1
    sc=1.0/(2048*512)
    A.I(f'''
    v_mul_f32 v{T+2}, {f2u(1/32)}, v{fl}
    v_add_f32 v{T+3}, 0.5, v{T+2}
    v_add_f32 v{T+4}, v{f16w}, v{fl}
    v_mul_f32 v{T+7}, {f2u(1/2048)}, v{T+4}
    v_mul_f32 v{T+4}, {f2u(1/64)}, v{T+4}
    v_mul_f32 v{T+5}, {f2u(1/2048)}, v{fl}
    v_add_f32 v{T+6}, {f2u(16/2048)}, v{T+5}
    v_add_f32 v{T+8}, v{f16w}, v{fg4}
    s_mov_b32 s46, {f2u(2*sc)}
    s_cmp_eq_u32 s33, 0
    s_cselect_b32 s46, {f2u(sc)}, s46
    v_mov_b32 v{vC+2}, s46
    ''')
    a_,c_,s_=T+9,T+10,T+11
    def cs_pack(ang,R,I):
        A.I(f'''
        v_cos_f32 v{c_}, v{ang}
        v_sin_f32 v{s_}, v{ang}
        v_cvt_pk_bf16_f32 v{R}, v{c_}, v{s_}
        v_cvt_pk_bf16_f32 v{I}, -v{s_}, v{c_}
        ''')
    fa=T+12
    for t in range(2):
        for q in range(4):
            A.I(f'v_add_f32 v{fa}, {f2u(16*t+q)}, v{fg4}')
            for nt in range(2):
                A.I(f'v_mul_f32 v{a_}, v{fa}, v{T+2+nt}')
                cs_pack(a_, C32R+(t*2+nt)*4+q, C32I+(t*2+nt)*4+q)
    for r in range(4):
        A.I(f'v_add_f32 v{fa}, {f2u(r)}, v{T+8}')
        for nt in range(2):
            A.I(f'''v_mul_f32 v{a_}, v{fa}, v{T+5+nt}
            v_cos_f32 v{T1c+nt*4+r}, v{a_}
            v_sin_f32 v{T1s+nt*4+r}, v{a_}''')
    for tp in range(4):
        for q in range(4):
            A.I(f'v_add_f32 v{fa}, {f2u(16*tp+q)}, v{fg4}')
            A.I(f'v_mul_f32 v{a_}, v{fa}, v{T+4}')
            cs_pack(a_, C64R+tp*4+q, C64I+tp*4+q)
    for it in range(2):
        for r in range(4):
            A.I(f'''v_add_f32 v{fa}, {f2u(16*it+r)}, v{fg4}
            v_mul_f32 v{a_}, v{fa}, v{T+7}
            v_cos_f32 v{T2c+it*4+r}, v{a_}
            v_sin_f32 v{T2s+it*4+r}, v{a_}
            v_mul_f32 v{T2c+it*4+r}, v{T2c+it*4+r}, v{vC+2}
            v_mul_f32 v{T2s+it*4+r}, v{T2s+it*4+r}, v{vC+2}''')
    vLw,vLr=T+13,T+14
    A.I(f'''
    v_lshlrev_b32 v{vLr}, 4, v{L}
    v_add_u32 v{vLr}, {EX}, v{vLr}
    s_lshl_b32 s13, s12, 11
    v_add_u32 v{vLw}, s13, v{vLr}
    s_lshl_b32 s13, s12, 2
    v_add_u32 v{vC+1}, s13, v{vC}
    s_mov_b32 s26, 0x80000000
    s_mov_b32 s27, 0x8000
    ''')
    ST.mark(A)
    A.I('s_waitcnt vmcnt(0)\ns_barrier')
    if 'noprio' not in EXP: A.I('s_setprio 3')
    ST.mark(A)
    A.I('s_cmp_lg_u32 s32, 4\ns_cbranch_scc1 s2_w1')
    A.skip_begin()
    A.I(f's_add_u32 s59, s34, {C_Y}\ns_lshl_b32 s59, s59, 7\nv_mov_b32 v{E}, s59\nv_mov_b32 v{E+1}, 16')
    poll_cnt(A,E,E+1,E+2,1)
    if 'dbg' in EXP:
        A.I(f's_cmp_lg_u32 s2, 9\ns_cbranch_scc1 dbg1')
        A.I(f'v_mov_b32 v{E+4}, v{E}\nv_mov_b32 v{E+5}, v{E+1}\nv_mov_b32 v{E+6}, v{E+2}\nv_mov_b32 v{E+7}, s58\nv_mov_b32 v{E+8}, 32\ns_mov_b64 exec, 1\nglobal_store_dwordx4 v{E+8}, {v(E+4,4)}, s[54:55]\ns_mov_b64 exec, -1')
        A.L('dbg1')
    A.I(f'v_mov_b32 v{E}, 1\nds_write_b32 v{vC}, v{E} offset:8')
    A.skip_end(); A.L('s2_w1')
    lds_wait(A,vC,E,8,1)
    ST.mark(A)
    A.L('s2_col')
    if 'nos2' in EXP: A.I('s_branch s2_skip')
    A.I(f'''
    s_and_b32 s14, s33, 255
    s_lshl_b32 s14, s14, 13
    s_lshl_b32 s15, s33, 13
    s_add_u32 s29, s15, 4096
    buffer_load_dwordx4 {v(Ya,4)}, v{vY}, s[8:11], s14 offen{SC}
    buffer_load_dwordx4 {v(Ya+4,4)}, v{vY}, s[8:11], s14 offen offset:64{SC}
    buffer_load_dwordx4 {v(Wv,4)}, v{vW}, s[16:19], s15 offen{SC}
    buffer_load_dwordx4 {v(Wv+4,4)}, v{vW}, s[16:19], s15 offen offset:1024{SC}
    s_cmp_eq_u32 s33, 256
    s_cselect_b32 s24, 16, 0
    s_and_b32 s25, s33, 255
    s_cmp_eq_u32 s25, 0
    s_cselect_b32 s25, 0xffff, -1
    s_cmp_lg_u32 s33, 0
    s_cbranch_scc1 s2_nx
    s_mov_b32 s60, 0x200000
    buffer_load_dwordx4 {v(208,4)}, v{vW}, s[16:19], s60 offen{SC}
    buffer_load_dwordx4 {v(212,4)}, v{vW}, s[16:19], s60 offen offset:1024{SC}
    s_waitcnt vmcnt(4)
    s_branch s2_ld
    s2_nx:
    s_waitcnt vmcnt(2)
    s2_ld:
    ''')
    for i in range(8): A.I(f'v_mov_b32 v{216+i}, v{Ya+i}')
    A.L('s2_cmp')
    if 's2fine' in EXP: ST.mark(A)
    for i in range(8): A.I(f'v_lshrrev_b32 v{Ya+i}, s24, v{Ya+i}')
    for i in range(8): A.I(f'v_and_b32 v{Ya+i}, s25, v{Ya+i}')
    for nt in range(2):
        for t in range(2): mf16(A,DR+nt*4,Ya+t*4,C32R+(t*2+nt)*4,t==0)
        for t in range(2): mf16(A,DI+nt*4,Ya+t*4,C32I+(t*2+nt)*4,t==0)
    t0,t1=T+15,T+16
    def cmul_pack(dst,xr,xi,c,s,sign):
        A.I(f'v_mul_f32 v{t0}, v{xr}, v{c}')
        A.I(f'v_mul_f32 v{t1}, v{xi}, v{c}')
        if sign<0:
            A.I(f'v_fma_f32 v{t0}, v{xi}, v{s}, v{t0}'); A.I(f'v_fma_f32 v{t1}, -v{xr}, v{s}, v{t1}')
        else:
            A.I(f'v_fma_f32 v{t0}, -v{xi}, v{s}, v{t0}'); A.I(f'v_fma_f32 v{t1}, v{xr}, v{s}, v{t1}')
        A.I(f'v_cvt_pk_bf16_f32 v{dst}, v{t0}, v{t1}')
    def exchange(base,ph):
        for nt in range(2): A.I(f'ds_write_b128 v{vLw}, {v(F+nt*4,4)} offset:{base+nt*1024}')
        A.I(f's_add_u32 s46, s47, {ph}\nv_mov_b32 v{t0}, s46\nds_write_b32 v{vC+1}, v{t0} offset:16')
        lds_wait(A,vC,E,16,'s46',4)
        for tp in range(4):
            for nt in range(2): A.I(f'ds_read_b128 {v(E+(tp*2+nt)*4,4)}, v{vLr} offset:{base+(tp*2+nt)*1024}')
    for nt in range(2):
        for r in range(4): cmul_pack(F+nt*4+r,DR+nt*4+r,DI+nt*4+r,T1c+nt*4+r,T1s+nt*4+r,-1)
    if 's2fine' in EXP: ST.mark(A)
    exchange(0,1)
    if 's2fine' in EXP: ST.mark(A)
    for tp in range(4):
        A.I(f's_waitcnt lgkmcnt({6-2*tp})')
        for nt in range(2):
            mf16(A,DR+nt*4,C64R+tp*4,E+(tp*2+nt)*4,tp==0)
            mf16(A,DI+nt*4,C64I+tp*4,E+(tp*2+nt)*4,tp==0)
    if 's2fine' in EXP: ST.mark(A)
    A.I('s_cmp_eq_u32 s33, 256\ns_cbranch_scc1 s2_nw\ns_waitcnt vmcnt(0)')
    A.L('s2_nw')
    wr,wi=T+17,T+18
    def conj(R,I):
        for i in range(16):
            A.I(f'v_xor_b32 v{R+i}, s26, v{R+i}'); A.I(f'v_xor_b32 v{I+i}, s27, v{I+i}')
    conj(C32R,C32I)
    for nt in range(2):
        for r in range(4):
            A.I(f'v_lshlrev_b32 v{wr}, 16, v{Wv+nt*4+r}')
            A.I(f'v_and_b32 v{wi}, 0xffff0000, v{Wv+nt*4+r}')
            cmul_pack(F+nt*4+r,DR+nt*4+r,DI+nt*4+r,wr,wi,+1)
    conj(C64R,C64I)
    if 's2fine' in EXP: ST.mark(A)
    def publish(kreg_is_256,suf,xd):
        A.I('s_waitcnt vmcnt(0)')
        A.I(f'v_mov_b32 v{t1}, {xd}\nds_write_b32 v{vC+1}, v{t1} offset:32')
        A.I(f's_cmp_lg_u32 s32, 4\ns_cbranch_scc1 s2_w2{suf}')
        A.skip_begin()
        lds_wait(A,vC,224,32,xd,4)
        cnt_base(A)
        if kreg_is_256=='n': A.I(f'v_add_u32 v228, {C_N}, v{L}')
        elif kreg_is_256=='0': A.I(f'v_lshlrev_b32 v228, 3, v{L}\nv_add_u32 v228, {C_Z}, v228')
        else: A.I(f's_and_b32 s46, s33, 7\ns_add_u32 s46, s46, {C_Z}\nv_lshlrev_b32 v228, 3, v{L}\nv_add_u32 v228, s46, v228')
        A.I(f'v_lshlrev_b32 v228, 7, v228\nv_mov_b32 v229, 1')
        A.I(f's_mov_b64 exec, {(1<<ZREP)-1}\nglobal_atomic_add v228, v229, s[62:63]{SC}\ns_mov_b64 exec, -1')
        A.skip_end(); A.L(f's2_w2{suf}')
    exchange(8192,2)
    A.I('s_cmp_lg_u32 s33, 256\ns_cbranch_scc1 s2_np')
    publish('0','c',1)
    A.L('s2_np')
    if 's2fine' in EXP: ST.mark(A)
    for tp in range(4):
        A.I(f's_waitcnt lgkmcnt({6-2*tp})')
        for it in range(2):
            mf16(A,DR+it*4,E+(tp*2+it)*4,C64R+tp*4,tp==0)
            mf16(A,DI+it*4,E+(tp*2+it)*4,C64I+tp*4,tp==0)
    for it in range(2):
        for r in range(4): cmul_pack(F+it*4+r,DR+it*4+r,DI+it*4+r,T2c+it*4+r,T2s+it*4+r,+1)
    for nt in range(2):
        for t in range(2): mf16(A,DR+nt*4,C32R+(t*2+nt)*4,F+t*4,t==0)
        for t in range(2): mf16(A,DI+nt*4,C32I+(t*2+nt)*4,F+t*4,t==0)
    if 's2fine' in EXP: ST.mark(A)
    A.I(f'v_lshrrev_b32 v{t0}, 1, v{vY}')
    for nt in range(2):
        for part,D in ((0,DR),(1,DI)):
            e=E+nt*4+part*2
            A.I(f'v_cvt_pk_bf16_f32 v{e}, v{D+nt*4}, v{D+nt*4+1}\nv_cvt_pk_bf16_f32 v{e+1}, v{D+nt*4+2}, v{D+nt*4+3}')
            A.I(f'buffer_store_dwordx2 {v(e,2)}, v{t0}, s[20:23], s15 offen offset:{32*nt}{SC}' if part==0 else f'buffer_store_dwordx2 {v(e,2)}, v{t0}, s[20:23], s29 offen offset:{32*nt}{SC}')
    A.I('s_cmp_eq_u32 s33, 0\ns_cbranch_scc1 s2_second')
    A.I('s_cmp_eq_u32 s33, 256\ns_cbranch_scc1 s2_pubn')
    publish('k','a',1)
    A.I('s_branch s2_fin')
    A.L('s2_pubn')
    publish('n','b',2)
    A.I('s_branch s2_fin')
    A.L('s2_second')
    conj(C32R,C32I); conj(C64R,C64I)
    for i in range(8): A.I(f'v_mov_b32 v{Ya+i}, v{216+i}')
    for i in range(8): A.I(f'v_mov_b32 v{Wv+i}, v{208+i}')
    A.I('s_movk_i32 s33, 256\ns_mov_b32 s15, 0x200000\ns_add_u32 s29, s15, 4096\ns_mov_b32 s24, 16\ns_mov_b32 s25, 0xffff\ns_add_u32 s47, s47, 2\ns_branch s2_cmp')
    A.L('s2_fin')
    A.I('s_setprio 0')
    ST.mark(A)
    A.I('s_cmp_lg_u32 s32, 4\ns_cbranch_scc1 s2_w3')
    A.skip_begin()
    lds_wait(A,vC,E,12,1)
    A.I(f's_and_b32 s46, s2, {ZREP-1}\ns_lshl_b32 s46, s46, 3\ns_add_u32 s46, s46, {C_Z}\nv_add_u32 v{E}, s46, v{L}\nv_lshlrev_b32 v{E}, 7, v{E}\nv_mov_b32 v{E+1}, 32')
    poll_cnt(A,E,E+1,E+2,8)
    A.I(f'v_mov_b32 v{E}, 1\nds_write_b32 v{vC}, v{E} offset:4')
    A.I(f's_and_b32 s46, s2, {ZREP-1}\ns_add_u32 s46, s46, {C_N}\ns_lshl_b32 s46, s46, 7\nv_mov_b32 v{E}, s46\nv_mov_b32 v{E+1}, 1')
    poll_cnt(A,E,E+1,E+2,1)
    A.I(f'v_mov_b32 v{E}, 1\nds_write_b32 v{vC}, v{E} offset:48')
    A.skip_end(); A.L('s2_w3')
    ST.mark(A)
    A.I('s_waitcnt lgkmcnt(0)\ns_barrier')

def p3_phase(A, nh=28, nz=8, NB=8):
    L,half,l32=1,2,3
    vB=4; vZd=5; vZr=6; vX=9; vC=10; vAd=11; vAr=12; vLw=14; vLr=15
    XR=16; T=24; ACC=32; AF=96; BR=112; ZA=176
    A.I(f"""
    s_load_dwordx2 s[28:29], s[0:1], 56
    s_load_dwordx2 s[30:31], s[0:1], 48
    v_and_b32 v{L}, 63, v0
    v_and_b32 v{l32}, 31, v0
    v_bfe_u32 v{half}, v0, 5, 1
    v_mov_b32 v{vC}, {CTRL}
    s_mov_b32 s12, s32
    s_and_b32 s13, s2, 7
    s_lshr_b32 s14, s2, 3
    s_and_b32 s15, s13, 3
    s_lshl_b32 s15, s15, 3
    s_and_b32 s39, s14, 7
    s_add_u32 s15, s15, s39          ; sb
    s_lshr_b32 s13, s13, 2
    s_lshl_b32 s13, s13, 2
    s_lshr_b32 s14, s14, 3
    s_add_u32 s13, s13, s14          ; db
    s_and_b32 s36, s12, 1
    s_lshr_b32 s37, s12, 1
    v_lshrrev_b32 v{T}, 3, v{L}
    v_bfe_u32 v{T+1}, v{L}, 4, 1
    v_lshlrev_b32 v{T+1}, 2, v{T+1}
    v_and_b32 v{T+2}, 7, v{L}
    v_xor_b32 v{T+2}, v{T+2}, v{T+1}
    v_lshlrev_b32 v{T+2}, 4, v{T+2}           ; c*16
    v_lshl_add_u32 v{vAd}, v{T}, 10, v{T+2}
    s_lshl_b32 s39, s13, 7
    v_add_u32 v{vAd}, s39, v{vAd}
    v_lshl_add_u32 v{vZd}, v{T}, 12, v{T+2}
    s_lshl_b32 s39, s15, 7
    v_add_u32 v{vZd}, s39, v{vZd}
    s_mul_i32 s44, s12, {nh*16*1024}
    s_mul_i32 s45, s12, {AREG}
    s_mul_i32 s52, s12, {nz*16*4096}
    s_waitcnt lgkmcnt(0)
    """)
    srd(A,8,30,0,1792*512*2)
    q=[]
    def dmaA(t):
        for j in range(2):
            A.I(f's_add_u32 m0, s45, {(t%NSL)*2048+j*1024}')
            A.I(f's_add_u32 s60, s44, {(t*16+j*8)*1024}')
            A.I(f'buffer_load_dwordx4 v{vAd}, s[8:11], s60 offen lds'); q.append(('A',t))
    def dmaZ(i):
        t=nh+i
        for j in range(2):
            A.I(f's_add_u32 m0, s45, {(t%NSL)*2048+j*1024}')
            A.I(f's_add_u32 s60, s52, {(i*16+j*8)*4096}')
            A.I(f'buffer_load_dwordx4 v{vZd}, s[20:23], s60 offen{SC} lds'); q.append(('A',t))
    srd(A,24,6,0,2048*512*2)
    srd(A,16,4,OFF_HP,224*32768)
    srd(A,20,4,OFF_ZQ,514*4096)
    srd(A,40,28,0,2048*512*2)
    A.I(f"""
    s_lshl_b32 s39, s15, 1
    s_add_u32 s39, s39, s37
    s_lshl_b32 s39, s39, 10
    s_lshl_b32 s31, s13, 7
    s_add_u32 s39, s39, s31
    s_lshl_b32 s31, s36, 6
    s_add_u32 s39, s39, s31
    v_lshlrev_b32 v{vX}, 16, v{l32}
    v_lshl_add_u32 v{vX}, v{half}, 3, v{vX}
    v_add_u32 v{vX}, s39, v{vX}
    """)
    for i in range(4):
        A.I(f'buffer_load_dwordx2 {v(XR+2*i,2)}, v{vX}, s[24:27], 0 offen offset:{16*i}'); q.append('x')
    ZT=248
    A.I(f"""
    s_lshl_b32 s39, s15, 10
    v_lshlrev_b32 v{vB}, 15, v{half}
    v_lshl_add_u32 v{vB}, v{l32}, 4, v{vB}
    v_add_u32 v{vB}, s39, v{vB}
    s_mul_i32 s46, s12, {nh*65536}
    s_lshl_b32 s39, s37, 9
    s_add_u32 s47, s46, 512
    s_sub_u32 s47, s47, s39
    s_add_u32 s46, s46, s39
    v_lshrrev_b32 v{T}, 5, v{L}
    v_lshlrev_b32 v{T}, 3, v{T}
    v_bfe_u32 v{T+1}, v{L}, 2, 2
    v_add_u32 v{T}, v{T}, v{T+1}
    v_lshlrev_b32 v{T}, 7, v{T}              ; row*128
    v_bfe_u32 v{T+2}, v{L}, 4, 1
    v_lshlrev_b32 v{T+2}, 1, v{T+2}
    v_bfe_u32 v{T+3}, v{L}, 1, 1
    v_add_u32 v{T+2}, v{T+2}, v{T+3}
    v_bfe_u32 v{T+3}, v{L}, 3, 1
    v_lshlrev_b32 v{T+3}, 2, v{T+3}
    v_xor_b32 v{T+2}, v{T+2}, v{T+3}
    v_lshl_add_u32 v{T}, v{T+2}, 4, v{T}
    v_and_b32 v{T+3}, 1, v{L}
    v_lshl_add_u32 v{T}, v{T+3}, 3, v{T}
    v_add_u32 v{T}, s45, v{T}
    s_lshl_b32 s39, s36, 6
    v_xor_b32 v{vAr}, s39, v{T}
    v_xor_b32 v{vAr+1}, 64, v{vAr}
    s_lshl_b32 s39, s37, 6
    v_xor_b32 v{vZr}, s39, v{T}
    v_xor_b32 v{vZr+1}, 64, v{vZr}
    s_lshl_b32 s39, s13, 6
    s_lshl_b32 s31, s36, 5
    s_add_u32 s39, s39, s31
    v_add_u32 v{T}, s39, v{l32}
    v_cvt_f32_u32 v{T}, v{T}
    v_mul_f32 v{ZT}, {f2u(1/512)}, v{T}
    s_lshl_b32 s39, s13, 6
    s_xor_b32 s31, s31, 32
    s_add_u32 s39, s39, s31
    v_add_u32 v{T+1}, s39, v{l32}
    v_cvt_f32_u32 v{T+1}, v{T+1}
    v_mul_f32 v{ZT+1}, {f2u(1/512)}, v{T+1}
    s_mul_i32 s39, s12, {nz*8}
    v_lshlrev_b32 v{T+2}, 2, v{half}
    v_add_u32 v{T+2}, s39, v{T+2}
    v_cvt_f32_u32 v{ZT+2}, v{T+2}
    """)
    zitems=[]
    for i in range(nz):
        for qq in range(4):
            def zf(i=i,qq=qq):
                A.I(f'v_add_f32 v{ZT+3}, {f2u(8*i+qq)}, v{ZT+2}')
                for ar in range(2):
                    A.I(f'v_mul_f32 v{ZT+4+ar}, v{ZT+3}, v{ZT+ar}\nv_fract_f32 v{ZT+4+ar}, v{ZT+4+ar}')
                for ar in range(2):
                    A.I(f'v_cos_f32 v{ZT+6}, v{ZT+4+ar}\nv_sin_f32 v{ZT+7}, v{ZT+4+ar}\nv_cvt_pk_bf16_f32 v{ZA+i*8+ar*4+qq}, v{ZT+6}, -v{ZT+7}')
            zitems.append(zf)
    NZ0=10 if 'z0' not in EXP else 0
    for zf in zitems[:NZ0]: zf()
    A.I(f's_waitcnt vmcnt({len(q)})\ns_barrier')
    ST.mark(A)
    A.I('s_cmp_lg_u32 s32, 0\ns_cbranch_scc1 p3_a1')
    A.skip_begin()
    A.I(f's_add_u32 s59, s35, {C_H}'); A.I('s_mov_b32 s61, s59'); arrive(A,61,T)
    A.skip_end(); A.L('p3_a1')
    rest=zitems[NZ0:]
    if 'epf' in EXP:
        for zf in rest: zf()
    else:
        for t in range(NSL):
            dmaA(t)
            for zf in rest[(t*len(rest))//NSL:((t+1)*len(rest))//NSL]: zf()
    ST.mark(A)
    A.I('s_cmp_lg_u32 s32, 0\ns_cbranch_scc1 p3_w1')
    A.skip_begin()
    A.I(f's_lshr_b32 s59, s15, 1\ns_add_u32 s59, s59, {C_H}\ns_lshl_b32 s59, s59, 7\nv_mov_b32 v{T}, s59\nv_mov_b32 v{T+1}, 16')
    poll_cnt(A,T,T+1,T+2,1)
    A.I(f'v_mov_b32 v{T}, 1\nds_write_b32 v{vC}, v{T}')
    A.skip_end(); A.L('p3_w1')
    lds_wait(A,vC,T,0,1)
    ST.mark(A)
    n=nh+nz
    def issueB(i):
        sl=BR+(i%NB)*8
        A.I(f'buffer_load_dwordx4 {v(sl,4)}, v{vB}, s[16:19], s46 offen{SCB}')
        A.I(f'buffer_load_dwordx4 {v(sl+4,4)}, v{vB}, s[16:19], s47 offen{SCB}')
        q.extend([('B',i)]*2)
        A.I('s_add_u32 s46, s46, 65536\ns_add_u32 s47, s47, 65536')
    def vwait(*tags):
        idx=[k for k,x in enumerate(q) if x in tags]
        if not idx: return
        N=len(q)-1-max(idx); del q[:max(idx)+1]
        A.I(f's_waitcnt vmcnt({min(N,63)})')
    def reads(t):
        f=AF+(t%2)*8
        if t<nh:
            for ar in range(2):
                for rd in range(2):
                    A.I(f'ds_read_b64_tr_b16 {v(f+ar*4+rd*2,2)}, v{vAr+ar} offset:{(t%NSL)*2048+rd*512}')
        else:
            for b_ in range(2):
                for rd in range(2):
                    A.I(f'ds_read_b64_tr_b16 {v(f+b_*4+rd*2,2)}, v{vZr+b_} offset:{(t%NSL)*2048+rd*512}')
    nxt=0
    ZAT=nh-4; ZP=nh-10
    for k in range(NB):
        issueB(nxt); nxt+=1
    vwait(('A',0)); reads(0)
    for i in range(n):
        if i<nh: vwait(('B',i),('A',i+1))
        else: vwait(('A',i+1))
        if 'p3steps' in EXP and i in (0,4,10,17,24): ST.mark(A)
        A.I('s_waitcnt lgkmcnt(0)')
        if i==ZAT:
            ST.mark(A); lds_wait(A,vC,T,4,1); ST.mark(A)
            for z in range(nz): dmaZ(z)
        if i+1<n and not (i+1==nh): reads(i+1)
        if i+1==nh:
            vwait(('A',nh)); reads(nh)
        for brr in range(2):
            for ar in range(2):
                if i<nh: a=AF+(i%2)*8+ar*4; b_=BR+(i%NB)*8+brr*4
                else: a=ZA+(i-nh)*8+ar*4; b_=AF+(i%2)*8+brr*4
                mf32(A,ACC+(ar+2*brr)*16,a,b_,i==0)
        if i==ZP:
            A.I(f'v_mov_b32 v{T}, 1\nds_write_b32 v{vC}, v{T} offset:12')
        if i+NSL<nh: dmaA(i+NSL)
        while nxt<nh and nxt<=i+NB:
            issueB(nxt); nxt+=1
    ST.mark(A)
    lds_wait(A,vC,T,48,1)
    A.I(f's_lshl_b32 s39, s15, 6\ns_lshl_b32 s31, s37, 5\ns_add_u32 s39, s39, s31\nv_add_u32 v{T+6}, s39, v{l32}\nv_lshlrev_b32 v{T+6}, 1, v{T+6}\ns_mov_b32 s39, {512*4096}')
    A.I(f'buffer_load_ushort v{T+7}, v{T+6}, s[20:23], s39 offen{SC}')
    A.I(f'v_lshlrev_b32 v{vLw}, 4, v{L}\nv_add_u32 v{vLw}, s45, v{vLw}')
    for j in range(1,4):
        for c in range(4): A.I(f'ds_write_b128 v{vLw}, {v(ACC+j*16+c*4,4)} offset:{(j-1)*4096+c*1024}')
    A.I('s_waitcnt lgkmcnt(0)\ns_barrier')
    for j in range(1,4):
        A.I(f's_xor_b32 s39, s12, {j}\ns_mul_i32 s39, s39, {AREG}\nv_lshlrev_b32 v{vLr}, 4, v{L}\nv_add_u32 v{vLr}, s39, v{vLr}')
        for c in range(4): A.I(f'ds_read_b128 {v(BR+(j-1)*16+c*4,4)}, v{vLr} offset:{(j-1)*4096+c*1024}')
    for j in range(3):
        A.I(f's_waitcnt lgkmcnt({8-4*j})')
        for i in range(16): A.I(f'v_add_f32 v{ACC+i}, v{ACC+i}, v{BR+j*16+i}')
    A.I(f's_waitcnt vmcnt(0)\nv_lshlrev_b32 v{T+7}, 16, v{T+7}')
    for i in range(16): A.I(f'v_{"add" if i%2==0 else "sub"}_f32 v{ACC+i}, v{ACC+i}, v{T+7}')
    for qq in range(4):
        x0,x1=XR+2*qq,XR+2*qq+1
        A.I(f"""v_lshlrev_b32 v{T}, 16, v{x0}
        v_and_b32 v{T+1}, 0xffff0000, v{x0}
        v_lshlrev_b32 v{T+2}, 16, v{x1}
        v_and_b32 v{T+3}, 0xffff0000, v{x1}""")
        for r in range(4): A.I(f'v_add_f32 v{ACC+4*qq+r}, v{ACC+4*qq+r}, v{T+r}')
        A.I(f'v_cvt_pk_bf16_f32 v{x0}, v{ACC+4*qq}, v{ACC+4*qq+1}')
        A.I(f'v_cvt_pk_bf16_f32 v{x1}, v{ACC+4*qq+2}, v{ACC+4*qq+3}')
        A.I(f'buffer_store_dwordx2 {v(x0,2)}, v{vX}, s[40:43], 0 offen offset:{16*qq}'+(' sc1' if 'outsc1' in EXP else (' nt' if 'outnt' in EXP else '')))

NAME='parallel_sum__spectral_gfnet__glu_gated_geglu__prompt'
HDR=open('cdna_kernels/'+NAME+'.s.ref').read().split('; Override')[0]
def full():
    A=Asm(); K=NAME+'_kernel'
    A.raw(HDR.rstrip())
    A.raw(f'; @launch grid=(256,1,1) block=(512,1,1) lds={LDS_TOTAL}')
    A.raw('.amdgcn_target "amdgcn-amd-amdhsa--gfx950"\n.text')
    A.raw(f'.globl {K}\n.p2align 8\n.type {K},@function'); A.L(K)
    A.I('s_cmp_ge_u32 s2, 256\ns_cbranch_scc1 k_done')
    if 'scram' in EXP: A.I('s_and_b32 s3, s2, 7\ns_lshl_b32 s3, s3, 5\ns_lshr_b32 s2, s2, 3\ns_or_b32 s2, s2, s3')
    A.I('''s_load_dwordx2 s[4:5], s[0:1], 72
    s_load_dwordx2 s[6:7], s[0:1], 0
    s_load_dwordx2 s[28:29], s[0:1], 32
    s_load_dwordx2 s[30:31], s[0:1], 40
    s_load_dwordx2 s[54:55], s[0:1], 64
    s_load_dwordx2 s[40:41], s[0:1], 8
    s_load_dwordx2 s[44:45], s[0:1], 16
    s_load_dwordx2 s[56:57], s[0:1], 48
    v_lshrrev_b32 v1, 6, v0
    s_nop 0
    v_readfirstlane_b32 s32, v1
    s_waitcnt lgkmcnt(0)''')
    ST.mark(A)
    p1_body(A)
    if 'p1only' in EXP:
        A.I('s_waitcnt vmcnt(0)'); ST.mark(A); ST.dump(A); A.I('s_endpgm')
    n0=ST.n
    A.I('s_cmp_ge_u32 s32, 4\ns_cbranch_scc1 k_s2')
    A.fence()
    p3_phase(A)
    if STAMP: A.I('s_waitcnt vmcnt(0)')
    ST.mark(A)
    ST.dump(A)
    A.I('s_endpgm')
    A.L('k_s2'); A.fence()
    ST.n=n0
    s2_phase(A)
    ST.mark(A)
    ST.dump(A)
    A.L('k_done'); A.I('s_endpgm')
    txt=A.finalize()
    txt+=f'''.section .rodata,"a"
.p2align 6
.amdhsa_kernel {K}
  .amdhsa_next_free_vgpr 256
  .amdhsa_next_free_sgpr 100
  .amdhsa_accum_offset 256
  .amdhsa_group_segment_fixed_size 0
  .amdhsa_kernarg_size 80
  .amdhsa_user_sgpr_count 2
  .amdhsa_user_sgpr_kernarg_segment_ptr 1
  .amdhsa_system_sgpr_workgroup_id_x 1
  .amdhsa_float_denorm_mode_32 3
.end_amdhsa_kernel
'''
    return txt
if __name__=='__main__':
    if len(sys.argv)>2 and sys.argv[2]=='stamp': STAMP=True
    if len(sys.argv)>3: EXP=set(sys.argv[3].split(','))
    if 'pace1' in EXP: PACE=1
    if 'pace2' in EXP: PACE=2
    if 'perm' in EXP: SB[1],SB[2]=SB[2],SB[1]
    if 'sb16' in EXP: SB[1]=49152+4096; SB[2]=98304+8192
    if 'plainB' in EXP: SCB=''
    if 'pollsc1' in EXP: SCP=' sc1'
    if 'nos2' in EXP: pass
    open(sys.argv[1],'w').write(full())
```

```python
import sys, struct, math
from asmlib import *
OFF_HP=0; OFF_ZQ=0x700000; OFF_YQ=0x940000; OFF_WT=0xB40000
OFF_CNT=0x1000000; OFF_RS=0x1018000; OFF_CSP=0x1040000; OFF_TS=0x2000000
C_RS=0; C_CS=16; C_H=32; C_Y=48; C_Z=64; ZREP=16; C_N=64+ZREP*8; NCNT=256
SLOT=49152; XS=0; GS=16384; US=32768
SB=[0,49152,98304]
YSCR=3*SLOT
LDS_TOTAL=163840; CTRL=LDS_TOTAL-256; STAT=CTRL-1024
NSL=17; AREG=NSL*2048
EX=4*AREG
STAMP=False; EXP=set(); PACE=0; NA_=17; ZP_=18; NB_=8
SC=' sc1'
SCB=' sc1'
SCP=' sc1'
def f2u(x): return '0x%08x'%struct.unpack('<I',struct.pack('<f',x))[0]
class Stamps:
    def __init__(s): s.n=0
    def mark(s,A):
        if not STAMP or s.n>=15: return
        A.I(f's_{"memtime" if "clk" in EXP else "memrealtime"} s[{66+2*s.n}:{67+2*s.n}]'); s.n+=1
    def dump(s,A,n=None):
        if not STAMP: return
        n=s.n if n is None else n
        if 'diag' in EXP:
            A.I('s_waitcnt lgkmcnt(0) vmcnt(0)')
            l=newlab('dg')
            A.I(f's_cmp_lg_u32 s32, 0\ns_cbranch_scc1 {l}')
            A.I('s_load_dwordx2 s[96:97], s[0:1], 64\ns_waitcnt lgkmcnt(0)\ns_mov_b64 exec, 1')
            A.I('s_not_b32 s60, s66\nv_mov_b32 v244, 4\nv_mov_b32 v245, s60\nglobal_atomic_umax v244, v245, s[96:97]')
            for i in range(1,min(n,13)):
                A.I(f'v_mov_b32 v244, {4+4*i}\nv_mov_b32 v245, s{66+2*i}\nglobal_atomic_umax v244, v245, s[96:97]')
            A.I('s_mov_b64 exec, -1')
            A.L(l)
            return
        A.I('s_waitcnt lgkmcnt(0) vmcnt(0)')
        A.I(f's_lshl_b32 s60, s2, 3\ns_add_u32 s60, s60, s32\ns_lshl_b32 s60, s60, 7\ns_add_u32 s60, s60, {hex(OFF_TS)}')
        A.I(f's_add_u32 s96, s4, s60\ns_addc_u32 s97, s5, 0')
        A.I('v_mov_b32 v246, 0')
        for i in range(n):
            A.I(f'v_mov_b32 v244, s{66+2*i}\nv_mov_b32 v245, s{67+2*i}')
            A.I(f'global_store_dwordx2 v246, v[244:245], s[96:97] offset:{8*i}')
            A.I('s_nop 1')
ST=Stamps()
def srd(A,dst,base,off,size):
    if off:
        A.I(f's_add_u32 s{dst}, s{base}, {hex(off)}'); A.I(f's_addc_u32 s{dst+1}, s{base+1}, 0')
    else:
        A.I(f's_mov_b32 s{dst}, s{base}'); A.I(f's_mov_b32 s{dst+1}, s{base+1}')
    A.I(f's_mov_b32 s{dst+2}, {hex(size)}'); A.I(f's_mov_b32 s{dst+3}, 0x20000')
def mf16(A,D,a,b,first):
    A.I(f'v_mfma_f32_16x16x32_bf16 {v(D,4)}, {v(a,4)}, {v(b,4)}, {"0" if first else v(D,4)}')
def mf32(A,D,a,b,first=False):
    A.I(f'v_mfma_f32_32x32x16_bf16 {v(D,16)}, {v(a,4)}, {v(b,4)}, {"0" if first else v(D,16)}')
_lab=[0]
def newlab(p):
    _lab[0]+=1; return f'{p}_{_lab[0]}'
SPIN_MAX=0x20000
def lds_wait(A,vaddr,vtmp,off,val,n=1):
    l=newlab('lw'); d=newlab('ld')
    A.I('s_mov_b32 s58, 0'); A.L(l)
    if n==1:
        A.I(f'ds_read_b32 v{vtmp}, v{vaddr} offset:{off}\ns_waitcnt lgkmcnt(0)')
    else:
        A.I(f'ds_read_b128 {v(vtmp,4)}, v{vaddr} offset:{off}\ns_waitcnt lgkmcnt(0)')
        A.I(f'v_min_u32 v{vtmp}, v{vtmp}, v{vtmp+1}\nv_min_u32 v{vtmp+2}, v{vtmp+2}, v{vtmp+3}\nv_min_u32 v{vtmp}, v{vtmp}, v{vtmp+2}')
    A.I(f'v_readfirstlane_b32 s59, v{vtmp}')
    A.I(f's_cmp_ge_u32 s59, {val}\ns_cbranch_scc1 {d}')
    A.I(f's_add_u32 s58, s58, 1\ns_cmp_lt_u32 s58, {SPIN_MAX}\ns_cbranch_scc1 {l}')
    A.L(d)
def cnt_base(A):
    A.I(f's_add_u32 s62, s4, {hex(OFF_CNT)}\ns_addc_u32 s63, s5, 0')
def arrive(A,sidx,vt):
    cnt_base(A)
    A.I(f's_lshl_b32 s59, s{sidx}, 7\nv_mov_b32 v{vt}, s59\nv_mov_b32 v{vt+1}, 1\ns_mov_b64 exec, 1')
    A.I(f'global_atomic_add v{vt}, v{vt+1}, s[62:63]{SC}')
    A.I('s_mov_b64 exec, -1')
def poll_cnt(A,voff,vexp,vt,nl,first_loaded=False,sleep=0):
    l=newlab('pc'); d=newlab('pd'); c=newlab('pk')
    cnt_base(A)
    A.I(f's_mov_b32 s58, 0\ns_mov_b64 exec, {(1<<nl)-1}')
    if first_loaded: A.I(f's_branch {c}')
    A.L(l)
    A.I(f'global_load_dword v{vt}, v{voff}, s[62:63]{SCP}\ns_waitcnt vmcnt(0)')
    A.L(c)
    A.I(f'v_cmp_ne_u32 vcc, v{vt}, v{vexp}\ns_cbranch_vccz {d}')
    if sleep: A.I(f's_sleep {sleep}')
    A.I(f's_add_u32 s58, s58, 1\ns_cmp_lt_u32 s58, {SPIN_MAX>>4}\ns_cbranch_scc1 {l}')
    A.L(d)
    A.I('s_mov_b64 exec, -1')

def p1_body(A):
    L,half,l32=1,2,3
    vX0,vX1,vW=4,5,6
    vAr=8; vBr=12
    csr=24; ones=28
    AFR=32; BFR=48
    T=80
    RSL=104; RSV=108
    vHo=112
    ACC=128
    vFw=8; fu=12; kb=13; kmask=14; FB=32; FO=48; SV=128; ST2=56; WTr=60; vWTs=76; vWTd=77; CSL=160; RD=20; FP=22
    PB=192
    tile=lambda m,st: ACC+(st>>1)*64+(m*2+(st&1))*16
    A.I(f"""
    v_and_b32 v{L}, 63, v0
    v_and_b32 v{l32}, 31, v0
    v_bfe_u32 v{half}, v0, 5, 1
    s_and_b32 s33, s2, 7
    s_lshr_b32 s34, s2, 3
    s_and_b32 s35, s33, 1
    s_lshl_b32 s35, s35, 3
    s_and_b32 s36, s34, 7
    s_add_u32 s35, s35, s36              ; rb
    s_lshr_b32 s33, s33, 1
    s_lshl_b32 s33, s33, 2
    s_lshr_b32 s34, s34, 3
    s_add_u32 s34, s33, s34              ; cb
    s_and_b32 s36, s32, 3                ; fq (C) / h (H)
    s_lshr_b32 s37, s32, 2               ; sh
    s_lshr_b32 s49, s35, 1               ; s0 (K rotation)
    s_cmp_lt_u32 s32, 4
    s_cbranch_scc1 p1_roleC
    """)
    NST=8
    def spread_into(G,items,lo,hi):
        n=hi-lo
        for j,it in enumerate(items): G[lo+min(j*n//max(len(items),1),n-1)].append(it)
    want=lambda i: i in ((0,1,2,3,4,5,6,7) if 'allB' in EXP else (1,2,3,4,5) if 'bw' in EXP else (() if ('p3steps' in EXP or 's2fine' in EXP) else (0,4)))
    n_st=ST.n
    vq=[]
    srd(A,8,6,0,2048*512*2)
    srd(A,12,28,0,512*1792*2)
    srd(A,16,30,0,512*1792*2)
    mask=0
    for Ln in range(64):
        c=(Ln%16)^((Ln//16)<<2)
        if c<14: mask|=1<<Ln
    A.I(f"""
    s_mov_b32 s50, {hex(mask&0xffffffff)}
    s_mov_b32 s51, {hex(mask>>32)}
    s_lshl_b32 s38, s36, 12              ; h*4096
    v_lshrrev_b32 v{T}, 3, v{L}
    v_lshlrev_b32 v{T}, 16, v{T}
    s_lshl_b32 s60, s35, 2
    s_add_u32 s60, s60, s36
    s_lshl_b32 s60, s60, 10
    v_add_u32 v{T}, s60, v{T}
    v_and_b32 v{T+1}, 7, v{L}
    v_lshrrev_b32 v{T+2}, 4, v{L}
    v_xor_b32 v{T+1}, v{T+1}, v{T+2}
    v_lshl_add_u32 v{vX0}, v{T+1}, 4, v{T}
    v_xor_b32 v{vX1}, 64, v{vX0}
    s_lshl_b32 s60, s36, 4
    v_add_u32 v{T+1}, s60, v{T+2}
    s_movk_i32 s60, 3584
    v_mul_lo_u32 v{T+1}, v{T+1}, s60
    v_and_b32 v{T+3}, 15, v{L}
    v_lshlrev_b32 v{T+2}, 2, v{T+2}
    v_xor_b32 v{T+3}, v{T+3}, v{T+2}
    v_lshl_add_u32 v{vW}, v{T+3}, 4, v{T+1}
    s_mul_i32 s60, s34, 224
    v_add_u32 v{vW}, s60, v{vW}
    """)
    def dma(stage):
        slot=SB[stage%3]
        A.I(f's_add_u32 s52, s49, {stage}\ns_and_b32 s52, s52, 7\ns_mul_i32 s53, s52, {64*3584}\ns_lshl_b32 s52, s52, 7')
        for i in range(4):
            A.I(f's_add_u32 m0, s38, {slot+XS+i*1024}')
            A.I(f's_add_u32 s60, s52, {i*524288}')
            A.I(f'buffer_load_dwordx4 v{vX0+(i&1)}, s[8:11], s60 offen lds'); vq.append(stage)
            if PACE and stage>1: A.I(f's_sleep {PACE}')
            A.I(f's_add_u32 s60, s53, {i*14336}\ns_mov_b64 exec, s[50:51]')
            for m in range(2):
                A.I(f's_add_u32 m0, s38, {slot+(US if m else GS)+i*1024}\ns_nop 0')
                A.I(f'buffer_load_dwordx4 v{vW}, s[{12+4*m}:{15+4*m}], s60 offen lds'); vq.append(stage)
                if PACE and stage>1: A.I(f's_sleep {PACE}')
            A.I('s_mov_b64 exec, -1')
    VST='vst' in EXP
    RBUF=[112,160,208]; vLW=16
    def gload(stage):
        b=RBUF[stage%3]
        A.I(f's_add_u32 s52, s49, {stage}\ns_and_b32 s52, s52, 7\ns_mul_i32 s53, s52, {64*3584}\ns_lshl_b32 s52, s52, 7')
        for i in range(4):
            A.I(f's_add_u32 s60, s52, {i*524288}')
            A.I(f'buffer_load_dwordx4 {v(b+12*i,4)}, v{vX0+(i&1)}, s[8:11], s60 offen'); vq.append(('L',stage))
            A.I(f's_add_u32 s60, s53, {i*14336}\ns_mov_b64 exec, s[50:51]')
            for m in range(2):
                A.I(f'buffer_load_dwordx4 {v(b+12*i+4+4*m,4)}, v{vW}, s[{12+4*m}:{15+4*m}], s60 offen'); vq.append(('L',stage))
            A.I('s_mov_b64 exec, -1')
    def lwrite(stage):
        b=RBUF[stage%3]; sl=stage%3
        vwait(('L',stage))
        for i in range(4): A.I(f'ds_write_b128 v{vLW+sl}, {v(b+12*i,4)} offset:{XS+i*1024}')
        A.I('s_mov_b64 exec, s[50:51]')
        for i in range(4):
            for m in range(2): A.I(f'ds_write_b128 v{vLW+sl}, {v(b+12*i+4+4*m,4)} offset:{(US if m else GS)+i*1024}')
        A.I('s_mov_b64 exec, -1')
    def vwait(tag,lg=False):
        idx=[k for k,x in enumerate(vq) if x==tag]
        if not idx:
            if lg: A.I('s_waitcnt lgkmcnt(0)')
            return
        N=len(vq)-1-max(idx); del vq[:max(idx)+1]
        A.I(f's_waitcnt vmcnt({min(N,63)})'+(' lgkmcnt(0)' if lg else ''))
    if VST: SV=60
    (gload if VST else dma)(0)
    A.I(f"""
    s_lshl_b32 s33, s34, 3
    s_lshl_b32 s60, s36, 1
    s_add_u32 s33, s33, s60
    s_lshl_b32 s60, s35, 7
    s_add_u32 s64, s60, s33
    v_lshlrev_b32 v{T}, 4, v{L}
    """)
    for n in range(2):
        A.I(f"""s_add_u32 s60, s64, {n}
        s_and_b32 s61, s60, 31
        s_lshl_b32 s61, s61, 6
        s_lshr_b32 s60, s60, 5
        s_add_u32 s60, s60, s61
        s_lshl_b32 s60, s60, 10
        buffer_load_dwordx4 {v(SV+4*n,4)}, v{T}, s[8:11], s60 offen"""); vq.append('row')
    (gload if VST else dma)(1)
    if VST:
        gload(2)
        A.I(f'v_lshlrev_b32 v{vLW}, 4, v{L}\nv_add_u32 v{vLW}, s38, v{vLW}\nv_add_u32 v{vLW+1}, {SB[1]}, v{vLW}\nv_add_u32 v{vLW+2}, {SB[2]}, v{vLW}')
    A.I('s_cmp_lt_u32 s32, 6\ns_cbranch_scc1 p1H_nf')
    A.skip_begin()
    A.I(f"""
    s_and_b32 s39, s32, 1
    s_lshl_b32 s33, s49, 6
    s_lshl_b32 s60, s39, 5
    s_add_u32 s33, s33, s60
    v_add_u32 v{T+2}, s33, v{l32}
    v_cvt_f32_u32 v{fu}, v{T+2}
    v_mul_f32 v{fu}, {f2u(1/512)}, v{fu}
    s_lshl_b32 s33, s34, 4
    v_lshlrev_b32 v{T+3}, 3, v{half}
    v_add_u32 v{T+3}, s33, v{T+3}
    v_cvt_f32_u32 v{kb}, v{T+3}
    v_mov_b32 v{kmask}, 0xffff
    """)
    for b_ in range(2):
        if b_==1: A.I(f'v_add_f32 v{fu}, {f2u(0.125)}, v{fu}\nv_fract_f32 v{fu}, v{fu}')
        A.I(f'v_mul_f32 v{T+4}, v{fu}, v{kb}')
        for j in range(4):
            A.I(f'v_cos_f32 v{T+6}, v{T+4}\nv_sin_f32 v{T+8}, v{T+4}\nv_add_f32 v{T+4}, v{T+4}, v{fu}')
            A.I(f'v_cos_f32 v{T+7}, v{T+4}\nv_sin_f32 v{T+9}, v{T+4}\nv_add_f32 v{T+4}, v{T+4}, v{fu}')
            A.I(f'v_cvt_pk_bf16_f32 v{FB+8*b_+j}, v{T+6}, v{T+7}')
            A.I(f'v_cvt_pk_bf16_f32 v{FB+8*b_+4+j}, -v{T+8}, -v{T+9}')
        A.I(f"""v_and_b32 v{T+5}, 1, v{l32}
        v_lshlrev_b32 v{T+5}, 15, v{T+5}
        v_or_b32 v{T+5}, 0x3f80, v{T+5}
        v_bfi_b32 v{T+5}, v{kmask}, v{T+5}, v{FB+8*b_+4}
        v_cmp_eq_u32 vcc, 0, v{T+3}
        v_cndmask_b32 v{FB+8*b_+4}, v{FB+8*b_+4}, v{T+5}, vcc""")
    A.I(f"""
    s_lshl_b32 s60, s39, 5
    v_add_u32 v{T+2}, s60, v{l32}
    v_and_b32 v{T+3}, 3, v{T+2}
    v_lshlrev_b32 v{T+3}, 2, v{T+3}
    v_add_u32 v{T+4}, 14, v{half}
    v_xor_b32 v{T+3}, v{T+3}, v{T+4}
    v_lshlrev_b32 v{T+3}, 4, v{T+3}
    v_lshl_add_u32 v{T+3}, v{T+2}, 8, v{T+3}
    v_add_u32 v{vFw}, {GS+SB[0]}, v{T+3}
    v_add_u32 v{vFw+1}, {GS+SB[1]}, v{T+3}
    v_add_u32 v{vFw+2}, {GS+SB[2]}, v{T+3}
    """)
    A.skip_end(); A.L('p1H_nf')
    flab=[0]
    def fgen(stage):
        flab[0]+=1; l=f'p1H_fg{flab[0]}'
        A.I(f's_cmp_lt_u32 s32, 6\ns_cbranch_scc1 {l}')
        A.skip_begin()
        slot=stage%3; b_=stage&1; t=(stage>>1)&3; B0=FB+8*b_
        def wr(m,src): A.I(f'ds_write_b128 v{vFw+slot}, {v(src,4)} offset:{m*16384}')
        if t==0:
            wr(0,B0); wr(1,B0+4)
        elif t==2:
            for m in range(2):
                for j in range(4): A.I(f'v_xor_b32 v{FO+4*m+j}, 0x80000000, v{B0+4*m+j}')
                wr(m,FO+4*m)
        else:
            ex=0 if t==1 else 0x80000000
            for m in range(2):
                for j in range(4):
                    own=B0+4*m+j; oth=B0+4*(1-m)+j
                    A.I(f'v_bfi_b32 v{FO+4*m+j}, v{kmask}, v{own}, v{oth}')
                    if m==0: sg=(0 if j%2==0 else 0x80008000)
                    else: sg=(0x80000000 if j%2==0 else 0x8000)
                    sg^=ex
                    if sg: A.I(f'v_xor_b32 v{FO+4*m+j}, {hex(sg)}, v{FO+4*m+j}')
                wr(m,FO+4*m)
        A.skip_end(); A.L(l)
    A.I('s_cmp_lg_u32 s2, 0\ns_cbranch_scc1 p1H_non\ns_cmp_lg_u32 s32, 7\ns_cbranch_scc1 p1H_non')
    A.skip_begin()
    cnt_base(A)
    A.I(f'v_lshlrev_b32 v{T}, 7, v{L}\nv_mov_b32 v{T+1}, 0')
    for j in range(NCNT//64):
        A.I(f'global_store_dword v{T}, v{T+1}, s[62:63]{SC}\nv_add_u32 v{T}, {64*128}, v{T}')
    A.I('s_mov_b64 exec, 1')
    A.I(f's_waitcnt vmcnt(0)\nv_mov_b32 v{T}, 0\nv_mov_b32 v{T+1}, 1\nglobal_store_dword v{T}, v{T+1}, s[54:55]{SC}\ns_mov_b64 exec, -1')
    A.skip_end(); A.L('p1H_non')
    def rowstats():
        U=T+14; S=ST2
        vwait('row')
        for i in range(4):
            for n in range(2):
                u=U+2*n
                A.I(f'v_lshlrev_b32 v{u}, 16, v{SV+4*n+i}\nv_and_b32 v{u+1}, 0xffff0000, v{SV+4*n+i}')
                if i==0: A.I(f'v_add_f32 v{S+2*n}, v{u}, v{u+1}\nv_mul_f32 v{S+2*n+1}, v{u}, v{u}')
                else: A.I(f'v_add_f32 v{S+2*n}, v{S+2*n}, v{u}\nv_fmac_f32 v{S+2*n+1}, v{u}, v{u}\nv_add_f32 v{S+2*n}, v{S+2*n}, v{u+1}')
                A.I(f'v_fmac_f32 v{S+2*n+1}, v{u+1}, v{u+1}')
        for ror in (8,4,2,1):
            for x in range(S,S+4): A.I(f'v_add_f32_dpp v{x}, v{x}, v{x} row_ror:{ror} row_mask:0xf bank_mask:0xf')
        for op in ('v_permlane16_swap_b32','v_permlane32_swap_b32'):
            for k in range(4): A.I(f'v_mov_b32 v{U+k}, v{S+k}')
            for k in range(4): A.I(f'{op} v{S+k}, v{U+k}')
            for k in range(4): A.I(f'v_add_f32 v{S+k}, v{S+k}, v{U+k}')
        A.I(f"""
        v_and_b32 v{U}, 1, v{L}
        v_cmp_eq_u32 vcc, 1, v{U}
        v_cndmask_b32 v{S}, v{S}, v{S+2}, vcc
        v_cndmask_b32 v{S+1}, v{S+1}, v{S+3}, vcc
        v_mul_f32 v{U}, {f2u(1/512)}, v{S}
        v_mul_f32 v{U+1}, {f2u(1/512)}, v{S+1}
        v_fma_f32 v{U+1}, -v{U}, v{U}, v{U+1}
        v_max_f32 v{U+1}, 0, v{U+1}
        v_cvt_pk_bf16_f32 v{U}, v{U}, v{U+1}
        v_and_b32 v{U+1}, 0xffff0000, v{U}
        v_lshlrev_b32 v{U}, 16, v{U}
        v_sub_f32 v{S}, 0, v{U}
        v_add_f32 v{U+1}, {f2u(1e-5)}, v{U+1}
        v_cvt_pk_bf16_f32 v{U+1}, v{U+1}, v{U+1}
        v_and_b32 v{U+1}, 0xffff0000, v{U+1}
        v_sqrt_f32 v{U+1}, v{U+1}
        v_cvt_pk_bf16_f32 v{U+1}, v{U+1}, v{U+1}
        v_and_b32 v{S+1}, 0xffff0000, v{U+1}
        s_lshl_b32 s60, s64, 3
        s_add_u32 s60, s60, {OFF_RS}
        s_add_u32 s62, s4, s60
        s_addc_u32 s63, s5, 0
        v_lshlrev_b32 v{U}, 3, v{L}
        s_mov_b64 exec, 3
        global_store_dwordx2 v{U}, {v(S,2)}, s[62:63]{SC}
        s_mov_b64 exec, -1
        """); vq.append('st')
    WV=128
    wS=76; wD=77
    def wt_job_loads():
        A.I(f"""
        v_and_b32 v{wD}, 255, v0
        v_lshrrev_b32 v{wD}, 4, v{wD}
        s_lshl_b32 s60, s35, 7
        v_add_u32 v{wS}, s60, v{wD}
        v_mul_u32_u24 v{wS}, 257, v{wS}
        v_and_b32 v{wD+1}, 15, v0
        s_lshl_b32 s60, s34, 4
        v_add_u32 v{wD+1}, s60, v{wD+1}
        v_add_u32 v{wS}, v{wS}, v{wD+1}
        v_lshlrev_b32 v{wS}, 1, v{wS}
        s_lshr_b32 s60, s35, 2
        s_lshl_b32 s60, s60, 11
        s_and_b32 s61, s35, 3
        s_lshl_b32 s61, s61, 8
        s_add_u32 s65, s60, s61
        v_lshlrev_b32 v{wD}, 4, v{wD}
        v_add_u32 v{wD}, s65, v{wD}
        v_lshl_add_u32 v{wD}, v{wD+1}, 13, v{wD}
        s_mov_b32 s42, 0x101000
        s_mov_b32 s43, 0x20000
        s_mov_b32 s46, 0x101000
        s_mov_b32 s47, 0x20000
        """)
        for n in range(2):
            for r in range(4):
                A.I(f's_mov_b32 s60, {r*16448+n*8224}')
                A.I(f'buffer_load_short_d16 v{WV+4*n+r}, v{wS}, s[40:43], s60 offen')
                A.I(f'buffer_load_short_d16_hi v{WV+8+4*n+r}, v{wS}, s[44:47], s60 offen'); vq.extend(['wt','wt'])
        A.I('s_cmp_lg_u32 s34, 0\ns_cbranch_scc1 p1H_wt0\ns_cmp_lg_u32 s32, 4\ns_cbranch_scc1 p1H_wt0')
        A.skip_begin()
        A.I(f's_lshl_b32 s60, s35, 7\nv_add_u32 v{wD+1}, s60, v{l32}\nv_mul_u32_u24 v{wD+1}, 257, v{wD+1}\nv_add_u32 v{wD+1}, 256, v{wD+1}\nv_lshlrev_b32 v{wD+1}, 1, v{wD+1}')
        for r in range(4):
            A.I(f's_mov_b32 s60, {r*16448}')
            A.I(f'buffer_load_short_d16 v{WV+16+r}, v{wD+1}, s[40:43], s60 offen')
            A.I(f'buffer_load_short_d16_hi v{WV+20+r}, v{wD+1}, s[44:47], s60 offen')
        A.skip_end(); A.L('p1H_wt0')
    def wt_job_stores():
        vwait('wt')
        srd(A,40,4,OFF_WT,257*8192)
        for n in range(2):
            for r in range(4): A.I(f'v_or_b32 v{WV+4*n+r}, v{WV+4*n+r}, v{WV+8+4*n+r}')
            A.I(f'buffer_store_dwordx4 {v(WV+4*n,4)}, v{wD}, s[40:43], 0 offen offset:{n*1024}{SC}'); vq.append('wst')
        A.I('s_cmp_lg_u32 s34, 0\ns_cbranch_scc1 p1H_wt1\ns_cmp_lg_u32 s32, 4\ns_cbranch_scc1 p1H_wt1')
        A.skip_begin()
        for r in range(4): A.I(f'v_or_b32 v{WV+16+r}, v{WV+16+r}, v{WV+20+r}')
        A.I(f'v_lshrrev_b32 v{wS}, 4, v{l32}\nv_lshlrev_b32 v{wS}, 10, v{wS}\nv_and_b32 v{wD+1}, 15, v{l32}\nv_lshl_add_u32 v{wS}, v{wD+1}, 4, v{wS}')
        A.I(f'v_add_u32 v{wS}, s65, v{wS}\nv_add_u32 v{wS}, 0x200000, v{wS}\ns_mov_b32 exec_hi, 0')
        A.I(f'buffer_store_dwordx4 {v(WV+16,4)}, v{wS}, s[40:43], 0 offen{SC}\ns_mov_b64 exec, -1')
        A.skip_end(); A.L('p1H_wt1')
    def warmup():
        A.I(f"""
        s_bfe_u32 s60, s2, 0x30003            ; n&7
        s_mul_i32 s60, s60, 224
        s_mul_i32 s61, s36, 56
        s_add_u32 s60, s60, s61
        v_add_u32 v{T}, s60, v{L}
        v_lshlrev_b32 v{T}, 10, v{T}
        s_bfe_u32 s60, s2, 0x10002            ; x>>2
        s_lshl_b32 s60, s60, 2
        s_lshr_b32 s61, s2, 6
        s_add_u32 s60, s60, s61               ; db
        s_lshl_b32 s60, s60, 7
        v_add_u32 v{T}, s60, v{T}
        s_mov_b32 s20, s56
        s_mov_b32 s21, s57
        s_mov_b32 s22, {hex(1792*512*2)}
        s_mov_b32 s23, 0x20000
        buffer_load_dword v{T+2}, v{T}, s[20:23], 0 offen
        s_getpc_b64 s[60:61]
        p1H_pc:
        s_add_u32 s60, s60, p1_join-p1H_pc
        s_addc_u32 s61, s61, 0
        s_lshl_b32 s62, s36, 13
        v_lshlrev_b32 v{T+4}, 7, v{L}
        v_add_u32 v{T+4}, s62, v{T+4}
        v_min_u32 v{T+4}, k_done-p1_join, v{T+4}
        v_mov_b32 v{T+5}, s61
        v_add_co_u32 v{T+4}, vcc, s60, v{T+4}
        v_addc_co_u32 v{T+5}, vcc, 0, v{T+5}, vcc
        global_load_dword v{T+3}, v[{T+4}:{T+5}], off
        """)
        vq.extend(['pf','pf'])
    def ready_load():
        A.I(f'v_mov_b32 v{RD+1}, 0\ns_mov_b64 exec, 1\nglobal_load_dword v{RD}, v{RD+1}, s[54:55]{SCP}\ns_mov_b64 exec, -1'); vq.append('non')
    def ready_check():
        l=newlab('nl'); d=newlab('nd')
        A.I(f'v_readfirstlane_b32 s3, v{RD}\ns_cmp_lg_u32 s3, 0\ns_cbranch_scc1 {d}\ns_mov_b32 s58, 0')
        A.L(l)
        A.I(f'global_load_dword v{RD}, v{RD+1}, s[54:55]{SCP}\ns_waitcnt vmcnt(0)\nv_readfirstlane_b32 s3, v{RD}')
        A.I(f's_cmp_lg_u32 s3, 0\ns_cbranch_scc1 {d}\ns_add_u32 s58, s58, 1\ns_cmp_lt_u32 s58, {SPIN_MAX>>4}\ns_cbranch_scc1 {l}')
        A.L(d)
    def rs_loads(q):
        A.I(f"""
        s_lshl_b32 s60, s35, 7
        s_lshl_b32 s61, s37, 6
        s_add_u32 s60, s60, s61
        v_add_u32 v{RSL}, s60, v{l32}
        v_lshlrev_b32 v{RSL+1}, 3, v{RSL}
        s_add_u32 s62, s4, {OFF_RS}
        s_addc_u32 s63, s5, 0
        global_load_dwordx2 {v(RSV,2)}, v{RSL+1}, s[62:63]{SC}
        global_load_dwordx2 {v(RSV+2,2)}, v{RSL+1}, s[62:63] offset:256{SC}
        """); q.extend(['rs','rs'])
    if VST:
        lwrite(0); gload(3); lwrite(1); gload(4)
    for i in range(NST):
        if 'bw' in EXP and i in (1,2,3,4,5): ST.mark(A)
        if VST and i==3: vwait('st')
        vwait(i,True)
        if 'bw' in EXP and i in (1,2,3,4,5): ST.mark(A)
        if i==6:
            A.I('s_cmp_lg_u32 s32, 4\ns_cbranch_scc1 p1H_sq')
            A.skip_begin()
            A.I('s_waitcnt vmcnt(0)' if VST else 's_waitcnt vmcnt(12)')
            poll_cnt(A,FP+1,FP+3,FP+2,2,True)
            A.skip_end(); A.L('p1H_sq')
        A.I('s_barrier')
        if want(i): ST.mark(A)
        if i==5:
            A.I(f"""
            s_lshl_b32 s60, s35, 7
            s_add_u32 s61, s34, {C_CS}
            s_lshl_b32 s61, s61, 7
            v_mov_b32 v{FP+1}, s61
            v_mov_b32 v{FP}, s60
            v_cmp_eq_u32 vcc, 0, v{L}
            v_cndmask_b32 v{FP+1}, v{FP+1}, v{FP}, vcc
            v_mov_b32 v{FP+3}, 16
            s_cmp_lg_u32 s32, 4
            s_cbranch_scc1 p1H_sp
            """)
            A.skip_begin()
            cnt_base(A)
            A.I(f's_mov_b64 exec, 3\nglobal_load_dword v{FP+2}, v{FP+1}, s[62:63]{SCP}\ns_mov_b64 exec, -1')
            A.skip_end(); A.L('p1H_sp')
        if i==0: ready_load()
        if i==3:
            A.I('s_cmp_lg_u32 s32, 4\ns_cbranch_scc1 p1H_f0')
            A.skip_begin()
            ready_check()
            arrive(A,35,T+14)
            A.I(f's_add_u32 s61, s34, {C_CS}'); arrive(A,61,T+14)
            A.skip_end(); A.L('p1H_f0')
        if i+2<NST: fgen(i+2)
        if i+2<NST and not VST: dma(i+2)
        if i+2<NST and VST:
            lwrite(i+2)
            if i+5<NST: gload(i+5)
        if i==0: rowstats()
        if i==4 and 'nopf' not in EXP: warmup()
        if i==6:
            wt_job_loads()
            rs_loads(vq)
            A.I(f's_lshl_b32 s60, s34, 14\ns_add_u32 s60, s60, {OFF_CSP}\ns_add_u32 s20, s4, s60\ns_addc_u32 s21, s5, 0\nv_and_b32 v{FP}, 255, v0\nv_lshlrev_b32 v{FP}, 2, v{FP}')
            for j4 in range(4):
                if j4>0: A.I(f'v_add_u32 v{FP}, 4096, v{FP}')
                for j in range(4):
                    A.I(f'global_load_dword v{CSL+4*j4+j}, v{FP}, s[20:21] offset:{j*1024}{SC}'); vq.append('csp')
    vwait('csp')
    wt_job_stores()
    X=CSL
    for j in range(8): A.I(f'v_add_f32 v{X+j}, v{X+j}, v{X+8+j}')
    for j in range(4): A.I(f'v_add_f32 v{X+j}, v{X+j}, v{X+4+j}')
    A.I(f'v_add_f32 v{X}, v{X}, v{X+1}\nv_add_f32 v{X+2}, v{X+2}, v{X+3}\nv_add_f32 v{X}, v{X}, v{X+2}')
    A.I(f"""
    v_cvt_pk_bf16_f32 v{X+1}, v{X}, v{X}
    v_and_b32 v{X+1}, 0xffff0000, v{X+1}
    v_sub_f32 v{X+2}, v{X}, v{X+1}
    v_cvt_pk_bf16_f32 v{X}, v{X+1}, v{X+2}
    v_and_b32 v{T}, 255, v0
    v_lshlrev_b32 v{T}, 2, v{T}
    v_add_u32 v{T}, {STAT}, v{T}
    ds_write_b32 v{T}, v{X}
    """)
    ST.mark(A)
    A.I(f"""
    s_lshl_b32 s60, s36, 14
    s_cmp_eq_u32 s36, 3
    s_cselect_b32 s60, {SB[2]}, s60
    v_lshlrev_b32 v{T}, 4, v{L}
    v_add_u32 v{T}, s60, v{T}
    s_waitcnt lgkmcnt(0)
    s_barrier
    """)
    for k in range(16): A.I(f'ds_read_b128 {v(ACC+4*k,4)}, v{T} offset:{k*1024}')
    A.I('s_branch p1_join')
    A.L('p1_roleC'); A.fence()
    ST.n=n_st
    cq=[]; lq=[]
    A.I(f"""
    v_lshrrev_b32 v{T}, 5, v{L}
    v_lshlrev_b32 v{T}, 3, v{T}
    v_bfe_u32 v{T+1}, v{L}, 2, 2
    v_add_u32 v{T}, v{T}, v{T+1}
    v_lshlrev_b32 v{T}, 8, v{T}
    v_bfe_u32 v{T+2}, v{L}, 4, 1
    v_lshlrev_b32 v{T+2}, 1, v{T+2}
    v_bfe_u32 v{T+3}, v{L}, 1, 1
    v_add_u32 v{T+2}, v{T+2}, v{T+3}
    s_lshl_b32 s33, s36, 2
    v_add_u32 v{T+2}, s33, v{T+2}
    v_lshlrev_b32 v{T+1}, 2, v{T+1}
    v_xor_b32 v{T+2}, v{T+2}, v{T+1}
    v_lshl_add_u32 v{T}, v{T+2}, 4, v{T}
    v_and_b32 v{T+3}, 1, v{L}
    v_lshl_add_u32 v{T}, v{T+3}, 3, v{T}
    v_add_u32 v{vAr}, {GS+SB[0]}, v{T}
    v_add_u32 v{vAr+1}, {GS+SB[1]}, v{T}
    v_add_u32 v{vAr+2}, {GS+SB[2]}, v{T}
    v_lshlrev_b32 v{T}, 7, v{l32}
    v_bfe_u32 v{T+1}, v{l32}, 1, 3
    v_xor_b32 v{T+1}, v{T+1}, v{half}
    v_lshl_add_u32 v{T}, v{T+1}, 4, v{T}
    v_mov_b32 v{ones}, 0x3f803f80
    """)
    for sl in range(3):
        for ks in range(4):
            if ks==0: A.I(f'v_add_u32 v{vBr+sl*4}, {SB[sl]+XS}, v{T}')
            else: A.I(f'v_xor_b32 v{vBr+sl*4+ks}, {ks*32}, v{vBr+sl*4}')
    for k in range(4): A.I(f'v_mov_b32 v{csr+k}, 0')
    A.I(f'v_mov_b32 v{T}, {CTRL}\nv_lshl_add_u32 v{T}, v{L}, 2, v{T}\nv_mov_b32 v{T+1}, 0\nds_write_b32 v{T}, v{T+1}')
    A.I(f"""
    s_lshl_b32 s60, s36, 4
    v_and_b32 v{T}, 15, v{L}
    v_add_u32 v{T}, s60, v{T}              ; row
    s_lshl_b32 s60, s49, 6
    v_lshlrev_b32 v{T+1}, 6, v{half}
    v_add_u32 v{T+1}, v{T+1}, v{T}
    v_add_u32 v{T+1}, s60, v{T+1}
    v_and_b32 v{T+1}, 511, v{T+1}          ; d
    v_cvt_f32_u32 v{T+2}, v{T+1}
    v_mul_f32 v{T+2}, {f2u(1/512)}, v{T+2} ; u
    v_bfe_u32 v{T+3}, v{L}, 4, 1           ; ch
    s_lshl_b32 s60, s34, 4
    v_lshlrev_b32 v{T+4}, 3, v{T+3}
    v_add_u32 v{T+4}, s60, v{T+4}          ; k0
    v_cvt_f32_u32 v{T+5}, v{T+4}
    v_mul_f32 v{T+5}, v{T+5}, v{T+2}       ; angle
    """)
    for j in range(4):
        A.I(f'v_cos_f32 v{T+6}, v{T+5}\nv_sin_f32 v{T+8}, v{T+5}\nv_add_f32 v{T+5}, v{T+5}, v{T+2}')
        A.I(f'v_cos_f32 v{T+7}, v{T+5}\nv_sin_f32 v{T+9}, v{T+5}\nv_add_f32 v{T+5}, v{T+5}, v{T+2}')
        A.I(f'v_cvt_pk_bf16_f32 v{AFR+j}, v{T+6}, v{T+7}')
        A.I(f'v_cvt_pk_bf16_f32 v{AFR+4+j}, -v{T+8}, -v{T+9}')
    A.I(f"""
    v_and_b32 v{T+6}, 1, v{T}
    v_lshlrev_b32 v{T+6}, 15, v{T+6}
    v_or_b32 v{T+6}, 0x3f80, v{T+6}
    v_mov_b32 v{T+7}, 0xffff
    v_bfi_b32 v{T+6}, v{T+7}, v{T+6}, v{AFR+4}
    v_cmp_eq_u32 vcc, 0, v{T+4}
    v_cndmask_b32 v{AFR+4}, v{AFR+4}, v{T+6}, vcc
    v_and_b32 v{T+6}, 3, v{T}
    v_lshlrev_b32 v{T+6}, 2, v{T+6}
    v_add_u32 v{T+7}, 14, v{T+3}
    v_xor_b32 v{T+6}, v{T+6}, v{T+7}
    v_lshlrev_b32 v{T+6}, 4, v{T+6}
    v_lshl_add_u32 v{T+6}, v{T}, 8, v{T+6}
    v_mul_u32_u24 v{T+7}, {SB[1]-SB[0]}, v{half}
    v_add_u32 v{T+6}, v{T+6}, v{T+7}
    v_add_u32 v{T+6}, {GS+SB[0]}, v{T+6}
    ds_write_b128 v{T+6}, {v(AFR,4)}
    ds_write_b128 v{T+6}, {v(AFR+4,4)} offset:16384
    """)
    AS=[32,40,80]; BS=[48,64,88]
    def read_items(stage,ks,fs,sts=(0,1,2,3)):
        slot=stage%3; a=AS[fs]; bb=BS[fs]
        def ra(m):
            def f():
                for rd in range(2):
                    A.I(f'ds_read_b64_tr_b16 {v(a+m*4+rd*2,2)}, v{vAr+slot} offset:{m*16384+ks*4096+rd*1024}'); lq.append(('A',m,stage,ks))
            return f
        def rb(st):
            def f():
                A.I(f'ds_read_b128 {v(bb+st*4,4)}, v{vBr+slot*4+ks} offset:{st*4096}'); lq.append(('B',st,stage,ks))
            return f
        return [ra(0),rb(sts[0]),ra(1)]+[rb(x) for x in sts[1:]]
    def lwait(tags):
        idx=[k for k,x in enumerate(lq) if x in tags]
        if not idx: return
        n=len(lq)-1-max(idx); del lq[:max(idx)+1]
        A.I(f's_waitcnt lgkmcnt({min(n,15)})')
    def compute(stage,ks,fs,first,nxt,extra=None,cs=None,sts=(0,1,2,3)):
        a=AS[fs]; bb=BS[fs]; k=0
        nxt=list(nxt)
        per=[[] for _ in range(2*len(sts))]
        for j,it in enumerate(nxt): per[(j if len(nxt)<=len(per) else (j*len(per))//len(nxt))].append(it)
        for st in sts:
            for m in range(2):
                lwait([('A',m,stage,ks),('B',st,stage,ks)])
                mf32(A,tile(m,st),a+m*4,bb+st*4,first)
                for it in per[k]: it()
                if cs is not None: A.I(f'v_dot2c_f32_bf16 v{csr+cs*2+(k>>2)}, v{a+(k>>2)*4+(k&3)}, v{ones}')
                if extra and k in extra: extra[k]()
                k+=1
    def cs_chunks():
        U=104; C=[]
        C.append(lambda: A.I(f"""s_bitcmp1_b32 s35, 0
            s_cselect_b64 vcc, -1, 0
            v_cndmask_b32 v{U}, v{csr}, v{csr+2}, vcc
            v_cndmask_b32 v{U+2}, v{csr+1}, v{csr+3}, vcc"""))
        C.append(lambda: A.I(f"""v_mov_b32 v{U+1}, v{U}
            v_mov_b32 v{U+3}, v{U+2}
            s_lshl_b32 s60, s34, 4
            s_add_u32 s60, s60, s35"""))
        C.append(lambda: A.I(f"""v_permlane32_swap_b32 v{U}, v{U+1}
            v_permlane32_swap_b32 v{U+2}, v{U+3}
            s_lshl_b32 s60, s60, 10
            s_lshl_b32 s61, s36, 7"""))
        C.append(lambda: A.I(f"""v_add_f32 v{U}, v{U}, v{U+1}
            v_add_f32 v{U+2}, v{U+2}, v{U+3}
            s_add_u32 s60, s60, s61
            s_add_u32 s60, s60, {OFF_CSP}"""))
        C.append(lambda: A.I(f"""s_add_u32 s62, s4, s60
            s_addc_u32 s63, s5, 0
            v_lshlrev_b32 v{U+1}, 2, v{l32}
            s_mov_b32 exec_hi, 0
            global_store_dword v{U+1}, v{U}, s[62:63]{SC}
            s_mov_b64 exec, -1"""))
        C.append(lambda: A.I(f"""s_mov_b32 exec_hi, 0
            global_store_dword v{U+1}, v{U+2}, s[62:63] offset:512{SC}
            s_mov_b64 exec, -1"""))
        return C
    for i in range(NST):
        if 'bw' in EXP and i in (1,2,3,4,5): ST.mark(A)
        if i==3: A.I('s_waitcnt vmcnt(0)')
        A.I('s_waitcnt lgkmcnt(0)'); lq.clear()
        if 'bw' in EXP and i in (1,2,3,4,5): ST.mark(A)
        A.I('s_barrier')
        if want(i): ST.mark(A)
        if 'la3' in EXP:
            fs=lambda st_,ks_: (4*st_+ks_)%3
            r01=read_items(i,0,fs(i,0))+read_items(i,1,fs(i,1))
            if i==0:
                for f in r01: f()
            else:
                compute(i-1,3,fs(i-1,3),False,r01,None,1 if i==1 else None)
            compute(i,0,fs(i,0),i==0,read_items(i,2,fs(i,2)),({6:lambda: rs_loads(cq)} if i==6 else (dict(zip((1,2,3,4,6,7),cs_chunks())) if i==1 else None)),0 if i==0 else None)
            compute(i,1,fs(i,1),False,read_items(i,3,fs(i,3)),None,0 if i==0 else None)
            compute(i,2,fs(i,2),False,[],None,1 if i==0 else None)
            continue
        r0=read_items(i,0,0)
        if i==0:
            for f in r0: f()
        else:
            compute(i-1,3,1,False,r0,None,1 if i==1 else None)
        compute(i,0,0,i==0,read_items(i,1,1),({6:lambda: rs_loads(cq)} if i==6 else (dict(zip((1,2,3,4,6,7),cs_chunks())) if i==1 else None)),0 if i==0 else None)
        compute(i,1,1,False,read_items(i,2,0),None,0 if i==0 else None)
        compute(i,2,0,False,read_items(i,3,1),None,1 if i==0 else None)
    HW=104
    A.I(f"""
    s_lshl_b32 s60, s36, 14
    s_cmp_eq_u32 s36, 3
    s_cselect_b32 s60, {SB[2]}, s60
    v_lshlrev_b32 v{HW}, 4, v{L}
    v_add_u32 v{HW}, s60, v{HW}
    """)
    if 'do7' not in EXP:
        A.I('s_waitcnt lgkmcnt(0)'); lq.clear()
        compute(7,3,((4*7+3)%3 if 'la3' in EXP else 1),False,[])
        ST.mark(A)
        for k in range(16): A.I(f'ds_write_b128 v{HW}, {v(ACC+64+4*k,4)} offset:{k*1024}')
        A.I('s_waitcnt vmcnt(0) lgkmcnt(0)\ns_barrier')
    else:
        hi=(2,3); lo=(0,1)
        compute(7,0,0,False,read_items(7,1,1,hi),sts=hi)
        compute(7,1,1,False,read_items(7,2,0,hi),sts=hi)
        compute(7,2,0,False,read_items(7,3,1,hi),sts=hi)
        compute(7,3,1,False,read_items(10,0,0,lo),sts=hi)
        def hw(k0,k1):
            def f():
                for k in range(k0,k1):
                    A.I(f'ds_write_b128 v{HW}, {v(ACC+64+4*k,4)} offset:{k*1024}'); lq.append('hw')
            return f
        compute(10,0,0,False,read_items(10,1,1,lo),sts=lo)
        compute(10,1,1,False,read_items(10,2,0,lo),{0:hw(0,4),1:hw(4,8),2:hw(8,12),3:hw(12,16)},sts=lo)
        compute(10,2,0,False,read_items(10,3,1,lo),sts=lo)
        A.I('s_waitcnt lgkmcnt(0)\ns_barrier'); lq.clear()
        compute(10,3,1,False,[],sts=lo)
        ST.mark(A)
        A.I('s_waitcnt vmcnt(0)')
    A.L('p1_join')
    mm=[RSV,RSV+2]; sd=[RSV+1,RSV+3]
    c1p=T+6; c2p=T+14; sd2=T+16; rr=T+18
    c1=-2*0.7978845608028654*math.log2(math.e); c2=c1*0.044715
    FRK=32
    A.I(f"""
    s_lshl_b32 s39, s36, 7
    v_lshlrev_b32 v{T+2}, 2, v{l32}
    v_add_u32 v{T+2}, s39, v{T+2}
    v_add_u32 v{T+2}, {STAT}, v{T+2}
    ds_read_b32 v{T+10}, v{T+2}
    ds_read_b32 v{T+11}, v{T+2} offset:512
    """)
    for k in range(16): A.I(f'v_mov_b32 v{FRK+k}, 0')
    for st in range(2):
        A.I(f"""
        v_rcp_f32 v{rr+st}, v{sd[st]}
        v_mul_f32 v{sd2+st}, v{sd[st]}, v{sd[st]}
        v_mul_f32 v{c1p+st}, {f2u(c1)}, v{rr+st}
        v_mul_f32 v{T+9}, v{rr+st}, v{rr+st}
        v_mul_f32 v{T+9}, v{T+9}, v{rr+st}
        v_mul_f32 v{c2p+st}, {f2u(c2)}, v{T+9}
        """)
    srd(A,20,4,OFF_HP,224*32768)
    srd(A,24,4,OFF_YQ,256*8192)
    A.I(f"""
    v_cvt_pk_bf16_f32 v{T+12}, v{mm[0]}, v{mm[0]}
    v_cvt_pk_bf16_f32 v{T+13}, v{mm[1]}, v{mm[1]}
    v_cmp_gt_u32 vcc, 32, v{L}
    v_cndmask_b32 v{FRK+8}, 0, v{T+12}, vcc
    v_cndmask_b32 v{FRK+12}, 0, v{T+13}, vcc
    s_lshl_b32 s33, s35, 7
    s_lshl_b32 s39, s37, 6
    s_add_u32 s33, s33, s39              ; 128rb+64sh
    v_add_u32 v{T+4}, s33, v{l32}
    v_lshlrev_b32 v{vHo}, 4, v{T+4}
    v_lshl_add_u32 v{vHo}, v{half}, 15, v{vHo}
    v_add_u32 v{vHo+1}, 512, v{vHo}
    s_waitcnt lgkmcnt(0)
    v_cndmask_b32 v{FRK}, 0, v{T+10}, vcc
    v_cndmask_b32 v{FRK+4}, 0, v{T+11}, vcc
    """)
    for m in range(2):
        for b_ in range(2): mf32(A,ACC+(m*2+b_)*16,FRK+m*4,FRK+8+b_*4)
    vPf=114
    A.I('s_cmp_eq_u32 s37, 0\ns_cbranch_scc1 p1_pfC')
    A.I(f's_lshl_b32 s39, s36, 2\nv_mov_b32 v{vPf}, {CTRL}\nv_add_u32 v{vPf}, s39, v{vPf}\nv_mov_b32 v{vPf+1}, 1\nds_write_b32 v{vPf}, v{vPf+1} offset:64')
    A.I('s_branch p1_pfE')
    A.L('p1_pfC')
    srd(A,8,56,0,1792*512*2)
    A.I(f"""
    s_and_b32 s13, s2, 7
    s_lshr_b32 s14, s2, 3
    s_lshr_b32 s13, s13, 2
    s_lshl_b32 s13, s13, 2
    s_lshr_b32 s14, s14, 3
    s_add_u32 s13, s13, s14          ; db
    v_lshrrev_b32 v{vPf+1}, 3, v{L}
    v_bfe_u32 v{vPf+2}, v{L}, 4, 1
    v_lshlrev_b32 v{vPf+2}, 2, v{vPf+2}
    v_and_b32 v{vPf}, 7, v{L}
    v_xor_b32 v{vPf}, v{vPf}, v{vPf+2}
    v_lshlrev_b32 v{vPf}, 4, v{vPf}
    v_lshl_add_u32 v{vPf}, v{vPf+1}, 10, v{vPf}
    s_lshl_b32 s39, s13, 7
    v_add_u32 v{vPf}, s39, v{vPf}
    s_mul_i32 s44, s32, {28*16*1024}
    s_mul_i32 s45, s32, {AREG}
    v_mov_b32 v{vPf+1}, {CTRL}
    """)
    if 'epf' in EXP: lds_wait(A,vPf+1,116,64,1,4)
    A.L('p1_pfE')
    pfl=[0]
    def prefetch(lo,hi):
        if lo>=hi or 'epf' not in EXP: return
        pfl[0]+=1; l=f'p1_pf{pfl[0]}'
        A.I(f's_cmp_lg_u32 s37, 0\ns_cbranch_scc1 {l}')
        A.skip_begin()
        for t in range(lo,hi):
            for j in range(2):
                A.I(f's_add_u32 m0, s45, {t*2048+j*1024}')
                A.I(f's_add_u32 s39, s44, {(t*16+j*8)*1024}')
                A.I(f'buffer_load_dwordx4 v{vPf}, s[8:11], s39 offen lds')
        A.skip_end(); A.L(l)
    A.I('s_nop 7\ns_nop 4')
    Z=T+20
    vH=[vHo,vHo+1]
    GT=lambda st: ACC+st*16
    UT=lambda st: ACC+(2+st)*16
    def hq(q,st,p):
        g=[GT(st)+4*q+r for r in range(4)]; u=[UT(st)+4*q+r for r in range(4)]
        for r in range(4):
            A.I(f'v_mul_f32 v{Z+r}, v{g[r]}, v{g[r]}')
            A.I(f'v_fma_f32 v{Z+r}, v{Z+r}, v{c2p+st}, v{c1p+st}')
            A.I(f'v_mul_f32 v{Z+r}, v{Z+r}, v{g[r]}')
        for r in range(4): A.I(f'v_exp_f32 v{Z+r}, v{Z+r}')
        for r in range(4):
            A.I(f'v_mul_f32 v{g[r]}, v{g[r]}, v{u[r]}')
            A.I(f'v_fma_f32 v{Z+r}, v{Z+r}, v{sd2+st}, v{sd2+st}')
        for r in range(4): A.I(f'v_rcp_f32 v{Z+r}, v{Z+r}')
        for r in range(4): A.I(f'v_mul_f32 v{g[r]}, v{g[r]}, v{Z+r}')
        A.I(f'v_cvt_pk_bf16_f32 v{p}, v{g[0]}, v{g[1]}')
        A.I(f'v_cvt_pk_bf16_f32 v{p+1}, v{g[2]}, v{g[3]}')
    def hpair(q,st,P):
        hq(q,st,P); hq(q+1,st,P+2)
        A.I(f'v_permlane32_swap_b32 v{P}, v{P+2}')
        A.I(f'v_permlane32_swap_b32 v{P+1}, v{P+3}')
        A.I(f'buffer_store_dwordx4 {v(P,4)}, v{vH[st]}, s[20:23], s60 offen{SC}')
    A.I(f's_mul_i32 s61, s34, 14\ns_lshl_b32 s39, s36, 2\ns_add_u32 s61, s61, s39\ns_lshl_b32 s61, s61, 15')
    YT=208
    A.I('s_cmp_lg_u32 s36, 3\ns_cbranch_scc1 p1_noy')
    A.I(f"""
    s_lshl_b32 s39, s37, 12
    s_add_u32 s39, s39, {YSCR}
    v_lshlrev_b32 v{YT}, 10, v{half}
    v_lshl_add_u32 v{YT}, v{l32}, 2, v{YT}
    v_add_u32 v{YT}, s39, v{YT}
    v_lshlrev_b32 v{YT+1}, 4, v{L}
    v_add_u32 v{YT+1}, s39, v{YT+1}
    v_lshrrev_b32 v{YT+2}, 4, v{L}
    v_lshlrev_b32 v{YT+2}, 13, v{YT+2}
    v_and_b32 v{YT+3}, 15, v{L}
    v_lshl_add_u32 v{YT+2}, v{YT+3}, 4, v{YT+2}
    s_lshl_b32 s39, s33, 2
    v_add_u32 v{YT+2}, s39, v{YT+2}
    """)
    for q in (2,3):
        for st in range(2):
            for r in range(4):
                G_=GT(st)+4*q+r; U=UT(st)+4*q+r
                A.I(f'v_mul_f32 v{G_}, v{G_}, v{rr+st}')
                A.I(f'v_mul_f32 v{U}, v{U}, v{rr+st}')
                A.I(f'v_cvt_pk_bf16_f32 v{G_}, v{G_}, v{U}')
                A.I(f'ds_write_b32 v{YT}, v{G_} offset:{(8*(q-2)+r)*256+st*128}')
    A.I('s_waitcnt lgkmcnt(0)')
    for j in range(4): A.I(f'ds_read_b128 {v(YT+4+4*j,4)}, v{YT+1} offset:{j*1024}')
    A.I('s_waitcnt lgkmcnt(0)')
    for j in range(4):
        A.I(f's_lshl_b32 s60, s34, 4\ns_add_u32 s60, s60, {4*j}\ns_lshl_b32 s60, s60, 13')
        A.I(f'buffer_store_dwordx4 {v(YT+4+4*j,4)}, v{YT+2}, s[24:27], s60 offen{SC}')
    A.I('s_mov_b32 s60, s61')
    A.I('s_cmp_lg_u32 s37, 0\ns_cbranch_scc1 p1_y7')
    prefetch(0,9); hpair(0,0,PB); prefetch(9,17); hpair(0,1,PB+4)
    A.I(f's_waitcnt vmcnt({36 if "epf" in EXP else 2})\nv_mov_b32 v{YT}, {CTRL}\nv_mov_b32 v{YT+1}, 1\nds_write_b32 v{YT}, v{YT+1} offset:80')
    A.I('s_branch p1_end')
    A.L('p1_y7')
    hpair(0,0,PB); hpair(0,1,PB+4)
    A.I(f's_waitcnt vmcnt(2)\nv_mov_b32 v{YT}, {CTRL}')
    lds_wait(A,YT,YT+4,80,1,4)
    A.I(f's_add_u32 s61, s34, {C_Y}'); arrive(A,61,YT+2)
    A.I('s_branch p1_end')
    A.L('p1_noy')
    k=0; cuts=[0,6,12,17,17]
    for q in (0,2):
        A.I(f's_add_u32 s60, s61, {q*32768}')
        for st in range(2):
            hpair(q,st,PB+4*(q+st))
            prefetch(cuts[k],cuts[k+1]); k+=1
            if k==2:
                A.I('s_cmp_eq_u32 s37, 0\ns_cbranch_scc1 p1_wf')
                A.I(f's_waitcnt vmcnt(2)\ns_lshl_b32 s39, s36, 2\nv_mov_b32 v{YT}, {CTRL}\nv_add_u32 v{YT}, s39, v{YT}\nv_mov_b32 v{YT+1}, 1\nds_write_b32 v{YT}, v{YT+1} offset:84')
                A.L('p1_wf')
    A.L('p1_end')
    ST.mark(A)

def s2_phase(A):
    L,l,g,vY,vW,fl,fg4=1,2,3,4,5,6,7
    T=184
    Ya=16; Wv=24; C32R=32; C32I=48; C64R=64; C64I=80; T1c=96; T1s=104; T2c=112; T2s=120
    DR=128; DI=136; F=144; E=152
    vC=203
    A.I(f'''
    s_sub_u32 s12, s32, 4
    v_and_b32 v{L}, 63, v0
    v_and_b32 v{l}, 15, v0
    v_bfe_u32 v{g}, v0, 4, 2
    v_mov_b32 v{vC}, {CTRL}
    s_lshl_b32 s33, s34, 4
    s_add_u32 s33, s33, s35          ; column k
    s_mov_b32 s47, 0
    ''')
    srd(A,8,4,OFF_YQ,256*8192)
    srd(A,16,4,OFF_WT,257*8192)
    srd(A,20,4,OFF_ZQ,514*4096)
    A.I(f'''
    s_lshl_b32 s13, s12, 11
    v_lshlrev_b32 v{vY}, 7, v{l}
    v_lshl_add_u32 v{vY}, v{g}, 4, v{vY}
    v_add_u32 v{vY}, s13, v{vY}
    v_lshlrev_b32 v{vW}, 4, v{l}
    v_lshl_add_u32 v{vW}, v{g}, 8, v{vW}
    v_add_u32 v{vW}, s13, v{vW}
    v_cvt_f32_u32 v{fl}, v{l}
    v_lshlrev_b32 v{T}, 2, v{g}
    v_cvt_f32_u32 v{fg4}, v{T}
    s_lshl_b32 s13, s12, 4
    v_cvt_f32_u32 v{T+1}, s13
    ''')
    f16w=T+1
    sc=1.0/(2048*512)
    A.I(f'''
    v_mul_f32 v{T+2}, {f2u(1/32)}, v{fl}
    v_add_f32 v{T+3}, 0.5, v{T+2}
    v_add_f32 v{T+4}, v{f16w}, v{fl}
    v_mul_f32 v{T+7}, {f2u(1/2048)}, v{T+4}
    v_mul_f32 v{T+4}, {f2u(1/64)}, v{T+4}
    v_mul_f32 v{T+5}, {f2u(1/2048)}, v{fl}
    v_add_f32 v{T+6}, {f2u(16/2048)}, v{T+5}
    v_add_f32 v{T+8}, v{f16w}, v{fg4}
    s_mov_b32 s46, {f2u(2*sc)}
    s_cmp_eq_u32 s33, 0
    s_cselect_b32 s46, {f2u(sc)}, s46
    v_mov_b32 v{vC+2}, s46
    ''')
    a_,c_,s_=T+9,T+10,T+11
    def cs_pack(ang,R,I):
        A.I(f'''
        v_cos_f32 v{c_}, v{ang}
        v_sin_f32 v{s_}, v{ang}
        v_cvt_pk_bf16_f32 v{R}, v{c_}, v{s_}
        v_cvt_pk_bf16_f32 v{I}, -v{s_}, v{c_}
        ''')
    fa=T+12
    for t in range(2):
        for q in range(4):
            A.I(f'v_add_f32 v{fa}, {f2u(16*t+q)}, v{fg4}')
            for nt in range(2):
                A.I(f'v_mul_f32 v{a_}, v{fa}, v{T+2+nt}')
                cs_pack(a_, C32R+(t*2+nt)*4+q, C32I+(t*2+nt)*4+q)
    for r in range(4):
        A.I(f'v_add_f32 v{fa}, {f2u(r)}, v{T+8}')
        for nt in range(2):
            A.I(f'''v_mul_f32 v{a_}, v{fa}, v{T+5+nt}
            v_cos_f32 v{T1c+nt*4+r}, v{a_}
            v_sin_f32 v{T1s+nt*4+r}, v{a_}''')
    for tp in range(4):
        for q in range(4):
            A.I(f'v_add_f32 v{fa}, {f2u(16*tp+q)}, v{fg4}')
            A.I(f'v_mul_f32 v{a_}, v{fa}, v{T+4}')
            cs_pack(a_, C64R+tp*4+q, C64I+tp*4+q)
    for it in range(2):
        for r in range(4):
            A.I(f'''v_add_f32 v{fa}, {f2u(16*it+r)}, v{fg4}
            v_mul_f32 v{a_}, v{fa}, v{T+7}
            v_cos_f32 v{T2c+it*4+r}, v{a_}
            v_sin_f32 v{T2s+it*4+r}, v{a_}
            v_mul_f32 v{T2c+it*4+r}, v{T2c+it*4+r}, v{vC+2}
            v_mul_f32 v{T2s+it*4+r}, v{T2s+it*4+r}, v{vC+2}''')
    vLw,vLr=T+13,T+14
    A.I(f'''
    v_lshlrev_b32 v{vLr}, 4, v{L}
    v_add_u32 v{vLr}, {EX}, v{vLr}
    s_lshl_b32 s13, s12, 11
    v_add_u32 v{vLw}, s13, v{vLr}
    s_lshl_b32 s13, s12, 2
    v_add_u32 v{vC+1}, s13, v{vC}
    s_mov_b32 s26, 0x80000000
    s_mov_b32 s27, 0x8000
    ''')
    ST.mark(A)
    A.I('s_waitcnt vmcnt(0)\ns_barrier')
    if 'noprio' not in EXP: A.I('s_setprio 3')
    ST.mark(A)
    A.I('s_cmp_lg_u32 s32, 4\ns_cbranch_scc1 s2_w1')
    A.skip_begin()
    A.I(f's_add_u32 s59, s34, {C_Y}\ns_lshl_b32 s59, s59, 7\nv_mov_b32 v{E}, s59\nv_mov_b32 v{E+1}, 16')
    poll_cnt(A,E,E+1,E+2,1)
    if 'dbg' in EXP:
        A.I(f's_cmp_lg_u32 s2, 9\ns_cbranch_scc1 dbg1')
        A.I(f'v_mov_b32 v{E+4}, v{E}\nv_mov_b32 v{E+5}, v{E+1}\nv_mov_b32 v{E+6}, v{E+2}\nv_mov_b32 v{E+7}, s58\nv_mov_b32 v{E+8}, 32\ns_mov_b64 exec, 1\nglobal_store_dwordx4 v{E+8}, {v(E+4,4)}, s[54:55]\ns_mov_b64 exec, -1')
        A.L('dbg1')
    A.I(f'v_mov_b32 v{E}, 1\nds_write_b32 v{vC}, v{E} offset:8')
    A.skip_end(); A.L('s2_w1')
    lds_wait(A,vC,E,8,1)
    ST.mark(A)
    A.L('s2_col')
    if 'nos2' in EXP: A.I('s_branch s2_skip')
    A.I(f'''
    s_and_b32 s14, s33, 255
    s_lshl_b32 s14, s14, 13
    s_lshl_b32 s15, s33, 13
    s_add_u32 s29, s15, 4096
    buffer_load_dwordx4 {v(Ya,4)}, v{vY}, s[8:11], s14 offen{SC}
    buffer_load_dwordx4 {v(Ya+4,4)}, v{vY}, s[8:11], s14 offen offset:64{SC}
    buffer_load_dwordx4 {v(Wv,4)}, v{vW}, s[16:19], s15 offen{SC}
    buffer_load_dwordx4 {v(Wv+4,4)}, v{vW}, s[16:19], s15 offen offset:1024{SC}
    s_cmp_eq_u32 s33, 256
    s_cselect_b32 s24, 16, 0
    s_and_b32 s25, s33, 255
    s_cmp_eq_u32 s25, 0
    s_cselect_b32 s25, 0xffff, -1
    s_cmp_lg_u32 s33, 0
    s_cbranch_scc1 s2_nx
    s_mov_b32 s60, 0x200000
    buffer_load_dwordx4 {v(208,4)}, v{vW}, s[16:19], s60 offen{SC}
    buffer_load_dwordx4 {v(212,4)}, v{vW}, s[16:19], s60 offen offset:1024{SC}
    s_waitcnt vmcnt(4)
    s_branch s2_ld
    s2_nx:
    s_waitcnt vmcnt(2)
    s2_ld:
    ''')
    for i in range(8): A.I(f'v_mov_b32 v{216+i}, v{Ya+i}')
    A.L('s2_cmp')
    if 's2fine' in EXP: ST.mark(A)
    for i in range(8): A.I(f'v_lshrrev_b32 v{Ya+i}, s24, v{Ya+i}')
    for i in range(8): A.I(f'v_and_b32 v{Ya+i}, s25, v{Ya+i}')
    for nt in range(2):
        for t in range(2): mf16(A,DR+nt*4,Ya+t*4,C32R+(t*2+nt)*4,t==0)
        for t in range(2): mf16(A,DI+nt*4,Ya+t*4,C32I+(t*2+nt)*4,t==0)
    t0,t1=T+15,T+16
    def cmul_pack(dst,xr,xi,c,s,sign):
        A.I(f'v_mul_f32 v{t0}, v{xr}, v{c}')
        A.I(f'v_mul_f32 v{t1}, v{xi}, v{c}')
        if sign<0:
            A.I(f'v_fma_f32 v{t0}, v{xi}, v{s}, v{t0}'); A.I(f'v_fma_f32 v{t1}, -v{xr}, v{s}, v{t1}')
        else:
            A.I(f'v_fma_f32 v{t0}, -v{xi}, v{s}, v{t0}'); A.I(f'v_fma_f32 v{t1}, v{xr}, v{s}, v{t1}')
        A.I(f'v_cvt_pk_bf16_f32 v{dst}, v{t0}, v{t1}')
    def exchange(base,ph):
        for nt in range(2): A.I(f'ds_write_b128 v{vLw}, {v(F+nt*4,4)} offset:{base+nt*1024}')
        A.I(f's_add_u32 s46, s47, {ph}\nv_mov_b32 v{t0}, s46\nds_write_b32 v{vC+1}, v{t0} offset:16')
        lds_wait(A,vC,E,16,'s46',4)
        for tp in range(4):
            for nt in range(2): A.I(f'ds_read_b128 {v(E+(tp*2+nt)*4,4)}, v{vLr} offset:{base+(tp*2+nt)*1024}')
    for nt in range(2):
        for r in range(4): cmul_pack(F+nt*4+r,DR+nt*4+r,DI+nt*4+r,T1c+nt*4+r,T1s+nt*4+r,-1)
    if 's2fine' in EXP: ST.mark(A)
    exchange(0,1)
    if 's2fine' in EXP: ST.mark(A)
    for tp in range(4):
        A.I(f's_waitcnt lgkmcnt({6-2*tp})')
        for nt in range(2):
            mf16(A,DR+nt*4,C64R+tp*4,E+(tp*2+nt)*4,tp==0)
            mf16(A,DI+nt*4,C64I+tp*4,E+(tp*2+nt)*4,tp==0)
    if 's2fine' in EXP: ST.mark(A)
    A.I('s_cmp_eq_u32 s33, 256\ns_cbranch_scc1 s2_nw\ns_waitcnt vmcnt(0)')
    A.L('s2_nw')
    wr,wi=T+17,T+18
    def conj(R,I):
        for i in range(16):
            A.I(f'v_xor_b32 v{R+i}, s26, v{R+i}'); A.I(f'v_xor_b32 v{I+i}, s27, v{I+i}')
    conj(C32R,C32I)
    for nt in range(2):
        for r in range(4):
            A.I(f'v_lshlrev_b32 v{wr}, 16, v{Wv+nt*4+r}')
            A.I(f'v_and_b32 v{wi}, 0xffff0000, v{Wv+nt*4+r}')
            cmul_pack(F+nt*4+r,DR+nt*4+r,DI+nt*4+r,wr,wi,+1)
    conj(C64R,C64I)
    if 's2fine' in EXP: ST.mark(A)
    def publish(kreg_is_256,suf,xd):
        A.I('s_waitcnt vmcnt(0)')
        A.I(f'v_mov_b32 v{t1}, {xd}\nds_write_b32 v{vC+1}, v{t1} offset:32')
        A.I(f's_cmp_lg_u32 s32, 4\ns_cbranch_scc1 s2_w2{suf}')
        A.skip_begin()
        lds_wait(A,vC,224,32,xd,4)
        cnt_base(A)
        if kreg_is_256=='n': A.I(f'v_add_u32 v228, {C_N}, v{L}')
        elif kreg_is_256=='0': A.I(f'v_lshlrev_b32 v228, 3, v{L}\nv_add_u32 v228, {C_Z}, v228')
        else: A.I(f's_and_b32 s46, s33, 7\ns_add_u32 s46, s46, {C_Z}\nv_lshlrev_b32 v228, 3, v{L}\nv_add_u32 v228, s46, v228')
        A.I(f'v_lshlrev_b32 v228, 7, v228\nv_mov_b32 v229, 1')
        A.I(f's_mov_b64 exec, {(1<<ZREP)-1}\nglobal_atomic_add v228, v229, s[62:63]{SC}\ns_mov_b64 exec, -1')
        A.skip_end(); A.L(f's2_w2{suf}')
    exchange(8192,2)
    A.I('s_cmp_lg_u32 s33, 256\ns_cbranch_scc1 s2_np')
    publish('0','c',1)
    A.I('s_barrier')
    A.L('s2_np')
    if 's2fine' in EXP: ST.mark(A)
    for tp in range(4):
        A.I(f's_waitcnt lgkmcnt({6-2*tp})')
        for it in range(2):
            mf16(A,DR+it*4,E+(tp*2+it)*4,C64R+tp*4,tp==0)
            mf16(A,DI+it*4,E+(tp*2+it)*4,C64I+tp*4,tp==0)
    for it in range(2):
        for r in range(4): cmul_pack(F+it*4+r,DR+it*4+r,DI+it*4+r,T2c+it*4+r,T2s+it*4+r,+1)
    for nt in range(2):
        for t in range(2): mf16(A,DR+nt*4,C32R+(t*2+nt)*4,F+t*4,t==0)
        for t in range(2): mf16(A,DI+nt*4,C32I+(t*2+nt)*4,F+t*4,t==0)
    if 's2fine' in EXP: ST.mark(A)
    A.I(f'v_lshrrev_b32 v{t0}, 1, v{vY}')
    for nt in range(2):
        for part,D in ((0,DR),(1,DI)):
            e=E+nt*4+part*2
            A.I(f'v_cvt_pk_bf16_f32 v{e}, v{D+nt*4}, v{D+nt*4+1}\nv_cvt_pk_bf16_f32 v{e+1}, v{D+nt*4+2}, v{D+nt*4+3}')
            A.I(f'buffer_store_dwordx2 {v(e,2)}, v{t0}, s[20:23], s15 offen offset:{32*nt}{SC}' if part==0 else f'buffer_store_dwordx2 {v(e,2)}, v{t0}, s[20:23], s29 offen offset:{32*nt}{SC}')
    A.I('s_cmp_eq_u32 s33, 0\ns_cbranch_scc1 s2_second')
    A.I('s_cmp_eq_u32 s33, 256\ns_cbranch_scc1 s2_pubn')
    publish('k','a',1)
    A.I('s_barrier')
    A.I('s_branch s2_fin')
    A.L('s2_pubn')
    publish('n','b',2)
    A.I('s_branch s2_fin')
    A.L('s2_second')
    conj(C32R,C32I); conj(C64R,C64I)
    for i in range(8): A.I(f'v_mov_b32 v{Ya+i}, v{216+i}')
    for i in range(8): A.I(f'v_mov_b32 v{Wv+i}, v{208+i}')
    A.I('s_movk_i32 s33, 256\ns_mov_b32 s15, 0x200000\ns_add_u32 s29, s15, 4096\ns_mov_b32 s24, 16\ns_mov_b32 s25, 0xffff\ns_add_u32 s47, s47, 2\ns_branch s2_cmp')
    A.L('s2_fin')
    A.I('s_setprio 0')
    ST.mark(A)
    A.I('s_cmp_lg_u32 s32, 4\ns_cbranch_scc1 s2_w3')
    A.skip_begin()
    A.I(f's_and_b32 s46, s2, {ZREP-1}\ns_lshl_b32 s46, s46, 3\ns_add_u32 s46, s46, {C_Z}\nv_add_u32 v{E}, s46, v{L}\nv_lshlrev_b32 v{E}, 7, v{E}\nv_mov_b32 v{E+1}, 32')
    poll_cnt(A,E,E+1,E+2,8,sleep=2)
    A.I(f'v_mov_b32 v{E}, 1\nds_write_b32 v{vC}, v{E} offset:4')
    A.I(f's_and_b32 s46, s2, {ZREP-1}\ns_add_u32 s46, s46, {C_N}\ns_lshl_b32 s46, s46, 7\nv_mov_b32 v{E}, s46\nv_mov_b32 v{E+1}, 1')
    poll_cnt(A,E,E+1,E+2,1)
    A.I(f'v_mov_b32 v{E}, 1\nds_write_b32 v{vC}, v{E} offset:48')
    A.skip_end(); A.L('s2_w3')
    ST.mark(A)
    A.I('s_waitcnt lgkmcnt(0)\ns_barrier')

def p3_phase(A, nh=28, nz=8):
    NB=NB_
    BR0=112
    NA=NA_; NL=NSL-NA; RB=NB+NL
    BL=[16,240]
    L,half,l32=1,2,3
    vB=4; vZd=5; vZr=6; vX=9; vC=10; vAd=11; vAr=12; vLw=14; vLr=15; vBd=8; vBr=28
    XR2=16; T=24; ACC=32; AF=96; BR=112; ZA=176
    A.I(f"""
    s_load_dwordx2 s[28:29], s[0:1], 56
    s_load_dwordx2 s[30:31], s[0:1], 48
    v_and_b32 v{L}, 63, v0
    v_and_b32 v{l32}, 31, v0
    v_bfe_u32 v{half}, v0, 5, 1
    v_mov_b32 v{vC}, {CTRL}
    s_mov_b32 s12, s32
    s_and_b32 s13, s2, 7
    s_lshr_b32 s14, s2, 3
    s_and_b32 s15, s13, 3
    s_lshl_b32 s15, s15, 3
    s_and_b32 s39, s14, 7
    s_add_u32 s15, s15, s39          ; sb
    s_lshr_b32 s13, s13, 2
    s_lshl_b32 s13, s13, 2
    s_lshr_b32 s14, s14, 3
    s_add_u32 s13, s13, s14          ; db
    s_and_b32 s36, s12, 1
    s_lshr_b32 s37, s12, 1
    v_lshrrev_b32 v{T}, 3, v{L}
    v_bfe_u32 v{T+1}, v{L}, 4, 1
    v_lshlrev_b32 v{T+1}, 2, v{T+1}
    v_and_b32 v{T+2}, 7, v{L}
    v_xor_b32 v{T+2}, v{T+2}, v{T+1}
    v_lshlrev_b32 v{T+2}, 4, v{T+2}           ; c*16
    v_lshl_add_u32 v{vAd}, v{T}, 10, v{T+2}
    s_lshl_b32 s39, s13, 7
    v_add_u32 v{vAd}, s39, v{vAd}
    v_lshl_add_u32 v{vZd}, v{T}, 12, v{T+2}
    s_lshl_b32 s39, s15, 7
    v_add_u32 v{vZd}, s39, v{vZd}
    s_mul_i32 s44, s12, {nh*16*1024}
    s_mul_i32 s45, s12, {AREG}
    s_mul_i32 s52, s12, {nz*16*4096}
    s_waitcnt lgkmcnt(0)
    """)
    srd(A,8,30,0,1792*512*2)
    q=[]
    def dmaA(t):
        for j in range(2):
            A.I(f's_add_u32 m0, s45, {(t%NA)*2048+j*1024}')
            A.I(f's_add_u32 s60, s44, {(t*16+j*8)*1024}')
            A.I(f'buffer_load_dwordx4 v{vAd}, s[8:11], s60 offen lds'); q.append(('A',t))
    def dmaZ(i):
        t=nh+i
        for j in range(2):
            A.I(f's_add_u32 m0, s45, {(t%NA)*2048+j*1024}')
            A.I(f's_add_u32 s60, s52, {(i*16+j*8)*4096}')
            A.I(f'buffer_load_dwordx4 v{vZd}, s[20:23], s60 offen{SC} lds'); q.append(('A',t))
    srd(A,24,6,0,2048*512*2)
    srd(A,16,4,OFF_HP,224*32768)
    srd(A,20,4,OFF_ZQ,514*4096)
    srd(A,40,28,0,2048*512*2)
    A.I(f"""
    s_lshl_b32 s39, s15, 1
    s_add_u32 s39, s39, s37
    s_lshl_b32 s39, s39, 10
    s_lshl_b32 s31, s13, 7
    s_add_u32 s39, s39, s31
    s_lshl_b32 s31, s36, 6
    s_add_u32 s39, s39, s31
    v_lshlrev_b32 v{vX}, 16, v{l32}
    v_lshl_add_u32 v{vX}, v{half}, 3, v{vX}
    v_add_u32 v{vX}, s39, v{vX}
    """)
    ZT=248
    A.I(f"""
    s_lshl_b32 s39, s15, 10
    v_lshlrev_b32 v{vB}, 15, v{half}
    v_lshl_add_u32 v{vB}, v{l32}, 4, v{vB}
    v_add_u32 v{vB}, s39, v{vB}
    s_mul_i32 s46, s12, {nh*65536}
    s_mov_b32 s48, s46
    s_lshl_b32 s39, s15, 10
    v_lshlrev_b32 v{vBd}, 4, v{L}
    v_add_u32 v{vBd}, s39, v{vBd}
    v_lshlrev_b32 v{vBr}, 10, v{half}
    v_lshl_add_u32 v{vBr}, v{l32}, 4, v{vBr}
    v_add_u32 v{vBr}, s45, v{vBr}
    s_lshl_b32 s39, s37, 9
    v_xor_b32 v{vBr+1}, 512, v{vBr}
    v_add_u32 v{vBr}, s39, v{vBr}
    v_subrev_u32 v{vBr+1}, s39, v{vBr+1}
    s_add_u32 s47, s46, 512
    s_sub_u32 s47, s47, s39
    s_add_u32 s46, s46, s39
    v_lshrrev_b32 v{T}, 5, v{L}
    v_lshlrev_b32 v{T}, 3, v{T}
    v_bfe_u32 v{T+1}, v{L}, 2, 2
    v_add_u32 v{T}, v{T}, v{T+1}
    v_lshlrev_b32 v{T}, 7, v{T}              ; row*128
    v_bfe_u32 v{T+2}, v{L}, 4, 1
    v_lshlrev_b32 v{T+2}, 1, v{T+2}
    v_bfe_u32 v{T+3}, v{L}, 1, 1
    v_add_u32 v{T+2}, v{T+2}, v{T+3}
    v_bfe_u32 v{T+3}, v{L}, 3, 1
    v_lshlrev_b32 v{T+3}, 2, v{T+3}
    v_xor_b32 v{T+2}, v{T+2}, v{T+3}
    v_lshl_add_u32 v{T}, v{T+2}, 4, v{T}
    v_and_b32 v{T+3}, 1, v{L}
    v_lshl_add_u32 v{T}, v{T+3}, 3, v{T}
    v_add_u32 v{T}, s45, v{T}
    s_lshl_b32 s39, s36, 6
    v_xor_b32 v{vAr}, s39, v{T}
    v_xor_b32 v{vAr+1}, 64, v{vAr}
    s_lshl_b32 s39, s37, 6
    v_xor_b32 v{vZr}, s39, v{T}
    v_xor_b32 v{vZr+1}, 64, v{vZr}
    s_lshl_b32 s39, s13, 6
    s_lshl_b32 s31, s36, 5
    s_add_u32 s39, s39, s31
    v_add_u32 v{T}, s39, v{l32}
    v_cvt_f32_u32 v{T}, v{T}
    v_mul_f32 v{ZT}, {f2u(1/512)}, v{T}
    s_lshl_b32 s39, s13, 6
    s_xor_b32 s31, s31, 32
    s_add_u32 s39, s39, s31
    v_add_u32 v{T+1}, s39, v{l32}
    v_cvt_f32_u32 v{T+1}, v{T+1}
    v_mul_f32 v{ZT+1}, {f2u(1/512)}, v{T+1}
    s_mul_i32 s39, s12, {nz*8}
    v_lshlrev_b32 v{T+2}, 2, v{half}
    v_add_u32 v{T+2}, s39, v{T+2}
    v_cvt_f32_u32 v{ZT+2}, v{T+2}
    """)
    zitems=[]
    for i in range(nz):
        for qq in range(4):
            def zf(i=i,qq=qq):
                A.I(f'v_add_f32 v{ZT+3}, {f2u(8*i+qq)}, v{ZT+2}')
                for ar in range(2):
                    A.I(f'v_mul_f32 v{ZT+4+ar}, v{ZT+3}, v{ZT+ar}\nv_fract_f32 v{ZT+4+ar}, v{ZT+4+ar}')
                for ar in range(2):
                    A.I(f'v_cos_f32 v{ZT+6}, v{ZT+4+ar}\nv_sin_f32 v{ZT+7}, v{ZT+4+ar}\nv_cvt_pk_bf16_f32 v{ZA+i*8+ar*4+qq}, v{ZT+6}, -v{ZT+7}')
            zitems.append(zf)
    PT=NA-4
    NZ0=10 if 'z0' not in EXP else 0
    for zf in zitems[:NZ0]: zf()
    A.I(f's_waitcnt vmcnt({len(q)})\ns_barrier')
    ST.mark(A)
    A.I('s_cmp_lg_u32 s32, 0\ns_cbranch_scc1 p3_a1')
    A.skip_begin()
    A.I(f's_add_u32 s59, s35, {C_H}'); A.I('s_mov_b32 s61, s59'); arrive(A,61,T)
    A.skip_end(); A.L('p3_a1')
    rest=zitems[NZ0:]
    if 'epf' in EXP:
        for zf in rest: zf()
    else:
        for t in range(NA):
            dmaA(t)
            for zf in rest[(t*len(rest))//NA:((t+1)*len(rest))//NA]: zf()
            if t==PT:
                A.I(f's_lshr_b32 s59, s15, 1\ns_add_u32 s59, s59, {C_H}\ns_lshl_b32 s59, s59, 7\nv_mov_b32 v{T}, s59\nv_mov_b32 v{T+1}, 16')
                A.I('s_cmp_lg_u32 s32, 0\ns_cbranch_scc1 p3_ap')
                A.skip_begin()
                cnt_base(A)
                A.I(f's_mov_b64 exec, 1\nglobal_load_dword v{T+2}, v{T}, s[62:63]{SCP}\ns_mov_b64 exec, -1')
                A.skip_end(); A.L('p3_ap')
    ST.mark(A)
    A.I('s_cmp_lg_u32 s32, 0\ns_cbranch_scc1 p3_w1')
    A.skip_begin()
    A.I(f's_waitcnt vmcnt({2*(NA-1-PT)})')
    poll_cnt(A,T,T+1,T+2,1,True)
    A.I(f'v_mov_b32 v{T}, 1\nds_write_b32 v{vC}, v{T}')
    A.skip_end(); A.L('p3_w1')
    lds_wait(A,vC,T,0,1)
    ST.mark(A)
    n=nh+nz
    isL=lambda i: (i%RB)>=NB
    def issueB(i):
        if isL(i):
            sl=NA+(i%RB)-NB
            for j in range(2):
                A.I(f's_add_u32 m0, s45, {sl*2048+j*1024}')
                A.I(f's_add_u32 s60, s48, {j*32768}')
                A.I(f'buffer_load_dwordx4 v{vBd}, s[16:19], s60 offen{SCB} lds')
        else:
            sl=BR+(i%RB)*8
            A.I(f'buffer_load_dwordx4 {v(sl,4)}, v{vB}, s[16:19], s46 offen{SCB}')
            A.I(f'buffer_load_dwordx4 {v(sl+4,4)}, v{vB}, s[16:19], s47 offen{SCB}')
        q.extend([('B',i)]*2)
        A.I('s_add_u32 s46, s46, 65536\ns_add_u32 s47, s47, 65536\ns_add_u32 s48, s48, 65536')
    def readsBL(i):
        sl=NA+(i%RB)-NB; f=BL[i%2]
        for b_ in range(2):
            A.I(f'ds_read_b128 {v(f+4*b_,4)}, v{vBr+b_} offset:{sl*2048}')
    def vwait(*tags):
        idx=[k for k,x in enumerate(q) if x in tags]
        if not idx: return
        N=len(q)-1-max(idx); del q[:max(idx)+1]
        A.I(f's_waitcnt vmcnt({min(N,63)})')
    def reads(t):
        f=AF+(t%2)*8
        if t<nh:
            for ar in range(2):
                for rd in range(2):
                    A.I(f'ds_read_b64_tr_b16 {v(f+ar*4+rd*2,2)}, v{vAr+ar} offset:{(t%NA)*2048+rd*512}')
        else:
            for b_ in range(2):
                for rd in range(2):
                    A.I(f'ds_read_b64_tr_b16 {v(f+b_*4+rd*2,2)}, v{vZr+b_} offset:{(t%NA)*2048+rd*512}')
    nxt=0
    ZAT=nh-4; ZP=ZP_
    for k in range(RB):
        issueB(nxt); nxt+=1
    vwait(('A',0)); reads(0)
    for i in range(n):
        tags=[('A',i+1)]
        if i<nh and not isL(i): tags.append(('B',i))
        if i+1<nh and isL(i+1): tags.append(('B',i+1))
        vwait(*tags)
        if 'p3steps' in EXP and i in (0,4,10,17,24): ST.mark(A)
        A.I('s_waitcnt lgkmcnt(0)')
        if i==ZAT:
            ST.mark(A); lds_wait(A,vC,T,4,1); ST.mark(A)
            for z in range(nz): dmaZ(z)
        if i+1<n and not (i+1==nh): reads(i+1)
        if i+1==nh:
            vwait(('A',nh)); reads(nh)
        if i+1<nh and isL(i+1): readsBL(i+1)
        for brr in range(2):
            for ar in range(2):
                if i<nh:
                    a=AF+(i%2)*8+ar*4
                    b_=(BL[i%2]+brr*4) if isL(i) else (BR+(i%RB)*8+brr*4)
                else: a=ZA+(i-nh)*8+ar*4; b_=AF+(i%2)*8+brr*4
                mf32(A,ACC+(ar+2*brr)*16,a,b_,i==0)
        if i==ZP: A.I('s_barrier')
        if i+NA<nh: dmaA(i+NA)
        while nxt<nh and nxt<=i+RB:
            issueB(nxt); nxt+=1
    for i in range(4):
        A.I(f'buffer_load_dwordx2 {v(XR2+2*i,2)}, v{vX}, s[24:27], 0 offen offset:{16*i}')
    ST.mark(A)
    lds_wait(A,vC,T,48,1)
    A.I(f's_lshl_b32 s39, s15, 6\ns_lshl_b32 s31, s37, 5\ns_add_u32 s39, s39, s31\nv_add_u32 v{T+6}, s39, v{l32}\nv_lshlrev_b32 v{T+6}, 1, v{T+6}\ns_mov_b32 s39, {512*4096}')
    A.I(f'buffer_load_ushort v{T+7}, v{T+6}, s[20:23], s39 offen{SC}')
    A.I(f'v_lshlrev_b32 v{vLw}, 4, v{L}\nv_add_u32 v{vLw}, s45, v{vLw}')
    for j in range(1,4):
        for c in range(4): A.I(f'ds_write_b128 v{vLw}, {v(ACC+j*16+c*4,4)} offset:{(j-1)*4096+c*1024}')
    A.I('s_waitcnt lgkmcnt(0)\ns_barrier')
    for j in range(1,4):
        A.I(f's_xor_b32 s39, s12, {j}\ns_mul_i32 s39, s39, {AREG}\nv_lshlrev_b32 v{vLr}, 4, v{L}\nv_add_u32 v{vLr}, s39, v{vLr}')
        for c in range(4): A.I(f'ds_read_b128 {v(BR+(j-1)*16+c*4,4)}, v{vLr} offset:{(j-1)*4096+c*1024}')
    for j in range(3):
        A.I(f's_waitcnt lgkmcnt({8-4*j})')
        for i in range(16): A.I(f'v_add_f32 v{ACC+i}, v{ACC+i}, v{BR+j*16+i}')
    A.I(f's_waitcnt vmcnt(0)\nv_lshlrev_b32 v{T+7}, 16, v{T+7}')
    for i in range(16): A.I(f'v_{"add" if i%2==0 else "sub"}_f32 v{ACC+i}, v{ACC+i}, v{T+7}')
    for qq in range(4):
        x0,x1=XR2+2*qq,XR2+2*qq+1
        A.I(f"""v_lshlrev_b32 v{T}, 16, v{x0}
        v_and_b32 v{T+1}, 0xffff0000, v{x0}
        v_lshlrev_b32 v{T+2}, 16, v{x1}
        v_and_b32 v{T+3}, 0xffff0000, v{x1}""")
        for r in range(4): A.I(f'v_add_f32 v{ACC+4*qq+r}, v{ACC+4*qq+r}, v{T+r}')
        A.I(f'v_cvt_pk_bf16_f32 v{x0}, v{ACC+4*qq}, v{ACC+4*qq+1}')
        A.I(f'v_cvt_pk_bf16_f32 v{x1}, v{ACC+4*qq+2}, v{ACC+4*qq+3}')
        A.I(f'buffer_store_dwordx2 {v(x0,2)}, v{vX}, s[40:43], 0 offen offset:{16*qq}'+(' sc1' if 'outsc1' in EXP else (' nt' if 'outnt' in EXP else '')))

NAME='parallel_sum__spectral_gfnet__glu_gated_geglu__prompt'
HDR=open('cdna_kernels/'+NAME+'.s.ref').read().split('; Override')[0]
def full():
    A=Asm(); K=NAME+'_kernel'
    A.raw(HDR.rstrip())
    A.raw(f'; @launch grid=(256,1,1) block=(512,1,1) lds={LDS_TOTAL}')
    A.raw('.amdgcn_target "amdgcn-amd-amdhsa--gfx950"\n.text')
    A.raw(f'.globl {K}\n.p2align 8\n.type {K},@function'); A.L(K)
    A.I('s_cmp_ge_u32 s2, 256\ns_cbranch_scc1 k_done')
    if 'scram' in EXP: A.I('s_and_b32 s3, s2, 7\ns_lshl_b32 s3, s3, 5\ns_lshr_b32 s2, s2, 3\ns_or_b32 s2, s2, s3')
    A.I('''s_load_dwordx2 s[4:5], s[0:1], 72
    s_load_dwordx2 s[6:7], s[0:1], 0
    s_load_dwordx2 s[28:29], s[0:1], 32
    s_load_dwordx2 s[30:31], s[0:1], 40
    s_load_dwordx2 s[54:55], s[0:1], 64
    s_load_dwordx2 s[40:41], s[0:1], 8
    s_load_dwordx2 s[44:45], s[0:1], 16
    s_load_dwordx2 s[56:57], s[0:1], 48
    v_lshrrev_b32 v1, 6, v0
    s_nop 0
    v_readfirstlane_b32 s32, v1
    s_waitcnt lgkmcnt(0)''')
    ST.mark(A)
    p1_body(A)
    if 'p1only' in EXP:
        A.I('s_waitcnt vmcnt(0)'); ST.mark(A); ST.dump(A); A.I('s_endpgm')
    n0=ST.n
    A.I('s_cmp_ge_u32 s32, 4\ns_cbranch_scc1 k_s2')
    A.fence()
    p3_phase(A)
    if STAMP: A.I('s_waitcnt vmcnt(0)')
    ST.mark(A)
    ST.dump(A)
    A.I('s_endpgm')
    A.L('k_s2'); A.fence()
    ST.n=n0
    s2_phase(A)
    ST.mark(A)
    ST.dump(A)
    A.L('k_done'); A.I('s_endpgm')
    txt=A.finalize()
    txt+=f'''.section .rodata,"a"
.p2align 6
.amdhsa_kernel {K}
  .amdhsa_next_free_vgpr 256
  .amdhsa_next_free_sgpr 100
  .amdhsa_accum_offset 256
  .amdhsa_group_segment_fixed_size 0
  .amdhsa_kernarg_size 80
  .amdhsa_user_sgpr_count 2
  .amdhsa_user_sgpr_kernarg_segment_ptr 1
  .amdhsa_system_sgpr_workgroup_id_x 1
  .amdhsa_float_denorm_mode_32 3
.end_amdhsa_kernel
'''
    return txt
if __name__=='__main__':
    if len(sys.argv)>2 and sys.argv[2]=='stamp': STAMP=True
    if len(sys.argv)>3: EXP=set(sys.argv[3].split(','))
    for e in EXP:
        if e.startswith('na'): NA_=int(e[2:])
        if e.startswith('zp'): ZP_=int(e[2:])
        if e.startswith('nb'): NB_=int(e[2:])
    if 'pace1' in EXP: PACE=1
    if 'pace2' in EXP: PACE=2
    if 'perm' in EXP: SB[1],SB[2]=SB[2],SB[1]
    if 'sb16' in EXP: SB[1]=49152+4096; SB[2]=98304+8192
    if 'plainB' in EXP: SCB=''
    if 'pollsc1' in EXP: SCP=' sc1'
    if 'nos2' in EXP: pass
    open(sys.argv[1],'w').write(full())
```

```python
import sys, struct, math
from asmlib import *
OFF_HP=0; OFF_ZQ=0x700000; OFF_YQ=0x940000; OFF_WT=0xB40000
OFF_CNT=0x1000000; OFF_RS=0x1018000; OFF_CSP=0x1040000; OFF_TS=0x2000000
C_RS=0; C_CS=16; C_H=32; C_Y=48; C_Z=64; ZREP=16; C_N=64+ZREP*8; NCNT=256
SLOT=49152; XS=0; GS=16384; US=32768
SB=[0,49152,98304]
YSCR=3*SLOT
LDS_TOTAL=163840; CTRL=LDS_TOTAL-256; STAT=CTRL-1024
NSL=17; AREG=NSL*2048
EX=4*AREG
STAMP=False; EXP=set(); PACE=0; NA_=17; ZP_=18; NB_=8; WI=4
SC=' sc1'
SCB=' sc1'
SCP=' sc1'
def f2u(x): return '0x%08x'%struct.unpack('<I',struct.pack('<f',x))[0]
class Stamps:
    def __init__(s): s.n=0
    def mark(s,A):
        if not STAMP or s.n>=15: return
        A.I(f's_{"memtime" if "clk" in EXP else "memrealtime"} s[{66+2*s.n}:{67+2*s.n}]'); s.n+=1
    def dump(s,A,n=None):
        if not STAMP: return
        n=s.n if n is None else n
        if 'diag' in EXP:
            A.I('s_waitcnt lgkmcnt(0) vmcnt(0)')
            l=newlab('dg')
            A.I(f's_cmp_lg_u32 s32, 0\ns_cbranch_scc1 {l}')
            A.I('s_load_dwordx2 s[96:97], s[0:1], 64\ns_waitcnt lgkmcnt(0)\ns_mov_b64 exec, 1')
            A.I('s_not_b32 s60, s66\nv_mov_b32 v244, 4\nv_mov_b32 v245, s60\nglobal_atomic_umax v244, v245, s[96:97]')
            for i in range(1,min(n,13)):
                A.I(f'v_mov_b32 v244, {4+4*i}\nv_mov_b32 v245, s{66+2*i}\nglobal_atomic_umax v244, v245, s[96:97]')
            A.I('s_mov_b64 exec, -1')
            A.L(l)
            return
        A.I('s_waitcnt lgkmcnt(0) vmcnt(0)')
        A.I(f's_lshl_b32 s60, s2, 3\ns_add_u32 s60, s60, s32\ns_lshl_b32 s60, s60, 7\ns_add_u32 s60, s60, {hex(OFF_TS)}')
        A.I(f's_add_u32 s96, s4, s60\ns_addc_u32 s97, s5, 0')
        A.I('v_mov_b32 v246, 0')
        for i in range(n):
            A.I(f'v_mov_b32 v244, s{66+2*i}\nv_mov_b32 v245, s{67+2*i}')
            A.I(f'global_store_dwordx2 v246, v[244:245], s[96:97] offset:{8*i}')
            A.I('s_nop 1')
ST=Stamps()
def srd(A,dst,base,off,size):
    if off:
        A.I(f's_add_u32 s{dst}, s{base}, {hex(off)}'); A.I(f's_addc_u32 s{dst+1}, s{base+1}, 0')
    else:
        A.I(f's_mov_b32 s{dst}, s{base}'); A.I(f's_mov_b32 s{dst+1}, s{base+1}')
    A.I(f's_mov_b32 s{dst+2}, {hex(size)}'); A.I(f's_mov_b32 s{dst+3}, 0x20000')
def mf16(A,D,a,b,first):
    A.I(f'v_mfma_f32_16x16x32_bf16 {v(D,4)}, {v(a,4)}, {v(b,4)}, {"0" if first else v(D,4)}')
def mf32(A,D,a,b,first=False):
    A.I(f'v_mfma_f32_32x32x16_bf16 {v(D,16)}, {v(a,4)}, {v(b,4)}, {"0" if first else v(D,16)}')
_lab=[0]
def newlab(p):
    _lab[0]+=1; return f'{p}_{_lab[0]}'
SPIN_MAX=0x20000
def lds_wait(A,vaddr,vtmp,off,val,n=1):
    l=newlab('lw'); d=newlab('ld')
    A.I('s_mov_b32 s58, 0'); A.L(l)
    if n==1:
        A.I(f'ds_read_b32 v{vtmp}, v{vaddr} offset:{off}\ns_waitcnt lgkmcnt(0)')
    else:
        A.I(f'ds_read_b128 {v(vtmp,4)}, v{vaddr} offset:{off}\ns_waitcnt lgkmcnt(0)')
        A.I(f'v_min_u32 v{vtmp}, v{vtmp}, v{vtmp+1}\nv_min_u32 v{vtmp+2}, v{vtmp+2}, v{vtmp+3}\nv_min_u32 v{vtmp}, v{vtmp}, v{vtmp+2}')
    A.I(f'v_readfirstlane_b32 s59, v{vtmp}')
    A.I(f's_cmp_ge_u32 s59, {val}\ns_cbranch_scc1 {d}')
    A.I(f's_add_u32 s58, s58, 1\ns_cmp_lt_u32 s58, {SPIN_MAX}\ns_cbranch_scc1 {l}')
    A.L(d)
def cnt_base(A):
    A.I(f's_add_u32 s62, s4, {hex(OFF_CNT)}\ns_addc_u32 s63, s5, 0')
def arrive(A,sidx,vt):
    cnt_base(A)
    A.I(f's_lshl_b32 s59, s{sidx}, 7\nv_mov_b32 v{vt}, s59\nv_mov_b32 v{vt+1}, 1\ns_mov_b64 exec, 1')
    A.I(f'global_atomic_add v{vt}, v{vt+1}, s[62:63]{SC}')
    A.I('s_mov_b64 exec, -1')
def poll_cnt(A,voff,vexp,vt,nl,first_loaded=False,sleep=0):
    l=newlab('pc'); d=newlab('pd'); c=newlab('pk')
    cnt_base(A)
    A.I(f's_mov_b32 s58, 0\ns_mov_b64 exec, {(1<<nl)-1}')
    if first_loaded: A.I(f's_branch {c}')
    A.L(l)
    A.I(f'global_load_dword v{vt}, v{voff}, s[62:63]{SCP}\ns_waitcnt vmcnt(0)')
    A.L(c)
    A.I(f'v_cmp_ne_u32 vcc, v{vt}, v{vexp}\ns_cbranch_vccz {d}')
    if sleep: A.I(f's_sleep {sleep}')
    A.I(f's_add_u32 s58, s58, 1\ns_cmp_lt_u32 s58, {SPIN_MAX>>4}\ns_cbranch_scc1 {l}')
    A.L(d)
    A.I('s_mov_b64 exec, -1')

def p1_body(A):
    L,half,l32=1,2,3
    vX0,vX1,vW=4,5,6
    vAr=8; vBr=12
    csr=24; ones=28
    AFR=32; BFR=48
    T=80
    RSL=104; RSV=108
    vHo=112
    ACC=128
    vFw=8; fu=12; kb=13; kmask=14; FB=32; FO=48; SV=128; ST2=56; WTr=60; vWTs=76; vWTd=77; CSL=160; RD=20; FP=22
    PB=192
    tile=lambda m,st: ACC+(st>>1)*64+(m*2+(st&1))*16
    A.I(f"""
    v_and_b32 v{L}, 63, v0
    v_and_b32 v{l32}, 31, v0
    v_bfe_u32 v{half}, v0, 5, 1
    s_and_b32 s33, s2, 7
    s_lshr_b32 s34, s2, 3
    s_and_b32 s35, s33, 1
    s_lshl_b32 s35, s35, 3
    s_and_b32 s36, s34, 7
    s_add_u32 s35, s35, s36              ; rb
    s_lshr_b32 s33, s33, 1
    s_lshl_b32 s33, s33, 2
    s_lshr_b32 s34, s34, 3
    s_add_u32 s34, s33, s34              ; cb
    s_and_b32 s36, s32, 3                ; fq (C) / h (H)
    s_lshr_b32 s37, s32, 2               ; sh
    s_lshr_b32 s49, s35, 1               ; s0 (K rotation)
    s_cmp_lt_u32 s32, 4
    s_cbranch_scc1 p1_roleC
    """)
    NST=8
    def spread_into(G,items,lo,hi):
        n=hi-lo
        for j,it in enumerate(items): G[lo+min(j*n//max(len(items),1),n-1)].append(it)
    want=lambda i: i in ((0,1,2,3,4,5,6,7) if 'allB' in EXP else (1,2,3,4,5) if 'bw' in EXP else (() if ('p3steps' in EXP or 's2fine' in EXP) else (0,4)))
    n_st=ST.n
    vq=[]
    srd(A,8,6,0,2048*512*2)
    srd(A,12,28,0,512*1792*2)
    srd(A,16,30,0,512*1792*2)
    mask=0
    for Ln in range(64):
        c=(Ln%16)^((Ln//16)<<2)
        if c<14: mask|=1<<Ln
    A.I(f"""
    s_mov_b32 s50, {hex(mask&0xffffffff)}
    s_mov_b32 s51, {hex(mask>>32)}
    s_lshl_b32 s38, s36, 12              ; h*4096
    v_lshrrev_b32 v{T}, 3, v{L}
    v_lshlrev_b32 v{T}, 16, v{T}
    s_lshl_b32 s60, s35, 2
    s_add_u32 s60, s60, s36
    s_lshl_b32 s60, s60, 10
    v_add_u32 v{T}, s60, v{T}
    v_and_b32 v{T+1}, 7, v{L}
    v_lshrrev_b32 v{T+2}, 4, v{L}
    v_xor_b32 v{T+1}, v{T+1}, v{T+2}
    v_lshl_add_u32 v{vX0}, v{T+1}, 4, v{T}
    v_xor_b32 v{vX1}, 64, v{vX0}
    s_lshl_b32 s60, s36, 4
    v_add_u32 v{T+1}, s60, v{T+2}
    s_movk_i32 s60, 3584
    v_mul_lo_u32 v{T+1}, v{T+1}, s60
    v_and_b32 v{T+3}, 15, v{L}
    v_lshlrev_b32 v{T+2}, 2, v{T+2}
    v_xor_b32 v{T+3}, v{T+3}, v{T+2}
    v_lshl_add_u32 v{vW}, v{T+3}, 4, v{T+1}
    s_mul_i32 s60, s34, 224
    v_add_u32 v{vW}, s60, v{vW}
    """)
    def dma(stage):
        slot=SB[stage%3]
        A.I(f's_add_u32 s52, s49, {stage}\ns_and_b32 s52, s52, 7\ns_mul_i32 s53, s52, {64*3584}\ns_lshl_b32 s52, s52, 7')
        for i in range(4):
            A.I(f's_add_u32 m0, s38, {slot+XS+i*1024}')
            A.I(f's_add_u32 s60, s52, {i*524288}')
            A.I(f'buffer_load_dwordx4 v{vX0+(i&1)}, s[8:11], s60 offen lds'); vq.append(stage)
            if PACE and stage>1: A.I(f's_sleep {PACE}')
            A.I(f's_add_u32 s60, s53, {i*14336}\ns_mov_b64 exec, s[50:51]')
            for m in range(2):
                A.I(f's_add_u32 m0, s38, {slot+(US if m else GS)+i*1024}\ns_nop 0')
                A.I(f'buffer_load_dwordx4 v{vW}, s[{12+4*m}:{15+4*m}], s60 offen lds'); vq.append(stage)
                if PACE and stage>1: A.I(f's_sleep {PACE}')
            A.I('s_mov_b64 exec, -1')
    VST='vst' in EXP
    RBUF=[112,160,208]; vLW=16
    def gload(stage):
        b=RBUF[stage%3]
        A.I(f's_add_u32 s52, s49, {stage}\ns_and_b32 s52, s52, 7\ns_mul_i32 s53, s52, {64*3584}\ns_lshl_b32 s52, s52, 7')
        for i in range(4):
            A.I(f's_add_u32 s60, s52, {i*524288}')
            A.I(f'buffer_load_dwordx4 {v(b+12*i,4)}, v{vX0+(i&1)}, s[8:11], s60 offen'); vq.append(('L',stage))
            A.I(f's_add_u32 s60, s53, {i*14336}\ns_mov_b64 exec, s[50:51]')
            for m in range(2):
                A.I(f'buffer_load_dwordx4 {v(b+12*i+4+4*m,4)}, v{vW}, s[{12+4*m}:{15+4*m}], s60 offen'); vq.append(('L',stage))
            A.I('s_mov_b64 exec, -1')
    def lwrite(stage):
        b=RBUF[stage%3]; sl=stage%3
        vwait(('L',stage))
        for i in range(4): A.I(f'ds_write_b128 v{vLW+sl}, {v(b+12*i,4)} offset:{XS+i*1024}')
        A.I('s_mov_b64 exec, s[50:51]')
        for i in range(4):
            for m in range(2): A.I(f'ds_write_b128 v{vLW+sl}, {v(b+12*i+4+4*m,4)} offset:{(US if m else GS)+i*1024}')
        A.I('s_mov_b64 exec, -1')
    def vwait(tag,lg=False):
        idx=[k for k,x in enumerate(vq) if x==tag]
        if not idx:
            if lg: A.I('s_waitcnt lgkmcnt(0)')
            return
        N=len(vq)-1-max(idx); del vq[:max(idx)+1]
        A.I(f's_waitcnt vmcnt({min(N,63)})'+(' lgkmcnt(0)' if lg else ''))
    if VST: SV=60
    (gload if VST else dma)(0)
    A.I(f"""
    s_lshl_b32 s33, s34, 3
    s_lshl_b32 s60, s36, 1
    s_add_u32 s33, s33, s60
    s_lshl_b32 s60, s35, 7
    s_add_u32 s64, s60, s33
    v_lshlrev_b32 v{T}, 4, v{L}
    """)
    for n in range(2):
        A.I(f"""s_add_u32 s60, s64, {n}
        s_and_b32 s61, s60, 31
        s_lshl_b32 s61, s61, 6
        s_lshr_b32 s60, s60, 5
        s_add_u32 s60, s60, s61
        s_lshl_b32 s60, s60, 10
        buffer_load_dwordx4 {v(SV+4*n,4)}, v{T}, s[8:11], s60 offen"""); vq.append('row')
    (gload if VST else dma)(1)
    if VST:
        gload(2)
        A.I(f'v_lshlrev_b32 v{vLW}, 4, v{L}\nv_add_u32 v{vLW}, s38, v{vLW}\nv_add_u32 v{vLW+1}, {SB[1]}, v{vLW}\nv_add_u32 v{vLW+2}, {SB[2]}, v{vLW}')
    A.I('s_cmp_lt_u32 s32, 6\ns_cbranch_scc1 p1H_nf')
    A.skip_begin()
    A.I(f"""
    s_and_b32 s39, s32, 1
    s_lshl_b32 s33, s49, 6
    s_lshl_b32 s60, s39, 5
    s_add_u32 s33, s33, s60
    v_add_u32 v{T+2}, s33, v{l32}
    v_cvt_f32_u32 v{fu}, v{T+2}
    v_mul_f32 v{fu}, {f2u(1/512)}, v{fu}
    s_lshl_b32 s33, s34, 4
    v_lshlrev_b32 v{T+3}, 3, v{half}
    v_add_u32 v{T+3}, s33, v{T+3}
    v_cvt_f32_u32 v{kb}, v{T+3}
    v_mov_b32 v{kmask}, 0xffff
    """)
    for b_ in range(2):
        if b_==1: A.I(f'v_add_f32 v{fu}, {f2u(0.125)}, v{fu}\nv_fract_f32 v{fu}, v{fu}')
        A.I(f'v_mul_f32 v{T+4}, v{fu}, v{kb}')
        for j in range(4):
            A.I(f'v_cos_f32 v{T+6}, v{T+4}\nv_sin_f32 v{T+8}, v{T+4}\nv_add_f32 v{T+4}, v{T+4}, v{fu}')
            A.I(f'v_cos_f32 v{T+7}, v{T+4}\nv_sin_f32 v{T+9}, v{T+4}\nv_add_f32 v{T+4}, v{T+4}, v{fu}')
            A.I(f'v_cvt_pk_bf16_f32 v{FB+8*b_+j}, v{T+6}, v{T+7}')
            A.I(f'v_cvt_pk_bf16_f32 v{FB+8*b_+4+j}, -v{T+8}, -v{T+9}')
        A.I(f"""v_and_b32 v{T+5}, 1, v{l32}
        v_lshlrev_b32 v{T+5}, 15, v{T+5}
        v_or_b32 v{T+5}, 0x3f80, v{T+5}
        v_bfi_b32 v{T+5}, v{kmask}, v{T+5}, v{FB+8*b_+4}
        v_cmp_eq_u32 vcc, 0, v{T+3}
        v_cndmask_b32 v{FB+8*b_+4}, v{FB+8*b_+4}, v{T+5}, vcc""")
    A.I(f"""
    s_lshl_b32 s60, s39, 5
    v_add_u32 v{T+2}, s60, v{l32}
    v_and_b32 v{T+3}, 3, v{T+2}
    v_lshlrev_b32 v{T+3}, 2, v{T+3}
    v_add_u32 v{T+4}, 14, v{half}
    v_xor_b32 v{T+3}, v{T+3}, v{T+4}
    v_lshlrev_b32 v{T+3}, 4, v{T+3}
    v_lshl_add_u32 v{T+3}, v{T+2}, 8, v{T+3}
    v_add_u32 v{vFw}, {GS+SB[0]}, v{T+3}
    v_add_u32 v{vFw+1}, {GS+SB[1]}, v{T+3}
    v_add_u32 v{vFw+2}, {GS+SB[2]}, v{T+3}
    """)
    A.skip_end(); A.L('p1H_nf')
    flab=[0]
    def fgen(stage):
        flab[0]+=1; l=f'p1H_fg{flab[0]}'
        A.I(f's_cmp_lt_u32 s32, 6\ns_cbranch_scc1 {l}')
        A.skip_begin()
        slot=stage%3; b_=stage&1; t=(stage>>1)&3; B0=FB+8*b_
        def wr(m,src): A.I(f'ds_write_b128 v{vFw+slot}, {v(src,4)} offset:{m*16384}')
        if t==0:
            wr(0,B0); wr(1,B0+4)
        elif t==2:
            for m in range(2):
                for j in range(4): A.I(f'v_xor_b32 v{FO+4*m+j}, 0x80000000, v{B0+4*m+j}')
                wr(m,FO+4*m)
        else:
            ex=0 if t==1 else 0x80000000
            for m in range(2):
                for j in range(4):
                    own=B0+4*m+j; oth=B0+4*(1-m)+j
                    A.I(f'v_bfi_b32 v{FO+4*m+j}, v{kmask}, v{own}, v{oth}')
                    if m==0: sg=(0 if j%2==0 else 0x80008000)
                    else: sg=(0x80000000 if j%2==0 else 0x8000)
                    sg^=ex
                    if sg: A.I(f'v_xor_b32 v{FO+4*m+j}, {hex(sg)}, v{FO+4*m+j}')
                wr(m,FO+4*m)
        A.skip_end(); A.L(l)
    A.I('s_cmp_lg_u32 s2, 0\ns_cbranch_scc1 p1H_non\ns_cmp_lg_u32 s32, 7\ns_cbranch_scc1 p1H_non')
    A.skip_begin()
    cnt_base(A)
    A.I(f'v_lshlrev_b32 v{T}, 7, v{L}\nv_mov_b32 v{T+1}, 0')
    for j in range(NCNT//64):
        A.I(f'global_store_dword v{T}, v{T+1}, s[62:63]{SC}\nv_add_u32 v{T}, {64*128}, v{T}')
    A.I('s_mov_b64 exec, 1')
    A.I(f's_waitcnt vmcnt(0)\nv_mov_b32 v{T}, 0\nv_mov_b32 v{T+1}, 1\nglobal_store_dword v{T}, v{T+1}, s[54:55]{SC}\ns_mov_b64 exec, -1')
    A.skip_end(); A.L('p1H_non')
    def rowstats():
        U=T+14; S=ST2
        vwait('row')
        for i in range(4):
            for n in range(2):
                u=U+2*n
                A.I(f'v_lshlrev_b32 v{u}, 16, v{SV+4*n+i}\nv_and_b32 v{u+1}, 0xffff0000, v{SV+4*n+i}')
                if i==0: A.I(f'v_add_f32 v{S+2*n}, v{u}, v{u+1}\nv_mul_f32 v{S+2*n+1}, v{u}, v{u}')
                else: A.I(f'v_add_f32 v{S+2*n}, v{S+2*n}, v{u}\nv_fmac_f32 v{S+2*n+1}, v{u}, v{u}\nv_add_f32 v{S+2*n}, v{S+2*n}, v{u+1}')
                A.I(f'v_fmac_f32 v{S+2*n+1}, v{u+1}, v{u+1}')
        for ror in (8,4,2,1):
            for x in range(S,S+4): A.I(f'v_add_f32_dpp v{x}, v{x}, v{x} row_ror:{ror} row_mask:0xf bank_mask:0xf')
        for op in ('v_permlane16_swap_b32','v_permlane32_swap_b32'):
            for k in range(4): A.I(f'v_mov_b32 v{U+k}, v{S+k}')
            for k in range(4): A.I(f'{op} v{S+k}, v{U+k}')
            for k in range(4): A.I(f'v_add_f32 v{S+k}, v{S+k}, v{U+k}')
        A.I(f"""
        v_and_b32 v{U}, 1, v{L}
        v_cmp_eq_u32 vcc, 1, v{U}
        v_cndmask_b32 v{S}, v{S}, v{S+2}, vcc
        v_cndmask_b32 v{S+1}, v{S+1}, v{S+3}, vcc
        v_mul_f32 v{U}, {f2u(1/512)}, v{S}
        v_mul_f32 v{U+1}, {f2u(1/512)}, v{S+1}
        v_fma_f32 v{U+1}, -v{U}, v{U}, v{U+1}
        v_max_f32 v{U+1}, 0, v{U+1}
        v_cvt_pk_bf16_f32 v{U}, v{U}, v{U+1}
        v_and_b32 v{U+1}, 0xffff0000, v{U}
        v_lshlrev_b32 v{U}, 16, v{U}
        v_sub_f32 v{S}, 0, v{U}
        v_add_f32 v{U+1}, {f2u(1e-5)}, v{U+1}
        v_cvt_pk_bf16_f32 v{U+1}, v{U+1}, v{U+1}
        v_and_b32 v{U+1}, 0xffff0000, v{U+1}
        v_sqrt_f32 v{U+1}, v{U+1}
        v_cvt_pk_bf16_f32 v{U+1}, v{U+1}, v{U+1}
        v_and_b32 v{S+1}, 0xffff0000, v{U+1}
        s_lshl_b32 s60, s64, 3
        s_add_u32 s60, s60, {OFF_RS}
        s_add_u32 s62, s4, s60
        s_addc_u32 s63, s5, 0
        v_lshlrev_b32 v{U}, 3, v{L}
        s_mov_b64 exec, 3
        global_store_dwordx2 v{U}, {v(S,2)}, s[62:63]{SC}
        s_mov_b64 exec, -1
        """); vq.append('st')
    WV=128
    wS=76; wD=77
    def wt_job_loads():
        A.I(f"""
        v_and_b32 v{wD}, 255, v0
        v_lshrrev_b32 v{wD}, 4, v{wD}
        s_lshl_b32 s60, s35, 7
        v_add_u32 v{wS}, s60, v{wD}
        v_mul_u32_u24 v{wS}, 257, v{wS}
        v_and_b32 v{wD+1}, 15, v0
        s_lshl_b32 s60, s34, 4
        v_add_u32 v{wD+1}, s60, v{wD+1}
        v_add_u32 v{wS}, v{wS}, v{wD+1}
        v_lshlrev_b32 v{wS}, 1, v{wS}
        s_lshr_b32 s60, s35, 2
        s_lshl_b32 s60, s60, 11
        s_and_b32 s61, s35, 3
        s_lshl_b32 s61, s61, 8
        s_add_u32 s65, s60, s61
        v_lshlrev_b32 v{wD}, 4, v{wD}
        v_add_u32 v{wD}, s65, v{wD}
        v_lshl_add_u32 v{wD}, v{wD+1}, 13, v{wD}
        s_mov_b32 s42, 0x101000
        s_mov_b32 s43, 0x20000
        s_mov_b32 s46, 0x101000
        s_mov_b32 s47, 0x20000
        """)
        for n in range(2):
            for r in range(4):
                A.I(f's_mov_b32 s60, {r*16448+n*8224}')
                A.I(f'buffer_load_short_d16 v{WV+4*n+r}, v{wS}, s[40:43], s60 offen')
                A.I(f'buffer_load_short_d16_hi v{WV+8+4*n+r}, v{wS}, s[44:47], s60 offen'); vq.extend(['wt','wt'])
        A.I('s_cmp_lg_u32 s34, 0\ns_cbranch_scc1 p1H_wt0\ns_cmp_lg_u32 s32, 4\ns_cbranch_scc1 p1H_wt0')
        A.skip_begin()
        A.I(f's_lshl_b32 s60, s35, 7\nv_add_u32 v{wD+1}, s60, v{l32}\nv_mul_u32_u24 v{wD+1}, 257, v{wD+1}\nv_add_u32 v{wD+1}, 256, v{wD+1}\nv_lshlrev_b32 v{wD+1}, 1, v{wD+1}')
        for r in range(4):
            A.I(f's_mov_b32 s60, {r*16448}')
            A.I(f'buffer_load_short_d16 v{WV+16+r}, v{wD+1}, s[40:43], s60 offen')
            A.I(f'buffer_load_short_d16_hi v{WV+20+r}, v{wD+1}, s[44:47], s60 offen')
        A.skip_end(); A.L('p1H_wt0')
    def wt_job_stores():
        vwait('wt')
        srd(A,40,4,OFF_WT,257*8192)
        for n in range(2):
            for r in range(4): A.I(f'v_or_b32 v{WV+4*n+r}, v{WV+4*n+r}, v{WV+8+4*n+r}')
            A.I(f'buffer_store_dwordx4 {v(WV+4*n,4)}, v{wD}, s[40:43], 0 offen offset:{n*1024}{SC}'); vq.append('wst')
        A.I('s_cmp_lg_u32 s34, 0\ns_cbranch_scc1 p1H_wt1\ns_cmp_lg_u32 s32, 4\ns_cbranch_scc1 p1H_wt1')
        A.skip_begin()
        for r in range(4): A.I(f'v_or_b32 v{WV+16+r}, v{WV+16+r}, v{WV+20+r}')
        A.I(f'v_lshrrev_b32 v{wS}, 4, v{l32}\nv_lshlrev_b32 v{wS}, 10, v{wS}\nv_and_b32 v{wD+1}, 15, v{l32}\nv_lshl_add_u32 v{wS}, v{wD+1}, 4, v{wS}')
        A.I(f'v_add_u32 v{wS}, s65, v{wS}\nv_add_u32 v{wS}, 0x200000, v{wS}\ns_mov_b32 exec_hi, 0')
        A.I(f'buffer_store_dwordx4 {v(WV+16,4)}, v{wS}, s[40:43], 0 offen{SC}\ns_mov_b64 exec, -1')
        A.skip_end(); A.L('p1H_wt1')
    def warmup():
        A.I(f"""
        s_bfe_u32 s60, s2, 0x30003            ; n&7
        s_mul_i32 s60, s60, 224
        s_mul_i32 s61, s36, 56
        s_add_u32 s60, s60, s61
        v_add_u32 v{T}, s60, v{L}
        v_lshlrev_b32 v{T}, 10, v{T}
        s_bfe_u32 s60, s2, 0x10002            ; x>>2
        s_lshl_b32 s60, s60, 2
        s_lshr_b32 s61, s2, 6
        s_add_u32 s60, s60, s61               ; db
        s_lshl_b32 s60, s60, 7
        v_add_u32 v{T}, s60, v{T}
        s_mov_b32 s20, s56
        s_mov_b32 s21, s57
        s_mov_b32 s22, {hex(1792*512*2)}
        s_mov_b32 s23, 0x20000
        {'buffer_load_dword v%d, v%d, s[20:23], 0 offen'%(T+2,T) if 'nopfw' not in EXP else 's_nop 0'}
        s_getpc_b64 s[60:61]
        p1H_pc:
        s_add_u32 s60, s60, p1_join-p1H_pc
        s_addc_u32 s61, s61, 0
        s_lshl_b32 s62, s36, 13
        v_lshlrev_b32 v{T+4}, 7, v{L}
        v_add_u32 v{T+4}, s62, v{T+4}
        v_min_u32 v{T+4}, k_done-p1_join, v{T+4}
        v_mov_b32 v{T+5}, s61
        v_add_co_u32 v{T+4}, vcc, s60, v{T+4}
        v_addc_co_u32 v{T+5}, vcc, 0, v{T+5}, vcc
        {'global_load_dword v%d, v[%d:%d], off'%(T+3,T+4,T+5) if 'nopfc' not in EXP else 's_nop 0'}
        """)
        vq.extend(['pf']*(2-('nopfw' in EXP)-('nopfc' in EXP)))
    def warm_filter():
        A.I(f"""
        s_lshl_b32 s60, s35, 7
        s_lshl_b32 s61, s36, 5
        s_add_u32 s60, s60, s61
        v_add_u32 v{T}, s60, v{l32}
        v_mul_u32_u24 v{T}, 514, v{T}
        s_lshl_b32 s60, s34, 5
        v_add_u32 v{T}, s60, v{T}
        v_and_b32 v{T}, -4, v{T}
        s_mov_b32 s42, 0x101000
        s_mov_b32 s43, 0x20000
        s_mov_b32 s46, 0x101000
        s_mov_b32 s47, 0x20000
        s_mov_b32 exec_hi, 0
        buffer_load_dword v{T+2}, v{T}, s[40:43], 0 offen
        s_mov_b64 exec, -1
        s_mov_b32 exec_lo, 0
        buffer_load_dword v{T+3}, v{T}, s[44:47], 0 offen
        s_mov_b64 exec, -1
        """); vq.extend(['pf','pf'])
    def ready_load():
        A.I(f'v_mov_b32 v{RD+1}, 0\ns_mov_b64 exec, 1\nglobal_load_dword v{RD}, v{RD+1}, s[54:55]{SCP}\ns_mov_b64 exec, -1'); vq.append('non')
    def ready_check():
        l=newlab('nl'); d=newlab('nd')
        A.I(f'v_readfirstlane_b32 s3, v{RD}\ns_cmp_lg_u32 s3, 0\ns_cbranch_scc1 {d}\ns_mov_b32 s58, 0')
        A.L(l)
        A.I(f'global_load_dword v{RD}, v{RD+1}, s[54:55]{SCP}\ns_waitcnt vmcnt(0)\nv_readfirstlane_b32 s3, v{RD}')
        A.I(f's_cmp_lg_u32 s3, 0\ns_cbranch_scc1 {d}\ns_add_u32 s58, s58, 1\ns_cmp_lt_u32 s58, {SPIN_MAX>>4}\ns_cbranch_scc1 {l}')
        A.L(d)
    def rs_loads(q):
        A.I(f"""
        s_lshl_b32 s60, s35, 7
        s_lshl_b32 s61, s37, 6
        s_add_u32 s60, s60, s61
        v_add_u32 v{RSL}, s60, v{l32}
        v_lshlrev_b32 v{RSL+1}, 3, v{RSL}
        s_add_u32 s62, s4, {OFF_RS}
        s_addc_u32 s63, s5, 0
        global_load_dwordx2 {v(RSV,2)}, v{RSL+1}, s[62:63]{SC}
        global_load_dwordx2 {v(RSV+2,2)}, v{RSL+1}, s[62:63] offset:256{SC}
        """); q.extend(['rs','rs'])
    if VST:
        lwrite(0); gload(3); lwrite(1); gload(4)
    for i in range(NST):
        if 'bw' in EXP and i in (1,2,3,4,5): ST.mark(A)
        if VST and i==3: vwait('st')
        vwait(i,True)
        if 'bw' in EXP and i in (1,2,3,4,5): ST.mark(A)
        if i==6:
            A.I('s_cmp_lg_u32 s32, 4\ns_cbranch_scc1 p1H_sq')
            A.skip_begin()
            A.I('s_waitcnt vmcnt(0)' if VST else 's_waitcnt vmcnt(12)')
            poll_cnt(A,FP+1,FP+3,FP+2,2,True)
            A.skip_end(); A.L('p1H_sq')
        A.I('s_barrier')
        if want(i): ST.mark(A)
        if i==5:
            A.I(f"""
            s_lshl_b32 s60, s35, 7
            s_add_u32 s61, s34, {C_CS}
            s_lshl_b32 s61, s61, 7
            v_mov_b32 v{FP+1}, s61
            v_mov_b32 v{FP}, s60
            v_cmp_eq_u32 vcc, 0, v{L}
            v_cndmask_b32 v{FP+1}, v{FP+1}, v{FP}, vcc
            v_mov_b32 v{FP+3}, 16
            s_cmp_lg_u32 s32, 4
            s_cbranch_scc1 p1H_sp
            """)
            A.skip_begin()
            cnt_base(A)
            A.I(f's_mov_b64 exec, 3\nglobal_load_dword v{FP+2}, v{FP+1}, s[62:63]{SCP}\ns_mov_b64 exec, -1')
            A.skip_end(); A.L('p1H_sp')
        if i==0: ready_load()
        if i==3:
            A.I('s_cmp_lg_u32 s32, 4\ns_cbranch_scc1 p1H_f0')
            A.skip_begin()
            ready_check()
            arrive(A,35,T+14)
            A.I(f's_add_u32 s61, s34, {C_CS}'); arrive(A,61,T+14)
            A.skip_end(); A.L('p1H_f0')
        if i+2<NST: fgen(i+2)
        if i+2<NST and not VST: dma(i+2)
        if i+2<NST and VST:
            lwrite(i+2)
            if i+5<NST: gload(i+5)
        if i==0: rowstats()
        if i==WI and 'nopf' not in EXP: warmup()
        if i==3 and 'pff' in EXP: warm_filter()
        if i==6:
            wt_job_loads()
            rs_loads(vq)
            A.I(f's_lshl_b32 s60, s34, 14\ns_add_u32 s60, s60, {OFF_CSP}\ns_add_u32 s20, s4, s60\ns_addc_u32 s21, s5, 0\nv_and_b32 v{FP}, 255, v0\nv_lshlrev_b32 v{FP}, 2, v{FP}')
            for j4 in range(4):
                if j4>0: A.I(f'v_add_u32 v{FP}, 4096, v{FP}')
                for j in range(4):
                    A.I(f'global_load_dword v{CSL+4*j4+j}, v{FP}, s[20:21] offset:{j*1024}{SC}'); vq.append('csp')
    vwait('csp')
    wt_job_stores()
    X=CSL
    for j in range(8): A.I(f'v_add_f32 v{X+j}, v{X+j}, v{X+8+j}')
    for j in range(4): A.I(f'v_add_f32 v{X+j}, v{X+j}, v{X+4+j}')
    A.I(f'v_add_f32 v{X}, v{X}, v{X+1}\nv_add_f32 v{X+2}, v{X+2}, v{X+3}\nv_add_f32 v{X}, v{X}, v{X+2}')
    A.I(f"""
    v_cvt_pk_bf16_f32 v{X+1}, v{X}, v{X}
    v_and_b32 v{X+1}, 0xffff0000, v{X+1}
    v_sub_f32 v{X+2}, v{X}, v{X+1}
    v_cvt_pk_bf16_f32 v{X}, v{X+1}, v{X+2}
    v_and_b32 v{T}, 255, v0
    v_lshlrev_b32 v{T}, 2, v{T}
    v_add_u32 v{T}, {STAT}, v{T}
    ds_write_b32 v{T}, v{X}
    """)
    ST.mark(A)
    A.I(f"""
    s_lshl_b32 s60, s36, 14
    s_cmp_eq_u32 s36, 3
    s_cselect_b32 s60, {SB[2]}, s60
    v_lshlrev_b32 v{T}, 4, v{L}
    v_add_u32 v{T}, s60, v{T}
    s_waitcnt lgkmcnt(0)
    s_barrier
    """)
    for k in range(16): A.I(f'ds_read_b128 {v(ACC+4*k,4)}, v{T} offset:{k*1024}')
    A.I('s_branch p1_join')
    A.L('p1_roleC'); A.fence()
    ST.n=n_st
    cq=[]; lq=[]
    A.I(f"""
    v_lshrrev_b32 v{T}, 5, v{L}
    v_lshlrev_b32 v{T}, 3, v{T}
    v_bfe_u32 v{T+1}, v{L}, 2, 2
    v_add_u32 v{T}, v{T}, v{T+1}
    v_lshlrev_b32 v{T}, 8, v{T}
    v_bfe_u32 v{T+2}, v{L}, 4, 1
    v_lshlrev_b32 v{T+2}, 1, v{T+2}
    v_bfe_u32 v{T+3}, v{L}, 1, 1
    v_add_u32 v{T+2}, v{T+2}, v{T+3}
    s_lshl_b32 s33, s36, 2
    v_add_u32 v{T+2}, s33, v{T+2}
    v_lshlrev_b32 v{T+1}, 2, v{T+1}
    v_xor_b32 v{T+2}, v{T+2}, v{T+1}
    v_lshl_add_u32 v{T}, v{T+2}, 4, v{T}
    v_and_b32 v{T+3}, 1, v{L}
    v_lshl_add_u32 v{T}, v{T+3}, 3, v{T}
    v_add_u32 v{vAr}, {GS+SB[0]}, v{T}
    v_add_u32 v{vAr+1}, {GS+SB[1]}, v{T}
    v_add_u32 v{vAr+2}, {GS+SB[2]}, v{T}
    v_lshlrev_b32 v{T}, 7, v{l32}
    v_bfe_u32 v{T+1}, v{l32}, 1, 3
    v_xor_b32 v{T+1}, v{T+1}, v{half}
    v_lshl_add_u32 v{T}, v{T+1}, 4, v{T}
    v_mov_b32 v{ones}, 0x3f803f80
    """)
    for sl in range(3):
        for ks in range(4):
            if ks==0: A.I(f'v_add_u32 v{vBr+sl*4}, {SB[sl]+XS}, v{T}')
            else: A.I(f'v_xor_b32 v{vBr+sl*4+ks}, {ks*32}, v{vBr+sl*4}')
    for k in range(4): A.I(f'v_mov_b32 v{csr+k}, 0')
    A.I(f'v_mov_b32 v{T}, {CTRL}\nv_lshl_add_u32 v{T}, v{L}, 2, v{T}\nv_mov_b32 v{T+1}, 0\nds_write_b32 v{T}, v{T+1}')
    A.I(f"""
    s_lshl_b32 s60, s36, 4
    v_and_b32 v{T}, 15, v{L}
    v_add_u32 v{T}, s60, v{T}              ; row
    s_lshl_b32 s60, s49, 6
    v_lshlrev_b32 v{T+1}, 6, v{half}
    v_add_u32 v{T+1}, v{T+1}, v{T}
    v_add_u32 v{T+1}, s60, v{T+1}
    v_and_b32 v{T+1}, 511, v{T+1}          ; d
    v_cvt_f32_u32 v{T+2}, v{T+1}
    v_mul_f32 v{T+2}, {f2u(1/512)}, v{T+2} ; u
    v_bfe_u32 v{T+3}, v{L}, 4, 1           ; ch
    s_lshl_b32 s60, s34, 4
    v_lshlrev_b32 v{T+4}, 3, v{T+3}
    v_add_u32 v{T+4}, s60, v{T+4}          ; k0
    v_cvt_f32_u32 v{T+5}, v{T+4}
    v_mul_f32 v{T+5}, v{T+5}, v{T+2}       ; angle
    """)
    for j in range(4):
        A.I(f'v_cos_f32 v{T+6}, v{T+5}\nv_sin_f32 v{T+8}, v{T+5}\nv_add_f32 v{T+5}, v{T+5}, v{T+2}')
        A.I(f'v_cos_f32 v{T+7}, v{T+5}\nv_sin_f32 v{T+9}, v{T+5}\nv_add_f32 v{T+5}, v{T+5}, v{T+2}')
        A.I(f'v_cvt_pk_bf16_f32 v{AFR+j}, v{T+6}, v{T+7}')
        A.I(f'v_cvt_pk_bf16_f32 v{AFR+4+j}, -v{T+8}, -v{T+9}')
    A.I(f"""
    v_and_b32 v{T+6}, 1, v{T}
    v_lshlrev_b32 v{T+6}, 15, v{T+6}
    v_or_b32 v{T+6}, 0x3f80, v{T+6}
    v_mov_b32 v{T+7}, 0xffff
    v_bfi_b32 v{T+6}, v{T+7}, v{T+6}, v{AFR+4}
    v_cmp_eq_u32 vcc, 0, v{T+4}
    v_cndmask_b32 v{AFR+4}, v{AFR+4}, v{T+6}, vcc
    v_and_b32 v{T+6}, 3, v{T}
    v_lshlrev_b32 v{T+6}, 2, v{T+6}
    v_add_u32 v{T+7}, 14, v{T+3}
    v_xor_b32 v{T+6}, v{T+6}, v{T+7}
    v_lshlrev_b32 v{T+6}, 4, v{T+6}
    v_lshl_add_u32 v{T+6}, v{T}, 8, v{T+6}
    v_mul_u32_u24 v{T+7}, {SB[1]-SB[0]}, v{half}
    v_add_u32 v{T+6}, v{T+6}, v{T+7}
    v_add_u32 v{T+6}, {GS+SB[0]}, v{T+6}
    ds_write_b128 v{T+6}, {v(AFR,4)}
    ds_write_b128 v{T+6}, {v(AFR+4,4)} offset:16384
    """)
    AS=[32,40,80]; BS=[48,64,88]
    def read_items(stage,ks,fs,sts=(0,1,2,3)):
        slot=stage%3; a=AS[fs]; bb=BS[fs]
        def ra(m):
            def f():
                for rd in range(2):
                    A.I(f'ds_read_b64_tr_b16 {v(a+m*4+rd*2,2)}, v{vAr+slot} offset:{m*16384+ks*4096+rd*1024}'); lq.append(('A',m,stage,ks))
            return f
        def rb(st):
            def f():
                A.I(f'ds_read_b128 {v(bb+st*4,4)}, v{vBr+slot*4+ks} offset:{st*4096}'); lq.append(('B',st,stage,ks))
            return f
        return [ra(0),rb(sts[0]),ra(1)]+[rb(x) for x in sts[1:]]
    def lwait(tags):
        idx=[k for k,x in enumerate(lq) if x in tags]
        if not idx: return
        n=len(lq)-1-max(idx); del lq[:max(idx)+1]
        A.I(f's_waitcnt lgkmcnt({min(n,15)})')
    def compute(stage,ks,fs,first,nxt,extra=None,cs=None,sts=(0,1,2,3)):
        a=AS[fs]; bb=BS[fs]; k=0
        nxt=list(nxt)
        per=[[] for _ in range(2*len(sts))]
        for j,it in enumerate(nxt): per[(j if len(nxt)<=len(per) else (j*len(per))//len(nxt))].append(it)
        for st in sts:
            for m in range(2):
                lwait([('A',m,stage,ks),('B',st,stage,ks)])
                mf32(A,tile(m,st),a+m*4,bb+st*4,first)
                for it in per[k]: it()
                if cs is not None: A.I(f'v_dot2c_f32_bf16 v{csr+cs*2+(k>>2)}, v{a+(k>>2)*4+(k&3)}, v{ones}')
                if extra and k in extra: extra[k]()
                k+=1
    def cs_chunks():
        U=104; C=[]
        C.append(lambda: A.I(f"""s_bitcmp1_b32 s35, 0
            s_cselect_b64 vcc, -1, 0
            v_cndmask_b32 v{U}, v{csr}, v{csr+2}, vcc
            v_cndmask_b32 v{U+2}, v{csr+1}, v{csr+3}, vcc"""))
        C.append(lambda: A.I(f"""v_mov_b32 v{U+1}, v{U}
            v_mov_b32 v{U+3}, v{U+2}
            s_lshl_b32 s60, s34, 4
            s_add_u32 s60, s60, s35"""))
        C.append(lambda: A.I(f"""v_permlane32_swap_b32 v{U}, v{U+1}
            v_permlane32_swap_b32 v{U+2}, v{U+3}
            s_lshl_b32 s60, s60, 10
            s_lshl_b32 s61, s36, 7"""))
        C.append(lambda: A.I(f"""v_add_f32 v{U}, v{U}, v{U+1}
            v_add_f32 v{U+2}, v{U+2}, v{U+3}
            s_add_u32 s60, s60, s61
            s_add_u32 s60, s60, {OFF_CSP}"""))
        C.append(lambda: A.I(f"""s_add_u32 s62, s4, s60
            s_addc_u32 s63, s5, 0
            v_lshlrev_b32 v{U+1}, 2, v{l32}
            s_mov_b32 exec_hi, 0
            global_store_dword v{U+1}, v{U}, s[62:63]{SC}
            s_mov_b64 exec, -1"""))
        C.append(lambda: A.I(f"""s_mov_b32 exec_hi, 0
            global_store_dword v{U+1}, v{U+2}, s[62:63] offset:512{SC}
            s_mov_b64 exec, -1"""))
        return C
    for i in range(NST):
        if 'bw' in EXP and i in (1,2,3,4,5): ST.mark(A)
        if i==3: A.I('s_waitcnt vmcnt(0)')
        A.I('s_waitcnt lgkmcnt(0)'); lq.clear()
        if 'bw' in EXP and i in (1,2,3,4,5): ST.mark(A)
        A.I('s_barrier')
        if want(i): ST.mark(A)
        if 'la2' not in EXP:
            fs=lambda st_,ks_: (4*st_+ks_)%3
            r01=read_items(i,0,fs(i,0))+read_items(i,1,fs(i,1))
            if i==0:
                for f in r01: f()
            else:
                compute(i-1,3,fs(i-1,3),False,r01,None,1 if i==1 else None)
            compute(i,0,fs(i,0),i==0,read_items(i,2,fs(i,2)),({6:lambda: rs_loads(cq)} if i==6 else (dict(zip((1,2,3,4,6,7),cs_chunks())) if i==1 else None)),0 if i==0 else None)
            compute(i,1,fs(i,1),False,read_items(i,3,fs(i,3)),None,0 if i==0 else None)
            compute(i,2,fs(i,2),False,[],None,1 if i==0 else None)
            continue
        r0=read_items(i,0,0)
        if i==0:
            for f in r0: f()
        else:
            compute(i-1,3,1,False,r0,None,1 if i==1 else None)
        compute(i,0,0,i==0,read_items(i,1,1),({6:lambda: rs_loads(cq)} if i==6 else (dict(zip((1,2,3,4,6,7),cs_chunks())) if i==1 else None)),0 if i==0 else None)
        compute(i,1,1,False,read_items(i,2,0),None,0 if i==0 else None)
        compute(i,2,0,False,read_items(i,3,1),None,1 if i==0 else None)
    HW=104
    A.I(f"""
    s_lshl_b32 s60, s36, 14
    s_cmp_eq_u32 s36, 3
    s_cselect_b32 s60, {SB[2]}, s60
    v_lshlrev_b32 v{HW}, 4, v{L}
    v_add_u32 v{HW}, s60, v{HW}
    """)
    if 'do7' not in EXP:
        A.I('s_waitcnt lgkmcnt(0)'); lq.clear()
        compute(7,3,((4*7+3)%3 if 'la2' not in EXP else 1),False,[])
        ST.mark(A)
        for k in range(16): A.I(f'ds_write_b128 v{HW}, {v(ACC+64+4*k,4)} offset:{k*1024}')
        A.I('s_waitcnt vmcnt(0) lgkmcnt(0)\ns_barrier')
    else:
        hi=(2,3); lo=(0,1)
        compute(7,0,0,False,read_items(7,1,1,hi),sts=hi)
        compute(7,1,1,False,read_items(7,2,0,hi),sts=hi)
        compute(7,2,0,False,read_items(7,3,1,hi),sts=hi)
        compute(7,3,1,False,read_items(10,0,0,lo),sts=hi)
        def hw(k0,k1):
            def f():
                for k in range(k0,k1):
                    A.I(f'ds_write_b128 v{HW}, {v(ACC+64+4*k,4)} offset:{k*1024}'); lq.append('hw')
            return f
        compute(10,0,0,False,read_items(10,1,1,lo),sts=lo)
        compute(10,1,1,False,read_items(10,2,0,lo),{0:hw(0,4),1:hw(4,8),2:hw(8,12),3:hw(12,16)},sts=lo)
        compute(10,2,0,False,read_items(10,3,1,lo),sts=lo)
        A.I('s_waitcnt lgkmcnt(0)\ns_barrier'); lq.clear()
        compute(10,3,1,False,[],sts=lo)
        ST.mark(A)
        A.I('s_waitcnt vmcnt(0)')
    A.L('p1_join')
    mm=[RSV,RSV+2]; sd=[RSV+1,RSV+3]
    c1p=T+6; c2p=T+14; sd2=T+16; rr=T+18
    c1=-2*0.7978845608028654*math.log2(math.e); c2=c1*0.044715
    FRK=32
    A.I(f"""
    s_lshl_b32 s39, s36, 7
    v_lshlrev_b32 v{T+2}, 2, v{l32}
    v_add_u32 v{T+2}, s39, v{T+2}
    v_add_u32 v{T+2}, {STAT}, v{T+2}
    ds_read_b32 v{T+10}, v{T+2}
    ds_read_b32 v{T+11}, v{T+2} offset:512
    """)
    for k in range(16): A.I(f'v_mov_b32 v{FRK+k}, 0')
    for st in range(2):
        A.I(f"""
        v_rcp_f32 v{rr+st}, v{sd[st]}
        v_mul_f32 v{sd2+st}, v{sd[st]}, v{sd[st]}
        v_mul_f32 v{c1p+st}, {f2u(c1)}, v{rr+st}
        v_mul_f32 v{T+9}, v{rr+st}, v{rr+st}
        v_mul_f32 v{T+9}, v{T+9}, v{rr+st}
        v_mul_f32 v{c2p+st}, {f2u(c2)}, v{T+9}
        """)
    srd(A,20,4,OFF_HP,224*32768)
    srd(A,24,4,OFF_YQ,256*8192)
    A.I(f"""
    v_cvt_pk_bf16_f32 v{T+12}, v{mm[0]}, v{mm[0]}
    v_cvt_pk_bf16_f32 v{T+13}, v{mm[1]}, v{mm[1]}
    v_cmp_gt_u32 vcc, 32, v{L}
    v_cndmask_b32 v{FRK+8}, 0, v{T+12}, vcc
    v_cndmask_b32 v{FRK+12}, 0, v{T+13}, vcc
    s_lshl_b32 s33, s35, 7
    s_lshl_b32 s39, s37, 6
    s_add_u32 s33, s33, s39              ; 128rb+64sh
    v_add_u32 v{T+4}, s33, v{l32}
    v_lshlrev_b32 v{vHo}, 4, v{T+4}
    v_lshl_add_u32 v{vHo}, v{half}, 15, v{vHo}
    v_add_u32 v{vHo+1}, 512, v{vHo}
    s_waitcnt lgkmcnt(0)
    v_cndmask_b32 v{FRK}, 0, v{T+10}, vcc
    v_cndmask_b32 v{FRK+4}, 0, v{T+11}, vcc
    """)
    for m in range(2):
        for b_ in range(2): mf32(A,ACC+(m*2+b_)*16,FRK+m*4,FRK+8+b_*4)
    vPf=114
    A.I('s_cmp_eq_u32 s37, 0\ns_cbranch_scc1 p1_pfC')
    A.I(f's_lshl_b32 s39, s36, 2\nv_mov_b32 v{vPf}, {CTRL}\nv_add_u32 v{vPf}, s39, v{vPf}\nv_mov_b32 v{vPf+1}, 1\nds_write_b32 v{vPf}, v{vPf+1} offset:64')
    A.I('s_branch p1_pfE')
    A.L('p1_pfC')
    srd(A,8,56,0,1792*512*2)
    A.I(f"""
    s_and_b32 s13, s2, 7
    s_lshr_b32 s14, s2, 3
    s_lshr_b32 s13, s13, 2
    s_lshl_b32 s13, s13, 2
    s_lshr_b32 s14, s14, 3
    s_add_u32 s13, s13, s14          ; db
    v_lshrrev_b32 v{vPf+1}, 3, v{L}
    v_bfe_u32 v{vPf+2}, v{L}, 4, 1
    v_lshlrev_b32 v{vPf+2}, 2, v{vPf+2}
    v_and_b32 v{vPf}, 7, v{L}
    v_xor_b32 v{vPf}, v{vPf}, v{vPf+2}
    v_lshlrev_b32 v{vPf}, 4, v{vPf}
    v_lshl_add_u32 v{vPf}, v{vPf+1}, 10, v{vPf}
    s_lshl_b32 s39, s13, 7
    v_add_u32 v{vPf}, s39, v{vPf}
    s_mul_i32 s44, s32, {28*16*1024}
    s_mul_i32 s45, s32, {AREG}
    v_mov_b32 v{vPf+1}, {CTRL}
    """)
    if 'epf' in EXP: lds_wait(A,vPf+1,116,64,1,4)
    A.L('p1_pfE')
    pfl=[0]
    def prefetch(lo,hi):
        if lo>=hi or 'epf' not in EXP: return
        pfl[0]+=1; l=f'p1_pf{pfl[0]}'
        A.I(f's_cmp_lg_u32 s37, 0\ns_cbranch_scc1 {l}')
        A.skip_begin()
        for t in range(lo,hi):
            for j in range(2):
                A.I(f's_add_u32 m0, s45, {t*2048+j*1024}')
                A.I(f's_add_u32 s39, s44, {(t*16+j*8)*1024}')
                A.I(f'buffer_load_dwordx4 v{vPf}, s[8:11], s39 offen lds')
        A.skip_end(); A.L(l)
    A.I('s_nop 7\ns_nop 4')
    Z=T+20
    vH=[vHo,vHo+1]
    GT=lambda st: ACC+st*16
    UT=lambda st: ACC+(2+st)*16
    def hq(q,st,p):
        g=[GT(st)+4*q+r for r in range(4)]; u=[UT(st)+4*q+r for r in range(4)]
        for r in range(4):
            A.I(f'v_mul_f32 v{Z+r}, v{g[r]}, v{g[r]}')
            A.I(f'v_fma_f32 v{Z+r}, v{Z+r}, v{c2p+st}, v{c1p+st}')
            A.I(f'v_mul_f32 v{Z+r}, v{Z+r}, v{g[r]}')
        for r in range(4): A.I(f'v_exp_f32 v{Z+r}, v{Z+r}')
        for r in range(4):
            A.I(f'v_mul_f32 v{g[r]}, v{g[r]}, v{u[r]}')
            A.I(f'v_fma_f32 v{Z+r}, v{Z+r}, v{sd2+st}, v{sd2+st}')
        for r in range(4): A.I(f'v_rcp_f32 v{Z+r}, v{Z+r}')
        for r in range(4): A.I(f'v_mul_f32 v{g[r]}, v{g[r]}, v{Z+r}')
        A.I(f'v_cvt_pk_bf16_f32 v{p}, v{g[0]}, v{g[1]}')
        A.I(f'v_cvt_pk_bf16_f32 v{p+1}, v{g[2]}, v{g[3]}')
    def hpair(q,st,P):
        hq(q,st,P); hq(q+1,st,P+2)
        A.I(f'v_permlane32_swap_b32 v{P}, v{P+2}')
        A.I(f'v_permlane32_swap_b32 v{P+1}, v{P+3}')
        A.I(f'buffer_store_dwordx4 {v(P,4)}, v{vH[st]}, s[20:23], s60 offen{SC}')
    A.I(f's_mul_i32 s61, s34, 14\ns_lshl_b32 s39, s36, 2\ns_add_u32 s61, s61, s39\ns_lshl_b32 s61, s61, 15')
    YT=208
    A.I('s_cmp_lg_u32 s36, 3\ns_cbranch_scc1 p1_noy')
    A.I(f"""
    s_lshl_b32 s39, s37, 12
    s_add_u32 s39, s39, {YSCR}
    v_lshlrev_b32 v{YT}, 10, v{half}
    v_lshl_add_u32 v{YT}, v{l32}, 2, v{YT}
    v_add_u32 v{YT}, s39, v{YT}
    v_lshlrev_b32 v{YT+1}, 4, v{L}
    v_add_u32 v{YT+1}, s39, v{YT+1}
    v_lshrrev_b32 v{YT+2}, 4, v{L}
    v_lshlrev_b32 v{YT+2}, 13, v{YT+2}
    v_and_b32 v{YT+3}, 15, v{L}
    v_lshl_add_u32 v{YT+2}, v{YT+3}, 4, v{YT+2}
    s_lshl_b32 s39, s33, 2
    v_add_u32 v{YT+2}, s39, v{YT+2}
    """)
    for q in (2,3):
        for st in range(2):
            for r in range(4):
                G_=GT(st)+4*q+r; U=UT(st)+4*q+r
                A.I(f'v_mul_f32 v{G_}, v{G_}, v{rr+st}')
                A.I(f'v_mul_f32 v{U}, v{U}, v{rr+st}')
                A.I(f'v_cvt_pk_bf16_f32 v{G_}, v{G_}, v{U}')
                A.I(f'ds_write_b32 v{YT}, v{G_} offset:{(8*(q-2)+r)*256+st*128}')
    A.I('s_waitcnt lgkmcnt(0)')
    for j in range(4): A.I(f'ds_read_b128 {v(YT+4+4*j,4)}, v{YT+1} offset:{j*1024}')
    A.I('s_waitcnt lgkmcnt(0)')
    for j in range(4):
        A.I(f's_lshl_b32 s60, s34, 4\ns_add_u32 s60, s60, {4*j}\ns_lshl_b32 s60, s60, 13')
        A.I(f'buffer_store_dwordx4 {v(YT+4+4*j,4)}, v{YT+2}, s[24:27], s60 offen{SC}')
    A.I('s_mov_b32 s60, s61')
    A.I('s_cmp_lg_u32 s37, 0\ns_cbranch_scc1 p1_y7')
    prefetch(0,9); hpair(0,0,PB); prefetch(9,17); hpair(0,1,PB+4)
    A.I(f's_waitcnt vmcnt({36 if "epf" in EXP else 2})\nv_mov_b32 v{YT}, {CTRL}\nv_mov_b32 v{YT+1}, 1\nds_write_b32 v{YT}, v{YT+1} offset:80')
    A.I('s_branch p1_end')
    A.L('p1_y7')
    hpair(0,0,PB); hpair(0,1,PB+4)
    A.I(f's_waitcnt vmcnt(2)\nv_mov_b32 v{YT}, {CTRL}')
    lds_wait(A,YT,YT+4,80,1,4)
    A.I(f's_add_u32 s61, s34, {C_Y}'); arrive(A,61,YT+2)
    A.I('s_branch p1_end')
    A.L('p1_noy')
    k=0; cuts=[0,6,12,17,17]
    for q in (0,2):
        A.I(f's_add_u32 s60, s61, {q*32768}')
        for st in range(2):
            hpair(q,st,PB+4*(q+st))
            prefetch(cuts[k],cuts[k+1]); k+=1
            if k==2:
                A.I('s_cmp_eq_u32 s37, 0\ns_cbranch_scc1 p1_wf')
                A.I(f's_waitcnt vmcnt(2)\ns_lshl_b32 s39, s36, 2\nv_mov_b32 v{YT}, {CTRL}\nv_add_u32 v{YT}, s39, v{YT}\nv_mov_b32 v{YT+1}, 1\nds_write_b32 v{YT}, v{YT+1} offset:84')
                A.L('p1_wf')
    A.L('p1_end')
    ST.mark(A)

def s2_phase(A):
    L,l,g,vY,vW,fl,fg4=1,2,3,4,5,6,7
    T=184
    Ya=16; Wv=24; C32R=32; C32I=48; C64R=64; C64I=80; T1c=96; T1s=104; T2c=112; T2s=120
    DR=128; DI=136; F=144; E=152
    vC=203
    A.I(f'''
    s_sub_u32 s12, s32, 4
    v_and_b32 v{L}, 63, v0
    v_and_b32 v{l}, 15, v0
    v_bfe_u32 v{g}, v0, 4, 2
    v_mov_b32 v{vC}, {CTRL}
    s_lshl_b32 s33, s34, 4
    s_add_u32 s33, s33, s35          ; column k
    s_mov_b32 s47, 0
    ''')
    srd(A,8,4,OFF_YQ,256*8192)
    srd(A,16,4,OFF_WT,257*8192)
    srd(A,20,4,OFF_ZQ,514*4096)
    A.I(f'''
    s_lshl_b32 s13, s12, 11
    v_lshlrev_b32 v{vY}, 7, v{l}
    v_lshl_add_u32 v{vY}, v{g}, 4, v{vY}
    v_add_u32 v{vY}, s13, v{vY}
    v_lshlrev_b32 v{vW}, 4, v{l}
    v_lshl_add_u32 v{vW}, v{g}, 8, v{vW}
    v_add_u32 v{vW}, s13, v{vW}
    v_cvt_f32_u32 v{fl}, v{l}
    v_lshlrev_b32 v{T}, 2, v{g}
    v_cvt_f32_u32 v{fg4}, v{T}
    s_lshl_b32 s13, s12, 4
    v_cvt_f32_u32 v{T+1}, s13
    ''')
    f16w=T+1
    sc=1.0/(2048*512)
    A.I(f'''
    v_mul_f32 v{T+2}, {f2u(1/32)}, v{fl}
    v_add_f32 v{T+3}, 0.5, v{T+2}
    v_add_f32 v{T+4}, v{f16w}, v{fl}
    v_mul_f32 v{T+7}, {f2u(1/2048)}, v{T+4}
    v_mul_f32 v{T+4}, {f2u(1/64)}, v{T+4}
    v_mul_f32 v{T+5}, {f2u(1/2048)}, v{fl}
    v_add_f32 v{T+6}, {f2u(16/2048)}, v{T+5}
    v_add_f32 v{T+8}, v{f16w}, v{fg4}
    s_mov_b32 s46, {f2u(2*sc)}
    s_cmp_eq_u32 s33, 0
    s_cselect_b32 s46, {f2u(sc)}, s46
    v_mov_b32 v{vC+2}, s46
    ''')
    a_,c_,s_=T+9,T+10,T+11
    def cs_pack(ang,R,I):
        A.I(f'''
        v_cos_f32 v{c_}, v{ang}
        v_sin_f32 v{s_}, v{ang}
        v_cvt_pk_bf16_f32 v{R}, v{c_}, v{s_}
        v_cvt_pk_bf16_f32 v{I}, -v{s_}, v{c_}
        ''')
    fa=T+12
    for t in range(2):
        for q in range(4):
            A.I(f'v_add_f32 v{fa}, {f2u(16*t+q)}, v{fg4}')
            for nt in range(2):
                A.I(f'v_mul_f32 v{a_}, v{fa}, v{T+2+nt}')
                cs_pack(a_, C32R+(t*2+nt)*4+q, C32I+(t*2+nt)*4+q)
    for r in range(4):
        A.I(f'v_add_f32 v{fa}, {f2u(r)}, v{T+8}')
        for nt in range(2):
            A.I(f'''v_mul_f32 v{a_}, v{fa}, v{T+5+nt}
            v_cos_f32 v{T1c+nt*4+r}, v{a_}
            v_sin_f32 v{T1s+nt*4+r}, v{a_}''')
    for tp in range(4):
        for q in range(4):
            A.I(f'v_add_f32 v{fa}, {f2u(16*tp+q)}, v{fg4}')
            A.I(f'v_mul_f32 v{a_}, v{fa}, v{T+4}')
            cs_pack(a_, C64R+tp*4+q, C64I+tp*4+q)
    for it in range(2):
        for r in range(4):
            A.I(f'''v_add_f32 v{fa}, {f2u(16*it+r)}, v{fg4}
            v_mul_f32 v{a_}, v{fa}, v{T+7}
            v_cos_f32 v{T2c+it*4+r}, v{a_}
            v_sin_f32 v{T2s+it*4+r}, v{a_}
            v_mul_f32 v{T2c+it*4+r}, v{T2c+it*4+r}, v{vC+2}
            v_mul_f32 v{T2s+it*4+r}, v{T2s+it*4+r}, v{vC+2}''')
    vLw,vLr=T+13,T+14
    A.I(f'''
    v_lshlrev_b32 v{vLr}, 4, v{L}
    v_add_u32 v{vLr}, {EX}, v{vLr}
    s_lshl_b32 s13, s12, 11
    v_add_u32 v{vLw}, s13, v{vLr}
    s_lshl_b32 s13, s12, 2
    v_add_u32 v{vC+1}, s13, v{vC}
    s_mov_b32 s26, 0x80000000
    s_mov_b32 s27, 0x8000
    ''')
    ST.mark(A)
    A.I('s_waitcnt vmcnt(0)\ns_barrier')
    if 'noprio' not in EXP: A.I('s_setprio 3')
    ST.mark(A)
    A.I('s_cmp_lg_u32 s32, 4\ns_cbranch_scc1 s2_w1')
    A.skip_begin()
    A.I(f's_add_u32 s59, s34, {C_Y}\ns_lshl_b32 s59, s59, 7\nv_mov_b32 v{E}, s59\nv_mov_b32 v{E+1}, 16')
    poll_cnt(A,E,E+1,E+2,1)
    if 'dbg' in EXP:
        A.I(f's_cmp_lg_u32 s2, 9\ns_cbranch_scc1 dbg1')
        A.I(f'v_mov_b32 v{E+4}, v{E}\nv_mov_b32 v{E+5}, v{E+1}\nv_mov_b32 v{E+6}, v{E+2}\nv_mov_b32 v{E+7}, s58\nv_mov_b32 v{E+8}, 32\ns_mov_b64 exec, 1\nglobal_store_dwordx4 v{E+8}, {v(E+4,4)}, s[54:55]\ns_mov_b64 exec, -1')
        A.L('dbg1')
    A.I(f'v_mov_b32 v{E}, 1\nds_write_b32 v{vC}, v{E} offset:8')
    A.skip_end(); A.L('s2_w1')
    lds_wait(A,vC,E,8,1)
    ST.mark(A)
    A.L('s2_col')
    if 'nos2' in EXP: A.I('s_branch s2_skip')
    A.I(f'''
    s_and_b32 s14, s33, 255
    s_lshl_b32 s14, s14, 13
    s_lshl_b32 s15, s33, 13
    s_add_u32 s29, s15, 4096
    buffer_load_dwordx4 {v(Ya,4)}, v{vY}, s[8:11], s14 offen{SC}
    buffer_load_dwordx4 {v(Ya+4,4)}, v{vY}, s[8:11], s14 offen offset:64{SC}
    buffer_load_dwordx4 {v(Wv,4)}, v{vW}, s[16:19], s15 offen{SC}
    buffer_load_dwordx4 {v(Wv+4,4)}, v{vW}, s[16:19], s15 offen offset:1024{SC}
    s_cmp_eq_u32 s33, 256
    s_cselect_b32 s24, 16, 0
    s_and_b32 s25, s33, 255
    s_cmp_eq_u32 s25, 0
    s_cselect_b32 s25, 0xffff, -1
    s_cmp_lg_u32 s33, 0
    s_cbranch_scc1 s2_nx
    s_mov_b32 s60, 0x200000
    buffer_load_dwordx4 {v(208,4)}, v{vW}, s[16:19], s60 offen{SC}
    buffer_load_dwordx4 {v(212,4)}, v{vW}, s[16:19], s60 offen offset:1024{SC}
    s_waitcnt vmcnt(4)
    s_branch s2_ld
    s2_nx:
    s_waitcnt vmcnt(2)
    s2_ld:
    ''')
    for i in range(8): A.I(f'v_mov_b32 v{216+i}, v{Ya+i}')
    A.L('s2_cmp')
    if 's2fine' in EXP: ST.mark(A)
    for i in range(8): A.I(f'v_lshrrev_b32 v{Ya+i}, s24, v{Ya+i}')
    for i in range(8): A.I(f'v_and_b32 v{Ya+i}, s25, v{Ya+i}')
    for nt in range(2):
        for t in range(2): mf16(A,DR+nt*4,Ya+t*4,C32R+(t*2+nt)*4,t==0)
        for t in range(2): mf16(A,DI+nt*4,Ya+t*4,C32I+(t*2+nt)*4,t==0)
    t0,t1=T+15,T+16
    def cmul_pack(dst,xr,xi,c,s,sign):
        A.I(f'v_mul_f32 v{t0}, v{xr}, v{c}')
        A.I(f'v_mul_f32 v{t1}, v{xi}, v{c}')
        if sign<0:
            A.I(f'v_fma_f32 v{t0}, v{xi}, v{s}, v{t0}'); A.I(f'v_fma_f32 v{t1}, -v{xr}, v{s}, v{t1}')
        else:
            A.I(f'v_fma_f32 v{t0}, -v{xi}, v{s}, v{t0}'); A.I(f'v_fma_f32 v{t1}, v{xr}, v{s}, v{t1}')
        A.I(f'v_cvt_pk_bf16_f32 v{dst}, v{t0}, v{t1}')
    def exchange(base,ph):
        for nt in range(2): A.I(f'ds_write_b128 v{vLw}, {v(F+nt*4,4)} offset:{base+nt*1024}')
        A.I(f's_add_u32 s46, s47, {ph}\nv_mov_b32 v{t0}, s46\nds_write_b32 v{vC+1}, v{t0} offset:16')
        lds_wait(A,vC,E,16,'s46',4)
        for tp in range(4):
            for nt in range(2): A.I(f'ds_read_b128 {v(E+(tp*2+nt)*4,4)}, v{vLr} offset:{base+(tp*2+nt)*1024}')
    for nt in range(2):
        for r in range(4): cmul_pack(F+nt*4+r,DR+nt*4+r,DI+nt*4+r,T1c+nt*4+r,T1s+nt*4+r,-1)
    if 's2fine' in EXP: ST.mark(A)
    exchange(0,1)
    if 's2fine' in EXP: ST.mark(A)
    for tp in range(4):
        A.I(f's_waitcnt lgkmcnt({6-2*tp})')
        for nt in range(2):
            mf16(A,DR+nt*4,C64R+tp*4,E+(tp*2+nt)*4,tp==0)
            mf16(A,DI+nt*4,C64I+tp*4,E+(tp*2+nt)*4,tp==0)
    if 's2fine' in EXP: ST.mark(A)
    A.I('s_cmp_eq_u32 s33, 256\ns_cbranch_scc1 s2_nw\ns_waitcnt vmcnt(0)')
    A.L('s2_nw')
    wr,wi=T+17,T+18
    def conj(R,I):
        for i in range(16):
            A.I(f'v_xor_b32 v{R+i}, s26, v{R+i}'); A.I(f'v_xor_b32 v{I+i}, s27, v{I+i}')
    conj(C32R,C32I)
    for nt in range(2):
        for r in range(4):
            A.I(f'v_lshlrev_b32 v{wr}, 16, v{Wv+nt*4+r}')
            A.I(f'v_and_b32 v{wi}, 0xffff0000, v{Wv+nt*4+r}')
            cmul_pack(F+nt*4+r,DR+nt*4+r,DI+nt*4+r,wr,wi,+1)
    conj(C64R,C64I)
    if 's2fine' in EXP: ST.mark(A)
    def publish(kreg_is_256,suf,xd):
        A.I('s_waitcnt vmcnt(0)')
        A.I(f'v_mov_b32 v{t1}, {xd}\nds_write_b32 v{vC+1}, v{t1} offset:32')
        A.I(f's_cmp_lg_u32 s32, 4\ns_cbranch_scc1 s2_w2{suf}')
        A.skip_begin()
        lds_wait(A,vC,224,32,xd,4)
        cnt_base(A)
        if kreg_is_256=='n': A.I(f'v_add_u32 v228, {C_N}, v{L}')
        elif kreg_is_256=='0': A.I(f'v_lshlrev_b32 v228, 3, v{L}\nv_add_u32 v228, {C_Z}, v228')
        else: A.I(f's_and_b32 s46, s33, 7\ns_add_u32 s46, s46, {C_Z}\nv_lshlrev_b32 v228, 3, v{L}\nv_add_u32 v228, s46, v228')
        A.I(f'v_lshlrev_b32 v228, 7, v228\nv_mov_b32 v229, 1')
        A.I(f's_mov_b64 exec, {(1<<ZREP)-1}\nglobal_atomic_add v228, v229, s[62:63]{SC}\ns_mov_b64 exec, -1')
        A.skip_end(); A.L(f's2_w2{suf}')
    exchange(8192,2)
    A.I('s_cmp_lg_u32 s33, 256\ns_cbranch_scc1 s2_np')
    publish('0','c',1)
    A.I('s_barrier')
    A.L('s2_np')
    if 's2fine' in EXP: ST.mark(A)
    for tp in range(4):
        A.I(f's_waitcnt lgkmcnt({6-2*tp})')
        for it in range(2):
            mf16(A,DR+it*4,E+(tp*2+it)*4,C64R+tp*4,tp==0)
            mf16(A,DI+it*4,E+(tp*2+it)*4,C64I+tp*4,tp==0)
    for it in range(2):
        for r in range(4): cmul_pack(F+it*4+r,DR+it*4+r,DI+it*4+r,T2c+it*4+r,T2s+it*4+r,+1)
    for nt in range(2):
        for t in range(2): mf16(A,DR+nt*4,C32R+(t*2+nt)*4,F+t*4,t==0)
        for t in range(2): mf16(A,DI+nt*4,C32I+(t*2+nt)*4,F+t*4,t==0)
    if 's2fine' in EXP: ST.mark(A)
    A.I(f'v_lshrrev_b32 v{t0}, 1, v{vY}')
    for nt in range(2):
        for part,D in ((0,DR),(1,DI)):
            e=E+nt*4+part*2
            A.I(f'v_cvt_pk_bf16_f32 v{e}, v{D+nt*4}, v{D+nt*4+1}\nv_cvt_pk_bf16_f32 v{e+1}, v{D+nt*4+2}, v{D+nt*4+3}')
            A.I(f'buffer_store_dwordx2 {v(e,2)}, v{t0}, s[20:23], s15 offen offset:{32*nt}{SC}' if part==0 else f'buffer_store_dwordx2 {v(e,2)}, v{t0}, s[20:23], s29 offen offset:{32*nt}{SC}')
    A.I('s_cmp_eq_u32 s33, 0\ns_cbranch_scc1 s2_second')
    A.I('s_cmp_eq_u32 s33, 256\ns_cbranch_scc1 s2_pubn')
    publish('k','a',1)
    A.I('s_barrier')
    A.I('s_branch s2_fin')
    A.L('s2_pubn')
    publish('n','b',2)
    A.I('s_branch s2_fin')
    A.L('s2_second')
    conj(C32R,C32I); conj(C64R,C64I)
    for i in range(8): A.I(f'v_mov_b32 v{Ya+i}, v{216+i}')
    for i in range(8): A.I(f'v_mov_b32 v{Wv+i}, v{208+i}')
    A.I('s_movk_i32 s33, 256\ns_mov_b32 s15, 0x200000\ns_add_u32 s29, s15, 4096\ns_mov_b32 s24, 16\ns_mov_b32 s25, 0xffff\ns_add_u32 s47, s47, 2\ns_branch s2_cmp')
    A.L('s2_fin')
    A.I('s_setprio 0')
    ST.mark(A)
    A.I('s_cmp_lg_u32 s32, 4\ns_cbranch_scc1 s2_w3')
    A.skip_begin()
    A.I(f's_and_b32 s46, s2, {ZREP-1}\ns_lshl_b32 s46, s46, 3\ns_add_u32 s46, s46, {C_Z}\nv_add_u32 v{E}, s46, v{L}\nv_lshlrev_b32 v{E}, 7, v{E}\nv_mov_b32 v{E+1}, 32')
    poll_cnt(A,E,E+1,E+2,8,sleep=2)
    A.I(f'v_mov_b32 v{E}, 1\nds_write_b32 v{vC}, v{E} offset:4')
    A.I(f's_and_b32 s46, s2, {ZREP-1}\ns_add_u32 s46, s46, {C_N}\ns_lshl_b32 s46, s46, 7\nv_mov_b32 v{E}, s46\nv_mov_b32 v{E+1}, 1')
    poll_cnt(A,E,E+1,E+2,1)
    A.I(f'v_mov_b32 v{E}, 1\nds_write_b32 v{vC}, v{E} offset:48')
    A.skip_end(); A.L('s2_w3')
    ST.mark(A)
    A.I('s_waitcnt lgkmcnt(0)\ns_barrier')

def p3_phase(A, nh=28, nz=8):
    NB=NB_
    BR0=112
    NA=NA_; NL=NSL-NA; RB=NB+NL
    BL=[16,240]
    L,half,l32=1,2,3
    vB=4; vZd=5; vZr=6; vX=9; vC=10; vAd=11; vAr=12; vLw=14; vLr=15; vBd=8; vBr=28
    XR2=16; T=24; ACC=32; AF=96; BR=112; ZA=176
    A.I(f"""
    s_load_dwordx2 s[28:29], s[0:1], 56
    s_load_dwordx2 s[30:31], s[0:1], 48
    v_and_b32 v{L}, 63, v0
    v_and_b32 v{l32}, 31, v0
    v_bfe_u32 v{half}, v0, 5, 1
    v_mov_b32 v{vC}, {CTRL}
    s_mov_b32 s12, s32
    s_and_b32 s13, s2, 7
    s_lshr_b32 s14, s2, 3
    s_and_b32 s15, s13, 3
    s_lshl_b32 s15, s15, 3
    s_and_b32 s39, s14, 7
    s_add_u32 s15, s15, s39          ; sb
    s_lshr_b32 s13, s13, 2
    s_lshl_b32 s13, s13, 2
    s_lshr_b32 s14, s14, 3
    s_add_u32 s13, s13, s14          ; db
    s_and_b32 s36, s12, 1
    s_lshr_b32 s37, s12, 1
    v_lshrrev_b32 v{T}, 3, v{L}
    v_bfe_u32 v{T+1}, v{L}, 4, 1
    v_lshlrev_b32 v{T+1}, 2, v{T+1}
    v_and_b32 v{T+2}, 7, v{L}
    v_xor_b32 v{T+2}, v{T+2}, v{T+1}
    v_lshlrev_b32 v{T+2}, 4, v{T+2}           ; c*16
    v_lshl_add_u32 v{vAd}, v{T}, 10, v{T+2}
    s_lshl_b32 s39, s13, 7
    v_add_u32 v{vAd}, s39, v{vAd}
    v_lshl_add_u32 v{vZd}, v{T}, 12, v{T+2}
    s_lshl_b32 s39, s15, 7
    v_add_u32 v{vZd}, s39, v{vZd}
    s_mul_i32 s44, s12, {nh*16*1024}
    s_mul_i32 s45, s12, {AREG}
    s_mul_i32 s52, s12, {nz*16*4096}
    s_waitcnt lgkmcnt(0)
    """)
    srd(A,8,30,0,1792*512*2)
    q=[]
    def dmaA(t):
        for j in range(2):
            A.I(f's_add_u32 m0, s45, {(t%NA)*2048+j*1024}')
            A.I(f's_add_u32 s60, s44, {(t*16+j*8)*1024}')
            A.I(f'buffer_load_dwordx4 v{vAd}, s[8:11], s60 offen lds'); q.append(('A',t))
    def dmaZ(i):
        t=nh+i
        for j in range(2):
            A.I(f's_add_u32 m0, s45, {(t%NA)*2048+j*1024}')
            A.I(f's_add_u32 s60, s52, {(i*16+j*8)*4096}')
            A.I(f'buffer_load_dwordx4 v{vZd}, s[20:23], s60 offen{SC} lds'); q.append(('A',t))
    srd(A,24,6,0,2048*512*2)
    srd(A,16,4,OFF_HP,224*32768)
    srd(A,20,4,OFF_ZQ,514*4096)
    srd(A,40,28,0,2048*512*2)
    A.I(f"""
    s_lshl_b32 s39, s15, 1
    s_add_u32 s39, s39, s37
    s_lshl_b32 s39, s39, 10
    s_lshl_b32 s31, s13, 7
    s_add_u32 s39, s39, s31
    s_lshl_b32 s31, s36, 6
    s_add_u32 s39, s39, s31
    v_lshlrev_b32 v{vX}, 16, v{l32}
    v_lshl_add_u32 v{vX}, v{half}, 3, v{vX}
    v_add_u32 v{vX}, s39, v{vX}
    """)
    ZT=248
    A.I(f"""
    s_lshl_b32 s39, s15, 10
    v_lshlrev_b32 v{vB}, 15, v{half}
    v_lshl_add_u32 v{vB}, v{l32}, 4, v{vB}
    v_add_u32 v{vB}, s39, v{vB}
    s_mul_i32 s46, s12, {nh*65536}
    s_mov_b32 s48, s46
    s_lshl_b32 s39, s15, 10
    v_lshlrev_b32 v{vBd}, 4, v{L}
    v_add_u32 v{vBd}, s39, v{vBd}
    v_lshlrev_b32 v{vBr}, 10, v{half}
    v_lshl_add_u32 v{vBr}, v{l32}, 4, v{vBr}
    v_add_u32 v{vBr}, s45, v{vBr}
    s_lshl_b32 s39, s37, 9
    v_xor_b32 v{vBr+1}, 512, v{vBr}
    v_add_u32 v{vBr}, s39, v{vBr}
    v_subrev_u32 v{vBr+1}, s39, v{vBr+1}
    s_add_u32 s47, s46, 512
    s_sub_u32 s47, s47, s39
    s_add_u32 s46, s46, s39
    v_lshrrev_b32 v{T}, 5, v{L}
    v_lshlrev_b32 v{T}, 3, v{T}
    v_bfe_u32 v{T+1}, v{L}, 2, 2
    v_add_u32 v{T}, v{T}, v{T+1}
    v_lshlrev_b32 v{T}, 7, v{T}              ; row*128
    v_bfe_u32 v{T+2}, v{L}, 4, 1
    v_lshlrev_b32 v{T+2}, 1, v{T+2}
    v_bfe_u32 v{T+3}, v{L}, 1, 1
    v_add_u32 v{T+2}, v{T+2}, v{T+3}         ; chunk within 64B half
    v_bfe_u32 v{T+3}, v{L}, 3, 1
    v_lshlrev_b32 v{T+3}, 2, v{T+3}          ; swizzle bit
    v_xor_b32 v{T+2}, v{T+2}, v{T+3}
    v_lshl_add_u32 v{T}, v{T+2}, 4, v{T}
    v_and_b32 v{T+3}, 1, v{L}
    v_lshl_add_u32 v{T}, v{T+3}, 3, v{T}
    v_add_u32 v{T}, s45, v{T}
    s_lshl_b32 s39, s36, 6
    v_xor_b32 v{vAr}, s39, v{T}
    v_xor_b32 v{vAr+1}, 64, v{vAr}
    s_lshl_b32 s39, s37, 6
    v_xor_b32 v{vZr}, s39, v{T}
    v_xor_b32 v{vZr+1}, 64, v{vZr}
    s_lshl_b32 s39, s13, 6
    s_lshl_b32 s31, s36, 5
    s_add_u32 s39, s39, s31
    v_add_u32 v{T}, s39, v{l32}
    v_cvt_f32_u32 v{T}, v{T}
    v_mul_f32 v{ZT}, {f2u(1/512)}, v{T}
    s_lshl_b32 s39, s13, 6
    s_xor_b32 s31, s31, 32
    s_add_u32 s39, s39, s31
    v_add_u32 v{T+1}, s39, v{l32}
    v_cvt_f32_u32 v{T+1}, v{T+1}
    v_mul_f32 v{ZT+1}, {f2u(1/512)}, v{T+1}
    s_mul_i32 s39, s12, {nz*8}
    v_lshlrev_b32 v{T+2}, 2, v{half}
    v_add_u32 v{T+2}, s39, v{T+2}
    v_cvt_f32_u32 v{ZT+2}, v{T+2}
    """)
    zitems=[]
    for i in range(nz):
        for qq in range(4):
            def zf(i=i,qq=qq):
                A.I(f'v_add_f32 v{ZT+3}, {f2u(8*i+qq)}, v{ZT+2}')
                for ar in range(2):
                    A.I(f'v_mul_f32 v{ZT+4+ar}, v{ZT+3}, v{ZT+ar}\nv_fract_f32 v{ZT+4+ar}, v{ZT+4+ar}')
                for ar in range(2):
                    A.I(f'v_cos_f32 v{ZT+6}, v{ZT+4+ar}\nv_sin_f32 v{ZT+7}, v{ZT+4+ar}\nv_cvt_pk_bf16_f32 v{ZA+i*8+ar*4+qq}, v{ZT+6}, -v{ZT+7}')
            zitems.append(zf)
    PT=NA-4
    NZ0=10 if 'z0' not in EXP else 0
    for zf in zitems[:NZ0]: zf()
    A.I(f's_waitcnt vmcnt({len(q)})\ns_barrier')
    ST.mark(A)
    A.I('s_cmp_lg_u32 s32, 0\ns_cbranch_scc1 p3_a1')
    A.skip_begin()
    A.I(f's_add_u32 s59, s35, {C_H}'); A.I('s_mov_b32 s61, s59'); arrive(A,61,T)
    A.skip_end(); A.L('p3_a1')
    rest=zitems[NZ0:]
    if 'epf' in EXP:
        for zf in rest: zf()
    else:
        for t in range(NA):
            dmaA(t)
            for zf in rest[(t*len(rest))//NA:((t+1)*len(rest))//NA]: zf()
            if t==PT:
                A.I(f's_lshr_b32 s59, s15, 1\ns_add_u32 s59, s59, {C_H}\ns_lshl_b32 s59, s59, 7\nv_mov_b32 v{T}, s59\nv_mov_b32 v{T+1}, 16')
                A.I('s_cmp_lg_u32 s32, 0\ns_cbranch_scc1 p3_ap')
                A.skip_begin()
                cnt_base(A)
                A.I(f's_mov_b64 exec, 1\nglobal_load_dword v{T+2}, v{T}, s[62:63]{SCP}\ns_mov_b64 exec, -1')
                A.skip_end(); A.L('p3_ap')
    ST.mark(A)
    A.I('s_cmp_lg_u32 s32, 0\ns_cbranch_scc1 p3_w1')
    A.skip_begin()
    A.I(f's_waitcnt vmcnt({2*(NA-1-PT)})')
    poll_cnt(A,T,T+1,T+2,1,True)
    A.I(f'v_mov_b32 v{T}, 1\nds_write_b32 v{vC}, v{T}')
    A.skip_end(); A.L('p3_w1')
    lds_wait(A,vC,T,0,1)
    ST.mark(A)
    n=nh+nz
    isL=lambda i: (i%RB)>=NB
    def issueB(i):
        if isL(i):
            sl=NA+(i%RB)-NB
            for j in range(2):
                A.I(f's_add_u32 m0, s45, {sl*2048+j*1024}')
                A.I(f's_add_u32 s60, s48, {j*32768}')
                A.I(f'buffer_load_dwordx4 v{vBd}, s[16:19], s60 offen{SCB} lds')
        else:
            sl=BR+(i%RB)*8
            A.I(f'buffer_load_dwordx4 {v(sl,4)}, v{vB}, s[16:19], s46 offen{SCB}')
            A.I(f'buffer_load_dwordx4 {v(sl+4,4)}, v{vB}, s[16:19], s47 offen{SCB}')
        q.extend([('B',i)]*2)
        A.I('s_add_u32 s46, s46, 65536\ns_add_u32 s47, s47, 65536\ns_add_u32 s48, s48, 65536')
    def readsBL(i):
        sl=NA+(i%RB)-NB; f=BL[i%2]
        for b_ in range(2):
            A.I(f'ds_read_b128 {v(f+4*b_,4)}, v{vBr+b_} offset:{sl*2048}')
    def vwait(*tags):
        idx=[k for k,x in enumerate(q) if x in tags]
        if not idx: return
        N=len(q)-1-max(idx); del q[:max(idx)+1]
        A.I(f's_waitcnt vmcnt({min(N,63)})')
    def reads(t):
        f=AF+(t%2)*8
        if t<nh:
            for ar in range(2):
                for rd in range(2):
                    A.I(f'ds_read_b64_tr_b16 {v(f+ar*4+rd*2,2)}, v{vAr+ar} offset:{(t%NA)*2048+rd*512}')
        else:
            for b_ in range(2):
                for rd in range(2):
                    A.I(f'ds_read_b64_tr_b16 {v(f+b_*4+rd*2,2)}, v{vZr+b_} offset:{(t%NA)*2048+rd*512}')
    nxt=0
    ZAT=nh-4; ZP=ZP_
    for k in range(RB):
        issueB(nxt); nxt+=1
    vwait(('A',0)); reads(0)
    for i in range(n):
        tags=[('A',i+1)]
        if i<nh and not isL(i): tags.append(('B',i))
        if i+1<nh and isL(i+1): tags.append(('B',i+1))
        vwait(*tags)
        if 'p3steps' in EXP and i in (0,4,10,17,24): ST.mark(A)
        A.I('s_waitcnt lgkmcnt(0)')
        if i==ZAT:
            ST.mark(A); lds_wait(A,vC,T,4,1); ST.mark(A)
            for z in range(nz): dmaZ(z)
        if i+1<n and not (i+1==nh): reads(i+1)
        if i+1==nh:
            vwait(('A',nh)); reads(nh)
        if i+1<nh and isL(i+1): readsBL(i+1)
        for brr in range(2):
            for ar in range(2):
                if i<nh:
                    a=AF+(i%2)*8+ar*4
                    b_=(BL[i%2]+brr*4) if isL(i) else (BR+(i%RB)*8+brr*4)
                else: a=ZA+(i-nh)*8+ar*4; b_=AF+(i%2)*8+brr*4
                mf32(A,ACC+(ar+2*brr)*16,a,b_,i==0)
        if i==ZP: A.I('s_barrier')
        if i+NA<nh: dmaA(i+NA)
        while nxt<nh and nxt<=i+RB:
            issueB(nxt); nxt+=1
    for i in range(4):
        A.I(f'buffer_load_dwordx2 {v(XR2+2*i,2)}, v{vX}, s[24:27], 0 offen offset:{16*i}')
    ST.mark(A)
    lds_wait(A,vC,T,48,1)
    A.I(f's_lshl_b32 s39, s15, 6\ns_lshl_b32 s31, s37, 5\ns_add_u32 s39, s39, s31\nv_add_u32 v{T+6}, s39, v{l32}\nv_lshlrev_b32 v{T+6}, 1, v{T+6}\ns_mov_b32 s39, {512*4096}')
    A.I(f'buffer_load_ushort v{T+7}, v{T+6}, s[20:23], s39 offen{SC}')
    A.I(f'v_lshlrev_b32 v{vLw}, 4, v{L}\nv_add_u32 v{vLw}, s45, v{vLw}')
    for j in range(1,4):
        for c in range(4): A.I(f'ds_write_b128 v{vLw}, {v(ACC+j*16+c*4,4)} offset:{(j-1)*4096+c*1024}')
    A.I('s_waitcnt lgkmcnt(0)\ns_barrier')
    for j in range(1,4):
        A.I(f's_xor_b32 s39, s12, {j}\ns_mul_i32 s39, s39, {AREG}\nv_lshlrev_b32 v{vLr}, 4, v{L}\nv_add_u32 v{vLr}, s39, v{vLr}')
        for c in range(4): A.I(f'ds_read_b128 {v(BR+(j-1)*16+c*4,4)}, v{vLr} offset:{(j-1)*4096+c*1024}')
    for j in range(3):
        A.I(f's_waitcnt lgkmcnt({8-4*j})')
        for i in range(16): A.I(f'v_add_f32 v{ACC+i}, v{ACC+i}, v{BR+j*16+i}')
    A.I(f's_waitcnt vmcnt(0)\nv_lshlrev_b32 v{T+7}, 16, v{T+7}')
    for i in range(16): A.I(f'v_{"add" if i%2==0 else "sub"}_f32 v{ACC+i}, v{ACC+i}, v{T+7}')
    for qq in range(4):
        x0,x1=XR2+2*qq,XR2+2*qq+1
        A.I(f"""v_lshlrev_b32 v{T}, 16, v{x0}
        v_and_b32 v{T+1}, 0xffff0000, v{x0}
        v_lshlrev_b32 v{T+2}, 16, v{x1}
        v_and_b32 v{T+3}, 0xffff0000, v{x1}""")
        for r in range(4): A.I(f'v_add_f32 v{ACC+4*qq+r}, v{ACC+4*qq+r}, v{T+r}')
        A.I(f'v_cvt_pk_bf16_f32 v{x0}, v{ACC+4*qq}, v{ACC+4*qq+1}')
        A.I(f'v_cvt_pk_bf16_f32 v{x1}, v{ACC+4*qq+2}, v{ACC+4*qq+3}')
        A.I(f'buffer_store_dwordx2 {v(x0,2)}, v{vX}, s[40:43], 0 offen offset:{16*qq}'+(' sc1' if 'outsc1' in EXP else (' nt' if 'outnt' in EXP else '')))

NAME='parallel_sum__spectral_gfnet__glu_gated_geglu__prompt'
HDR=open('cdna_kernels/'+NAME+'.s.ref').read().split('; Override')[0]
def full():
    A=Asm(); K=NAME+'_kernel'
    A.raw(HDR.rstrip())
    A.raw(f'; @launch grid=(256,1,1) block=(512,1,1) lds={LDS_TOTAL}')
    A.raw('.amdgcn_target "amdgcn-amd-amdhsa--gfx950"\n.text')
    A.raw(f'.globl {K}\n.p2align 8\n.type {K},@function'); A.L(K)
    A.I('s_cmp_ge_u32 s2, 256\ns_cbranch_scc1 k_done')
    if 'scram' in EXP: A.I('s_and_b32 s3, s2, 7\ns_lshl_b32 s3, s3, 5\ns_lshr_b32 s2, s2, 3\ns_or_b32 s2, s2, s3')
    A.I('''s_load_dwordx2 s[4:5], s[0:1], 72
    s_load_dwordx2 s[6:7], s[0:1], 0
    s_load_dwordx2 s[28:29], s[0:1], 32
    s_load_dwordx2 s[30:31], s[0:1], 40
    s_load_dwordx2 s[54:55], s[0:1], 64
    s_load_dwordx2 s[40:41], s[0:1], 8
    s_load_dwordx2 s[44:45], s[0:1], 16
    s_load_dwordx2 s[56:57], s[0:1], 48
    v_lshrrev_b32 v1, 6, v0
    s_nop 0
    v_readfirstlane_b32 s32, v1''')
    if 'pfe' in EXP:
        A.I(f'''s_getpc_b64 s[60:61]
        k_pc:
        v_lshlrev_b32 v4, 5, v0
        v_min_u32 v4, p1_join-k_pc, v4
        v_mov_b32 v5, s61
        v_add_co_u32 v4, vcc, s60, v4
        v_addc_co_u32 v5, vcc, 0, v5, vcc
        global_load_dword v7, v[4:5], off''')
    A.I('s_waitcnt lgkmcnt(0)')
    ST.mark(A)
    p1_body(A)
    if 'p1only' in EXP:
        A.I('s_waitcnt vmcnt(0)'); ST.mark(A); ST.dump(A); A.I('s_endpgm')
    n0=ST.n
    A.I('s_cmp_ge_u32 s32, 4\ns_cbranch_scc1 k_s2')
    A.fence()
    p3_phase(A)
    if STAMP: A.I('s_waitcnt vmcnt(0)')
    ST.mark(A)
    ST.dump(A)
    A.I('s_endpgm')
    A.L('k_s2'); A.fence()
    ST.n=n0
    s2_phase(A)
    ST.mark(A)
    ST.dump(A)
    A.L('k_done'); A.I('s_endpgm')
    txt=A.finalize()
    txt+=f'''.section .rodata,"a"
.p2align 6
.amdhsa_kernel {K}
  .amdhsa_next_free_vgpr 256
  .amdhsa_next_free_sgpr 100
  .amdhsa_accum_offset 256
  .amdhsa_group_segment_fixed_size 0
  .amdhsa_kernarg_size 80
  .amdhsa_user_sgpr_count 2
  .amdhsa_user_sgpr_kernarg_segment_ptr 1
  .amdhsa_system_sgpr_workgroup_id_x 1
  .amdhsa_float_denorm_mode_32 3
.end_amdhsa_kernel
'''
    return txt
if __name__=='__main__':
    if len(sys.argv)>2 and sys.argv[2]=='stamp': STAMP=True
    if len(sys.argv)>3: EXP=set(sys.argv[3].split(','))
    for e in EXP:
        if e.startswith('na'): NA_=int(e[2:])
        if e.startswith('zp'): ZP_=int(e[2:])
        if e.startswith('nb'): NB_=int(e[2:])
        if e.startswith('wi'): WI=int(e[2:])
    if 'pace1' in EXP: PACE=1
    if 'pace2' in EXP: PACE=2
    if 'perm' in EXP: SB[1],SB[2]=SB[2],SB[1]
    if 'sb16' in EXP: SB[1]=49152+4096; SB[2]=98304+8192
    if 'plainB' in EXP: SCB=''
    if 'pollsc1' in EXP: SCP=' sc1'
    if 'nos2' in EXP: pass
    open(sys.argv[1],'w').write(full())
```

```python
import sys, struct, math
from asmlib import *
OFF_HP=0; OFF_ZQ=0x700000; OFF_YQ=0x940000; OFF_WT=0xB40000
OFF_CNT=0x1000000; OFF_RS=0x1018000; OFF_CSP=0x1040000; OFF_TS=0x2000000
C_RS=0; C_CS=16; C_H=32; C_Y=48; C_Z=64; ZREP=16; C_N=64+ZREP*8; NCNT=256
SLOT=49152; XS=0; GS=16384; US=32768
SB=[0,49152,98304]
YSCR=3*SLOT
LDS_TOTAL=163840; CTRL=LDS_TOTAL-256; STAT=CTRL-1024
NSL=17; AREG=NSL*2048
EX=4*AREG
STAMP=False; EXP=set(); PACE=0; NA_=17; ZP_=18; NB_=8; WI=4; PS_=0; NAR_=0
SC=' sc1'
SCB=' sc1'
SCP=' sc1'
def f2u(x): return '0x%08x'%struct.unpack('<I',struct.pack('<f',x))[0]
class Stamps:
    def __init__(s): s.n=0
    def mark(s,A):
        if not STAMP or s.n>=15: return
        A.I(f's_{"memtime" if "clk" in EXP else "memrealtime"} s[{66+2*s.n}:{67+2*s.n}]'); s.n+=1
    def dump(s,A,n=None):
        if not STAMP: return
        n=s.n if n is None else n
        if 'diag' in EXP:
            A.I('s_waitcnt lgkmcnt(0) vmcnt(0)')
            l=newlab('dg')
            A.I(f's_cmp_lg_u32 s32, 0\ns_cbranch_scc1 {l}')
            A.I('s_load_dwordx2 s[96:97], s[0:1], 64\ns_waitcnt lgkmcnt(0)\ns_mov_b64 exec, 1')
            A.I('s_not_b32 s60, s66\nv_mov_b32 v244, 4\nv_mov_b32 v245, s60\nglobal_atomic_umax v244, v245, s[96:97]')
            for i in range(1,min(n,13)):
                A.I(f'v_mov_b32 v244, {4+4*i}\nv_mov_b32 v245, s{66+2*i}\nglobal_atomic_umax v244, v245, s[96:97]')
            A.I('s_mov_b64 exec, -1')
            A.L(l)
            return
        A.I('s_waitcnt lgkmcnt(0) vmcnt(0)')
        A.I(f's_lshl_b32 s60, s2, 3\ns_add_u32 s60, s60, s32\ns_lshl_b32 s60, s60, 7\ns_add_u32 s60, s60, {hex(OFF_TS)}')
        A.I(f's_add_u32 s96, s4, s60\ns_addc_u32 s97, s5, 0')
        A.I('v_mov_b32 v246, 0')
        for i in range(n):
            A.I(f'v_mov_b32 v244, s{66+2*i}\nv_mov_b32 v245, s{67+2*i}')
            A.I(f'global_store_dwordx2 v246, v[244:245], s[96:97] offset:{8*i}')
            A.I('s_nop 1')
ST=Stamps()
def srd(A,dst,base,off,size):
    if off:
        A.I(f's_add_u32 s{dst}, s{base}, {hex(off)}'); A.I(f's_addc_u32 s{dst+1}, s{base+1}, 0')
    else:
        A.I(f's_mov_b32 s{dst}, s{base}'); A.I(f's_mov_b32 s{dst+1}, s{base+1}')
    A.I(f's_mov_b32 s{dst+2}, {hex(size)}'); A.I(f's_mov_b32 s{dst+3}, 0x20000')
def mf16(A,D,a,b,first):
    A.I(f'v_mfma_f32_16x16x32_bf16 {v(D,4)}, {v(a,4)}, {v(b,4)}, {"0" if first else v(D,4)}')
def mf32(A,D,a,b,first=False):
    A.I(f'v_mfma_f32_32x32x16_bf16 {v(D,16)}, {v(a,4)}, {v(b,4)}, {"0" if first else v(D,16)}')
_lab=[0]
def newlab(p):
    _lab[0]+=1; return f'{p}_{_lab[0]}'
SPIN_MAX=0x20000
def lds_wait(A,vaddr,vtmp,off,val,n=1):
    l=newlab('lw'); d=newlab('ld')
    A.I('s_mov_b32 s58, 0'); A.L(l)
    if n==1:
        A.I(f'ds_read_b32 v{vtmp}, v{vaddr} offset:{off}\ns_waitcnt lgkmcnt(0)')
    else:
        A.I(f'ds_read_b128 {v(vtmp,4)}, v{vaddr} offset:{off}\ns_waitcnt lgkmcnt(0)')
        A.I(f'v_min_u32 v{vtmp}, v{vtmp}, v{vtmp+1}\nv_min_u32 v{vtmp+2}, v{vtmp+2}, v{vtmp+3}\nv_min_u32 v{vtmp}, v{vtmp}, v{vtmp+2}')
    A.I(f'v_readfirstlane_b32 s59, v{vtmp}')
    A.I(f's_cmp_ge_u32 s59, {val}\ns_cbranch_scc1 {d}')
    A.I(f's_add_u32 s58, s58, 1\ns_cmp_lt_u32 s58, {SPIN_MAX}\ns_cbranch_scc1 {l}')
    A.L(d)
def cnt_base(A):
    A.I(f's_add_u32 s62, s4, {hex(OFF_CNT)}\ns_addc_u32 s63, s5, 0')
def arrive(A,sidx,vt):
    cnt_base(A)
    A.I(f's_lshl_b32 s59, s{sidx}, 7\nv_mov_b32 v{vt}, s59\nv_mov_b32 v{vt+1}, 1\ns_mov_b64 exec, 1')
    A.I(f'global_atomic_add v{vt}, v{vt+1}, s[62:63]{SC}')
    A.I('s_mov_b64 exec, -1')
def poll_cnt(A,voff,vexp,vt,nl,first_loaded=False,sleep=0):
    l=newlab('pc'); d=newlab('pd'); c=newlab('pk')
    cnt_base(A)
    A.I(f's_mov_b32 s58, 0\ns_mov_b64 exec, {(1<<nl)-1}')
    if first_loaded: A.I(f's_branch {c}')
    A.L(l)
    A.I(f'global_load_dword v{vt}, v{voff}, s[62:63]{SCP}\ns_waitcnt vmcnt(0)')
    A.L(c)
    A.I(f'v_cmp_ne_u32 vcc, v{vt}, v{vexp}\ns_cbranch_vccz {d}')
    if sleep: A.I(f's_sleep {sleep}')
    A.I(f's_add_u32 s58, s58, 1\ns_cmp_lt_u32 s58, {SPIN_MAX>>4}\ns_cbranch_scc1 {l}')
    A.L(d)
    A.I('s_mov_b64 exec, -1')

def p1_body(A):
    L,half,l32=1,2,3
    vX0,vX1,vW=4,5,6
    vAr=8; vBr=12
    csr=24; ones=28
    AFR=32; BFR=48
    T=80
    RSL=104; RSV=108
    vHo=112
    ACC=128
    vFw=8; fu=12; kb=13; kmask=14; FB=32; FO=48; SV=128; ST2=56; WTr=60; vWTs=76; vWTd=77; CSL=160; RD=20; FP=22
    PB=192
    tile=lambda m,st: ACC+(st>>1)*64+(m*2+(st&1))*16
    A.I(f"""
    v_and_b32 v{L}, 63, v0
    v_and_b32 v{l32}, 31, v0
    v_bfe_u32 v{half}, v0, 5, 1
    s_and_b32 s33, s2, 7
    s_lshr_b32 s34, s2, 3
    s_and_b32 s35, s33, 1
    s_lshl_b32 s35, s35, 3
    s_and_b32 s36, s34, 7
    s_add_u32 s35, s35, s36              ; rb
    s_lshr_b32 s33, s33, 1
    s_lshl_b32 s33, s33, 2
    s_lshr_b32 s34, s34, 3
    s_add_u32 s34, s33, s34              ; cb
    s_and_b32 s36, s32, 3                ; fq (C) / h (H)
    s_lshr_b32 s37, s32, 2               ; sh
    s_lshr_b32 s49, s35, 1               ; s0 (K rotation)
    s_cmp_lt_u32 s32, 4
    s_cbranch_scc1 p1_roleC
    """)
    NST=8
    def spread_into(G,items,lo,hi):
        n=hi-lo
        for j,it in enumerate(items): G[lo+min(j*n//max(len(items),1),n-1)].append(it)
    want=lambda i: i in ((0,1,2,3,4,5,6,7) if 'allB' in EXP else (1,2,3,4,5) if 'bw' in EXP else (() if ('p3steps' in EXP or 's2fine' in EXP) else (0,4)))
    n_st=ST.n
    vq=[]
    srd(A,8,6,0,2048*512*2)
    srd(A,12,28,0,512*1792*2)
    srd(A,16,30,0,512*1792*2)
    mask=0
    for Ln in range(64):
        c=(Ln%16)^((Ln//16)<<2)
        if c<14: mask|=1<<Ln
    A.I(f"""
    s_mov_b32 s50, {hex(mask&0xffffffff)}
    s_mov_b32 s51, {hex(mask>>32)}
    s_lshl_b32 s38, s36, 12              ; h*4096
    v_lshrrev_b32 v{T}, 3, v{L}
    v_lshlrev_b32 v{T}, 16, v{T}
    s_lshl_b32 s60, s35, 2
    s_add_u32 s60, s60, s36
    s_lshl_b32 s60, s60, 10
    v_add_u32 v{T}, s60, v{T}
    v_and_b32 v{T+1}, 7, v{L}
    v_lshrrev_b32 v{T+2}, 4, v{L}
    v_xor_b32 v{T+1}, v{T+1}, v{T+2}
    v_lshl_add_u32 v{vX0}, v{T+1}, 4, v{T}
    v_xor_b32 v{vX1}, 64, v{vX0}
    s_lshl_b32 s60, s36, 4
    v_add_u32 v{T+1}, s60, v{T+2}
    s_movk_i32 s60, 3584
    v_mul_lo_u32 v{T+1}, v{T+1}, s60
    v_and_b32 v{T+3}, 15, v{L}
    v_lshlrev_b32 v{T+2}, 2, v{T+2}
    v_xor_b32 v{T+3}, v{T+3}, v{T+2}
    v_lshl_add_u32 v{vW}, v{T+3}, 4, v{T+1}
    s_mul_i32 s60, s34, 224
    v_add_u32 v{vW}, s60, v{vW}
    """)
    def dma(stage):
        slot=SB[stage%3]
        A.I(f's_add_u32 s52, s49, {stage}\ns_and_b32 s52, s52, 7\ns_mul_i32 s53, s52, {64*3584}\ns_lshl_b32 s52, s52, 7')
        for i in range(4):
            A.I(f's_add_u32 m0, s38, {slot+XS+i*1024}')
            A.I(f's_add_u32 s60, s52, {i*524288}')
            A.I(f'buffer_load_dwordx4 v{vX0+(i&1)}, s[8:11], s60 offen lds'); vq.append(stage)
            if PACE and stage>1: A.I(f's_sleep {PACE}')
            A.I(f's_add_u32 s60, s53, {i*14336}\ns_mov_b64 exec, s[50:51]')
            for m in range(2):
                A.I(f's_add_u32 m0, s38, {slot+(US if m else GS)+i*1024}\ns_nop 0')
                A.I(f'buffer_load_dwordx4 v{vW}, s[{12+4*m}:{15+4*m}], s60 offen lds'); vq.append(stage)
                if PACE and stage>1: A.I(f's_sleep {PACE}')
            A.I('s_mov_b64 exec, -1')
    VST='vst' in EXP
    RBUF=[112,160,208]; vLW=16
    def gload(stage):
        b=RBUF[stage%3]
        A.I(f's_add_u32 s52, s49, {stage}\ns_and_b32 s52, s52, 7\ns_mul_i32 s53, s52, {64*3584}\ns_lshl_b32 s52, s52, 7')
        for i in range(4):
            A.I(f's_add_u32 s60, s52, {i*524288}')
            A.I(f'buffer_load_dwordx4 {v(b+12*i,4)}, v{vX0+(i&1)}, s[8:11], s60 offen'); vq.append(('L',stage))
            A.I(f's_add_u32 s60, s53, {i*14336}\ns_mov_b64 exec, s[50:51]')
            for m in range(2):
                A.I(f'buffer_load_dwordx4 {v(b+12*i+4+4*m,4)}, v{vW}, s[{12+4*m}:{15+4*m}], s60 offen'); vq.append(('L',stage))
            A.I('s_mov_b64 exec, -1')
    def lwrite(stage):
        b=RBUF[stage%3]; sl=stage%3
        vwait(('L',stage))
        for i in range(4): A.I(f'ds_write_b128 v{vLW+sl}, {v(b+12*i,4)} offset:{XS+i*1024}')
        A.I('s_mov_b64 exec, s[50:51]')
        for i in range(4):
            for m in range(2): A.I(f'ds_write_b128 v{vLW+sl}, {v(b+12*i+4+4*m,4)} offset:{(US if m else GS)+i*1024}')
        A.I('s_mov_b64 exec, -1')
    def vwait(tag,lg=False):
        idx=[k for k,x in enumerate(vq) if x==tag]
        if not idx:
            if lg: A.I('s_waitcnt lgkmcnt(0)')
            return
        N=len(vq)-1-max(idx); del vq[:max(idx)+1]
        A.I(f's_waitcnt vmcnt({min(N,63)})'+(' lgkmcnt(0)' if lg else ''))
    if VST: SV=60
    (gload if VST else dma)(0)
    A.I(f"""
    s_lshl_b32 s33, s34, 3
    s_lshl_b32 s60, s36, 1
    s_add_u32 s33, s33, s60
    s_lshl_b32 s60, s35, 7
    s_add_u32 s64, s60, s33
    v_lshlrev_b32 v{T}, 4, v{L}
    """)
    for n in range(2):
        A.I(f"""s_add_u32 s60, s64, {n}
        s_and_b32 s61, s60, 31
        s_lshl_b32 s61, s61, 6
        s_lshr_b32 s60, s60, 5
        s_add_u32 s60, s60, s61
        s_lshl_b32 s60, s60, 10
        buffer_load_dwordx4 {v(SV+4*n,4)}, v{T}, s[8:11], s60 offen"""); vq.append('row')
    (gload if VST else dma)(1)
    if VST:
        gload(2)
        A.I(f'v_lshlrev_b32 v{vLW}, 4, v{L}\nv_add_u32 v{vLW}, s38, v{vLW}\nv_add_u32 v{vLW+1}, {SB[1]}, v{vLW}\nv_add_u32 v{vLW+2}, {SB[2]}, v{vLW}')
    A.I('s_cmp_lt_u32 s32, 6\ns_cbranch_scc1 p1H_nf')
    A.skip_begin()
    A.I(f"""
    s_and_b32 s39, s32, 1
    s_lshl_b32 s33, s49, 6
    s_lshl_b32 s60, s39, 5
    s_add_u32 s33, s33, s60
    v_add_u32 v{T+2}, s33, v{l32}
    v_cvt_f32_u32 v{fu}, v{T+2}
    v_mul_f32 v{fu}, {f2u(1/512)}, v{fu}
    s_lshl_b32 s33, s34, 4
    v_lshlrev_b32 v{T+3}, 3, v{half}
    v_add_u32 v{T+3}, s33, v{T+3}
    v_cvt_f32_u32 v{kb}, v{T+3}
    v_mov_b32 v{kmask}, 0xffff
    """)
    for b_ in range(2):
        if b_==1: A.I(f'v_add_f32 v{fu}, {f2u(0.125)}, v{fu}\nv_fract_f32 v{fu}, v{fu}')
        A.I(f'v_mul_f32 v{T+4}, v{fu}, v{kb}')
        for j in range(4):
            A.I(f'v_cos_f32 v{T+6}, v{T+4}\nv_sin_f32 v{T+8}, v{T+4}\nv_add_f32 v{T+4}, v{T+4}, v{fu}')
            A.I(f'v_cos_f32 v{T+7}, v{T+4}\nv_sin_f32 v{T+9}, v{T+4}\nv_add_f32 v{T+4}, v{T+4}, v{fu}')
            A.I(f'v_cvt_pk_bf16_f32 v{FB+8*b_+j}, v{T+6}, v{T+7}')
            A.I(f'v_cvt_pk_bf16_f32 v{FB+8*b_+4+j}, -v{T+8}, -v{T+9}')
        A.I(f"""v_and_b32 v{T+5}, 1, v{l32}
        v_lshlrev_b32 v{T+5}, 15, v{T+5}
        v_or_b32 v{T+5}, 0x3f80, v{T+5}
        v_bfi_b32 v{T+5}, v{kmask}, v{T+5}, v{FB+8*b_+4}
        v_cmp_eq_u32 vcc, 0, v{T+3}
        v_cndmask_b32 v{FB+8*b_+4}, v{FB+8*b_+4}, v{T+5}, vcc""")
    A.I(f"""
    s_lshl_b32 s60, s39, 5
    v_add_u32 v{T+2}, s60, v{l32}
    v_and_b32 v{T+3}, 3, v{T+2}
    v_lshlrev_b32 v{T+3}, 2, v{T+3}
    v_add_u32 v{T+4}, 14, v{half}
    v_xor_b32 v{T+3}, v{T+3}, v{T+4}
    v_lshlrev_b32 v{T+3}, 4, v{T+3}
    v_lshl_add_u32 v{T+3}, v{T+2}, 8, v{T+3}
    v_add_u32 v{vFw}, {GS+SB[0]}, v{T+3}
    v_add_u32 v{vFw+1}, {GS+SB[1]}, v{T+3}
    v_add_u32 v{vFw+2}, {GS+SB[2]}, v{T+3}
    """)
    A.skip_end(); A.L('p1H_nf')
    flab=[0]
    def fgen(stage):
        flab[0]+=1; l=f'p1H_fg{flab[0]}'
        A.I(f's_cmp_lt_u32 s32, 6\ns_cbranch_scc1 {l}')
        A.skip_begin()
        slot=stage%3; b_=stage&1; t=(stage>>1)&3; B0=FB+8*b_
        def wr(m,src): A.I(f'ds_write_b128 v{vFw+slot}, {v(src,4)} offset:{m*16384}')
        if t==0:
            wr(0,B0); wr(1,B0+4)
        elif t==2:
            for m in range(2):
                for j in range(4): A.I(f'v_xor_b32 v{FO+4*m+j}, 0x80000000, v{B0+4*m+j}')
                wr(m,FO+4*m)
        else:
            ex=0 if t==1 else 0x80000000
            for m in range(2):
                for j in range(4):
                    own=B0+4*m+j; oth=B0+4*(1-m)+j
                    A.I(f'v_bfi_b32 v{FO+4*m+j}, v{kmask}, v{own}, v{oth}')
                    if m==0: sg=(0 if j%2==0 else 0x80008000)
                    else: sg=(0x80000000 if j%2==0 else 0x8000)
                    sg^=ex
                    if sg: A.I(f'v_xor_b32 v{FO+4*m+j}, {hex(sg)}, v{FO+4*m+j}')
                wr(m,FO+4*m)
        A.skip_end(); A.L(l)
    A.I('s_cmp_lg_u32 s2, 0\ns_cbranch_scc1 p1H_non\ns_cmp_lg_u32 s32, 7\ns_cbranch_scc1 p1H_non')
    A.skip_begin()
    cnt_base(A)
    A.I(f'v_lshlrev_b32 v{T}, 7, v{L}\nv_mov_b32 v{T+1}, 0')
    for j in range(NCNT//64):
        A.I(f'global_store_dword v{T}, v{T+1}, s[62:63]{SC}\nv_add_u32 v{T}, {64*128}, v{T}')
    A.I('s_mov_b64 exec, 1')
    A.I(f's_waitcnt vmcnt(0)\nv_mov_b32 v{T}, 0\nv_mov_b32 v{T+1}, 1\nglobal_store_dword v{T}, v{T+1}, s[54:55]{SC}\ns_mov_b64 exec, -1')
    A.skip_end(); A.L('p1H_non')
    def rowstats():
        U=T+14; S=ST2
        vwait('row')
        for i in range(4):
            for n in range(2):
                u=U+2*n
                A.I(f'v_lshlrev_b32 v{u}, 16, v{SV+4*n+i}\nv_and_b32 v{u+1}, 0xffff0000, v{SV+4*n+i}')
                if i==0: A.I(f'v_add_f32 v{S+2*n}, v{u}, v{u+1}\nv_mul_f32 v{S+2*n+1}, v{u}, v{u}')
                else: A.I(f'v_add_f32 v{S+2*n}, v{S+2*n}, v{u}\nv_fmac_f32 v{S+2*n+1}, v{u}, v{u}\nv_add_f32 v{S+2*n}, v{S+2*n}, v{u+1}')
                A.I(f'v_fmac_f32 v{S+2*n+1}, v{u+1}, v{u+1}')
        for ror in (8,4,2,1):
            for x in range(S,S+4): A.I(f'v_add_f32_dpp v{x}, v{x}, v{x} row_ror:{ror} row_mask:0xf bank_mask:0xf')
        for op in ('v_permlane16_swap_b32','v_permlane32_swap_b32'):
            for k in range(4): A.I(f'v_mov_b32 v{U+k}, v{S+k}')
            for k in range(4): A.I(f'{op} v{S+k}, v{U+k}')
            for k in range(4): A.I(f'v_add_f32 v{S+k}, v{S+k}, v{U+k}')
        A.I(f"""
        v_and_b32 v{U}, 1, v{L}
        v_cmp_eq_u32 vcc, 1, v{U}
        v_cndmask_b32 v{S}, v{S}, v{S+2}, vcc
        v_cndmask_b32 v{S+1}, v{S+1}, v{S+3}, vcc
        v_mul_f32 v{U}, {f2u(1/512)}, v{S}
        v_mul_f32 v{U+1}, {f2u(1/512)}, v{S+1}
        v_fma_f32 v{U+1}, -v{U}, v{U}, v{U+1}
        v_max_f32 v{U+1}, 0, v{U+1}
        v_cvt_pk_bf16_f32 v{U}, v{U}, v{U+1}
        v_and_b32 v{U+1}, 0xffff0000, v{U}
        v_lshlrev_b32 v{U}, 16, v{U}
        v_sub_f32 v{S}, 0, v{U}
        v_add_f32 v{U+1}, {f2u(1e-5)}, v{U+1}
        v_cvt_pk_bf16_f32 v{U+1}, v{U+1}, v{U+1}
        v_and_b32 v{U+1}, 0xffff0000, v{U+1}
        v_sqrt_f32 v{U+1}, v{U+1}
        v_cvt_pk_bf16_f32 v{U+1}, v{U+1}, v{U+1}
        v_and_b32 v{S+1}, 0xffff0000, v{U+1}
        s_lshl_b32 s60, s64, 3
        s_add_u32 s60, s60, {OFF_RS}
        s_add_u32 s62, s4, s60
        s_addc_u32 s63, s5, 0
        v_lshlrev_b32 v{U}, 3, v{L}
        s_mov_b64 exec, 3
        global_store_dwordx2 v{U}, {v(S,2)}, s[62:63]{SC}
        s_mov_b64 exec, -1
        """); vq.append('st')
    WV=128
    wS=76; wD=77
    def wt_job_loads():
        A.I(f"""
        v_and_b32 v{wD}, 255, v0
        v_lshrrev_b32 v{wD}, 4, v{wD}
        s_lshl_b32 s60, s35, 7
        v_add_u32 v{wS}, s60, v{wD}
        v_mul_u32_u24 v{wS}, 257, v{wS}
        v_and_b32 v{wD+1}, 15, v0
        s_lshl_b32 s60, s34, 4
        v_add_u32 v{wD+1}, s60, v{wD+1}
        v_add_u32 v{wS}, v{wS}, v{wD+1}
        v_lshlrev_b32 v{wS}, 1, v{wS}
        s_lshr_b32 s60, s35, 2
        s_lshl_b32 s60, s60, 11
        s_and_b32 s61, s35, 3
        s_lshl_b32 s61, s61, 8
        s_add_u32 s65, s60, s61
        v_lshlrev_b32 v{wD}, 4, v{wD}
        v_add_u32 v{wD}, s65, v{wD}
        v_lshl_add_u32 v{wD}, v{wD+1}, 13, v{wD}
        s_mov_b32 s42, 0x101000
        s_mov_b32 s43, 0x20000
        s_mov_b32 s46, 0x101000
        s_mov_b32 s47, 0x20000
        """)
        for n in range(2):
            for r in range(4):
                A.I(f's_mov_b32 s60, {r*16448+n*8224}')
                A.I(f'buffer_load_short_d16 v{WV+4*n+r}, v{wS}, s[40:43], s60 offen')
                A.I(f'buffer_load_short_d16_hi v{WV+8+4*n+r}, v{wS}, s[44:47], s60 offen'); vq.extend(['wt','wt'])
        A.I('s_cmp_lg_u32 s34, 0\ns_cbranch_scc1 p1H_wt0\ns_cmp_lg_u32 s32, 4\ns_cbranch_scc1 p1H_wt0')
        A.skip_begin()
        A.I(f's_lshl_b32 s60, s35, 7\nv_add_u32 v{wD+1}, s60, v{l32}\nv_mul_u32_u24 v{wD+1}, 257, v{wD+1}\nv_add_u32 v{wD+1}, 256, v{wD+1}\nv_lshlrev_b32 v{wD+1}, 1, v{wD+1}')
        for r in range(4):
            A.I(f's_mov_b32 s60, {r*16448}')
            A.I(f'buffer_load_short_d16 v{WV+16+r}, v{wD+1}, s[40:43], s60 offen')
            A.I(f'buffer_load_short_d16_hi v{WV+20+r}, v{wD+1}, s[44:47], s60 offen')
        A.skip_end(); A.L('p1H_wt0')
    def wt_job_stores():
        vwait('wt')
        srd(A,40,4,OFF_WT,257*8192)
        for n in range(2):
            for r in range(4): A.I(f'v_or_b32 v{WV+4*n+r}, v{WV+4*n+r}, v{WV+8+4*n+r}')
            A.I(f'buffer_store_dwordx4 {v(WV+4*n,4)}, v{wD}, s[40:43], 0 offen offset:{n*1024}{SC}'); vq.append('wst')
        A.I('s_cmp_lg_u32 s34, 0\ns_cbranch_scc1 p1H_wt1\ns_cmp_lg_u32 s32, 4\ns_cbranch_scc1 p1H_wt1')
        A.skip_begin()
        for r in range(4): A.I(f'v_or_b32 v{WV+16+r}, v{WV+16+r}, v{WV+20+r}')
        A.I(f'v_lshrrev_b32 v{wS}, 4, v{l32}\nv_lshlrev_b32 v{wS}, 10, v{wS}\nv_and_b32 v{wD+1}, 15, v{l32}\nv_lshl_add_u32 v{wS}, v{wD+1}, 4, v{wS}')
        A.I(f'v_add_u32 v{wS}, s65, v{wS}\nv_add_u32 v{wS}, 0x200000, v{wS}\ns_mov_b32 exec_hi, 0')
        A.I(f'buffer_store_dwordx4 {v(WV+16,4)}, v{wS}, s[40:43], 0 offen{SC}\ns_mov_b64 exec, -1')
        A.skip_end(); A.L('p1H_wt1')
    def warmup():
        A.I(f"""
        s_bfe_u32 s60, s2, 0x30003            ; n&7
        s_mul_i32 s60, s60, 224
        s_mul_i32 s61, s36, 56
        s_add_u32 s60, s60, s61
        v_add_u32 v{T}, s60, v{L}
        v_lshlrev_b32 v{T}, 10, v{T}
        s_bfe_u32 s60, s2, 0x10002            ; x>>2
        s_lshl_b32 s60, s60, 2
        s_lshr_b32 s61, s2, 6
        s_add_u32 s60, s60, s61               ; db
        s_lshl_b32 s60, s60, 7
        v_add_u32 v{T}, s60, v{T}
        s_mov_b32 s20, s56
        s_mov_b32 s21, s57
        s_mov_b32 s22, {hex(1792*512*2)}
        s_mov_b32 s23, 0x20000
        {'buffer_load_dword v%d, v%d, s[20:23], 0 offen'%(T+2,T) if 'nopfw' not in EXP else 's_nop 0'}
        s_getpc_b64 s[60:61]
        p1H_pc:
        s_add_u32 s60, s60, p1_join-p1H_pc
        s_addc_u32 s61, s61, 0
        s_lshl_b32 s62, s36, 13
        v_lshlrev_b32 v{T+4}, 7, v{L}
        v_add_u32 v{T+4}, s62, v{T+4}
        v_min_u32 v{T+4}, k_done-p1_join, v{T+4}
        v_mov_b32 v{T+5}, s61
        v_add_co_u32 v{T+4}, vcc, s60, v{T+4}
        v_addc_co_u32 v{T+5}, vcc, 0, v{T+5}, vcc
        {'global_load_dword v%d, v[%d:%d], off'%(T+3,T+4,T+5) if 'nopfc' not in EXP else 's_nop 0'}
        """)
        vq.extend(['pf']*(2-('nopfw' in EXP)-('nopfc' in EXP)))
    def warm_filter():
        A.I(f"""
        s_lshl_b32 s60, s35, 7
        s_lshl_b32 s61, s36, 5
        s_add_u32 s60, s60, s61
        v_add_u32 v{T}, s60, v{l32}
        v_mul_u32_u24 v{T}, 514, v{T}
        s_lshl_b32 s60, s34, 5
        v_add_u32 v{T}, s60, v{T}
        v_and_b32 v{T}, -4, v{T}
        s_mov_b32 s42, 0x101000
        s_mov_b32 s43, 0x20000
        s_mov_b32 s46, 0x101000
        s_mov_b32 s47, 0x20000
        s_mov_b32 exec_hi, 0
        buffer_load_dword v{T+2}, v{T}, s[40:43], 0 offen
        s_mov_b64 exec, -1
        s_mov_b32 exec_lo, 0
        buffer_load_dword v{T+3}, v{T}, s[44:47], 0 offen
        s_mov_b64 exec, -1
        """); vq.extend(['pf','pf'])
    def warm_all(cs):
        A.I(f"""
        s_bfe_u32 s60, s2, 0x10002
        s_lshl_b32 s60, s60, 2
        s_lshr_b32 s61, s2, 6
        s_add_u32 s60, s60, s61
        s_lshl_b32 s60, s60, 7
        s_mul_i32 s61, s36, {448*1024}
        s_add_u32 s60, s60, s61
        v_lshlrev_b32 v{T}, 10, v{L}
        s_mov_b32 s20, s56
        s_mov_b32 s21, s57
        s_mov_b32 s22, {hex(1792*512*2)}
        s_mov_b32 s23, 0x20000
        """)
        for c in cs:
            A.I(f's_add_u32 s61, s60, {c*64*1024}\nbuffer_load_dword v{T+2}, v{T}, s[20:23], s61 offen'); vq.append('pf')
    def ready_load():
        A.I(f'v_mov_b32 v{RD+1}, 0\ns_mov_b64 exec, 1\nglobal_load_dword v{RD}, v{RD+1}, s[54:55]{SCP}\ns_mov_b64 exec, -1'); vq.append('non')
    def ready_check():
        l=newlab('nl'); d=newlab('nd')
        A.I(f'v_readfirstlane_b32 s3, v{RD}\ns_cmp_lg_u32 s3, 0\ns_cbranch_scc1 {d}\ns_mov_b32 s58, 0')
        A.L(l)
        A.I(f'global_load_dword v{RD}, v{RD+1}, s[54:55]{SCP}\ns_waitcnt vmcnt(0)\nv_readfirstlane_b32 s3, v{RD}')
        A.I(f's_cmp_lg_u32 s3, 0\ns_cbranch_scc1 {d}\ns_add_u32 s58, s58, 1\ns_cmp_lt_u32 s58, {SPIN_MAX>>4}\ns_cbranch_scc1 {l}')
        A.L(d)
    def rs_loads(q):
        A.I(f"""
        s_lshl_b32 s60, s35, 7
        s_lshl_b32 s61, s37, 6
        s_add_u32 s60, s60, s61
        v_add_u32 v{RSL}, s60, v{l32}
        v_lshlrev_b32 v{RSL+1}, 3, v{RSL}
        s_add_u32 s62, s4, {OFF_RS}
        s_addc_u32 s63, s5, 0
        global_load_dwordx2 {v(RSV,2)}, v{RSL+1}, s[62:63]{SC}
        global_load_dwordx2 {v(RSV+2,2)}, v{RSL+1}, s[62:63] offset:256{SC}
        """); q.extend(['rs','rs'])
    if VST:
        lwrite(0); gload(3); lwrite(1); gload(4)
    for i in range(NST):
        if 'bw' in EXP and i in (1,2,3,4,5): ST.mark(A)
        if VST and i==3: vwait('st')
        vwait(i,True)
        if 'bw' in EXP and i in (1,2,3,4,5): ST.mark(A)
        if i==6:
            A.I('s_cmp_lg_u32 s32, 4\ns_cbranch_scc1 p1H_sq')
            A.skip_begin()
            A.I('s_waitcnt vmcnt(0)' if VST else 's_waitcnt vmcnt(12)')
            poll_cnt(A,FP+1,FP+3,FP+2,2,True)
            A.skip_end(); A.L('p1H_sq')
        A.I('s_barrier')
        if want(i): ST.mark(A)
        if i==5:
            A.I(f"""
            s_lshl_b32 s60, s35, 7
            s_add_u32 s61, s34, {C_CS}
            s_lshl_b32 s61, s61, 7
            v_mov_b32 v{FP+1}, s61
            v_mov_b32 v{FP}, s60
            v_cmp_eq_u32 vcc, 0, v{L}
            v_cndmask_b32 v{FP+1}, v{FP+1}, v{FP}, vcc
            v_mov_b32 v{FP+3}, 16
            s_cmp_lg_u32 s32, 4
            s_cbranch_scc1 p1H_sp
            """)
            A.skip_begin()
            cnt_base(A)
            A.I(f's_mov_b64 exec, 3\nglobal_load_dword v{FP+2}, v{FP+1}, s[62:63]{SCP}\ns_mov_b64 exec, -1')
            A.skip_end(); A.L('p1H_sp')
        if i==0: ready_load()
        if i==3:
            A.I('s_cmp_lg_u32 s32, 4\ns_cbranch_scc1 p1H_f0')
            A.skip_begin()
            ready_check()
            arrive(A,35,T+14)
            A.I(f's_add_u32 s61, s34, {C_CS}'); arrive(A,61,T+14)
            A.skip_end(); A.L('p1H_f0')
        if i+2<NST: fgen(i+2)
        if i+2<NST and not VST: dma(i+2)
        if i+2<NST and VST:
            lwrite(i+2)
            if i+5<NST: gload(i+5)
        if i==0: rowstats()
        if i==WI and 'nopf' not in EXP: warmup()
        if 'pfall' in EXP and i in (1,2,3,4): warm_all({1:(0,1),2:(2,3),3:(4,5),4:(6,)}[i])
        if i==3 and 'pff' in EXP: warm_filter()
        if i==6:
            wt_job_loads()
            rs_loads(vq)
            A.I(f's_lshl_b32 s60, s34, 14\ns_add_u32 s60, s60, {OFF_CSP}\ns_add_u32 s20, s4, s60\ns_addc_u32 s21, s5, 0\nv_and_b32 v{FP}, 255, v0\nv_lshlrev_b32 v{FP}, 2, v{FP}')
            for j4 in range(4):
                if j4>0: A.I(f'v_add_u32 v{FP}, 4096, v{FP}')
                for j in range(4):
                    A.I(f'global_load_dword v{CSL+4*j4+j}, v{FP}, s[20:21] offset:{j*1024}{SC}'); vq.append('csp')
    vwait('csp')
    wt_job_stores()
    X=CSL
    for j in range(8): A.I(f'v_add_f32 v{X+j}, v{X+j}, v{X+8+j}')
    for j in range(4): A.I(f'v_add_f32 v{X+j}, v{X+j}, v{X+4+j}')
    A.I(f'v_add_f32 v{X}, v{X}, v{X+1}\nv_add_f32 v{X+2}, v{X+2}, v{X+3}\nv_add_f32 v{X}, v{X}, v{X+2}')
    A.I(f"""
    v_cvt_pk_bf16_f32 v{X+1}, v{X}, v{X}
    v_and_b32 v{X+1}, 0xffff0000, v{X+1}
    v_sub_f32 v{X+2}, v{X}, v{X+1}
    v_cvt_pk_bf16_f32 v{X}, v{X+1}, v{X+2}
    v_and_b32 v{T}, 255, v0
    v_lshlrev_b32 v{T}, 2, v{T}
    v_add_u32 v{T}, {STAT}, v{T}
    ds_write_b32 v{T}, v{X}
    """)
    ST.mark(A)
    A.I(f"""
    s_lshl_b32 s60, s36, 14
    s_cmp_eq_u32 s36, 3
    s_cselect_b32 s60, {SB[2]}, s60
    v_lshlrev_b32 v{T}, 4, v{L}
    v_add_u32 v{T}, s60, v{T}
    s_waitcnt lgkmcnt(0)
    s_barrier
    """)
    for k in range(16): A.I(f'ds_read_b128 {v(ACC+4*k,4)}, v{T} offset:{k*1024}')
    A.I('s_branch p1_join')
    A.L('p1_roleC'); A.fence()
    ST.n=n_st
    cq=[]; lq=[]
    A.I(f"""
    v_lshrrev_b32 v{T}, 5, v{L}
    v_lshlrev_b32 v{T}, 3, v{T}
    v_bfe_u32 v{T+1}, v{L}, 2, 2
    v_add_u32 v{T}, v{T}, v{T+1}
    v_lshlrev_b32 v{T}, 8, v{T}
    v_bfe_u32 v{T+2}, v{L}, 4, 1
    v_lshlrev_b32 v{T+2}, 1, v{T+2}
    v_bfe_u32 v{T+3}, v{L}, 1, 1
    v_add_u32 v{T+2}, v{T+2}, v{T+3}
    s_lshl_b32 s33, s36, 2
    v_add_u32 v{T+2}, s33, v{T+2}
    v_lshlrev_b32 v{T+1}, 2, v{T+1}
    v_xor_b32 v{T+2}, v{T+2}, v{T+1}
    v_lshl_add_u32 v{T}, v{T+2}, 4, v{T}
    v_and_b32 v{T+3}, 1, v{L}
    v_lshl_add_u32 v{T}, v{T+3}, 3, v{T}
    v_add_u32 v{vAr}, {GS+SB[0]}, v{T}
    v_add_u32 v{vAr+1}, {GS+SB[1]}, v{T}
    v_add_u32 v{vAr+2}, {GS+SB[2]}, v{T}
    v_lshlrev_b32 v{T}, 7, v{l32}
    v_bfe_u32 v{T+1}, v{l32}, 1, 3
    v_xor_b32 v{T+1}, v{T+1}, v{half}
    v_lshl_add_u32 v{T}, v{T+1}, 4, v{T}
    v_mov_b32 v{ones}, 0x3f803f80
    """)
    for sl in range(3):
        for ks in range(4):
            if ks==0: A.I(f'v_add_u32 v{vBr+sl*4}, {SB[sl]+XS}, v{T}')
            else: A.I(f'v_xor_b32 v{vBr+sl*4+ks}, {ks*32}, v{vBr+sl*4}')
    for k in range(4): A.I(f'v_mov_b32 v{csr+k}, 0')
    A.I(f'v_mov_b32 v{T}, {CTRL}\nv_lshl_add_u32 v{T}, v{L}, 2, v{T}\nv_mov_b32 v{T+1}, 0\nds_write_b32 v{T}, v{T+1}')
    A.I(f"""
    s_lshl_b32 s60, s36, 4
    v_and_b32 v{T}, 15, v{L}
    v_add_u32 v{T}, s60, v{T}              ; row
    s_lshl_b32 s60, s49, 6
    v_lshlrev_b32 v{T+1}, 6, v{half}
    v_add_u32 v{T+1}, v{T+1}, v{T}
    v_add_u32 v{T+1}, s60, v{T+1}
    v_and_b32 v{T+1}, 511, v{T+1}          ; d
    v_cvt_f32_u32 v{T+2}, v{T+1}
    v_mul_f32 v{T+2}, {f2u(1/512)}, v{T+2} ; u
    v_bfe_u32 v{T+3}, v{L}, 4, 1           ; ch
    s_lshl_b32 s60, s34, 4
    v_lshlrev_b32 v{T+4}, 3, v{T+3}
    v_add_u32 v{T+4}, s60, v{T+4}          ; k0
    v_cvt_f32_u32 v{T+5}, v{T+4}
    v_mul_f32 v{T+5}, v{T+5}, v{T+2}       ; angle
    """)
    for j in range(4):
        A.I(f'v_cos_f32 v{T+6}, v{T+5}\nv_sin_f32 v{T+8}, v{T+5}\nv_add_f32 v{T+5}, v{T+5}, v{T+2}')
        A.I(f'v_cos_f32 v{T+7}, v{T+5}\nv_sin_f32 v{T+9}, v{T+5}\nv_add_f32 v{T+5}, v{T+5}, v{T+2}')
        A.I(f'v_cvt_pk_bf16_f32 v{AFR+j}, v{T+6}, v{T+7}')
        A.I(f'v_cvt_pk_bf16_f32 v{AFR+4+j}, -v{T+8}, -v{T+9}')
    A.I(f"""
    v_and_b32 v{T+6}, 1, v{T}
    v_lshlrev_b32 v{T+6}, 15, v{T+6}
    v_or_b32 v{T+6}, 0x3f80, v{T+6}
    v_mov_b32 v{T+7}, 0xffff
    v_bfi_b32 v{T+6}, v{T+7}, v{T+6}, v{AFR+4}
    v_cmp_eq_u32 vcc, 0, v{T+4}
    v_cndmask_b32 v{AFR+4}, v{AFR+4}, v{T+6}, vcc
    v_and_b32 v{T+6}, 3, v{T}
    v_lshlrev_b32 v{T+6}, 2, v{T+6}
    v_add_u32 v{T+7}, 14, v{T+3}
    v_xor_b32 v{T+6}, v{T+6}, v{T+7}
    v_lshlrev_b32 v{T+6}, 4, v{T+6}
    v_lshl_add_u32 v{T+6}, v{T}, 8, v{T+6}
    v_mul_u32_u24 v{T+7}, {SB[1]-SB[0]}, v{half}
    v_add_u32 v{T+6}, v{T+6}, v{T+7}
    v_add_u32 v{T+6}, {GS+SB[0]}, v{T+6}
    ds_write_b128 v{T+6}, {v(AFR,4)}
    ds_write_b128 v{T+6}, {v(AFR+4,4)} offset:16384
    """)
    AS=[32,40,80]; BS=[48,64,88]
    def read_items(stage,ks,fs,sts=(0,1,2,3)):
        slot=stage%3; a=AS[fs]; bb=BS[fs]
        def ra(m):
            def f():
                for rd in range(2):
                    A.I(f'ds_read_b64_tr_b16 {v(a+m*4+rd*2,2)}, v{vAr+slot} offset:{m*16384+ks*4096+rd*1024}'); lq.append(('A',m,stage,ks))
            return f
        def rb(st):
            def f():
                A.I(f'ds_read_b128 {v(bb+st*4,4)}, v{vBr+slot*4+ks} offset:{st*4096}'); lq.append(('B',st,stage,ks))
            return f
        return [ra(0),rb(sts[0]),ra(1)]+[rb(x) for x in sts[1:]]
    def lwait(tags):
        idx=[k for k,x in enumerate(lq) if x in tags]
        if not idx: return
        n=len(lq)-1-max(idx); del lq[:max(idx)+1]
        A.I(f's_waitcnt lgkmcnt({min(n,15)})')
    def compute(stage,ks,fs,first,nxt,extra=None,cs=None,sts=(0,1,2,3)):
        a=AS[fs]; bb=BS[fs]; k=0
        nxt=list(nxt)
        per=[[] for _ in range(2*len(sts))]
        for j,it in enumerate(nxt): per[(j if len(nxt)<=len(per) else (j*len(per))//len(nxt))].append(it)
        for st in sts:
            for m in range(2):
                lwait([('A',m,stage,ks),('B',st,stage,ks)])
                mf32(A,tile(m,st),a+m*4,bb+st*4,first)
                for it in per[k]: it()
                if cs is not None: A.I(f'v_dot2c_f32_bf16 v{csr+cs*2+(k>>2)}, v{a+(k>>2)*4+(k&3)}, v{ones}')
                if extra and k in extra: extra[k]()
                k+=1
    def cs_chunks():
        U=104; C=[]
        C.append(lambda: A.I(f"""s_bitcmp1_b32 s35, 0
            s_cselect_b64 vcc, -1, 0
            v_cndmask_b32 v{U}, v{csr}, v{csr+2}, vcc
            v_cndmask_b32 v{U+2}, v{csr+1}, v{csr+3}, vcc"""))
        C.append(lambda: A.I(f"""v_mov_b32 v{U+1}, v{U}
            v_mov_b32 v{U+3}, v{U+2}
            s_lshl_b32 s60, s34, 4
            s_add_u32 s60, s60, s35"""))
        C.append(lambda: A.I(f"""v_permlane32_swap_b32 v{U}, v{U+1}
            v_permlane32_swap_b32 v{U+2}, v{U+3}
            s_lshl_b32 s60, s60, 10
            s_lshl_b32 s61, s36, 7"""))
        C.append(lambda: A.I(f"""v_add_f32 v{U}, v{U}, v{U+1}
            v_add_f32 v{U+2}, v{U+2}, v{U+3}
            s_add_u32 s60, s60, s61
            s_add_u32 s60, s60, {OFF_CSP}"""))
        C.append(lambda: A.I(f"""s_add_u32 s62, s4, s60
            s_addc_u32 s63, s5, 0
            v_lshlrev_b32 v{U+1}, 2, v{l32}
            s_mov_b32 exec_hi, 0
            global_store_dword v{U+1}, v{U}, s[62:63]{SC}
            s_mov_b64 exec, -1"""))
        C.append(lambda: A.I(f"""s_mov_b32 exec_hi, 0
            global_store_dword v{U+1}, v{U+2}, s[62:63] offset:512{SC}
            s_mov_b64 exec, -1"""))
        return C
    for i in range(NST):
        if 'bw' in EXP and i in (1,2,3,4,5): ST.mark(A)
        if i==3: A.I('s_waitcnt vmcnt(0)')
        A.I('s_waitcnt lgkmcnt(0)'); lq.clear()
        if 'bw' in EXP and i in (1,2,3,4,5): ST.mark(A)
        A.I('s_barrier')
        if want(i): ST.mark(A)
        if 'la2' not in EXP:
            fs=lambda st_,ks_: (4*st_+ks_)%3
            r01=read_items(i,0,fs(i,0))+read_items(i,1,fs(i,1))
            if i==0:
                for f in r01: f()
            else:
                compute(i-1,3,fs(i-1,3),False,r01,None,1 if i==1 else None)
            compute(i,0,fs(i,0),i==0,read_items(i,2,fs(i,2)),({6:lambda: rs_loads(cq)} if i==6 else (dict(zip((1,2,3,4,6,7),cs_chunks())) if i==1 else None)),0 if i==0 else None)
            compute(i,1,fs(i,1),False,read_items(i,3,fs(i,3)),None,0 if i==0 else None)
            compute(i,2,fs(i,2),False,[],None,1 if i==0 else None)
            continue
        r0=read_items(i,0,0)
        if i==0:
            for f in r0: f()
        else:
            compute(i-1,3,1,False,r0,None,1 if i==1 else None)
        compute(i,0,0,i==0,read_items(i,1,1),({6:lambda: rs_loads(cq)} if i==6 else (dict(zip((1,2,3,4,6,7),cs_chunks())) if i==1 else None)),0 if i==0 else None)
        compute(i,1,1,False,read_items(i,2,0),None,0 if i==0 else None)
        compute(i,2,0,False,read_items(i,3,1),None,1 if i==0 else None)
    HW=104
    A.I(f"""
    s_lshl_b32 s60, s36, 14
    s_cmp_eq_u32 s36, 3
    s_cselect_b32 s60, {SB[2]}, s60
    v_lshlrev_b32 v{HW}, 4, v{L}
    v_add_u32 v{HW}, s60, v{HW}
    """)
    if 'do7' not in EXP:
        A.I('s_waitcnt lgkmcnt(0)'); lq.clear()
        compute(7,3,((4*7+3)%3 if 'la2' not in EXP else 1),False,[])
        ST.mark(A)
        for k in range(16): A.I(f'ds_write_b128 v{HW}, {v(ACC+64+4*k,4)} offset:{k*1024}')
        A.I('s_waitcnt vmcnt(0) lgkmcnt(0)\ns_barrier')
    else:
        hi=(2,3); lo=(0,1)
        compute(7,0,0,False,read_items(7,1,1,hi),sts=hi)
        compute(7,1,1,False,read_items(7,2,0,hi),sts=hi)
        compute(7,2,0,False,read_items(7,3,1,hi),sts=hi)
        compute(7,3,1,False,read_items(10,0,0,lo),sts=hi)
        def hw(k0,k1):
            def f():
                for k in range(k0,k1):
                    A.I(f'ds_write_b128 v{HW}, {v(ACC+64+4*k,4)} offset:{k*1024}'); lq.append('hw')
            return f
        compute(10,0,0,False,read_items(10,1,1,lo),sts=lo)
        compute(10,1,1,False,read_items(10,2,0,lo),{0:hw(0,4),1:hw(4,8),2:hw(8,12),3:hw(12,16)},sts=lo)
        compute(10,2,0,False,read_items(10,3,1,lo),sts=lo)
        A.I('s_waitcnt lgkmcnt(0)\ns_barrier'); lq.clear()
        compute(10,3,1,False,[],sts=lo)
        ST.mark(A)
        A.I('s_waitcnt vmcnt(0)')
    A.L('p1_join')
    mm=[RSV,RSV+2]; sd=[RSV+1,RSV+3]
    c1p=T+6; c2p=T+14; sd2=T+16; rr=T+18
    c1=-2*0.7978845608028654*math.log2(math.e); c2=c1*0.044715
    FRK=32
    A.I(f"""
    s_lshl_b32 s39, s36, 7
    v_lshlrev_b32 v{T+2}, 2, v{l32}
    v_add_u32 v{T+2}, s39, v{T+2}
    v_add_u32 v{T+2}, {STAT}, v{T+2}
    ds_read_b32 v{T+10}, v{T+2}
    ds_read_b32 v{T+11}, v{T+2} offset:512
    """)
    for k in range(16): A.I(f'v_mov_b32 v{FRK+k}, 0')
    for st in range(2):
        A.I(f"""
        v_rcp_f32 v{rr+st}, v{sd[st]}
        v_mul_f32 v{sd2+st}, v{sd[st]}, v{sd[st]}
        v_mul_f32 v{c1p+st}, {f2u(c1)}, v{rr+st}
        v_mul_f32 v{T+9}, v{rr+st}, v{rr+st}
        v_mul_f32 v{T+9}, v{T+9}, v{rr+st}
        v_mul_f32 v{c2p+st}, {f2u(c2)}, v{T+9}
        """)
    srd(A,20,4,OFF_HP,224*32768)
    srd(A,24,4,OFF_YQ,256*8192)
    A.I(f"""
    v_cvt_pk_bf16_f32 v{T+12}, v{mm[0]}, v{mm[0]}
    v_cvt_pk_bf16_f32 v{T+13}, v{mm[1]}, v{mm[1]}
    v_cmp_gt_u32 vcc, 32, v{L}
    v_cndmask_b32 v{FRK+8}, 0, v{T+12}, vcc
    v_cndmask_b32 v{FRK+12}, 0, v{T+13}, vcc
    s_lshl_b32 s33, s35, 7
    s_lshl_b32 s39, s37, 6
    s_add_u32 s33, s33, s39              ; 128rb+64sh
    v_add_u32 v{T+4}, s33, v{l32}
    v_lshlrev_b32 v{vHo}, 4, v{T+4}
    v_lshl_add_u32 v{vHo}, v{half}, 15, v{vHo}
    v_add_u32 v{vHo+1}, 512, v{vHo}
    s_waitcnt lgkmcnt(0)
    v_cndmask_b32 v{FRK}, 0, v{T+10}, vcc
    v_cndmask_b32 v{FRK+4}, 0, v{T+11}, vcc
    """)
    for m in range(2):
        for b_ in range(2): mf32(A,ACC+(m*2+b_)*16,FRK+m*4,FRK+8+b_*4)
    vPf=114
    A.I('s_cmp_eq_u32 s37, 0\ns_cbranch_scc1 p1_pfC')
    A.I(f's_lshl_b32 s39, s36, 2\nv_mov_b32 v{vPf}, {CTRL}\nv_add_u32 v{vPf}, s39, v{vPf}\nv_mov_b32 v{vPf+1}, 1\nds_write_b32 v{vPf}, v{vPf+1} offset:64')
    A.I('s_branch p1_pfE')
    A.L('p1_pfC')
    srd(A,8,56,0,1792*512*2)
    A.I(f"""
    s_and_b32 s13, s2, 7
    s_lshr_b32 s14, s2, 3
    s_lshr_b32 s13, s13, 2
    s_lshl_b32 s13, s13, 2
    s_lshr_b32 s14, s14, 3
    s_add_u32 s13, s13, s14          ; db
    v_lshrrev_b32 v{vPf+1}, 3, v{L}
    v_bfe_u32 v{vPf+2}, v{L}, 4, 1
    v_lshlrev_b32 v{vPf+2}, 2, v{vPf+2}
    v_and_b32 v{vPf}, 7, v{L}
    v_xor_b32 v{vPf}, v{vPf}, v{vPf+2}
    v_lshlrev_b32 v{vPf}, 4, v{vPf}
    v_lshl_add_u32 v{vPf}, v{vPf+1}, 10, v{vPf}
    s_lshl_b32 s39, s13, 7
    v_add_u32 v{vPf}, s39, v{vPf}
    s_mul_i32 s44, s32, {28*16*1024}
    s_mul_i32 s45, s32, {AREG}
    v_mov_b32 v{vPf+1}, {CTRL}
    """)
    if 'epf' in EXP: lds_wait(A,vPf+1,116,64,1,4)
    A.L('p1_pfE')
    pfl=[0]
    def prefetch(lo,hi):
        if lo>=hi or 'epf' not in EXP: return
        pfl[0]+=1; l=f'p1_pf{pfl[0]}'
        A.I(f's_cmp_lg_u32 s37, 0\ns_cbranch_scc1 {l}')
        A.skip_begin()
        for t in range(lo,hi):
            for j in range(2):
                A.I(f's_add_u32 m0, s45, {t*2048+j*1024}')
                A.I(f's_add_u32 s39, s44, {(t*16+j*8)*1024}')
                A.I(f'buffer_load_dwordx4 v{vPf}, s[8:11], s39 offen lds')
        A.skip_end(); A.L(l)
    A.I('s_nop 7\ns_nop 4')
    Z=T+20
    vH=[vHo,vHo+1]
    GT=lambda st: ACC+st*16
    UT=lambda st: ACC+(2+st)*16
    def hq(q,st,p):
        g=[GT(st)+4*q+r for r in range(4)]; u=[UT(st)+4*q+r for r in range(4)]
        for r in range(4):
            A.I(f'v_mul_f32 v{Z+r}, v{g[r]}, v{g[r]}')
            A.I(f'v_fma_f32 v{Z+r}, v{Z+r}, v{c2p+st}, v{c1p+st}')
            A.I(f'v_mul_f32 v{Z+r}, v{Z+r}, v{g[r]}')
        for r in range(4): A.I(f'v_exp_f32 v{Z+r}, v{Z+r}')
        for r in range(4):
            A.I(f'v_mul_f32 v{g[r]}, v{g[r]}, v{u[r]}')
            A.I(f'v_fma_f32 v{Z+r}, v{Z+r}, v{sd2+st}, v{sd2+st}')
        for r in range(4): A.I(f'v_rcp_f32 v{Z+r}, v{Z+r}')
        for r in range(4): A.I(f'v_mul_f32 v{g[r]}, v{g[r]}, v{Z+r}')
        A.I(f'v_cvt_pk_bf16_f32 v{p}, v{g[0]}, v{g[1]}')
        A.I(f'v_cvt_pk_bf16_f32 v{p+1}, v{g[2]}, v{g[3]}')
    def hpair(q,st,P):
        hq(q,st,P); hq(q+1,st,P+2)
        A.I(f'v_permlane32_swap_b32 v{P}, v{P+2}')
        A.I(f'v_permlane32_swap_b32 v{P+1}, v{P+3}')
        A.I(f'buffer_store_dwordx4 {v(P,4)}, v{vH[st]}, s[20:23], s60 offen{SC}')
    A.I(f's_mul_i32 s61, s34, 14\ns_lshl_b32 s39, s36, 2\ns_add_u32 s61, s61, s39\ns_lshl_b32 s61, s61, 15')
    YT=208
    A.I('s_cmp_lg_u32 s36, 3\ns_cbranch_scc1 p1_noy')
    A.I(f"""
    s_lshl_b32 s39, s37, 12
    s_add_u32 s39, s39, {YSCR}
    v_lshlrev_b32 v{YT}, 10, v{half}
    v_lshl_add_u32 v{YT}, v{l32}, 2, v{YT}
    v_add_u32 v{YT}, s39, v{YT}
    v_lshlrev_b32 v{YT+1}, 4, v{L}
    v_add_u32 v{YT+1}, s39, v{YT+1}
    v_lshrrev_b32 v{YT+2}, 4, v{L}
    v_lshlrev_b32 v{YT+2}, 13, v{YT+2}
    v_and_b32 v{YT+3}, 15, v{L}
    v_lshl_add_u32 v{YT+2}, v{YT+3}, 4, v{YT+2}
    s_lshl_b32 s39, s33, 2
    v_add_u32 v{YT+2}, s39, v{YT+2}
    """)
    for q in (2,3):
        for st in range(2):
            for r in range(4):
                G_=GT(st)+4*q+r; U=UT(st)+4*q+r
                A.I(f'v_mul_f32 v{G_}, v{G_}, v{rr+st}')
                A.I(f'v_mul_f32 v{U}, v{U}, v{rr+st}')
                A.I(f'v_cvt_pk_bf16_f32 v{G_}, v{G_}, v{U}')
                A.I(f'ds_write_b32 v{YT}, v{G_} offset:{(8*(q-2)+r)*256+st*128}')
    A.I('s_waitcnt lgkmcnt(0)')
    for j in range(4): A.I(f'ds_read_b128 {v(YT+4+4*j,4)}, v{YT+1} offset:{j*1024}')
    A.I('s_waitcnt lgkmcnt(0)')
    for j in range(4):
        A.I(f's_lshl_b32 s60, s34, 4\ns_add_u32 s60, s60, {4*j}\ns_lshl_b32 s60, s60, 13')
        A.I(f'buffer_store_dwordx4 {v(YT+4+4*j,4)}, v{YT+2}, s[24:27], s60 offen{SC}')
    A.I('s_mov_b32 s60, s61')
    A.I('s_cmp_lg_u32 s37, 0\ns_cbranch_scc1 p1_y7')
    prefetch(0,9); hpair(0,0,PB); prefetch(9,17); hpair(0,1,PB+4)
    A.I(f's_waitcnt vmcnt({36 if "epf" in EXP else 2})\nv_mov_b32 v{YT}, {CTRL}\nv_mov_b32 v{YT+1}, 1\nds_write_b32 v{YT}, v{YT+1} offset:80')
    A.I('s_branch p1_end')
    A.L('p1_y7')
    hpair(0,0,PB); hpair(0,1,PB+4)
    A.I(f's_waitcnt vmcnt(2)\nv_mov_b32 v{YT}, {CTRL}')
    lds_wait(A,YT,YT+4,80,1,4)
    A.I(f's_add_u32 s61, s34, {C_Y}'); arrive(A,61,YT+2)
    A.I('s_branch p1_end')
    A.L('p1_noy')
    k=0; cuts=[0,6,12,17,17]
    for q in (0,2):
        A.I(f's_add_u32 s60, s61, {q*32768}')
        for st in range(2):
            hpair(q,st,PB+4*(q+st))
            prefetch(cuts[k],cuts[k+1]); k+=1
            if k==2:
                A.I('s_cmp_eq_u32 s37, 0\ns_cbranch_scc1 p1_wf')
                A.I(f's_waitcnt vmcnt(2)\ns_lshl_b32 s39, s36, 2\nv_mov_b32 v{YT}, {CTRL}\nv_add_u32 v{YT}, s39, v{YT}\nv_mov_b32 v{YT+1}, 1\nds_write_b32 v{YT}, v{YT+1} offset:84')
                A.L('p1_wf')
    A.L('p1_end')
    ST.mark(A)

def s2_phase(A):
    L,l,g,vY,vW,fl,fg4=1,2,3,4,5,6,7
    T=184
    Ya=16; Wv=24; C32R=32; C32I=48; C64R=64; C64I=80; T1c=96; T1s=104; T2c=112; T2s=120
    DR=128; DI=136; F=144; E=152
    vC=203
    A.I(f'''
    s_sub_u32 s12, s32, 4
    v_and_b32 v{L}, 63, v0
    v_and_b32 v{l}, 15, v0
    v_bfe_u32 v{g}, v0, 4, 2
    v_mov_b32 v{vC}, {CTRL}
    s_lshl_b32 s33, s34, 4
    s_add_u32 s33, s33, s35          ; column k
    s_mov_b32 s47, 0
    ''')
    srd(A,8,4,OFF_YQ,256*8192)
    srd(A,16,4,OFF_WT,257*8192)
    srd(A,20,4,OFF_ZQ,514*4096)
    A.I(f'''
    s_lshl_b32 s13, s12, 11
    v_lshlrev_b32 v{vY}, 7, v{l}
    v_lshl_add_u32 v{vY}, v{g}, 4, v{vY}
    v_add_u32 v{vY}, s13, v{vY}
    v_lshlrev_b32 v{vW}, 4, v{l}
    v_lshl_add_u32 v{vW}, v{g}, 8, v{vW}
    v_add_u32 v{vW}, s13, v{vW}
    v_cvt_f32_u32 v{fl}, v{l}
    v_lshlrev_b32 v{T}, 2, v{g}
    v_cvt_f32_u32 v{fg4}, v{T}
    s_lshl_b32 s13, s12, 4
    v_cvt_f32_u32 v{T+1}, s13
    ''')
    f16w=T+1
    sc=1.0/(2048*512)
    A.I(f'''
    v_mul_f32 v{T+2}, {f2u(1/32)}, v{fl}
    v_add_f32 v{T+3}, 0.5, v{T+2}
    v_add_f32 v{T+4}, v{f16w}, v{fl}
    v_mul_f32 v{T+7}, {f2u(1/2048)}, v{T+4}
    v_mul_f32 v{T+4}, {f2u(1/64)}, v{T+4}
    v_mul_f32 v{T+5}, {f2u(1/2048)}, v{fl}
    v_add_f32 v{T+6}, {f2u(16/2048)}, v{T+5}
    v_add_f32 v{T+8}, v{f16w}, v{fg4}
    s_mov_b32 s46, {f2u(2*sc)}
    s_cmp_eq_u32 s33, 0
    s_cselect_b32 s46, {f2u(sc)}, s46
    v_mov_b32 v{vC+2}, s46
    ''')
    a_,c_,s_=T+9,T+10,T+11
    def cs_pack(ang,R,I):
        A.I(f'''
        v_cos_f32 v{c_}, v{ang}
        v_sin_f32 v{s_}, v{ang}
        v_cvt_pk_bf16_f32 v{R}, v{c_}, v{s_}
        v_cvt_pk_bf16_f32 v{I}, -v{s_}, v{c_}
        ''')
    fa=T+12
    for t in range(2):
        for q in range(4):
            A.I(f'v_add_f32 v{fa}, {f2u(16*t+q)}, v{fg4}')
            for nt in range(2):
                A.I(f'v_mul_f32 v{a_}, v{fa}, v{T+2+nt}')
                cs_pack(a_, C32R+(t*2+nt)*4+q, C32I+(t*2+nt)*4+q)
    for r in range(4):
        A.I(f'v_add_f32 v{fa}, {f2u(r)}, v{T+8}')
        for nt in range(2):
            A.I(f'''v_mul_f32 v{a_}, v{fa}, v{T+5+nt}
            v_cos_f32 v{T1c+nt*4+r}, v{a_}
            v_sin_f32 v{T1s+nt*4+r}, v{a_}''')
    for tp in range(4):
        for q in range(4):
            A.I(f'v_add_f32 v{fa}, {f2u(16*tp+q)}, v{fg4}')
            A.I(f'v_mul_f32 v{a_}, v{fa}, v{T+4}')
            cs_pack(a_, C64R+tp*4+q, C64I+tp*4+q)
    for it in range(2):
        for r in range(4):
            A.I(f'''v_add_f32 v{fa}, {f2u(16*it+r)}, v{fg4}
            v_mul_f32 v{a_}, v{fa}, v{T+7}
            v_cos_f32 v{T2c+it*4+r}, v{a_}
            v_sin_f32 v{T2s+it*4+r}, v{a_}
            v_mul_f32 v{T2c+it*4+r}, v{T2c+it*4+r}, v{vC+2}
            v_mul_f32 v{T2s+it*4+r}, v{T2s+it*4+r}, v{vC+2}''')
    vLw,vLr=T+13,T+14
    A.I(f'''
    v_lshlrev_b32 v{vLr}, 4, v{L}
    v_add_u32 v{vLr}, {EX}, v{vLr}
    s_lshl_b32 s13, s12, 11
    v_add_u32 v{vLw}, s13, v{vLr}
    s_lshl_b32 s13, s12, 2
    v_add_u32 v{vC+1}, s13, v{vC}
    s_mov_b32 s26, 0x80000000
    s_mov_b32 s27, 0x8000
    ''')
    ST.mark(A)
    A.I('s_waitcnt vmcnt(0)\ns_barrier')
    if 'noprio' not in EXP: A.I('s_setprio 3')
    ST.mark(A)
    A.I('s_cmp_lg_u32 s32, 4\ns_cbranch_scc1 s2_w1')
    A.skip_begin()
    A.I(f's_add_u32 s59, s34, {C_Y}\ns_lshl_b32 s59, s59, 7\nv_mov_b32 v{E}, s59\nv_mov_b32 v{E+1}, 16')
    poll_cnt(A,E,E+1,E+2,1)
    if 'dbg' in EXP:
        A.I(f's_cmp_lg_u32 s2, 9\ns_cbranch_scc1 dbg1')
        A.I(f'v_mov_b32 v{E+4}, v{E}\nv_mov_b32 v{E+5}, v{E+1}\nv_mov_b32 v{E+6}, v{E+2}\nv_mov_b32 v{E+7}, s58\nv_mov_b32 v{E+8}, 32\ns_mov_b64 exec, 1\nglobal_store_dwordx4 v{E+8}, {v(E+4,4)}, s[54:55]\ns_mov_b64 exec, -1')
        A.L('dbg1')
    A.I(f'v_mov_b32 v{E}, 1\nds_write_b32 v{vC}, v{E} offset:8')
    A.skip_end(); A.L('s2_w1')
    lds_wait(A,vC,E,8,1)
    ST.mark(A)
    A.L('s2_col')
    if 'nos2' in EXP: A.I('s_branch s2_skip')
    A.I(f'''
    s_and_b32 s14, s33, 255
    s_lshl_b32 s14, s14, 13
    s_lshl_b32 s15, s33, 13
    s_add_u32 s29, s15, 4096
    buffer_load_dwordx4 {v(Ya,4)}, v{vY}, s[8:11], s14 offen{SC}
    buffer_load_dwordx4 {v(Ya+4,4)}, v{vY}, s[8:11], s14 offen offset:64{SC}
    buffer_load_dwordx4 {v(Wv,4)}, v{vW}, s[16:19], s15 offen{SC}
    buffer_load_dwordx4 {v(Wv+4,4)}, v{vW}, s[16:19], s15 offen offset:1024{SC}
    s_cmp_eq_u32 s33, 256
    s_cselect_b32 s24, 16, 0
    s_and_b32 s25, s33, 255
    s_cmp_eq_u32 s25, 0
    s_cselect_b32 s25, 0xffff, -1
    s_cmp_lg_u32 s33, 0
    s_cbranch_scc1 s2_nx
    s_mov_b32 s60, 0x200000
    buffer_load_dwordx4 {v(208,4)}, v{vW}, s[16:19], s60 offen{SC}
    buffer_load_dwordx4 {v(212,4)}, v{vW}, s[16:19], s60 offen offset:1024{SC}
    s_waitcnt vmcnt(4)
    s_branch s2_ld
    s2_nx:
    s_waitcnt vmcnt(2)
    s2_ld:
    ''')
    for i in range(8): A.I(f'v_mov_b32 v{216+i}, v{Ya+i}')
    A.L('s2_cmp')
    if 's2fine' in EXP: ST.mark(A)
    for i in range(8): A.I(f'v_lshrrev_b32 v{Ya+i}, s24, v{Ya+i}')
    for i in range(8): A.I(f'v_and_b32 v{Ya+i}, s25, v{Ya+i}')
    for nt in range(2):
        for t in range(2): mf16(A,DR+nt*4,Ya+t*4,C32R+(t*2+nt)*4,t==0)
        for t in range(2): mf16(A,DI+nt*4,Ya+t*4,C32I+(t*2+nt)*4,t==0)
    t0,t1=T+15,T+16
    def cmul_pack(dst,xr,xi,c,s,sign):
        A.I(f'v_mul_f32 v{t0}, v{xr}, v{c}')
        A.I(f'v_mul_f32 v{t1}, v{xi}, v{c}')
        if sign<0:
            A.I(f'v_fma_f32 v{t0}, v{xi}, v{s}, v{t0}'); A.I(f'v_fma_f32 v{t1}, -v{xr}, v{s}, v{t1}')
        else:
            A.I(f'v_fma_f32 v{t0}, -v{xi}, v{s}, v{t0}'); A.I(f'v_fma_f32 v{t1}, v{xr}, v{s}, v{t1}')
        A.I(f'v_cvt_pk_bf16_f32 v{dst}, v{t0}, v{t1}')
    def exchange(base,ph):
        for nt in range(2): A.I(f'ds_write_b128 v{vLw}, {v(F+nt*4,4)} offset:{base+nt*1024}')
        A.I(f's_add_u32 s46, s47, {ph}\nv_mov_b32 v{t0}, s46\nds_write_b32 v{vC+1}, v{t0} offset:16')
        lds_wait(A,vC,E,16,'s46',4)
        for tp in range(4):
            for nt in range(2): A.I(f'ds_read_b128 {v(E+(tp*2+nt)*4,4)}, v{vLr} offset:{base+(tp*2+nt)*1024}')
    for nt in range(2):
        for r in range(4): cmul_pack(F+nt*4+r,DR+nt*4+r,DI+nt*4+r,T1c+nt*4+r,T1s+nt*4+r,-1)
    if 's2fine' in EXP: ST.mark(A)
    exchange(0,1)
    if 's2fine' in EXP: ST.mark(A)
    for tp in range(4):
        A.I(f's_waitcnt lgkmcnt({6-2*tp})')
        for nt in range(2):
            mf16(A,DR+nt*4,C64R+tp*4,E+(tp*2+nt)*4,tp==0)
            mf16(A,DI+nt*4,C64I+tp*4,E+(tp*2+nt)*4,tp==0)
    if 's2fine' in EXP: ST.mark(A)
    A.I('s_cmp_eq_u32 s33, 256\ns_cbranch_scc1 s2_nw\ns_waitcnt vmcnt(0)')
    A.L('s2_nw')
    wr,wi=T+17,T+18
    def conj(R,I):
        for i in range(16):
            A.I(f'v_xor_b32 v{R+i}, s26, v{R+i}'); A.I(f'v_xor_b32 v{I+i}, s27, v{I+i}')
    conj(C32R,C32I)
    for nt in range(2):
        for r in range(4):
            A.I(f'v_lshlrev_b32 v{wr}, 16, v{Wv+nt*4+r}')
            A.I(f'v_and_b32 v{wi}, 0xffff0000, v{Wv+nt*4+r}')
            cmul_pack(F+nt*4+r,DR+nt*4+r,DI+nt*4+r,wr,wi,+1)
    conj(C64R,C64I)
    if 's2fine' in EXP: ST.mark(A)
    def publish(kreg_is_256,suf,xd):
        A.I('s_waitcnt vmcnt(0)')
        A.I(f'v_mov_b32 v{t1}, {xd}\nds_write_b32 v{vC+1}, v{t1} offset:32')
        A.I(f's_cmp_lg_u32 s32, 4\ns_cbranch_scc1 s2_w2{suf}')
        A.skip_begin()
        lds_wait(A,vC,224,32,xd,4)
        cnt_base(A)
        if kreg_is_256=='n': A.I(f'v_add_u32 v228, {C_N}, v{L}')
        elif kreg_is_256=='0': A.I(f'v_lshlrev_b32 v228, 3, v{L}\nv_add_u32 v228, {C_Z}, v228')
        else: A.I(f's_and_b32 s46, s33, 7\ns_add_u32 s46, s46, {C_Z}\nv_lshlrev_b32 v228, 3, v{L}\nv_add_u32 v228, s46, v228')
        A.I(f'v_lshlrev_b32 v228, 7, v228\nv_mov_b32 v229, 1')
        A.I(f's_mov_b64 exec, {(1<<ZREP)-1}\nglobal_atomic_add v228, v229, s[62:63]{SC}\ns_mov_b64 exec, -1')
        A.skip_end(); A.L(f's2_w2{suf}')
    exchange(8192,2)
    A.I('s_cmp_lg_u32 s33, 256\ns_cbranch_scc1 s2_np')
    publish('0','c',1)
    A.I('s_barrier')
    A.L('s2_np')
    if 's2fine' in EXP: ST.mark(A)
    for tp in range(4):
        A.I(f's_waitcnt lgkmcnt({6-2*tp})')
        for it in range(2):
            mf16(A,DR+it*4,E+(tp*2+it)*4,C64R+tp*4,tp==0)
            mf16(A,DI+it*4,E+(tp*2+it)*4,C64I+tp*4,tp==0)
    for it in range(2):
        for r in range(4): cmul_pack(F+it*4+r,DR+it*4+r,DI+it*4+r,T2c+it*4+r,T2s+it*4+r,+1)
    for nt in range(2):
        for t in range(2): mf16(A,DR+nt*4,C32R+(t*2+nt)*4,F+t*4,t==0)
        for t in range(2): mf16(A,DI+nt*4,C32I+(t*2+nt)*4,F+t*4,t==0)
    if 's2fine' in EXP: ST.mark(A)
    A.I(f'v_lshrrev_b32 v{t0}, 1, v{vY}')
    for nt in range(2):
        for part,D in ((0,DR),(1,DI)):
            e=E+nt*4+part*2
            A.I(f'v_cvt_pk_bf16_f32 v{e}, v{D+nt*4}, v{D+nt*4+1}\nv_cvt_pk_bf16_f32 v{e+1}, v{D+nt*4+2}, v{D+nt*4+3}')
            A.I(f'buffer_store_dwordx2 {v(e,2)}, v{t0}, s[20:23], s15 offen offset:{32*nt}{SC}' if part==0 else f'buffer_store_dwordx2 {v(e,2)}, v{t0}, s[20:23], s29 offen offset:{32*nt}{SC}')
    A.I('s_cmp_eq_u32 s33, 0\ns_cbranch_scc1 s2_second')
    A.I('s_cmp_eq_u32 s33, 256\ns_cbranch_scc1 s2_pubn')
    publish('k','a',1)
    A.I('s_barrier')
    A.I('s_branch s2_fin')
    A.L('s2_pubn')
    publish('n','b',2)
    A.I('s_branch s2_fin')
    A.L('s2_second')
    conj(C32R,C32I); conj(C64R,C64I)
    for i in range(8): A.I(f'v_mov_b32 v{Ya+i}, v{216+i}')
    for i in range(8): A.I(f'v_mov_b32 v{Wv+i}, v{208+i}')
    A.I('s_movk_i32 s33, 256\ns_mov_b32 s15, 0x200000\ns_add_u32 s29, s15, 4096\ns_mov_b32 s24, 16\ns_mov_b32 s25, 0xffff\ns_add_u32 s47, s47, 2\ns_branch s2_cmp')
    A.L('s2_fin')
    A.I('s_setprio 0')
    ST.mark(A)
    A.I('s_cmp_lg_u32 s32, 4\ns_cbranch_scc1 s2_w3')
    A.skip_begin()
    A.I(f's_and_b32 s46, s2, {ZREP-1}\ns_lshl_b32 s46, s46, 3\ns_add_u32 s46, s46, {C_Z}\nv_add_u32 v{E}, s46, v{L}\nv_lshlrev_b32 v{E}, 7, v{E}\nv_mov_b32 v{E+1}, 32')
    poll_cnt(A,E,E+1,E+2,8,sleep=2)
    A.I(f'v_mov_b32 v{E}, 1\nds_write_b32 v{vC}, v{E} offset:4')
    A.I(f's_and_b32 s46, s2, {ZREP-1}\ns_add_u32 s46, s46, {C_N}\ns_lshl_b32 s46, s46, 7\nv_mov_b32 v{E}, s46\nv_mov_b32 v{E+1}, 1')
    poll_cnt(A,E,E+1,E+2,1)
    A.I(f'v_mov_b32 v{E}, 1\nds_write_b32 v{vC}, v{E} offset:48')
    A.skip_end(); A.L('s2_w3')
    ST.mark(A)
    A.I('s_waitcnt lgkmcnt(0)\ns_barrier')

def p3_phase(A, nh=28, nz=8):
    NB=NB_
    BR0=112
    NAR=NAR_
    if NAR: NB=8-NAR
    AR=112+NB*8
    NA=NA_; NL=NSL-NA; RB=NB+NL
    BL=[16,240]
    L,half,l32=1,2,3
    vB=4; vZd=5; vZr=6; vX=9; vC=10; vAd=11; vAr=12; vLw=14; vLr=15; vBd=8; vBr=28
    XR2=16; T=24; ACC=32; AF=96; BR=112; ZA=176
    A.I(f"""
    s_load_dwordx2 s[28:29], s[0:1], 56
    s_load_dwordx2 s[30:31], s[0:1], 48
    v_and_b32 v{L}, 63, v0
    v_and_b32 v{l32}, 31, v0
    v_bfe_u32 v{half}, v0, 5, 1
    v_mov_b32 v{vC}, {CTRL}
    s_mov_b32 s12, s32
    s_and_b32 s13, s2, 7
    s_lshr_b32 s14, s2, 3
    s_and_b32 s15, s13, 3
    s_lshl_b32 s15, s15, 3
    s_and_b32 s39, s14, 7
    s_add_u32 s15, s15, s39          ; sb
    s_lshr_b32 s13, s13, 2
    s_lshl_b32 s13, s13, 2
    s_lshr_b32 s14, s14, 3
    s_add_u32 s13, s13, s14          ; db
    s_and_b32 s36, s12, 1
    s_lshr_b32 s37, s12, 1
    v_lshrrev_b32 v{T}, 3, v{L}
    v_bfe_u32 v{T+1}, v{L}, 4, 1
    v_lshlrev_b32 v{T+1}, 2, v{T+1}
    v_and_b32 v{T+2}, 7, v{L}
    v_xor_b32 v{T+2}, v{T+2}, v{T+1}
    v_lshlrev_b32 v{T+2}, 4, v{T+2}           ; c*16
    v_lshl_add_u32 v{vAd}, v{T}, 10, v{T+2}
    s_lshl_b32 s39, s13, 7
    v_add_u32 v{vAd}, s39, v{vAd}
    v_lshl_add_u32 v{vZd}, v{T}, 12, v{T+2}
    s_lshl_b32 s39, s15, 7
    v_add_u32 v{vZd}, s39, v{vZd}
    s_mul_i32 s44, s12, {nh*16*1024}
    s_mul_i32 s45, s12, {AREG}
    s_mul_i32 s52, s12, {nz*16*4096}
    s_waitcnt lgkmcnt(0)
    """)
    srd(A,8,30,0,1792*512*2)
    q=[]
    def dmaA(t):
        for j in range(2):
            A.I(f's_add_u32 m0, s45, {(t%NA)*2048+j*1024}')
            A.I(f's_add_u32 s60, s44, {(t*16+j*8)*1024}')
            A.I(f'buffer_load_dwordx4 v{vAd}, s[8:11], s60 offen lds'); q.append(('A',t))
    def dmaZ(i):
        t=nh+i
        for j in range(2):
            A.I(f's_add_u32 m0, s45, {(t%NA)*2048+j*1024}')
            A.I(f's_add_u32 s60, s52, {(i*16+j*8)*4096}')
            A.I(f'buffer_load_dwordx4 v{vZd}, s[20:23], s60 offen{SC} lds'); q.append(('A',t))
    srd(A,24,6,0,2048*512*2)
    srd(A,16,4,OFF_HP,224*32768)
    srd(A,20,4,OFF_ZQ,514*4096)
    srd(A,40,28,0,2048*512*2)
    A.I(f"""
    s_lshl_b32 s39, s15, 1
    s_add_u32 s39, s39, s37
    s_lshl_b32 s39, s39, 10
    s_lshl_b32 s31, s13, 7
    s_add_u32 s39, s39, s31
    s_lshl_b32 s31, s36, 6
    s_add_u32 s39, s39, s31
    v_lshlrev_b32 v{vX}, 16, v{l32}
    v_lshl_add_u32 v{vX}, v{half}, 3, v{vX}
    v_add_u32 v{vX}, s39, v{vX}
    """)
    ZT=248
    A.I(f"""
    s_lshl_b32 s39, s15, 10
    v_lshlrev_b32 v{vB}, 15, v{half}
    v_lshl_add_u32 v{vB}, v{l32}, 4, v{vB}
    v_add_u32 v{vB}, s39, v{vB}
    s_mul_i32 s46, s12, {nh*65536}
    s_mov_b32 s48, s46
    s_lshl_b32 s39, s15, 10
    v_lshlrev_b32 v{vBd}, 4, v{L}
    v_add_u32 v{vBd}, s39, v{vBd}
    v_lshlrev_b32 v{vBr}, 10, v{half}
    v_lshl_add_u32 v{vBr}, v{l32}, 4, v{vBr}
    v_add_u32 v{vBr}, s45, v{vBr}
    s_lshl_b32 s39, s37, 9
    v_xor_b32 v{vBr+1}, 512, v{vBr}
    v_add_u32 v{vBr}, s39, v{vBr}
    v_subrev_u32 v{vBr+1}, s39, v{vBr+1}
    s_add_u32 s47, s46, 512
    s_sub_u32 s47, s47, s39
    s_add_u32 s46, s46, s39
    v_lshrrev_b32 v{T}, 5, v{L}
    v_lshlrev_b32 v{T}, 3, v{T}
    v_bfe_u32 v{T+1}, v{L}, 2, 2
    v_add_u32 v{T}, v{T}, v{T+1}
    v_lshlrev_b32 v{T}, 7, v{T}              ; row*128
    v_bfe_u32 v{T+2}, v{L}, 4, 1
    v_lshlrev_b32 v{T+2}, 1, v{T+2}
    v_bfe_u32 v{T+3}, v{L}, 1, 1
    v_add_u32 v{T+2}, v{T+2}, v{T+3}         ; chunk within 64B half
    v_bfe_u32 v{T+3}, v{L}, 3, 1
    v_lshlrev_b32 v{T+3}, 2, v{T+3}          ; swizzle bit
    v_xor_b32 v{T+2}, v{T+2}, v{T+3}
    v_lshl_add_u32 v{T}, v{T+2}, 4, v{T}
    v_and_b32 v{T+3}, 1, v{L}
    v_lshl_add_u32 v{T}, v{T+3}, 3, v{T}
    v_add_u32 v{T}, s45, v{T}
    s_lshl_b32 s39, s36, 6
    v_xor_b32 v{vAr}, s39, v{T}
    v_xor_b32 v{vAr+1}, 64, v{vAr}
    s_lshl_b32 s39, s37, 6
    v_xor_b32 v{vZr}, s39, v{T}
    v_xor_b32 v{vZr+1}, 64, v{vZr}
    s_lshl_b32 s39, s13, 6
    s_lshl_b32 s31, s36, 5
    s_add_u32 s39, s39, s31
    v_add_u32 v{T}, s39, v{l32}
    v_cvt_f32_u32 v{T}, v{T}
    v_mul_f32 v{ZT}, {f2u(1/512)}, v{T}
    s_lshl_b32 s39, s13, 6
    s_xor_b32 s31, s31, 32
    s_add_u32 s39, s39, s31
    v_add_u32 v{T+1}, s39, v{l32}
    v_cvt_f32_u32 v{T+1}, v{T+1}
    v_mul_f32 v{ZT+1}, {f2u(1/512)}, v{T+1}
    s_mul_i32 s39, s12, {nz*8}
    v_lshlrev_b32 v{T+2}, 2, v{half}
    v_add_u32 v{T+2}, s39, v{T+2}
    v_cvt_f32_u32 v{ZT+2}, v{T+2}
    """)
    zitems=[]
    for i in range(nz):
        for qq in range(4):
            def zf(i=i,qq=qq):
                A.I(f'v_add_f32 v{ZT+3}, {f2u(8*i+qq)}, v{ZT+2}')
                for ar in range(2):
                    A.I(f'v_mul_f32 v{ZT+4+ar}, v{ZT+3}, v{ZT+ar}\nv_fract_f32 v{ZT+4+ar}, v{ZT+4+ar}')
                for ar in range(2):
                    A.I(f'v_cos_f32 v{ZT+6}, v{ZT+4+ar}\nv_sin_f32 v{ZT+7}, v{ZT+4+ar}\nv_cvt_pk_bf16_f32 v{ZA+i*8+ar*4+qq}, v{ZT+6}, -v{ZT+7}')
            zitems.append(zf)
    PT=NA-4
    NZ0=10 if 'z0' not in EXP else 0
    for zf in zitems[:NZ0]: zf()
    A.I(f's_waitcnt vmcnt({len(q)})\ns_barrier')
    ST.mark(A)
    A.I('s_cmp_lg_u32 s32, 0\ns_cbranch_scc1 p3_a1')
    A.skip_begin()
    A.I(f's_add_u32 s59, s35, {C_H}'); A.I('s_mov_b32 s61, s59'); arrive(A,61,T)
    A.skip_end(); A.L('p3_a1')
    rest=zitems[NZ0:]
    if 'epf' in EXP:
        for zf in rest: zf()
    else:
        for t in range(NA):
            dmaA(t)
            for zf in rest[(t*len(rest))//NA:((t+1)*len(rest))//NA]: zf()
            if PS_ and t==PS_-1: lds_wait(A,vC,T+4 if False else 240,16,1,4)
            if t==PT:
                A.I(f's_lshr_b32 s59, s15, 1\ns_add_u32 s59, s59, {C_H}\ns_lshl_b32 s59, s59, 7\nv_mov_b32 v{T}, s59\nv_mov_b32 v{T+1}, 16')
                A.I('s_cmp_lg_u32 s32, 0\ns_cbranch_scc1 p3_ap')
                A.skip_begin()
                cnt_base(A)
                A.I(f's_mov_b64 exec, 1\nglobal_load_dword v{T+2}, v{T}, s[62:63]{SCP}\ns_mov_b64 exec, -1')
                A.skip_end(); A.L('p3_ap')
    if NAR:
        idx=[k for k,x in enumerate(q) if x==('A',NAR-1)]
        A.I(f's_waitcnt vmcnt({len(q)-1-max(idx)})'); del q[:max(idx)+1]
        for t in range(NAR):
            for ar in range(2):
                for rd in range(2):
                    A.I(f'ds_read_b64_tr_b16 {v(AR+t*8+ar*4+rd*2,2)}, v{vAr+ar} offset:{(t%NA)*2048+rd*512}')
        A.I('s_waitcnt lgkmcnt(0)')
        for t in range(NAR): dmaA(NA+t)
    ST.mark(A)
    A.I('s_cmp_lg_u32 s32, 0\ns_cbranch_scc1 p3_w1')
    A.skip_begin()
    A.I(f's_waitcnt vmcnt({2*(NA-1-PT)+2*NAR})')
    poll_cnt(A,T,T+1,T+2,1,True)
    A.I(f'v_mov_b32 v{T}, 1\nds_write_b32 v{vC}, v{T}')
    A.skip_end(); A.L('p3_w1')
    lds_wait(A,vC,T,0,1)
    ST.mark(A)
    n=nh+nz
    isL=lambda i: (i%RB)>=NB
    def issueB(i):
        if isL(i):
            sl=NA+(i%RB)-NB
            for j in range(2):
                A.I(f's_add_u32 m0, s45, {sl*2048+j*1024}')
                A.I(f's_add_u32 s60, s48, {j*32768}')
                A.I(f'buffer_load_dwordx4 v{vBd}, s[16:19], s60 offen{SCB} lds')
        else:
            sl=BR+(i%RB)*8
            A.I(f'buffer_load_dwordx4 {v(sl,4)}, v{vB}, s[16:19], s46 offen{SCB}')
            A.I(f'buffer_load_dwordx4 {v(sl+4,4)}, v{vB}, s[16:19], s47 offen{SCB}')
        q.extend([('B',i)]*2)
        A.I('s_add_u32 s46, s46, 65536\ns_add_u32 s47, s47, 65536\ns_add_u32 s48, s48, 65536')
    def readsBL(i):
        sl=NA+(i%RB)-NB; f=BL[i%2]
        for b_ in range(2):
            A.I(f'ds_read_b128 {v(f+4*b_,4)}, v{vBr+b_} offset:{sl*2048}')
    def vwait(*tags):
        idx=[k for k,x in enumerate(q) if x in tags]
        if not idx: return
        N=len(q)-1-max(idx); del q[:max(idx)+1]
        A.I(f's_waitcnt vmcnt({min(N,63)})')
    def reads(t):
        f=AF+(t%2)*8
        if t<nh:
            for ar in range(2):
                for rd in range(2):
                    A.I(f'ds_read_b64_tr_b16 {v(f+ar*4+rd*2,2)}, v{vAr+ar} offset:{(t%NA)*2048+rd*512}')
        else:
            for b_ in range(2):
                for rd in range(2):
                    A.I(f'ds_read_b64_tr_b16 {v(f+b_*4+rd*2,2)}, v{vZr+b_} offset:{(t%NA)*2048+rd*512}')
    nxt=0
    ZAT=nh-4; ZP=ZP_
    for k in range(RB):
        issueB(nxt); nxt+=1
    if not NAR:
        vwait(('A',0)); reads(0)
    for i in range(n):
        tags=[('A',i+1)]
        if i<nh and not isL(i): tags.append(('B',i))
        if i+1<nh and isL(i+1): tags.append(('B',i+1))
        vwait(*tags)
        if 'p3steps' in EXP and i in (0,4,10,17,24): ST.mark(A)
        A.I('s_waitcnt lgkmcnt(0)')
        if i==ZAT:
            ST.mark(A); lds_wait(A,vC,T,4,1); ST.mark(A)
            for z in range(nz): dmaZ(z)
        if i+1<n and not (i+1==nh) and i+1>=NAR: reads(i+1)
        if i+1==nh:
            vwait(('A',nh)); reads(nh)
        if i+1<nh and isL(i+1): readsBL(i+1)
        for brr in range(2):
            for ar in range(2):
                if i<nh:
                    a=(AF+(i%2)*8+ar*4) if i>=NAR else (AR+i*8+ar*4)
                    b_=(BL[i%2]+brr*4) if isL(i) else (BR+(i%RB)*8+brr*4)
                else: a=ZA+(i-nh)*8+ar*4; b_=AF+(i%2)*8+brr*4
                mf32(A,ACC+(ar+2*brr)*16,a,b_,i==0)
        if i==ZP: A.I('s_barrier')
        if i+NA<nh and i>=NAR: dmaA(i+NA)
        while nxt<nh and nxt<=i+RB:
            issueB(nxt); nxt+=1
    for i in range(4):
        A.I(f'buffer_load_dwordx2 {v(XR2+2*i,2)}, v{vX}, s[24:27], 0 offen offset:{16*i}')
    ST.mark(A)
    lds_wait(A,vC,T,48,1)
    A.I(f's_lshl_b32 s39, s15, 6\ns_lshl_b32 s31, s37, 5\ns_add_u32 s39, s39, s31\nv_add_u32 v{T+6}, s39, v{l32}\nv_lshlrev_b32 v{T+6}, 1, v{T+6}\ns_mov_b32 s39, {512*4096}')
    A.I(f'buffer_load_ushort v{T+7}, v{T+6}, s[20:23], s39 offen{SC}')
    A.I(f'v_lshlrev_b32 v{vLw}, 4, v{L}\nv_add_u32 v{vLw}, s45, v{vLw}')
    for j in range(1,4):
        for c in range(4): A.I(f'ds_write_b128 v{vLw}, {v(ACC+j*16+c*4,4)} offset:{(j-1)*4096+c*1024}')
    A.I('s_waitcnt lgkmcnt(0)\ns_barrier')
    for j in range(1,4):
        A.I(f's_xor_b32 s39, s12, {j}\ns_mul_i32 s39, s39, {AREG}\nv_lshlrev_b32 v{vLr}, 4, v{L}\nv_add_u32 v{vLr}, s39, v{vLr}')
        for c in range(4): A.I(f'ds_read_b128 {v(BR+(j-1)*16+c*4,4)}, v{vLr} offset:{(j-1)*4096+c*1024}')
    for j in range(3):
        A.I(f's_waitcnt lgkmcnt({8-4*j})')
        for i in range(16): A.I(f'v_add_f32 v{ACC+i}, v{ACC+i}, v{BR+j*16+i}')
    A.I(f's_waitcnt vmcnt(0)\nv_lshlrev_b32 v{T+7}, 16, v{T+7}')
    for i in range(16): A.I(f'v_{"add" if i%2==0 else "sub"}_f32 v{ACC+i}, v{ACC+i}, v{T+7}')
    for qq in range(4):
        x0,x1=XR2+2*qq,XR2+2*qq+1
        A.I(f"""v_lshlrev_b32 v{T}, 16, v{x0}
        v_and_b32 v{T+1}, 0xffff0000, v{x0}
        v_lshlrev_b32 v{T+2}, 16, v{x1}
        v_and_b32 v{T+3}, 0xffff0000, v{x1}""")
        for r in range(4): A.I(f'v_add_f32 v{ACC+4*qq+r}, v{ACC+4*qq+r}, v{T+r}')
        A.I(f'v_cvt_pk_bf16_f32 v{x0}, v{ACC+4*qq}, v{ACC+4*qq+1}')
        A.I(f'v_cvt_pk_bf16_f32 v{x1}, v{ACC+4*qq+2}, v{ACC+4*qq+3}')
        A.I(f'buffer_store_dwordx2 {v(x0,2)}, v{vX}, s[40:43], 0 offen offset:{16*qq}'+(' sc1' if 'outsc1' in EXP else (' nt' if 'outnt' in EXP else '')))

NAME='parallel_sum__spectral_gfnet__glu_gated_geglu__prompt'
HDR=open('cdna_kernels/'+NAME+'.s.ref').read().split('; Override')[0]
def full():
    A=Asm(); K=NAME+'_kernel'
    A.raw(HDR.rstrip())
    A.raw(f'; @launch grid=(256,1,1) block=(512,1,1) lds={LDS_TOTAL}')
    A.raw('.amdgcn_target "amdgcn-amd-amdhsa--gfx950"\n.text')
    A.raw(f'.globl {K}\n.p2align 8\n.type {K},@function'); A.L(K)
    A.I('s_cmp_ge_u32 s2, 256\ns_cbranch_scc1 k_done')
    if 'scram' in EXP: A.I('s_and_b32 s3, s2, 7\ns_lshl_b32 s3, s3, 5\ns_lshr_b32 s2, s2, 3\ns_or_b32 s2, s2, s3')
    A.I('''s_load_dwordx2 s[4:5], s[0:1], 72
    s_load_dwordx2 s[6:7], s[0:1], 0
    s_load_dwordx2 s[28:29], s[0:1], 32
    s_load_dwordx2 s[30:31], s[0:1], 40
    s_load_dwordx2 s[54:55], s[0:1], 64
    s_load_dwordx2 s[40:41], s[0:1], 8
    s_load_dwordx2 s[44:45], s[0:1], 16
    s_load_dwordx2 s[56:57], s[0:1], 48
    v_lshrrev_b32 v1, 6, v0
    s_nop 0
    v_readfirstlane_b32 s32, v1''')
    if 'pfe' in EXP:
        A.I(f'''s_getpc_b64 s[60:61]
        k_pc:
        v_lshlrev_b32 v4, 5, v0
        v_min_u32 v4, p1_join-k_pc, v4
        v_mov_b32 v5, s61
        v_add_co_u32 v4, vcc, s60, v4
        v_addc_co_u32 v5, vcc, 0, v5, vcc
        global_load_dword v7, v[4:5], off''')
    A.I('s_waitcnt lgkmcnt(0)')
    ST.mark(A)
    p1_body(A)
    if 'p1only' in EXP:
        A.I('s_waitcnt vmcnt(0)'); ST.mark(A); ST.dump(A); A.I('s_endpgm')
    n0=ST.n
    A.I('s_cmp_ge_u32 s32, 4\ns_cbranch_scc1 k_s2')
    A.fence()
    p3_phase(A)
    if STAMP: A.I('s_waitcnt vmcnt(0)')
    ST.mark(A)
    ST.dump(A)
    A.I('s_endpgm')
    A.L('k_s2'); A.fence()
    ST.n=n0
    s2_phase(A)
    ST.mark(A)
    ST.dump(A)
    A.L('k_done'); A.I('s_endpgm')
    txt=A.finalize()
    txt+=f'''.section .rodata,"a"
.p2align 6
.amdhsa_kernel {K}
  .amdhsa_next_free_vgpr 256
  .amdhsa_next_free_sgpr 100
  .amdhsa_accum_offset 256
  .amdhsa_group_segment_fixed_size 0
  .amdhsa_kernarg_size 80
  .amdhsa_user_sgpr_count 2
  .amdhsa_user_sgpr_kernarg_segment_ptr 1
  .amdhsa_system_sgpr_workgroup_id_x 1
  .amdhsa_float_denorm_mode_32 3
.end_amdhsa_kernel
'''
    return txt
if __name__=='__main__':
    if len(sys.argv)>2 and sys.argv[2]=='stamp': STAMP=True
    if len(sys.argv)>3: EXP=set(sys.argv[3].split(','))
    for e in EXP:
        if e.startswith('na'): NA_=int(e[2:])
        if e.startswith('zp'): ZP_=int(e[2:])
        if e.startswith('nb'): NB_=int(e[2:])
        if e.startswith('wi'): WI=int(e[2:])
        if e.startswith('ps'): PS_=int(e[2:])
        if e.startswith('ar'): NAR_=int(e[2:])
    if 'pace1' in EXP: PACE=1
    if 'pace2' in EXP: PACE=2
    if 'perm' in EXP: SB[1],SB[2]=SB[2],SB[1]
    if 'sb16' in EXP: SB[1]=49152+4096; SB[2]=98304+8192
    if 'plainB' in EXP: SCB=''
    if 'pollsc1' in EXP: SCP=' sc1'
    if 'nos2' in EXP: pass
    open(sys.argv[1],'w').write(full())
```

```python
import sys, struct, math
from asmlib import *
OFF_HP=0; OFF_ZQ=0x700000; OFF_YQ=0x940000; OFF_WT=0xB40000
OFF_CNT=0x1000000; OFF_RS=0x1018000; OFF_CSP=0x1040000; OFF_TS=0x2000000
C_RS=0; C_CS=16; C_H=32; C_Y=48; C_Z=64; ZREP=16; C_N=64+ZREP*8; NCNT=256
SLOT=49152; XS=0; GS=16384; US=32768
SB=[0,49152,98304]
YSCR=3*SLOT
LDS_TOTAL=163840; CTRL=LDS_TOTAL-256; STAT=CTRL-1024
NSL=17; AREG=NSL*2048
EX=4*AREG
STAMP=False; EXP=set(); PACE=0; NA_=17; ZP_=18; NB_=8; WI=4; PS_=0; NAR_=0; TI=1
SC=' sc1'
SCB=' sc1'
SCP=' sc1'
def f2u(x): return '0x%08x'%struct.unpack('<I',struct.pack('<f',x))[0]
class Stamps:
    def __init__(s): s.n=0
    def mark(s,A):
        if not STAMP or s.n>=15: return
        A.I(f's_{"memtime" if "clk" in EXP else "memrealtime"} s[{66+2*s.n}:{67+2*s.n}]'); s.n+=1
    def dump(s,A,n=None):
        if not STAMP: return
        n=s.n if n is None else n
        if 'diag' in EXP:
            A.I('s_waitcnt lgkmcnt(0) vmcnt(0)')
            l=newlab('dg')
            A.I(f's_cmp_lg_u32 s32, 0\ns_cbranch_scc1 {l}')
            A.I('s_load_dwordx2 s[96:97], s[0:1], 64\ns_waitcnt lgkmcnt(0)\ns_mov_b64 exec, 1')
            A.I('s_not_b32 s60, s66\nv_mov_b32 v244, 4\nv_mov_b32 v245, s60\nglobal_atomic_umax v244, v245, s[96:97]')
            for i in range(1,min(n,13)):
                A.I(f'v_mov_b32 v244, {4+4*i}\nv_mov_b32 v245, s{66+2*i}\nglobal_atomic_umax v244, v245, s[96:97]')
            A.I('s_mov_b64 exec, -1')
            A.L(l)
            return
        A.I('s_waitcnt lgkmcnt(0) vmcnt(0)')
        A.I(f's_lshl_b32 s60, s2, 3\ns_add_u32 s60, s60, s32\ns_lshl_b32 s60, s60, 7\ns_add_u32 s60, s60, {hex(OFF_TS)}')
        A.I(f's_add_u32 s96, s4, s60\ns_addc_u32 s97, s5, 0')
        A.I('v_mov_b32 v246, 0')
        for i in range(n):
            A.I(f'v_mov_b32 v244, s{66+2*i}\nv_mov_b32 v245, s{67+2*i}')
            A.I(f'global_store_dwordx2 v246, v[244:245], s[96:97] offset:{8*i}')
            A.I('s_nop 1')
ST=Stamps()
def srd(A,dst,base,off,size):
    if off:
        A.I(f's_add_u32 s{dst}, s{base}, {hex(off)}'); A.I(f's_addc_u32 s{dst+1}, s{base+1}, 0')
    else:
        A.I(f's_mov_b32 s{dst}, s{base}'); A.I(f's_mov_b32 s{dst+1}, s{base+1}')
    A.I(f's_mov_b32 s{dst+2}, {hex(size)}'); A.I(f's_mov_b32 s{dst+3}, 0x20000')
def mf16(A,D,a,b,first):
    A.I(f'v_mfma_f32_16x16x32_bf16 {v(D,4)}, {v(a,4)}, {v(b,4)}, {"0" if first else v(D,4)}')
def mf32(A,D,a,b,first=False):
    A.I(f'v_mfma_f32_32x32x16_bf16 {v(D,16)}, {v(a,4)}, {v(b,4)}, {"0" if first else v(D,16)}')
_lab=[0]
def newlab(p):
    _lab[0]+=1; return f'{p}_{_lab[0]}'
SPIN_MAX=0x20000
def lds_wait(A,vaddr,vtmp,off,val,n=1):
    l=newlab('lw'); d=newlab('ld')
    A.I('s_mov_b32 s58, 0'); A.L(l)
    if n==1:
        A.I(f'ds_read_b32 v{vtmp}, v{vaddr} offset:{off}\ns_waitcnt lgkmcnt(0)')
    else:
        A.I(f'ds_read_b128 {v(vtmp,4)}, v{vaddr} offset:{off}\ns_waitcnt lgkmcnt(0)')
        A.I(f'v_min_u32 v{vtmp}, v{vtmp}, v{vtmp+1}\nv_min_u32 v{vtmp+2}, v{vtmp+2}, v{vtmp+3}\nv_min_u32 v{vtmp}, v{vtmp}, v{vtmp+2}')
    A.I(f'v_readfirstlane_b32 s59, v{vtmp}')
    A.I(f's_cmp_ge_u32 s59, {val}\ns_cbranch_scc1 {d}')
    A.I(f's_add_u32 s58, s58, 1\ns_cmp_lt_u32 s58, {SPIN_MAX}\ns_cbranch_scc1 {l}')
    A.L(d)
def cnt_base(A):
    A.I(f's_add_u32 s62, s4, {hex(OFF_CNT)}\ns_addc_u32 s63, s5, 0')
def arrive(A,sidx,vt):
    cnt_base(A)
    A.I(f's_lshl_b32 s59, s{sidx}, 7\nv_mov_b32 v{vt}, s59\nv_mov_b32 v{vt+1}, 1\ns_mov_b64 exec, 1')
    A.I(f'global_atomic_add v{vt}, v{vt+1}, s[62:63]{SC}')
    A.I('s_mov_b64 exec, -1')
def poll_cnt(A,voff,vexp,vt,nl,first_loaded=False,sleep=0):
    l=newlab('pc'); d=newlab('pd'); c=newlab('pk')
    cnt_base(A)
    A.I(f's_mov_b32 s58, 0\ns_mov_b64 exec, {(1<<nl)-1}')
    if first_loaded: A.I(f's_branch {c}')
    A.L(l)
    A.I(f'global_load_dword v{vt}, v{voff}, s[62:63]{SCP}\ns_waitcnt vmcnt(0)')
    A.L(c)
    A.I(f'v_cmp_ne_u32 vcc, v{vt}, v{vexp}\ns_cbranch_vccz {d}')
    if sleep: A.I(f's_sleep {sleep}')
    A.I(f's_add_u32 s58, s58, 1\ns_cmp_lt_u32 s58, {SPIN_MAX>>4}\ns_cbranch_scc1 {l}')
    A.L(d)
    A.I('s_mov_b64 exec, -1')

def p1_body(A):
    L,half,l32=1,2,3
    vX0,vX1,vW=4,5,6
    vAr=8; vBr=12
    csr=24; ones=28
    AFR=32; BFR=48
    T=80
    RSL=104; RSV=108
    vHo=112
    ACC=128
    vFw=8; fu=12; kb=13; kmask=14; FB=32; FO=48; SV=128; ST2=56; WTr=60; vWTs=76; vWTd=77; CSL=160; RD=20; FP=22
    PB=192
    tile=lambda m,st: ACC+(st>>1)*64+(m*2+(st&1))*16
    A.I(f"""
    v_and_b32 v{L}, 63, v0
    v_and_b32 v{l32}, 31, v0
    v_bfe_u32 v{half}, v0, 5, 1
    s_and_b32 s33, s2, 7
    s_lshr_b32 s34, s2, 3
    s_and_b32 s35, s33, 1
    s_lshl_b32 s35, s35, 3
    s_and_b32 s36, s34, 7
    s_add_u32 s35, s35, s36              ; rb
    s_lshr_b32 s33, s33, 1
    s_lshl_b32 s33, s33, 2
    s_lshr_b32 s34, s34, 3
    s_add_u32 s34, s33, s34              ; cb
    s_and_b32 s36, s32, 3                ; fq (C) / h (H)
    s_lshr_b32 s37, s32, 2               ; sh
    s_lshr_b32 s49, s35, 1               ; s0 (K rotation)
    s_cmp_lt_u32 s32, 4
    s_cbranch_scc1 p1_roleC
    """)
    NST=8
    def spread_into(G,items,lo,hi):
        n=hi-lo
        for j,it in enumerate(items): G[lo+min(j*n//max(len(items),1),n-1)].append(it)
    want=lambda i: i in ((0,1,2,3,4,5,6,7) if 'allB' in EXP else (1,2,3,4,5) if 'bw' in EXP else (() if ('p3steps' in EXP or 's2fine' in EXP) else (0,4)))
    n_st=ST.n
    vq=[]
    srd(A,8,6,0,2048*512*2)
    srd(A,12,28,0,512*1792*2)
    srd(A,16,30,0,512*1792*2)
    mask=0
    for Ln in range(64):
        c=(Ln%16)^((Ln//16)<<2)
        if c<14: mask|=1<<Ln
    A.I(f"""
    s_mov_b32 s50, {hex(mask&0xffffffff)}
    s_mov_b32 s51, {hex(mask>>32)}
    s_lshl_b32 s38, s36, 12              ; h*4096
    v_lshrrev_b32 v{T}, 3, v{L}
    v_lshlrev_b32 v{T}, 16, v{T}
    s_lshl_b32 s60, s35, 2
    s_add_u32 s60, s60, s36
    s_lshl_b32 s60, s60, 10
    v_add_u32 v{T}, s60, v{T}
    v_and_b32 v{T+1}, 7, v{L}
    v_lshrrev_b32 v{T+2}, 4, v{L}
    v_xor_b32 v{T+1}, v{T+1}, v{T+2}
    v_lshl_add_u32 v{vX0}, v{T+1}, 4, v{T}
    v_xor_b32 v{vX1}, 64, v{vX0}
    s_lshl_b32 s60, s36, 4
    v_add_u32 v{T+1}, s60, v{T+2}
    s_movk_i32 s60, 3584
    v_mul_lo_u32 v{T+1}, v{T+1}, s60
    v_and_b32 v{T+3}, 15, v{L}
    v_lshlrev_b32 v{T+2}, 2, v{T+2}
    v_xor_b32 v{T+3}, v{T+3}, v{T+2}
    v_lshl_add_u32 v{vW}, v{T+3}, 4, v{T+1}
    s_mul_i32 s60, s34, 224
    v_add_u32 v{vW}, s60, v{vW}
    """)
    def dma(stage):
        slot=SB[stage%3]
        A.I(f's_add_u32 s52, s49, {stage}\ns_and_b32 s52, s52, 7\ns_mul_i32 s53, s52, {64*3584}\ns_lshl_b32 s52, s52, 7')
        for i in range(4):
            A.I(f's_add_u32 m0, s38, {slot+XS+i*1024}')
            A.I(f's_add_u32 s60, s52, {i*524288}')
            A.I(f'buffer_load_dwordx4 v{vX0+(i&1)}, s[8:11], s60 offen lds'); vq.append(stage)
            if PACE and stage>1: A.I(f's_sleep {PACE}')
            A.I(f's_add_u32 s60, s53, {i*14336}\ns_mov_b64 exec, s[50:51]')
            for m in range(2):
                A.I(f's_add_u32 m0, s38, {slot+(US if m else GS)+i*1024}\ns_nop 0')
                A.I(f'buffer_load_dwordx4 v{vW}, s[{12+4*m}:{15+4*m}], s60 offen lds'); vq.append(stage)
                if PACE and stage>1: A.I(f's_sleep {PACE}')
            A.I('s_mov_b64 exec, -1')
    VST='vst' in EXP
    RBUF=[112,160,208]; vLW=16
    def gload(stage):
        b=RBUF[stage%3]
        A.I(f's_add_u32 s52, s49, {stage}\ns_and_b32 s52, s52, 7\ns_mul_i32 s53, s52, {64*3584}\ns_lshl_b32 s52, s52, 7')
        for i in range(4):
            A.I(f's_add_u32 s60, s52, {i*524288}')
            A.I(f'buffer_load_dwordx4 {v(b+12*i,4)}, v{vX0+(i&1)}, s[8:11], s60 offen'); vq.append(('L',stage))
            A.I(f's_add_u32 s60, s53, {i*14336}\ns_mov_b64 exec, s[50:51]')
            for m in range(2):
                A.I(f'buffer_load_dwordx4 {v(b+12*i+4+4*m,4)}, v{vW}, s[{12+4*m}:{15+4*m}], s60 offen'); vq.append(('L',stage))
            A.I('s_mov_b64 exec, -1')
    def lwrite(stage):
        b=RBUF[stage%3]; sl=stage%3
        vwait(('L',stage))
        for i in range(4): A.I(f'ds_write_b128 v{vLW+sl}, {v(b+12*i,4)} offset:{XS+i*1024}')
        A.I('s_mov_b64 exec, s[50:51]')
        for i in range(4):
            for m in range(2): A.I(f'ds_write_b128 v{vLW+sl}, {v(b+12*i+4+4*m,4)} offset:{(US if m else GS)+i*1024}')
        A.I('s_mov_b64 exec, -1')
    def vwait(tag,lg=False):
        idx=[k for k,x in enumerate(vq) if x==tag]
        if not idx:
            if lg: A.I('s_waitcnt lgkmcnt(0)')
            return
        N=len(vq)-1-max(idx); del vq[:max(idx)+1]
        A.I(f's_waitcnt vmcnt({min(N,63)})'+(' lgkmcnt(0)' if lg else ''))
    if VST: SV=60
    (gload if VST else dma)(0)
    A.I(f"""
    s_lshl_b32 s33, s34, 3
    s_lshl_b32 s60, s36, 1
    s_add_u32 s33, s33, s60
    s_lshl_b32 s60, s35, 7
    s_add_u32 s64, s60, s33
    v_lshlrev_b32 v{T}, 4, v{L}
    """)
    for n in range(2):
        A.I(f"""s_add_u32 s60, s64, {n}
        s_and_b32 s61, s60, 31
        s_lshl_b32 s61, s61, 6
        s_lshr_b32 s60, s60, 5
        s_add_u32 s60, s60, s61
        s_lshl_b32 s60, s60, 10
        buffer_load_dwordx4 {v(SV+4*n,4)}, v{T}, s[8:11], s60 offen"""); vq.append('row')
    (gload if VST else dma)(1)
    if VST:
        gload(2)
        A.I(f'v_lshlrev_b32 v{vLW}, 4, v{L}\nv_add_u32 v{vLW}, s38, v{vLW}\nv_add_u32 v{vLW+1}, {SB[1]}, v{vLW}\nv_add_u32 v{vLW+2}, {SB[2]}, v{vLW}')
    A.I('s_cmp_lt_u32 s32, 6\ns_cbranch_scc1 p1H_nf')
    A.skip_begin()
    A.I(f"""
    s_and_b32 s39, s32, 1
    s_lshl_b32 s33, s49, 6
    s_lshl_b32 s60, s39, 5
    s_add_u32 s33, s33, s60
    v_add_u32 v{T+2}, s33, v{l32}
    v_cvt_f32_u32 v{fu}, v{T+2}
    v_mul_f32 v{fu}, {f2u(1/512)}, v{fu}
    s_lshl_b32 s33, s34, 4
    v_lshlrev_b32 v{T+3}, 3, v{half}
    v_add_u32 v{T+3}, s33, v{T+3}
    v_cvt_f32_u32 v{kb}, v{T+3}
    v_mov_b32 v{kmask}, 0xffff
    """)
    for b_ in range(2):
        if b_==1: A.I(f'v_add_f32 v{fu}, {f2u(0.125)}, v{fu}\nv_fract_f32 v{fu}, v{fu}')
        A.I(f'v_mul_f32 v{T+4}, v{fu}, v{kb}')
        for j in range(4):
            A.I(f'v_cos_f32 v{T+6}, v{T+4}\nv_sin_f32 v{T+8}, v{T+4}\nv_add_f32 v{T+4}, v{T+4}, v{fu}')
            A.I(f'v_cos_f32 v{T+7}, v{T+4}\nv_sin_f32 v{T+9}, v{T+4}\nv_add_f32 v{T+4}, v{T+4}, v{fu}')
            A.I(f'v_cvt_pk_bf16_f32 v{FB+8*b_+j}, v{T+6}, v{T+7}')
            A.I(f'v_cvt_pk_bf16_f32 v{FB+8*b_+4+j}, -v{T+8}, -v{T+9}')
        A.I(f"""v_and_b32 v{T+5}, 1, v{l32}
        v_lshlrev_b32 v{T+5}, 15, v{T+5}
        v_or_b32 v{T+5}, 0x3f80, v{T+5}
        v_bfi_b32 v{T+5}, v{kmask}, v{T+5}, v{FB+8*b_+4}
        v_cmp_eq_u32 vcc, 0, v{T+3}
        v_cndmask_b32 v{FB+8*b_+4}, v{FB+8*b_+4}, v{T+5}, vcc""")
    A.I(f"""
    s_lshl_b32 s60, s39, 5
    v_add_u32 v{T+2}, s60, v{l32}
    v_and_b32 v{T+3}, 3, v{T+2}
    v_lshlrev_b32 v{T+3}, 2, v{T+3}
    v_add_u32 v{T+4}, 14, v{half}
    v_xor_b32 v{T+3}, v{T+3}, v{T+4}
    v_lshlrev_b32 v{T+3}, 4, v{T+3}
    v_lshl_add_u32 v{T+3}, v{T+2}, 8, v{T+3}
    v_add_u32 v{vFw}, {GS+SB[0]}, v{T+3}
    v_add_u32 v{vFw+1}, {GS+SB[1]}, v{T+3}
    v_add_u32 v{vFw+2}, {GS+SB[2]}, v{T+3}
    """)
    A.skip_end(); A.L('p1H_nf')
    flab=[0]
    def fgen(stage):
        flab[0]+=1; l=f'p1H_fg{flab[0]}'
        A.I(f's_cmp_lt_u32 s32, 6\ns_cbranch_scc1 {l}')
        A.skip_begin()
        slot=stage%3; b_=stage&1; t=(stage>>1)&3; B0=FB+8*b_
        def wr(m,src): A.I(f'ds_write_b128 v{vFw+slot}, {v(src,4)} offset:{m*16384}')
        if t==0:
            wr(0,B0); wr(1,B0+4)
        elif t==2:
            for m in range(2):
                for j in range(4): A.I(f'v_xor_b32 v{FO+4*m+j}, 0x80000000, v{B0+4*m+j}')
                wr(m,FO+4*m)
        else:
            ex=0 if t==1 else 0x80000000
            for m in range(2):
                for j in range(4):
                    own=B0+4*m+j; oth=B0+4*(1-m)+j
                    A.I(f'v_bfi_b32 v{FO+4*m+j}, v{kmask}, v{own}, v{oth}')
                    if m==0: sg=(0 if j%2==0 else 0x80008000)
                    else: sg=(0x80000000 if j%2==0 else 0x8000)
                    sg^=ex
                    if sg: A.I(f'v_xor_b32 v{FO+4*m+j}, {hex(sg)}, v{FO+4*m+j}')
                wr(m,FO+4*m)
        A.skip_end(); A.L(l)
    A.I('s_cmp_lg_u32 s2, 0\ns_cbranch_scc1 p1H_non\ns_cmp_lg_u32 s32, 7\ns_cbranch_scc1 p1H_non')
    A.skip_begin()
    cnt_base(A)
    A.I(f'v_lshlrev_b32 v{T}, 7, v{L}\nv_mov_b32 v{T+1}, 0')
    for j in range(NCNT//64):
        A.I(f'global_store_dword v{T}, v{T+1}, s[62:63]{SC}\nv_add_u32 v{T}, {64*128}, v{T}')
    A.I('s_mov_b64 exec, 1')
    A.I(f's_waitcnt vmcnt(0)\nv_mov_b32 v{T}, 0\nv_mov_b32 v{T+1}, 1\nglobal_store_dword v{T}, v{T+1}, s[54:55]{SC}\ns_mov_b64 exec, -1')
    A.skip_end(); A.L('p1H_non')
    def rowstats():
        U=T+14; S=ST2
        vwait('row')
        for i in range(4):
            for n in range(2):
                u=U+2*n
                A.I(f'v_lshlrev_b32 v{u}, 16, v{SV+4*n+i}\nv_and_b32 v{u+1}, 0xffff0000, v{SV+4*n+i}')
                if i==0: A.I(f'v_add_f32 v{S+2*n}, v{u}, v{u+1}\nv_mul_f32 v{S+2*n+1}, v{u}, v{u}')
                else: A.I(f'v_add_f32 v{S+2*n}, v{S+2*n}, v{u}\nv_fmac_f32 v{S+2*n+1}, v{u}, v{u}\nv_add_f32 v{S+2*n}, v{S+2*n}, v{u+1}')
                A.I(f'v_fmac_f32 v{S+2*n+1}, v{u+1}, v{u+1}')
        for ror in (8,4,2,1):
            for x in range(S,S+4): A.I(f'v_add_f32_dpp v{x}, v{x}, v{x} row_ror:{ror} row_mask:0xf bank_mask:0xf')
        for op in ('v_permlane16_swap_b32','v_permlane32_swap_b32'):
            for k in range(4): A.I(f'v_mov_b32 v{U+k}, v{S+k}')
            for k in range(4): A.I(f'{op} v{S+k}, v{U+k}')
            for k in range(4): A.I(f'v_add_f32 v{S+k}, v{S+k}, v{U+k}')
        A.I(f"""
        v_and_b32 v{U}, 1, v{L}
        v_cmp_eq_u32 vcc, 1, v{U}
        v_cndmask_b32 v{S}, v{S}, v{S+2}, vcc
        v_cndmask_b32 v{S+1}, v{S+1}, v{S+3}, vcc
        v_mul_f32 v{U}, {f2u(1/512)}, v{S}
        v_mul_f32 v{U+1}, {f2u(1/512)}, v{S+1}
        v_fma_f32 v{U+1}, -v{U}, v{U}, v{U+1}
        v_max_f32 v{U+1}, 0, v{U+1}
        v_cvt_pk_bf16_f32 v{U}, v{U}, v{U+1}
        v_and_b32 v{U+1}, 0xffff0000, v{U}
        v_lshlrev_b32 v{U}, 16, v{U}
        v_sub_f32 v{S}, 0, v{U}
        v_add_f32 v{U+1}, {f2u(1e-5)}, v{U+1}
        v_cvt_pk_bf16_f32 v{U+1}, v{U+1}, v{U+1}
        v_and_b32 v{U+1}, 0xffff0000, v{U+1}
        v_sqrt_f32 v{U+1}, v{U+1}
        v_cvt_pk_bf16_f32 v{U+1}, v{U+1}, v{U+1}
        v_and_b32 v{S+1}, 0xffff0000, v{U+1}
        s_lshl_b32 s60, s64, 3
        s_add_u32 s60, s60, {OFF_RS}
        s_add_u32 s62, s4, s60
        s_addc_u32 s63, s5, 0
        v_lshlrev_b32 v{U}, 3, v{L}
        s_mov_b64 exec, 3
        global_store_dwordx2 v{U}, {v(S,2)}, s[62:63]{SC}
        s_mov_b64 exec, -1
        """); vq.append('st')
    WV=128
    wS=76; wD=77
    def wt_job_loads():
        A.I(f"""
        v_and_b32 v{wD}, 255, v0
        v_lshrrev_b32 v{wD}, 4, v{wD}
        s_lshl_b32 s60, s35, 7
        v_add_u32 v{wS}, s60, v{wD}
        v_mul_u32_u24 v{wS}, 257, v{wS}
        v_and_b32 v{wD+1}, 15, v0
        s_lshl_b32 s60, s34, 4
        v_add_u32 v{wD+1}, s60, v{wD+1}
        v_add_u32 v{wS}, v{wS}, v{wD+1}
        v_lshlrev_b32 v{wS}, 1, v{wS}
        s_lshr_b32 s60, s35, 2
        s_lshl_b32 s60, s60, 11
        s_and_b32 s61, s35, 3
        s_lshl_b32 s61, s61, 8
        s_add_u32 s65, s60, s61
        v_lshlrev_b32 v{wD}, 4, v{wD}
        v_add_u32 v{wD}, s65, v{wD}
        v_lshl_add_u32 v{wD}, v{wD+1}, 13, v{wD}
        s_mov_b32 s42, 0x101000
        s_mov_b32 s43, 0x20000
        s_mov_b32 s46, 0x101000
        s_mov_b32 s47, 0x20000
        """)
        for n in range(2):
            for r in range(4):
                A.I(f's_mov_b32 s60, {r*16448+n*8224}')
                A.I(f'buffer_load_short_d16 v{WV+4*n+r}, v{wS}, s[40:43], s60 offen')
                A.I(f'buffer_load_short_d16_hi v{WV+8+4*n+r}, v{wS}, s[44:47], s60 offen'); vq.extend(['wt','wt'])
        A.I('s_cmp_lg_u32 s34, 0\ns_cbranch_scc1 p1H_wt0\ns_cmp_lg_u32 s32, 4\ns_cbranch_scc1 p1H_wt0')
        A.skip_begin()
        A.I(f's_lshl_b32 s60, s35, 7\nv_add_u32 v{wD+1}, s60, v{l32}\nv_mul_u32_u24 v{wD+1}, 257, v{wD+1}\nv_add_u32 v{wD+1}, 256, v{wD+1}\nv_lshlrev_b32 v{wD+1}, 1, v{wD+1}')
        for r in range(4):
            A.I(f's_mov_b32 s60, {r*16448}')
            A.I(f'buffer_load_short_d16 v{WV+16+r}, v{wD+1}, s[40:43], s60 offen')
            A.I(f'buffer_load_short_d16_hi v{WV+20+r}, v{wD+1}, s[44:47], s60 offen')
        A.skip_end(); A.L('p1H_wt0')
    def wt_job_stores():
        vwait('wt')
        srd(A,40,4,OFF_WT,257*8192)
        for n in range(2):
            for r in range(4): A.I(f'v_or_b32 v{WV+4*n+r}, v{WV+4*n+r}, v{WV+8+4*n+r}')
            A.I(f'buffer_store_dwordx4 {v(WV+4*n,4)}, v{wD}, s[40:43], 0 offen offset:{n*1024}{SC}'); vq.append('wst')
        A.I('s_cmp_lg_u32 s34, 0\ns_cbranch_scc1 p1H_wt1\ns_cmp_lg_u32 s32, 4\ns_cbranch_scc1 p1H_wt1')
        A.skip_begin()
        for r in range(4): A.I(f'v_or_b32 v{WV+16+r}, v{WV+16+r}, v{WV+20+r}')
        A.I(f'v_lshrrev_b32 v{wS}, 4, v{l32}\nv_lshlrev_b32 v{wS}, 10, v{wS}\nv_and_b32 v{wD+1}, 15, v{l32}\nv_lshl_add_u32 v{wS}, v{wD+1}, 4, v{wS}')
        A.I(f'v_add_u32 v{wS}, s65, v{wS}\nv_add_u32 v{wS}, 0x200000, v{wS}\ns_mov_b32 exec_hi, 0')
        A.I(f'buffer_store_dwordx4 {v(WV+16,4)}, v{wS}, s[40:43], 0 offen{SC}\ns_mov_b64 exec, -1')
        A.skip_end(); A.L('p1H_wt1')
    def warmup():
        A.I(f"""
        s_bfe_u32 s60, s2, 0x30003            ; n&7
        s_mul_i32 s60, s60, 224
        s_mul_i32 s61, s36, 56
        s_add_u32 s60, s60, s61
        v_add_u32 v{T}, s60, v{L}
        v_lshlrev_b32 v{T}, 10, v{T}
        s_bfe_u32 s60, s2, 0x10002            ; x>>2
        s_lshl_b32 s60, s60, 2
        s_lshr_b32 s61, s2, 6
        s_add_u32 s60, s60, s61               ; db
        s_lshl_b32 s60, s60, 7
        v_add_u32 v{T}, s60, v{T}
        s_mov_b32 s20, s56
        s_mov_b32 s21, s57
        s_mov_b32 s22, {hex(1792*512*2)}
        s_mov_b32 s23, 0x20000
        {'buffer_load_dword v%d, v%d, s[20:23], 0 offen'%(T+2,T) if 'nopfw' not in EXP else 's_nop 0'}
        s_getpc_b64 s[60:61]
        p1H_pc:
        s_add_u32 s60, s60, p1_join-p1H_pc
        s_addc_u32 s61, s61, 0
        s_lshl_b32 s62, s36, 13
        v_lshlrev_b32 v{T+4}, 7, v{L}
        v_add_u32 v{T+4}, s62, v{T+4}
        v_min_u32 v{T+4}, k_done-p1_join, v{T+4}
        v_mov_b32 v{T+5}, s61
        v_add_co_u32 v{T+4}, vcc, s60, v{T+4}
        v_addc_co_u32 v{T+5}, vcc, 0, v{T+5}, vcc
        {'global_load_dword v%d, v[%d:%d], off'%(T+3,T+4,T+5) if 'nopfc' not in EXP else 's_nop 0'}
        """)
        vq.extend(['pf']*(2-('nopfw' in EXP)-('nopfc' in EXP)))
    def warm_filter():
        A.I(f"""
        s_lshl_b32 s60, s35, 7
        s_lshl_b32 s61, s36, 5
        s_add_u32 s60, s60, s61
        v_add_u32 v{T}, s60, v{l32}
        v_mul_u32_u24 v{T}, 514, v{T}
        s_lshl_b32 s60, s34, 5
        v_add_u32 v{T}, s60, v{T}
        v_and_b32 v{T}, -4, v{T}
        s_mov_b32 s42, 0x101000
        s_mov_b32 s43, 0x20000
        s_mov_b32 s46, 0x101000
        s_mov_b32 s47, 0x20000
        s_mov_b32 exec_hi, 0
        buffer_load_dword v{T+2}, v{T}, s[40:43], 0 offen
        s_mov_b64 exec, -1
        s_mov_b32 exec_lo, 0
        buffer_load_dword v{T+3}, v{T}, s[44:47], 0 offen
        s_mov_b64 exec, -1
        """); vq.extend(['pf','pf'])
    def warm_all(cs):
        A.I(f"""
        s_bfe_u32 s60, s2, 0x10002
        s_lshl_b32 s60, s60, 2
        s_lshr_b32 s61, s2, 6
        s_add_u32 s60, s60, s61
        s_lshl_b32 s60, s60, 7
        s_mul_i32 s61, s36, {448*1024}
        s_add_u32 s60, s60, s61
        v_lshlrev_b32 v{T}, 10, v{L}
        s_mov_b32 s20, s56
        s_mov_b32 s21, s57
        s_mov_b32 s22, {hex(1792*512*2)}
        s_mov_b32 s23, 0x20000
        """)
        for c in cs:
            A.I(f's_add_u32 s61, s60, {c*64*1024}\nbuffer_load_dword v{T+2}, v{T}, s[20:23], s61 offen'); vq.append('pf')
    def tlb_warm():
        A.I(f"""
        v_lshlrev_b32 v{T}, 19, v{L}
        v_min_u32 v{T}, {hex(0x1100000)}, v{T}
        global_load_dword v{T+2}, v{T}, s[4:5]
        s_load_dwordx2 s[62:63], s[0:1], 56
        v_and_b32 v{T+1}, 3, v{L}
        v_lshlrev_b32 v{T+1}, 19, v{T+1}
        s_waitcnt lgkmcnt(0)
        global_load_dword v{T+3}, v{T+1}, s[62:63]
        """); vq.extend(['pf','pf'])
    def ready_load():
        A.I(f'v_mov_b32 v{RD+1}, 0\ns_mov_b64 exec, 1\nglobal_load_dword v{RD}, v{RD+1}, s[54:55]{SCP}\ns_mov_b64 exec, -1'); vq.append('non')
    def ready_check():
        l=newlab('nl'); d=newlab('nd')
        A.I(f'v_readfirstlane_b32 s3, v{RD}\ns_cmp_lg_u32 s3, 0\ns_cbranch_scc1 {d}\ns_mov_b32 s58, 0')
        A.L(l)
        A.I(f'global_load_dword v{RD}, v{RD+1}, s[54:55]{SCP}\ns_waitcnt vmcnt(0)\nv_readfirstlane_b32 s3, v{RD}')
        A.I(f's_cmp_lg_u32 s3, 0\ns_cbranch_scc1 {d}\ns_add_u32 s58, s58, 1\ns_cmp_lt_u32 s58, {SPIN_MAX>>4}\ns_cbranch_scc1 {l}')
        A.L(d)
    def rs_loads(q):
        A.I(f"""
        s_lshl_b32 s60, s35, 7
        s_lshl_b32 s61, s37, 6
        s_add_u32 s60, s60, s61
        v_add_u32 v{RSL}, s60, v{l32}
        v_lshlrev_b32 v{RSL+1}, 3, v{RSL}
        s_add_u32 s62, s4, {OFF_RS}
        s_addc_u32 s63, s5, 0
        global_load_dwordx2 {v(RSV,2)}, v{RSL+1}, s[62:63]{SC}
        global_load_dwordx2 {v(RSV+2,2)}, v{RSL+1}, s[62:63] offset:256{SC}
        """); q.extend(['rs','rs'])
    if VST:
        lwrite(0); gload(3); lwrite(1); gload(4)
    for i in range(NST):
        if 'bw' in EXP and i in (1,2,3,4,5): ST.mark(A)
        if VST and i==3: vwait('st')
        vwait(i,True)
        if 'bw' in EXP and i in (1,2,3,4,5): ST.mark(A)
        if i==6:
            A.I('s_cmp_lg_u32 s32, 4\ns_cbranch_scc1 p1H_sq')
            A.skip_begin()
            A.I('s_waitcnt vmcnt(0)' if VST else 's_waitcnt vmcnt(12)')
            poll_cnt(A,FP+1,FP+3,FP+2,2,True)
            A.skip_end(); A.L('p1H_sq')
        A.I('s_barrier')
        if want(i): ST.mark(A)
        if i==5:
            A.I(f"""
            s_lshl_b32 s60, s35, 7
            s_add_u32 s61, s34, {C_CS}
            s_lshl_b32 s61, s61, 7
            v_mov_b32 v{FP+1}, s61
            v_mov_b32 v{FP}, s60
            v_cmp_eq_u32 vcc, 0, v{L}
            v_cndmask_b32 v{FP+1}, v{FP+1}, v{FP}, vcc
            v_mov_b32 v{FP+3}, 16
            s_cmp_lg_u32 s32, 4
            s_cbranch_scc1 p1H_sp
            """)
            A.skip_begin()
            cnt_base(A)
            A.I(f's_mov_b64 exec, 3\nglobal_load_dword v{FP+2}, v{FP+1}, s[62:63]{SCP}\ns_mov_b64 exec, -1')
            A.skip_end(); A.L('p1H_sp')
        if i==0: ready_load()
        if i==3:
            A.I('s_cmp_lg_u32 s32, 4\ns_cbranch_scc1 p1H_f0')
            A.skip_begin()
            ready_check()
            arrive(A,35,T+14)
            A.I(f's_add_u32 s61, s34, {C_CS}'); arrive(A,61,T+14)
            A.skip_end(); A.L('p1H_f0')
        if i+2<NST: fgen(i+2)
        if i+2<NST and not VST: dma(i+2)
        if i+2<NST and VST:
            lwrite(i+2)
            if i+5<NST: gload(i+5)
        if i==0: rowstats()
        if i==WI and 'nopf' not in EXP: warmup()
        if 'pfall' in EXP and i in (1,2,3,4): warm_all({1:(0,1),2:(2,3),3:(4,5),4:(6,)}[i])
        if i==3 and 'pff' in EXP: warm_filter()
        if i==TI and 'tlb' in EXP: tlb_warm()
        if i==6:
            wt_job_loads()
            rs_loads(vq)
            A.I(f's_lshl_b32 s60, s34, 14\ns_add_u32 s60, s60, {OFF_CSP}\ns_add_u32 s20, s4, s60\ns_addc_u32 s21, s5, 0\nv_and_b32 v{FP}, 255, v0\nv_lshlrev_b32 v{FP}, 2, v{FP}')
            for j4 in range(4):
                if j4>0: A.I(f'v_add_u32 v{FP}, 4096, v{FP}')
                for j in range(4):
                    A.I(f'global_load_dword v{CSL+4*j4+j}, v{FP}, s[20:21] offset:{j*1024}{SC}'); vq.append('csp')
    vwait('csp')
    wt_job_stores()
    X=CSL
    for j in range(8): A.I(f'v_add_f32 v{X+j}, v{X+j}, v{X+8+j}')
    for j in range(4): A.I(f'v_add_f32 v{X+j}, v{X+j}, v{X+4+j}')
    A.I(f'v_add_f32 v{X}, v{X}, v{X+1}\nv_add_f32 v{X+2}, v{X+2}, v{X+3}\nv_add_f32 v{X}, v{X}, v{X+2}')
    A.I(f"""
    v_cvt_pk_bf16_f32 v{X+1}, v{X}, v{X}
    v_and_b32 v{X+1}, 0xffff0000, v{X+1}
    v_sub_f32 v{X+2}, v{X}, v{X+1}
    v_cvt_pk_bf16_f32 v{X}, v{X+1}, v{X+2}
    v_and_b32 v{T}, 255, v0
    v_lshlrev_b32 v{T}, 2, v{T}
    v_add_u32 v{T}, {STAT}, v{T}
    ds_write_b32 v{T}, v{X}
    """)
    ST.mark(A)
    A.I(f"""
    s_lshl_b32 s60, s36, 14
    s_cmp_eq_u32 s36, 3
    s_cselect_b32 s60, {SB[2]}, s60
    v_lshlrev_b32 v{T}, 4, v{L}
    v_add_u32 v{T}, s60, v{T}
    s_waitcnt lgkmcnt(0)
    s_barrier
    """)
    for k in range(16): A.I(f'ds_read_b128 {v(ACC+4*k,4)}, v{T} offset:{k*1024}')
    A.I('s_branch p1_join')
    A.L('p1_roleC'); A.fence()
    ST.n=n_st
    cq=[]; lq=[]
    A.I(f"""
    v_lshrrev_b32 v{T}, 5, v{L}
    v_lshlrev_b32 v{T}, 3, v{T}
    v_bfe_u32 v{T+1}, v{L}, 2, 2
    v_add_u32 v{T}, v{T}, v{T+1}
    v_lshlrev_b32 v{T}, 8, v{T}
    v_bfe_u32 v{T+2}, v{L}, 4, 1
    v_lshlrev_b32 v{T+2}, 1, v{T+2}
    v_bfe_u32 v{T+3}, v{L}, 1, 1
    v_add_u32 v{T+2}, v{T+2}, v{T+3}
    s_lshl_b32 s33, s36, 2
    v_add_u32 v{T+2}, s33, v{T+2}
    v_lshlrev_b32 v{T+1}, 2, v{T+1}
    v_xor_b32 v{T+2}, v{T+2}, v{T+1}
    v_lshl_add_u32 v{T}, v{T+2}, 4, v{T}
    v_and_b32 v{T+3}, 1, v{L}
    v_lshl_add_u32 v{T}, v{T+3}, 3, v{T}
    v_add_u32 v{vAr}, {GS+SB[0]}, v{T}
    v_add_u32 v{vAr+1}, {GS+SB[1]}, v{T}
    v_add_u32 v{vAr+2}, {GS+SB[2]}, v{T}
    v_lshlrev_b32 v{T}, 7, v{l32}
    v_bfe_u32 v{T+1}, v{l32}, 1, 3
    v_xor_b32 v{T+1}, v{T+1}, v{half}
    v_lshl_add_u32 v{T}, v{T+1}, 4, v{T}
    v_mov_b32 v{ones}, 0x3f803f80
    """)
    for sl in range(3):
        for ks in range(4):
            if ks==0: A.I(f'v_add_u32 v{vBr+sl*4}, {SB[sl]+XS}, v{T}')
            else: A.I(f'v_xor_b32 v{vBr+sl*4+ks}, {ks*32}, v{vBr+sl*4}')
    for k in range(4): A.I(f'v_mov_b32 v{csr+k}, 0')
    A.I(f'v_mov_b32 v{T}, {CTRL}\nv_lshl_add_u32 v{T}, v{L}, 2, v{T}\nv_mov_b32 v{T+1}, 0\nds_write_b32 v{T}, v{T+1}')
    A.I(f"""
    s_lshl_b32 s60, s36, 4
    v_and_b32 v{T}, 15, v{L}
    v_add_u32 v{T}, s60, v{T}              ; row
    s_lshl_b32 s60, s49, 6
    v_lshlrev_b32 v{T+1}, 6, v{half}
    v_add_u32 v{T+1}, v{T+1}, v{T}
    v_add_u32 v{T+1}, s60, v{T+1}
    v_and_b32 v{T+1}, 511, v{T+1}          ; d
    v_cvt_f32_u32 v{T+2}, v{T+1}
    v_mul_f32 v{T+2}, {f2u(1/512)}, v{T+2} ; u
    v_bfe_u32 v{T+3}, v{L}, 4, 1           ; ch
    s_lshl_b32 s60, s34, 4
    v_lshlrev_b32 v{T+4}, 3, v{T+3}
    v_add_u32 v{T+4}, s60, v{T+4}          ; k0
    v_cvt_f32_u32 v{T+5}, v{T+4}
    v_mul_f32 v{T+5}, v{T+5}, v{T+2}       ; angle
    """)
    for j in range(4):
        A.I(f'v_cos_f32 v{T+6}, v{T+5}\nv_sin_f32 v{T+8}, v{T+5}\nv_add_f32 v{T+5}, v{T+5}, v{T+2}')
        A.I(f'v_cos_f32 v{T+7}, v{T+5}\nv_sin_f32 v{T+9}, v{T+5}\nv_add_f32 v{T+5}, v{T+5}, v{T+2}')
        A.I(f'v_cvt_pk_bf16_f32 v{AFR+j}, v{T+6}, v{T+7}')
        A.I(f'v_cvt_pk_bf16_f32 v{AFR+4+j}, -v{T+8}, -v{T+9}')
    A.I(f"""
    v_and_b32 v{T+6}, 1, v{T}
    v_lshlrev_b32 v{T+6}, 15, v{T+6}
    v_or_b32 v{T+6}, 0x3f80, v{T+6}
    v_mov_b32 v{T+7}, 0xffff
    v_bfi_b32 v{T+6}, v{T+7}, v{T+6}, v{AFR+4}
    v_cmp_eq_u32 vcc, 0, v{T+4}
    v_cndmask_b32 v{AFR+4}, v{AFR+4}, v{T+6}, vcc
    v_and_b32 v{T+6}, 3, v{T}
    v_lshlrev_b32 v{T+6}, 2, v{T+6}
    v_add_u32 v{T+7}, 14, v{T+3}
    v_xor_b32 v{T+6}, v{T+6}, v{T+7}
    v_lshlrev_b32 v{T+6}, 4, v{T+6}
    v_lshl_add_u32 v{T+6}, v{T}, 8, v{T+6}
    v_mul_u32_u24 v{T+7}, {SB[1]-SB[0]}, v{half}
    v_add_u32 v{T+6}, v{T+6}, v{T+7}
    v_add_u32 v{T+6}, {GS+SB[0]}, v{T+6}
    ds_write_b128 v{T+6}, {v(AFR,4)}
    ds_write_b128 v{T+6}, {v(AFR+4,4)} offset:16384
    """)
    AS=[32,40,80]; BS=[48,64,88]
    def read_items(stage,ks,fs,sts=(0,1,2,3)):
        slot=stage%3; a=AS[fs]; bb=BS[fs]
        def ra(m):
            def f():
                for rd in range(2):
                    A.I(f'ds_read_b64_tr_b16 {v(a+m*4+rd*2,2)}, v{vAr+slot} offset:{m*16384+ks*4096+rd*1024}'); lq.append(('A',m,stage,ks))
            return f
        def rb(st):
            def f():
                A.I(f'ds_read_b128 {v(bb+st*4,4)}, v{vBr+slot*4+ks} offset:{st*4096}'); lq.append(('B',st,stage,ks))
            return f
        return [ra(0),rb(sts[0]),ra(1)]+[rb(x) for x in sts[1:]]
    def lwait(tags):
        idx=[k for k,x in enumerate(lq) if x in tags]
        if not idx: return
        n=len(lq)-1-max(idx); del lq[:max(idx)+1]
        A.I(f's_waitcnt lgkmcnt({min(n,15)})')
    def compute(stage,ks,fs,first,nxt,extra=None,cs=None,sts=(0,1,2,3)):
        a=AS[fs]; bb=BS[fs]; k=0
        nxt=list(nxt)
        per=[[] for _ in range(2*len(sts))]
        for j,it in enumerate(nxt): per[(j if len(nxt)<=len(per) else (j*len(per))//len(nxt))].append(it)
        for st in sts:
            for m in range(2):
                lwait([('A',m,stage,ks),('B',st,stage,ks)])
                mf32(A,tile(m,st),a+m*4,bb+st*4,first)
                for it in per[k]: it()
                if cs is not None: A.I(f'v_dot2c_f32_bf16 v{csr+cs*2+(k>>2)}, v{a+(k>>2)*4+(k&3)}, v{ones}')
                if extra and k in extra: extra[k]()
                k+=1
    def cs_chunks():
        U=104; C=[]
        C.append(lambda: A.I(f"""s_bitcmp1_b32 s35, 0
            s_cselect_b64 vcc, -1, 0
            v_cndmask_b32 v{U}, v{csr}, v{csr+2}, vcc
            v_cndmask_b32 v{U+2}, v{csr+1}, v{csr+3}, vcc"""))
        C.append(lambda: A.I(f"""v_mov_b32 v{U+1}, v{U}
            v_mov_b32 v{U+3}, v{U+2}
            s_lshl_b32 s60, s34, 4
            s_add_u32 s60, s60, s35"""))
        C.append(lambda: A.I(f"""v_permlane32_swap_b32 v{U}, v{U+1}
            v_permlane32_swap_b32 v{U+2}, v{U+3}
            s_lshl_b32 s60, s60, 10
            s_lshl_b32 s61, s36, 7"""))
        C.append(lambda: A.I(f"""v_add_f32 v{U}, v{U}, v{U+1}
            v_add_f32 v{U+2}, v{U+2}, v{U+3}
            s_add_u32 s60, s60, s61
            s_add_u32 s60, s60, {OFF_CSP}"""))
        C.append(lambda: A.I(f"""s_add_u32 s62, s4, s60
            s_addc_u32 s63, s5, 0
            v_lshlrev_b32 v{U+1}, 2, v{l32}
            s_mov_b32 exec_hi, 0
            global_store_dword v{U+1}, v{U}, s[62:63]{SC}
            s_mov_b64 exec, -1"""))
        C.append(lambda: A.I(f"""s_mov_b32 exec_hi, 0
            global_store_dword v{U+1}, v{U+2}, s[62:63] offset:512{SC}
            s_mov_b64 exec, -1"""))
        return C
    for i in range(NST):
        if 'bw' in EXP and i in (1,2,3,4,5): ST.mark(A)
        if i==3: A.I('s_waitcnt vmcnt(0)')
        A.I('s_waitcnt lgkmcnt(0)'); lq.clear()
        if 'bw' in EXP and i in (1,2,3,4,5): ST.mark(A)
        A.I('s_barrier')
        if want(i): ST.mark(A)
        if 'la2' not in EXP:
            fs=lambda st_,ks_: (4*st_+ks_)%3
            r01=read_items(i,0,fs(i,0))+read_items(i,1,fs(i,1))
            if i==0:
                for f in r01: f()
            else:
                compute(i-1,3,fs(i-1,3),False,r01,None,1 if i==1 else None)
            compute(i,0,fs(i,0),i==0,read_items(i,2,fs(i,2)),({6:lambda: rs_loads(cq)} if i==6 else (dict(zip((1,2,3,4,6,7),cs_chunks())) if i==1 else None)),0 if i==0 else None)
            compute(i,1,fs(i,1),False,read_items(i,3,fs(i,3)),None,0 if i==0 else None)
            compute(i,2,fs(i,2),False,[],None,1 if i==0 else None)
            continue
        r0=read_items(i,0,0)
        if i==0:
            for f in r0: f()
        else:
            compute(i-1,3,1,False,r0,None,1 if i==1 else None)
        compute(i,0,0,i==0,read_items(i,1,1),({6:lambda: rs_loads(cq)} if i==6 else (dict(zip((1,2,3,4,6,7),cs_chunks())) if i==1 else None)),0 if i==0 else None)
        compute(i,1,1,False,read_items(i,2,0),None,0 if i==0 else None)
        compute(i,2,0,False,read_items(i,3,1),None,1 if i==0 else None)
    HW=104
    A.I(f"""
    s_lshl_b32 s60, s36, 14
    s_cmp_eq_u32 s36, 3
    s_cselect_b32 s60, {SB[2]}, s60
    v_lshlrev_b32 v{HW}, 4, v{L}
    v_add_u32 v{HW}, s60, v{HW}
    """)
    if 'do7' not in EXP:
        A.I('s_waitcnt lgkmcnt(0)'); lq.clear()
        compute(7,3,((4*7+3)%3 if 'la2' not in EXP else 1),False,[])
        ST.mark(A)
        for k in range(16): A.I(f'ds_write_b128 v{HW}, {v(ACC+64+4*k,4)} offset:{k*1024}')
        A.I('s_waitcnt vmcnt(0) lgkmcnt(0)\ns_barrier')
    else:
        hi=(2,3); lo=(0,1)
        compute(7,0,0,False,read_items(7,1,1,hi),sts=hi)
        compute(7,1,1,False,read_items(7,2,0,hi),sts=hi)
        compute(7,2,0,False,read_items(7,3,1,hi),sts=hi)
        compute(7,3,1,False,read_items(10,0,0,lo),sts=hi)
        def hw(k0,k1):
            def f():
                for k in range(k0,k1):
                    A.I(f'ds_write_b128 v{HW}, {v(ACC+64+4*k,4)} offset:{k*1024}'); lq.append('hw')
            return f
        compute(10,0,0,False,read_items(10,1,1,lo),sts=lo)
        compute(10,1,1,False,read_items(10,2,0,lo),{0:hw(0,4),1:hw(4,8),2:hw(8,12),3:hw(12,16)},sts=lo)
        compute(10,2,0,False,read_items(10,3,1,lo),sts=lo)
        A.I('s_waitcnt lgkmcnt(0)\ns_barrier'); lq.clear()
        compute(10,3,1,False,[],sts=lo)
        ST.mark(A)
        A.I('s_waitcnt vmcnt(0)')
    A.L('p1_join')
    mm=[RSV,RSV+2]; sd=[RSV+1,RSV+3]
    c1p=T+6; c2p=T+14; sd2=T+16; rr=T+18
    c1=-2*0.7978845608028654*math.log2(math.e); c2=c1*0.044715
    FRK=32
    A.I(f"""
    s_lshl_b32 s39, s36, 7
    v_lshlrev_b32 v{T+2}, 2, v{l32}
    v_add_u32 v{T+2}, s39, v{T+2}
    v_add_u32 v{T+2}, {STAT}, v{T+2}
    ds_read_b32 v{T+10}, v{T+2}
    ds_read_b32 v{T+11}, v{T+2} offset:512
    """)
    for k in range(16): A.I(f'v_mov_b32 v{FRK+k}, 0')
    for st in range(2):
        A.I(f"""
        v_rcp_f32 v{rr+st}, v{sd[st]}
        v_mul_f32 v{sd2+st}, v{sd[st]}, v{sd[st]}
        v_mul_f32 v{c1p+st}, {f2u(c1)}, v{rr+st}
        v_mul_f32 v{T+9}, v{rr+st}, v{rr+st}
        v_mul_f32 v{T+9}, v{T+9}, v{rr+st}
        v_mul_f32 v{c2p+st}, {f2u(c2)}, v{T+9}
        """)
    srd(A,20,4,OFF_HP,224*32768)
    srd(A,24,4,OFF_YQ,256*8192)
    A.I(f"""
    v_cvt_pk_bf16_f32 v{T+12}, v{mm[0]}, v{mm[0]}
    v_cvt_pk_bf16_f32 v{T+13}, v{mm[1]}, v{mm[1]}
    v_cmp_gt_u32 vcc, 32, v{L}
    v_cndmask_b32 v{FRK+8}, 0, v{T+12}, vcc
    v_cndmask_b32 v{FRK+12}, 0, v{T+13}, vcc
    s_lshl_b32 s33, s35, 7
    s_lshl_b32 s39, s37, 6
    s_add_u32 s33, s33, s39              ; 128rb+64sh
    v_add_u32 v{T+4}, s33, v{l32}
    v_lshlrev_b32 v{vHo}, 4, v{T+4}
    v_lshl_add_u32 v{vHo}, v{half}, 15, v{vHo}
    v_add_u32 v{vHo+1}, 512, v{vHo}
    s_waitcnt lgkmcnt(0)
    v_cndmask_b32 v{FRK}, 0, v{T+10}, vcc
    v_cndmask_b32 v{FRK+4}, 0, v{T+11}, vcc
    """)
    for m in range(2):
        for b_ in range(2): mf32(A,ACC+(m*2+b_)*16,FRK+m*4,FRK+8+b_*4)
    vPf=114
    A.I('s_cmp_eq_u32 s37, 0\ns_cbranch_scc1 p1_pfC')
    A.I(f's_lshl_b32 s39, s36, 2\nv_mov_b32 v{vPf}, {CTRL}\nv_add_u32 v{vPf}, s39, v{vPf}\nv_mov_b32 v{vPf+1}, 1\nds_write_b32 v{vPf}, v{vPf+1} offset:64')
    A.I('s_branch p1_pfE')
    A.L('p1_pfC')
    srd(A,8,56,0,1792*512*2)
    A.I(f"""
    s_and_b32 s13, s2, 7
    s_lshr_b32 s14, s2, 3
    s_lshr_b32 s13, s13, 2
    s_lshl_b32 s13, s13, 2
    s_lshr_b32 s14, s14, 3
    s_add_u32 s13, s13, s14          ; db
    v_lshrrev_b32 v{vPf+1}, 3, v{L}
    v_bfe_u32 v{vPf+2}, v{L}, 4, 1
    v_lshlrev_b32 v{vPf+2}, 2, v{vPf+2}
    v_and_b32 v{vPf}, 7, v{L}
    v_xor_b32 v{vPf}, v{vPf}, v{vPf+2}
    v_lshlrev_b32 v{vPf}, 4, v{vPf}
    v_lshl_add_u32 v{vPf}, v{vPf+1}, 10, v{vPf}
    s_lshl_b32 s39, s13, 7
    v_add_u32 v{vPf}, s39, v{vPf}
    s_mul_i32 s44, s32, {28*16*1024}
    s_mul_i32 s45, s32, {AREG}
    v_mov_b32 v{vPf+1}, {CTRL}
    """)
    if 'epf' in EXP: lds_wait(A,vPf+1,116,64,1,4)
    A.L('p1_pfE')
    pfl=[0]
    def prefetch(lo,hi):
        if lo>=hi or 'epf' not in EXP: return
        pfl[0]+=1; l=f'p1_pf{pfl[0]}'
        A.I(f's_cmp_lg_u32 s37, 0\ns_cbranch_scc1 {l}')
        A.skip_begin()
        for t in range(lo,hi):
            for j in range(2):
                A.I(f's_add_u32 m0, s45, {t*2048+j*1024}')
                A.I(f's_add_u32 s39, s44, {(t*16+j*8)*1024}')
                A.I(f'buffer_load_dwordx4 v{vPf}, s[8:11], s39 offen lds')
        A.skip_end(); A.L(l)
    A.I('s_nop 7\ns_nop 4')
    Z=T+20
    vH=[vHo,vHo+1]
    GT=lambda st: ACC+st*16
    UT=lambda st: ACC+(2+st)*16
    def hq(q,st,p):
        g=[GT(st)+4*q+r for r in range(4)]; u=[UT(st)+4*q+r for r in range(4)]
        for r in range(4):
            A.I(f'v_mul_f32 v{Z+r}, v{g[r]}, v{g[r]}')
            A.I(f'v_fma_f32 v{Z+r}, v{Z+r}, v{c2p+st}, v{c1p+st}')
            A.I(f'v_mul_f32 v{Z+r}, v{Z+r}, v{g[r]}')
        for r in range(4): A.I(f'v_exp_f32 v{Z+r}, v{Z+r}')
        for r in range(4):
            A.I(f'v_mul_f32 v{g[r]}, v{g[r]}, v{u[r]}')
            A.I(f'v_fma_f32 v{Z+r}, v{Z+r}, v{sd2+st}, v{sd2+st}')
        for r in range(4): A.I(f'v_rcp_f32 v{Z+r}, v{Z+r}')
        for r in range(4): A.I(f'v_mul_f32 v{g[r]}, v{g[r]}, v{Z+r}')
        A.I(f'v_cvt_pk_bf16_f32 v{p}, v{g[0]}, v{g[1]}')
        A.I(f'v_cvt_pk_bf16_f32 v{p+1}, v{g[2]}, v{g[3]}')
    def hpair(q,st,P):
        hq(q,st,P); hq(q+1,st,P+2)
        A.I(f'v_permlane32_swap_b32 v{P}, v{P+2}')
        A.I(f'v_permlane32_swap_b32 v{P+1}, v{P+3}')
        A.I(f'buffer_store_dwordx4 {v(P,4)}, v{vH[st]}, s[20:23], s60 offen{SC}')
    A.I(f's_mul_i32 s61, s34, 14\ns_lshl_b32 s39, s36, 2\ns_add_u32 s61, s61, s39\ns_lshl_b32 s61, s61, 15')
    YT=208
    A.I('s_cmp_lg_u32 s36, 3\ns_cbranch_scc1 p1_noy')
    A.I(f"""
    s_lshl_b32 s39, s37, 12
    s_add_u32 s39, s39, {YSCR}
    v_lshlrev_b32 v{YT}, 10, v{half}
    v_lshl_add_u32 v{YT}, v{l32}, 2, v{YT}
    v_add_u32 v{YT}, s39, v{YT}
    v_lshlrev_b32 v{YT+1}, 4, v{L}
    v_add_u32 v{YT+1}, s39, v{YT+1}
    v_lshrrev_b32 v{YT+2}, 4, v{L}
    v_lshlrev_b32 v{YT+2}, 13, v{YT+2}
    v_and_b32 v{YT+3}, 15, v{L}
    v_lshl_add_u32 v{YT+2}, v{YT+3}, 4, v{YT+2}
    s_lshl_b32 s39, s33, 2
    v_add_u32 v{YT+2}, s39, v{YT+2}
    """)
    for q in (2,3):
        for st in range(2):
            for r in range(4):
                G_=GT(st)+4*q+r; U=UT(st)+4*q+r
                A.I(f'v_mul_f32 v{G_}, v{G_}, v{rr+st}')
                A.I(f'v_mul_f32 v{U}, v{U}, v{rr+st}')
                A.I(f'v_cvt_pk_bf16_f32 v{G_}, v{G_}, v{U}')
                A.I(f'ds_write_b32 v{YT}, v{G_} offset:{(8*(q-2)+r)*256+st*128}')
    A.I('s_waitcnt lgkmcnt(0)')
    for j in range(4): A.I(f'ds_read_b128 {v(YT+4+4*j,4)}, v{YT+1} offset:{j*1024}')
    A.I('s_waitcnt lgkmcnt(0)')
    for j in range(4):
        A.I(f's_lshl_b32 s60, s34, 4\ns_add_u32 s60, s60, {4*j}\ns_lshl_b32 s60, s60, 13')
        A.I(f'buffer_store_dwordx4 {v(YT+4+4*j,4)}, v{YT+2}, s[24:27], s60 offen{SC}')
    A.I('s_mov_b32 s60, s61')
    A.I('s_cmp_lg_u32 s37, 0\ns_cbranch_scc1 p1_y7')
    prefetch(0,9); hpair(0,0,PB); prefetch(9,17); hpair(0,1,PB+4)
    A.I(f's_waitcnt vmcnt({36 if "epf" in EXP else 2})\nv_mov_b32 v{YT}, {CTRL}\nv_mov_b32 v{YT+1}, 1\nds_write_b32 v{YT}, v{YT+1} offset:80')
    A.I('s_branch p1_end')
    A.L('p1_y7')
    hpair(0,0,PB); hpair(0,1,PB+4)
    A.I(f's_waitcnt vmcnt(2)\nv_mov_b32 v{YT}, {CTRL}')
    lds_wait(A,YT,YT+4,80,1,4)
    A.I(f's_add_u32 s61, s34, {C_Y}'); arrive(A,61,YT+2)
    A.I('s_branch p1_end')
    A.L('p1_noy')
    k=0; cuts=[0,6,12,17,17]
    for q in (0,2):
        A.I(f's_add_u32 s60, s61, {q*32768}')
        for st in range(2):
            hpair(q,st,PB+4*(q+st))
            prefetch(cuts[k],cuts[k+1]); k+=1
            if k==2:
                A.I('s_cmp_eq_u32 s37, 0\ns_cbranch_scc1 p1_wf')
                A.I(f's_waitcnt vmcnt(2)\ns_lshl_b32 s39, s36, 2\nv_mov_b32 v{YT}, {CTRL}\nv_add_u32 v{YT}, s39, v{YT}\nv_mov_b32 v{YT+1}, 1\nds_write_b32 v{YT}, v{YT+1} offset:84')
                A.L('p1_wf')
    A.L('p1_end')
    ST.mark(A)

def s2_phase(A):
    L,l,g,vY,vW,fl,fg4=1,2,3,4,5,6,7
    T=184
    Ya=16; Wv=24; C32R=32; C32I=48; C64R=64; C64I=80; T1c=96; T1s=104; T2c=112; T2s=120
    DR=128; DI=136; F=144; E=152
    vC=203
    A.I(f'''
    s_sub_u32 s12, s32, 4
    v_and_b32 v{L}, 63, v0
    v_and_b32 v{l}, 15, v0
    v_bfe_u32 v{g}, v0, 4, 2
    v_mov_b32 v{vC}, {CTRL}
    s_lshl_b32 s33, s34, 4
    s_add_u32 s33, s33, s35          ; column k
    s_mov_b32 s47, 0
    ''')
    srd(A,8,4,OFF_YQ,256*8192)
    srd(A,16,4,OFF_WT,257*8192)
    srd(A,20,4,OFF_ZQ,514*4096)
    A.I(f'''
    s_lshl_b32 s13, s12, 11
    v_lshlrev_b32 v{vY}, 7, v{l}
    v_lshl_add_u32 v{vY}, v{g}, 4, v{vY}
    v_add_u32 v{vY}, s13, v{vY}
    v_lshlrev_b32 v{vW}, 4, v{l}
    v_lshl_add_u32 v{vW}, v{g}, 8, v{vW}
    v_add_u32 v{vW}, s13, v{vW}
    v_cvt_f32_u32 v{fl}, v{l}
    v_lshlrev_b32 v{T}, 2, v{g}
    v_cvt_f32_u32 v{fg4}, v{T}
    s_lshl_b32 s13, s12, 4
    v_cvt_f32_u32 v{T+1}, s13
    ''')
    f16w=T+1
    sc=1.0/(2048*512)
    A.I(f'''
    v_mul_f32 v{T+2}, {f2u(1/32)}, v{fl}
    v_add_f32 v{T+3}, 0.5, v{T+2}
    v_add_f32 v{T+4}, v{f16w}, v{fl}
    v_mul_f32 v{T+7}, {f2u(1/2048)}, v{T+4}
    v_mul_f32 v{T+4}, {f2u(1/64)}, v{T+4}
    v_mul_f32 v{T+5}, {f2u(1/2048)}, v{fl}
    v_add_f32 v{T+6}, {f2u(16/2048)}, v{T+5}
    v_add_f32 v{T+8}, v{f16w}, v{fg4}
    s_mov_b32 s46, {f2u(2*sc)}
    s_cmp_eq_u32 s33, 0
    s_cselect_b32 s46, {f2u(sc)}, s46
    v_mov_b32 v{vC+2}, s46
    ''')
    a_,c_,s_=T+9,T+10,T+11
    def cs_pack(ang,R,I):
        A.I(f'''
        v_cos_f32 v{c_}, v{ang}
        v_sin_f32 v{s_}, v{ang}
        v_cvt_pk_bf16_f32 v{R}, v{c_}, v{s_}
        v_cvt_pk_bf16_f32 v{I}, -v{s_}, v{c_}
        ''')
    fa=T+12
    for t in range(2):
        for q in range(4):
            A.I(f'v_add_f32 v{fa}, {f2u(16*t+q)}, v{fg4}')
            for nt in range(2):
                A.I(f'v_mul_f32 v{a_}, v{fa}, v{T+2+nt}')
                cs_pack(a_, C32R+(t*2+nt)*4+q, C32I+(t*2+nt)*4+q)
    for r in range(4):
        A.I(f'v_add_f32 v{fa}, {f2u(r)}, v{T+8}')
        for nt in range(2):
            A.I(f'''v_mul_f32 v{a_}, v{fa}, v{T+5+nt}
            v_cos_f32 v{T1c+nt*4+r}, v{a_}
            v_sin_f32 v{T1s+nt*4+r}, v{a_}''')
    for tp in range(4):
        for q in range(4):
            A.I(f'v_add_f32 v{fa}, {f2u(16*tp+q)}, v{fg4}')
            A.I(f'v_mul_f32 v{a_}, v{fa}, v{T+4}')
            cs_pack(a_, C64R+tp*4+q, C64I+tp*4+q)
    for it in range(2):
        for r in range(4):
            A.I(f'''v_add_f32 v{fa}, {f2u(16*it+r)}, v{fg4}
            v_mul_f32 v{a_}, v{fa}, v{T+7}
            v_cos_f32 v{T2c+it*4+r}, v{a_}
            v_sin_f32 v{T2s+it*4+r}, v{a_}
            v_mul_f32 v{T2c+it*4+r}, v{T2c+it*4+r}, v{vC+2}
            v_mul_f32 v{T2s+it*4+r}, v{T2s+it*4+r}, v{vC+2}''')
    vLw,vLr=T+13,T+14
    A.I(f'''
    v_lshlrev_b32 v{vLr}, 4, v{L}
    v_add_u32 v{vLr}, {EX}, v{vLr}
    s_lshl_b32 s13, s12, 11
    v_add_u32 v{vLw}, s13, v{vLr}
    s_lshl_b32 s13, s12, 2
    v_add_u32 v{vC+1}, s13, v{vC}
    s_mov_b32 s26, 0x80000000
    s_mov_b32 s27, 0x8000
    ''')
    ST.mark(A)
    A.I('s_waitcnt vmcnt(0)\ns_barrier')
    if 'noprio' not in EXP: A.I('s_setprio 3')
    ST.mark(A)
    A.I('s_cmp_lg_u32 s32, 4\ns_cbranch_scc1 s2_w1')
    A.skip_begin()
    A.I(f's_add_u32 s59, s34, {C_Y}\ns_lshl_b32 s59, s59, 7\nv_mov_b32 v{E}, s59\nv_mov_b32 v{E+1}, 16')
    poll_cnt(A,E,E+1,E+2,1)
    if 'dbg' in EXP:
        A.I(f's_cmp_lg_u32 s2, 9\ns_cbranch_scc1 dbg1')
        A.I(f'v_mov_b32 v{E+4}, v{E}\nv_mov_b32 v{E+5}, v{E+1}\nv_mov_b32 v{E+6}, v{E+2}\nv_mov_b32 v{E+7}, s58\nv_mov_b32 v{E+8}, 32\ns_mov_b64 exec, 1\nglobal_store_dwordx4 v{E+8}, {v(E+4,4)}, s[54:55]\ns_mov_b64 exec, -1')
        A.L('dbg1')
    A.I(f'v_mov_b32 v{E}, 1\nds_write_b32 v{vC}, v{E} offset:8')
    A.skip_end(); A.L('s2_w1')
    lds_wait(A,vC,E,8,1)
    ST.mark(A)
    A.L('s2_col')
    if 'nos2' in EXP: A.I('s_branch s2_skip')
    A.I(f'''
    s_and_b32 s14, s33, 255
    s_lshl_b32 s14, s14, 13
    s_lshl_b32 s15, s33, 13
    s_add_u32 s29, s15, 4096
    buffer_load_dwordx4 {v(Ya,4)}, v{vY}, s[8:11], s14 offen{SC}
    buffer_load_dwordx4 {v(Ya+4,4)}, v{vY}, s[8:11], s14 offen offset:64{SC}
    buffer_load_dwordx4 {v(Wv,4)}, v{vW}, s[16:19], s15 offen{SC}
    buffer_load_dwordx4 {v(Wv+4,4)}, v{vW}, s[16:19], s15 offen offset:1024{SC}
    s_cmp_eq_u32 s33, 256
    s_cselect_b32 s24, 16, 0
    s_and_b32 s25, s33, 255
    s_cmp_eq_u32 s25, 0
    s_cselect_b32 s25, 0xffff, -1
    s_cmp_lg_u32 s33, 0
    s_cbranch_scc1 s2_nx
    s_mov_b32 s60, 0x200000
    buffer_load_dwordx4 {v(208,4)}, v{vW}, s[16:19], s60 offen{SC}
    buffer_load_dwordx4 {v(212,4)}, v{vW}, s[16:19], s60 offen offset:1024{SC}
    s_waitcnt vmcnt(4)
    s_branch s2_ld
    s2_nx:
    s_waitcnt vmcnt(2)
    s2_ld:
    ''')
    for i in range(8): A.I(f'v_mov_b32 v{216+i}, v{Ya+i}')
    A.L('s2_cmp')
    if 's2fine' in EXP: ST.mark(A)
    for i in range(8): A.I(f'v_lshrrev_b32 v{Ya+i}, s24, v{Ya+i}')
    for i in range(8): A.I(f'v_and_b32 v{Ya+i}, s25, v{Ya+i}')
    for nt in range(2):
        for t in range(2): mf16(A,DR+nt*4,Ya+t*4,C32R+(t*2+nt)*4,t==0)
        for t in range(2): mf16(A,DI+nt*4,Ya+t*4,C32I+(t*2+nt)*4,t==0)
    t0,t1=T+15,T+16
    def cmul_pack(dst,xr,xi,c,s,sign):
        A.I(f'v_mul_f32 v{t0}, v{xr}, v{c}')
        A.I(f'v_mul_f32 v{t1}, v{xi}, v{c}')
        if sign<0:
            A.I(f'v_fma_f32 v{t0}, v{xi}, v{s}, v{t0}'); A.I(f'v_fma_f32 v{t1}, -v{xr}, v{s}, v{t1}')
        else:
            A.I(f'v_fma_f32 v{t0}, -v{xi}, v{s}, v{t0}'); A.I(f'v_fma_f32 v{t1}, v{xr}, v{s}, v{t1}')
        A.I(f'v_cvt_pk_bf16_f32 v{dst}, v{t0}, v{t1}')
    def exchange(base,ph):
        for nt in range(2): A.I(f'ds_write_b128 v{vLw}, {v(F+nt*4,4)} offset:{base+nt*1024}')
        A.I(f's_add_u32 s46, s47, {ph}\nv_mov_b32 v{t0}, s46\nds_write_b32 v{vC+1}, v{t0} offset:16')
        lds_wait(A,vC,E,16,'s46',4)
        for tp in range(4):
            for nt in range(2): A.I(f'ds_read_b128 {v(E+(tp*2+nt)*4,4)}, v{vLr} offset:{base+(tp*2+nt)*1024}')
    for nt in range(2):
        for r in range(4): cmul_pack(F+nt*4+r,DR+nt*4+r,DI+nt*4+r,T1c+nt*4+r,T1s+nt*4+r,-1)
    if 's2fine' in EXP: ST.mark(A)
    exchange(0,1)
    if 's2fine' in EXP: ST.mark(A)
    for tp in range(4):
        A.I(f's_waitcnt lgkmcnt({6-2*tp})')
        for nt in range(2):
            mf16(A,DR+nt*4,C64R+tp*4,E+(tp*2+nt)*4,tp==0)
            mf16(A,DI+nt*4,C64I+tp*4,E+(tp*2+nt)*4,tp==0)
    if 's2fine' in EXP: ST.mark(A)
    A.I('s_cmp_eq_u32 s33, 256\ns_cbranch_scc1 s2_nw\ns_waitcnt vmcnt(0)')
    A.L('s2_nw')
    wr,wi=T+17,T+18
    def conj(R,I):
        for i in range(16):
            A.I(f'v_xor_b32 v{R+i}, s26, v{R+i}'); A.I(f'v_xor_b32 v{I+i}, s27, v{I+i}')
    conj(C32R,C32I)
    for nt in range(2):
        for r in range(4):
            A.I(f'v_lshlrev_b32 v{wr}, 16, v{Wv+nt*4+r}')
            A.I(f'v_and_b32 v{wi}, 0xffff0000, v{Wv+nt*4+r}')
            cmul_pack(F+nt*4+r,DR+nt*4+r,DI+nt*4+r,wr,wi,+1)
    conj(C64R,C64I)
    if 's2fine' in EXP: ST.mark(A)
    def publish(kreg_is_256,suf,xd):
        A.I('s_waitcnt vmcnt(0)')
        A.I(f'v_mov_b32 v{t1}, {xd}\nds_write_b32 v{vC+1}, v{t1} offset:32')
        A.I(f's_cmp_lg_u32 s32, 4\ns_cbranch_scc1 s2_w2{suf}')
        A.skip_begin()
        lds_wait(A,vC,224,32,xd,4)
        cnt_base(A)
        if kreg_is_256=='n': A.I(f'v_add_u32 v228, {C_N}, v{L}')
        elif kreg_is_256=='0': A.I(f'v_lshlrev_b32 v228, 3, v{L}\nv_add_u32 v228, {C_Z}, v228')
        else: A.I(f's_and_b32 s46, s33, 7\ns_add_u32 s46, s46, {C_Z}\nv_lshlrev_b32 v228, 3, v{L}\nv_add_u32 v228, s46, v228')
        A.I(f'v_lshlrev_b32 v228, 7, v228\nv_mov_b32 v229, 1')
        A.I(f's_mov_b64 exec, {(1<<ZREP)-1}\nglobal_atomic_add v228, v229, s[62:63]{SC}\ns_mov_b64 exec, -1')
        A.skip_end(); A.L(f's2_w2{suf}')
    exchange(8192,2)
    A.I('s_cmp_lg_u32 s33, 256\ns_cbranch_scc1 s2_np')
    publish('0','c',1)
    A.I('s_barrier')
    A.L('s2_np')
    if 's2fine' in EXP: ST.mark(A)
    for tp in range(4):
        A.I(f's_waitcnt lgkmcnt({6-2*tp})')
        for it in range(2):
            mf16(A,DR+it*4,E+(tp*2+it)*4,C64R+tp*4,tp==0)
            mf16(A,DI+it*4,E+(tp*2+it)*4,C64I+tp*4,tp==0)
    for it in range(2):
        for r in range(4): cmul_pack(F+it*4+r,DR+it*4+r,DI+it*4+r,T2c+it*4+r,T2s+it*4+r,+1)
    for nt in range(2):
        for t in range(2): mf16(A,DR+nt*4,C32R+(t*2+nt)*4,F+t*4,t==0)
        for t in range(2): mf16(A,DI+nt*4,C32I+(t*2+nt)*4,F+t*4,t==0)
    if 's2fine' in EXP: ST.mark(A)
    A.I(f'v_lshrrev_b32 v{t0}, 1, v{vY}')
    for nt in range(2):
        for part,D in ((0,DR),(1,DI)):
            e=E+nt*4+part*2
            A.I(f'v_cvt_pk_bf16_f32 v{e}, v{D+nt*4}, v{D+nt*4+1}\nv_cvt_pk_bf16_f32 v{e+1}, v{D+nt*4+2}, v{D+nt*4+3}')
            A.I(f'buffer_store_dwordx2 {v(e,2)}, v{t0}, s[20:23], s15 offen offset:{32*nt}{SC}' if part==0 else f'buffer_store_dwordx2 {v(e,2)}, v{t0}, s[20:23], s29 offen offset:{32*nt}{SC}')
    A.I('s_cmp_eq_u32 s33, 0\ns_cbranch_scc1 s2_second')
    A.I('s_cmp_eq_u32 s33, 256\ns_cbranch_scc1 s2_pubn')
    publish('k','a',1)
    A.I('s_barrier')
    A.I('s_branch s2_fin')
    A.L('s2_pubn')
    publish('n','b',2)
    A.I('s_branch s2_fin')
    A.L('s2_second')
    conj(C32R,C32I); conj(C64R,C64I)
    for i in range(8): A.I(f'v_mov_b32 v{Ya+i}, v{216+i}')
    for i in range(8): A.I(f'v_mov_b32 v{Wv+i}, v{208+i}')
    A.I('s_movk_i32 s33, 256\ns_mov_b32 s15, 0x200000\ns_add_u32 s29, s15, 4096\ns_mov_b32 s24, 16\ns_mov_b32 s25, 0xffff\ns_add_u32 s47, s47, 2\ns_branch s2_cmp')
    A.L('s2_fin')
    A.I('s_setprio 0')
    ST.mark(A)
    A.I('s_cmp_lg_u32 s32, 4\ns_cbranch_scc1 s2_w3')
    A.skip_begin()
    A.I(f's_and_b32 s46, s2, {ZREP-1}\ns_lshl_b32 s46, s46, 3\ns_add_u32 s46, s46, {C_Z}\nv_add_u32 v{E}, s46, v{L}\nv_lshlrev_b32 v{E}, 7, v{E}\nv_mov_b32 v{E+1}, 32')
    poll_cnt(A,E,E+1,E+2,8,sleep=2)
    A.I(f'v_mov_b32 v{E}, 1\nds_write_b32 v{vC}, v{E} offset:4')
    A.I(f's_and_b32 s46, s2, {ZREP-1}\ns_add_u32 s46, s46, {C_N}\ns_lshl_b32 s46, s46, 7\nv_mov_b32 v{E}, s46\nv_mov_b32 v{E+1}, 1')
    poll_cnt(A,E,E+1,E+2,1)
    A.I(f'v_mov_b32 v{E}, 1\nds_write_b32 v{vC}, v{E} offset:48')
    A.skip_end(); A.L('s2_w3')
    ST.mark(A)
    A.I('s_waitcnt lgkmcnt(0)\ns_barrier')

def p3_phase(A, nh=28, nz=8):
    NB=NB_
    BR0=112
    NAR=NAR_
    if NAR: NB=8-NAR
    AR=112+NB*8
    NA=NA_; NL=NSL-NA; RB=NB+NL
    BL=[16,240]
    L,half,l32=1,2,3
    vB=4; vZd=5; vZr=6; vX=9; vC=10; vAd=11; vAr=12; vLw=14; vLr=15; vBd=8; vBr=28
    XR2=16; T=24; ACC=32; AF=96; BR=112; ZA=176
    A.I(f"""
    s_load_dwordx2 s[28:29], s[0:1], 56
    s_load_dwordx2 s[30:31], s[0:1], 48
    v_and_b32 v{L}, 63, v0
    v_and_b32 v{l32}, 31, v0
    v_bfe_u32 v{half}, v0, 5, 1
    v_mov_b32 v{vC}, {CTRL}
    s_mov_b32 s12, s32
    s_and_b32 s13, s2, 7
    s_lshr_b32 s14, s2, 3
    s_and_b32 s15, s13, 3
    s_lshl_b32 s15, s15, 3
    s_and_b32 s39, s14, 7
    s_add_u32 s15, s15, s39          ; sb
    s_lshr_b32 s13, s13, 2
    s_lshl_b32 s13, s13, 2
    s_lshr_b32 s14, s14, 3
    s_add_u32 s13, s13, s14          ; db
    s_and_b32 s36, s12, 1
    s_lshr_b32 s37, s12, 1
    v_lshrrev_b32 v{T}, 3, v{L}
    v_bfe_u32 v{T+1}, v{L}, 4, 1
    v_lshlrev_b32 v{T+1}, 2, v{T+1}
    v_and_b32 v{T+2}, 7, v{L}
    v_xor_b32 v{T+2}, v{T+2}, v{T+1}
    v_lshlrev_b32 v{T+2}, 4, v{T+2}           ; c*16
    v_lshl_add_u32 v{vAd}, v{T}, 10, v{T+2}
    s_lshl_b32 s39, s13, 7
    v_add_u32 v{vAd}, s39, v{vAd}
    v_lshl_add_u32 v{vZd}, v{T}, 12, v{T+2}
    s_lshl_b32 s39, s15, 7
    v_add_u32 v{vZd}, s39, v{vZd}
    s_mul_i32 s44, s12, {nh*16*1024}
    s_mul_i32 s45, s12, {AREG}
    s_mul_i32 s52, s12, {nz*16*4096}
    s_waitcnt lgkmcnt(0)
    """)
    srd(A,8,30,0,1792*512*2)
    q=[]
    def dmaA(t):
        for j in range(2):
            A.I(f's_add_u32 m0, s45, {(t%NA)*2048+j*1024}')
            A.I(f's_add_u32 s60, s44, {(t*16+j*8)*1024}')
            A.I(f'buffer_load_dwordx4 v{vAd}, s[8:11], s60 offen lds'); q.append(('A',t))
    def dmaZ(i):
        t=nh+i
        for j in range(2):
            A.I(f's_add_u32 m0, s45, {(t%NA)*2048+j*1024}')
            A.I(f's_add_u32 s60, s52, {(i*16+j*8)*4096}')
            A.I(f'buffer_load_dwordx4 v{vZd}, s[20:23], s60 offen{SC} lds'); q.append(('A',t))
    srd(A,24,6,0,2048*512*2)
    srd(A,16,4,OFF_HP,224*32768)
    srd(A,20,4,OFF_ZQ,514*4096)
    srd(A,40,28,0,2048*512*2)
    A.I(f"""
    s_lshl_b32 s39, s15, 1
    s_add_u32 s39, s39, s37
    s_lshl_b32 s39, s39, 10
    s_lshl_b32 s31, s13, 7
    s_add_u32 s39, s39, s31
    s_lshl_b32 s31, s36, 6
    s_add_u32 s39, s39, s31
    v_lshlrev_b32 v{vX}, 16, v{l32}
    v_lshl_add_u32 v{vX}, v{half}, 3, v{vX}
    v_add_u32 v{vX}, s39, v{vX}
    """)
    ZT=248
    A.I(f"""
    s_lshl_b32 s39, s15, 10
    v_lshlrev_b32 v{vB}, 15, v{half}
    v_lshl_add_u32 v{vB}, v{l32}, 4, v{vB}
    v_add_u32 v{vB}, s39, v{vB}
    s_mul_i32 s46, s12, {nh*65536}
    s_mov_b32 s48, s46
    s_lshl_b32 s39, s15, 10
    v_lshlrev_b32 v{vBd}, 4, v{L}
    v_add_u32 v{vBd}, s39, v{vBd}
    v_lshlrev_b32 v{vBr}, 10, v{half}
    v_lshl_add_u32 v{vBr}, v{l32}, 4, v{vBr}
    v_add_u32 v{vBr}, s45, v{vBr}
    s_lshl_b32 s39, s37, 9
    v_xor_b32 v{vBr+1}, 512, v{vBr}
    v_add_u32 v{vBr}, s39, v{vBr}
    v_subrev_u32 v{vBr+1}, s39, v{vBr+1}
    s_add_u32 s47, s46, 512
    s_sub_u32 s47, s47, s39
    s_add_u32 s46, s46, s39
    v_lshrrev_b32 v{T}, 5, v{L}
    v_lshlrev_b32 v{T}, 3, v{T}
    v_bfe_u32 v{T+1}, v{L}, 2, 2
    v_add_u32 v{T}, v{T}, v{T+1}
    v_lshlrev_b32 v{T}, 7, v{T}              ; row*128
    v_bfe_u32 v{T+2}, v{L}, 4, 1
    v_lshlrev_b32 v{T+2}, 1, v{T+2}
    v_bfe_u32 v{T+3}, v{L}, 1, 1
    v_add_u32 v{T+2}, v{T+2}, v{T+3}         ; chunk within 64B half
    v_bfe_u32 v{T+3}, v{L}, 3, 1
    v_lshlrev_b32 v{T+3}, 2, v{T+3}          ; swizzle bit
    v_xor_b32 v{T+2}, v{T+2}, v{T+3}
    v_lshl_add_u32 v{T}, v{T+2}, 4, v{T}
    v_and_b32 v{T+3}, 1, v{L}
    v_lshl_add_u32 v{T}, v{T+3}, 3, v{T}
    v_add_u32 v{T}, s45, v{T}                ; base for tile index 0
    s_lshl_b32 s39, s36, 6
    v_xor_b32 v{vAr}, s39, v{T}
    v_xor_b32 v{vAr+1}, 64, v{vAr}
    s_lshl_b32 s39, s37, 6
    v_xor_b32 v{vZr}, s39, v{T}
    v_xor_b32 v{vZr+1}, 64, v{vZr}
    s_lshl_b32 s39, s13, 6
    s_lshl_b32 s31, s36, 5
    s_add_u32 s39, s39, s31
    v_add_u32 v{T}, s39, v{l32}
    v_cvt_f32_u32 v{T}, v{T}
    v_mul_f32 v{ZT}, {f2u(1/512)}, v{T}
    s_lshl_b32 s39, s13, 6
    s_xor_b32 s31, s31, 32
    s_add_u32 s39, s39, s31
    v_add_u32 v{T+1}, s39, v{l32}
    v_cvt_f32_u32 v{T+1}, v{T+1}
    v_mul_f32 v{ZT+1}, {f2u(1/512)}, v{T+1}
    s_mul_i32 s39, s12, {nz*8}
    v_lshlrev_b32 v{T+2}, 2, v{half}
    v_add_u32 v{T+2}, s39, v{T+2}
    v_cvt_f32_u32 v{ZT+2}, v{T+2}
    """)
    zitems=[]
    for i in range(nz):
        for qq in range(4):
            def zf(i=i,qq=qq):
                A.I(f'v_add_f32 v{ZT+3}, {f2u(8*i+qq)}, v{ZT+2}')
                for ar in range(2):
                    A.I(f'v_mul_f32 v{ZT+4+ar}, v{ZT+3}, v{ZT+ar}\nv_fract_f32 v{ZT+4+ar}, v{ZT+4+ar}')
                for ar in range(2):
                    A.I(f'v_cos_f32 v{ZT+6}, v{ZT+4+ar}\nv_sin_f32 v{ZT+7}, v{ZT+4+ar}\nv_cvt_pk_bf16_f32 v{ZA+i*8+ar*4+qq}, v{ZT+6}, -v{ZT+7}')
            zitems.append(zf)
    PT=NA-4
    NZ0=10 if 'z0' not in EXP else 0
    for zf in zitems[:NZ0]: zf()
    A.I(f's_waitcnt vmcnt({len(q)})\ns_barrier')
    ST.mark(A)
    A.I('s_cmp_lg_u32 s32, 0\ns_cbranch_scc1 p3_a1')
    A.skip_begin()
    A.I(f's_add_u32 s59, s35, {C_H}'); A.I('s_mov_b32 s61, s59'); arrive(A,61,T)
    A.skip_end(); A.L('p3_a1')
    rest=zitems[NZ0:]
    if 'epf' in EXP:
        for zf in rest: zf()
    else:
        for t in range(NA):
            dmaA(t)
            for zf in rest[(t*len(rest))//NA:((t+1)*len(rest))//NA]: zf()
            if PS_ and t==PS_-1: lds_wait(A,vC,T+4 if False else 240,16,1,4)
            if t==PT:
                A.I(f's_lshr_b32 s59, s15, 1\ns_add_u32 s59, s59, {C_H}\ns_lshl_b32 s59, s59, 7\nv_mov_b32 v{T}, s59\nv_mov_b32 v{T+1}, 16')
                A.I('s_cmp_lg_u32 s32, 0\ns_cbranch_scc1 p3_ap')
                A.skip_begin()
                cnt_base(A)
                A.I(f's_mov_b64 exec, 1\nglobal_load_dword v{T+2}, v{T}, s[62:63]{SCP}\ns_mov_b64 exec, -1')
                A.skip_end(); A.L('p3_ap')
    if NAR:
        idx=[k for k,x in enumerate(q) if x==('A',NAR-1)]
        A.I(f's_waitcnt vmcnt({len(q)-1-max(idx)})'); del q[:max(idx)+1]
        for t in range(NAR):
            for ar in range(2):
                for rd in range(2):
                    A.I(f'ds_read_b64_tr_b16 {v(AR+t*8+ar*4+rd*2,2)}, v{vAr+ar} offset:{(t%NA)*2048+rd*512}')
        A.I('s_waitcnt lgkmcnt(0)')
        for t in range(NAR): dmaA(NA+t)
    ST.mark(A)
    A.I('s_cmp_lg_u32 s32, 0\ns_cbranch_scc1 p3_w1')
    A.skip_begin()
    A.I(f's_waitcnt vmcnt({2*(NA-1-PT)+2*NAR})')
    poll_cnt(A,T,T+1,T+2,1,True)
    A.I(f'v_mov_b32 v{T}, 1\nds_write_b32 v{vC}, v{T}')
    A.skip_end(); A.L('p3_w1')
    lds_wait(A,vC,T,0,1)
    ST.mark(A)
    n=nh+nz
    isL=lambda i: (i%RB)>=NB
    def issueB(i):
        if isL(i):
            sl=NA+(i%RB)-NB
            for j in range(2):
                A.I(f's_add_u32 m0, s45, {sl*2048+j*1024}')
                A.I(f's_add_u32 s60, s48, {j*32768}')
                A.I(f'buffer_load_dwordx4 v{vBd}, s[16:19], s60 offen{SCB} lds')
        else:
            sl=BR+(i%RB)*8
            A.I(f'buffer_load_dwordx4 {v(sl,4)}, v{vB}, s[16:19], s46 offen{SCB}')
            A.I(f'buffer_load_dwordx4 {v(sl+4,4)}, v{vB}, s[16:19], s47 offen{SCB}')
        q.extend([('B',i)]*2)
        A.I('s_add_u32 s46, s46, 65536\ns_add_u32 s47, s47, 65536\ns_add_u32 s48, s48, 65536')
    def readsBL(i):
        sl=NA+(i%RB)-NB; f=BL[i%2]
        for b_ in range(2):
            A.I(f'ds_read_b128 {v(f+4*b_,4)}, v{vBr+b_} offset:{sl*2048}')
    def vwait(*tags):
        idx=[k for k,x in enumerate(q) if x in tags]
        if not idx: return
        N=len(q)-1-max(idx); del q[:max(idx)+1]
        A.I(f's_waitcnt vmcnt({min(N,63)})')
    def reads(t):
        f=AF+(t%2)*8
        if t<nh:
            for ar in range(2):
                for rd in range(2):
                    A.I(f'ds_read_b64_tr_b16 {v(f+ar*4+rd*2,2)}, v{vAr+ar} offset:{(t%NA)*2048+rd*512}')
        else:
            for b_ in range(2):
                for rd in range(2):
                    A.I(f'ds_read_b64_tr_b16 {v(f+b_*4+rd*2,2)}, v{vZr+b_} offset:{(t%NA)*2048+rd*512}')
    nxt=0
    ZAT=nh-4; ZP=ZP_
    for k in range(RB):
        issueB(nxt); nxt+=1
    if not NAR:
        vwait(('A',0)); reads(0)
    for i in range(n):
        tags=[('A',i+1)]
        if i<nh and not isL(i): tags.append(('B',i))
        if i+1<nh and isL(i+1): tags.append(('B',i+1))
        vwait(*tags)
        if 'p3steps' in EXP and i in (0,4,10,17,24): ST.mark(A)
        A.I('s_waitcnt lgkmcnt(0)')
        if i==ZAT:
            ST.mark(A); lds_wait(A,vC,T,4,1); ST.mark(A)
            for z in range(nz): dmaZ(z)
        if i+1<n and not (i+1==nh) and i+1>=NAR: reads(i+1)
        if i+1==nh:
            vwait(('A',nh)); reads(nh)
        if i+1<nh and isL(i+1): readsBL(i+1)
        for brr in range(2):
            for ar in range(2):
                if i<nh:
                    a=(AF+(i%2)*8+ar*4) if i>=NAR else (AR+i*8+ar*4)
                    b_=(BL[i%2]+brr*4) if isL(i) else (BR+(i%RB)*8+brr*4)
                else: a=ZA+(i-nh)*8+ar*4; b_=AF+(i%2)*8+brr*4
                mf32(A,ACC+(ar+2*brr)*16,a,b_,i==0)
        if i==ZP: A.I('s_barrier')
        if i+NA<nh and i>=NAR: dmaA(i+NA)
        while nxt<nh and nxt<=i+RB:
            issueB(nxt); nxt+=1
    for i in range(4):
        A.I(f'buffer_load_dwordx2 {v(XR2+2*i,2)}, v{vX}, s[24:27], 0 offen offset:{16*i}')
    ST.mark(A)
    lds_wait(A,vC,T,48,1)
    A.I(f's_lshl_b32 s39, s15, 6\ns_lshl_b32 s31, s37, 5\ns_add_u32 s39, s39, s31\nv_add_u32 v{T+6}, s39, v{l32}\nv_lshlrev_b32 v{T+6}, 1, v{T+6}\ns_mov_b32 s39, {512*4096}')
    A.I(f'buffer_load_ushort v{T+7}, v{T+6}, s[20:23], s39 offen{SC}')
    A.I(f'v_lshlrev_b32 v{vLw}, 4, v{L}\nv_add_u32 v{vLw}, s45, v{vLw}')
    for j in range(1,4):
        for c in range(4): A.I(f'ds_write_b128 v{vLw}, {v(ACC+j*16+c*4,4)} offset:{(j-1)*4096+c*1024}')
    A.I('s_waitcnt lgkmcnt(0)\ns_barrier')
    for j in range(1,4):
        A.I(f's_xor_b32 s39, s12, {j}\ns_mul_i32 s39, s39, {AREG}\nv_lshlrev_b32 v{vLr}, 4, v{L}\nv_add_u32 v{vLr}, s39, v{vLr}')
        for c in range(4): A.I(f'ds_read_b128 {v(BR+(j-1)*16+c*4,4)}, v{vLr} offset:{(j-1)*4096+c*1024}')
    for j in range(3):
        A.I(f's_waitcnt lgkmcnt({8-4*j})')
        for i in range(16): A.I(f'v_add_f32 v{ACC+i}, v{ACC+i}, v{BR+j*16+i}')
    A.I(f's_waitcnt vmcnt(0)\nv_lshlrev_b32 v{T+7}, 16, v{T+7}')
    for i in range(16): A.I(f'v_{"add" if i%2==0 else "sub"}_f32 v{ACC+i}, v{ACC+i}, v{T+7}')
    for qq in range(4):
        x0,x1=XR2+2*qq,XR2+2*qq+1
        A.I(f"""v_lshlrev_b32 v{T}, 16, v{x0}
        v_and_b32 v{T+1}, 0xffff0000, v{x0}
        v_lshlrev_b32 v{T+2}, 16, v{x1}
        v_and_b32 v{T+3}, 0xffff0000, v{x1}""")
        for r in range(4): A.I(f'v_add_f32 v{ACC+4*qq+r}, v{ACC+4*qq+r}, v{T+r}')
        A.I(f'v_cvt_pk_bf16_f32 v{x0}, v{ACC+4*qq}, v{ACC+4*qq+1}')
        A.I(f'v_cvt_pk_bf16_f32 v{x1}, v{ACC+4*qq+2}, v{ACC+4*qq+3}')
        A.I(f'buffer_store_dwordx2 {v(x0,2)}, v{vX}, s[40:43], 0 offen offset:{16*qq}'+(' sc1' if 'outsc1' in EXP else (' nt' if 'outnt' in EXP else '')))

NAME='parallel_sum__spectral_gfnet__glu_gated_geglu__prompt'
HDR=open('cdna_kernels/'+NAME+'.s.ref').read().split('; Override')[0]
def full():
    A=Asm(); K=NAME+'_kernel'
    A.raw(HDR.rstrip())
    A.raw(f'; @launch grid=(256,1,1) block=(512,1,1) lds={LDS_TOTAL}')
    A.raw('.amdgcn_target "amdgcn-amd-amdhsa--gfx950"\n.text')
    A.raw(f'.globl {K}\n.p2align 8\n.type {K},@function'); A.L(K)
    A.I('s_cmp_ge_u32 s2, 256\ns_cbranch_scc1 k_done')
    if 'scram' in EXP: A.I('s_and_b32 s3, s2, 7\ns_lshl_b32 s3, s3, 5\ns_lshr_b32 s2, s2, 3\ns_or_b32 s2, s2, s3')
    A.I('''s_load_dwordx2 s[4:5], s[0:1], 72
    s_load_dwordx2 s[6:7], s[0:1], 0
    s_load_dwordx2 s[28:29], s[0:1], 32
    s_load_dwordx2 s[30:31], s[0:1], 40
    s_load_dwordx2 s[54:55], s[0:1], 64
    s_load_dwordx2 s[40:41], s[0:1], 8
    s_load_dwordx2 s[44:45], s[0:1], 16
    s_load_dwordx2 s[56:57], s[0:1], 48
    v_lshrrev_b32 v1, 6, v0
    s_nop 0
    v_readfirstlane_b32 s32, v1''')
    if 'pfe' in EXP:
        A.I(f'''s_getpc_b64 s[60:61]
        k_pc:
        v_lshlrev_b32 v4, 5, v0
        v_min_u32 v4, p1_join-k_pc, v4
        v_mov_b32 v5, s61
        v_add_co_u32 v4, vcc, s60, v4
        v_addc_co_u32 v5, vcc, 0, v5, vcc
        global_load_dword v7, v[4:5], off''')
    A.I('s_waitcnt lgkmcnt(0)')
    ST.mark(A)
    p1_body(A)
    if 'p1only' in EXP:
        A.I('s_waitcnt vmcnt(0)'); ST.mark(A); ST.dump(A); A.I('s_endpgm')
    n0=ST.n
    A.I('s_cmp_ge_u32 s32, 4\ns_cbranch_scc1 k_s2')
    A.fence()
    p3_phase(A)
    if STAMP: A.I('s_waitcnt vmcnt(0)')
    ST.mark(A)
    ST.dump(A)
    A.I('s_endpgm')
    A.L('k_s2'); A.fence()
    ST.n=n0
    s2_phase(A)
    ST.mark(A)
    ST.dump(A)
    A.L('k_done'); A.I('s_endpgm')
    txt=A.finalize()
    txt+=f'''.section .rodata,"a"
.p2align 6
.amdhsa_kernel {K}
  .amdhsa_next_free_vgpr 256
  .amdhsa_next_free_sgpr 100
  .amdhsa_accum_offset 256
  .amdhsa_group_segment_fixed_size 0
  .amdhsa_kernarg_size 80
  .amdhsa_user_sgpr_count 2
  .amdhsa_user_sgpr_kernarg_segment_ptr 1
  .amdhsa_system_sgpr_workgroup_id_x 1
  .amdhsa_float_denorm_mode_32 3
.end_amdhsa_kernel
'''
    return txt
if __name__=='__main__':
    if len(sys.argv)>2 and sys.argv[2]=='stamp': STAMP=True
    if len(sys.argv)>3: EXP=set(sys.argv[3].split(','))
    for e in EXP:
        if e.startswith('na'): NA_=int(e[2:])
        if e.startswith('zp'): ZP_=int(e[2:])
        if e.startswith('nb'): NB_=int(e[2:])
        if e.startswith('wi'): WI=int(e[2:])
        if e.startswith('ps'): PS_=int(e[2:])
        if e.startswith('ar'): NAR_=int(e[2:])
        if e.startswith('ti'): TI=int(e[2:])
    if 'pace1' in EXP: PACE=1
    if 'pace2' in EXP: PACE=2
    if 'perm' in EXP: SB[1],SB[2]=SB[2],SB[1]
    if 'sb16' in EXP: SB[1]=49152+4096; SB[2]=98304+8192
    if 'plainB' in EXP: SCB=''
    if 'pollsc1' in EXP: SCP=' sc1'
    if 'nos2' in EXP: pass
    open(sys.argv[1],'w').write(full())
```

```python
import sys, struct, math
from asmlib import *
OFF_HP=0; OFF_ZQ=0x700000; OFF_YQ=0x940000; OFF_WT=0xB40000
OFF_CNT=0x1000000; OFF_RS=0x1018000; OFF_CSP=0x1040000; OFF_TS=0x2000000
C_RS=0; C_CS=16; C_H=32; C_Y=48; C_Z=64; ZREP=16; C_N=64+ZREP*8; NCNT=256
SLOT=49152; XS=0; GS=16384; US=32768
SB=[0,49152,98304]
YSCR=3*SLOT
LDS_TOTAL=163840; CTRL=LDS_TOTAL-256; STAT=CTRL-1024
NSL=17; AREG=NSL*2048
EX=4*AREG
STAMP=False; EXP=set(); PACE=0; NA_=17; ZP_=18; NB_=8; WI=4; PS_=0; NAR_=0; TI=1
SC=' sc1'
SCB=' sc1'
SCP=' sc1'
def f2u(x): return '0x%08x'%struct.unpack('<I',struct.pack('<f',x))[0]
class Stamps:
    def __init__(s): s.n=0
    def mark(s,A):
        if not STAMP or s.n>=15: return
        A.I(f's_{"memtime" if "clk" in EXP else "memrealtime"} s[{66+2*s.n}:{67+2*s.n}]'); s.n+=1
    def dump(s,A,n=None):
        if not STAMP: return
        n=s.n if n is None else n
        if 'diag' in EXP:
            A.I('s_waitcnt lgkmcnt(0) vmcnt(0)')
            l=newlab('dg')
            A.I(f's_cmp_lg_u32 s32, 0\ns_cbranch_scc1 {l}')
            A.I('s_load_dwordx2 s[96:97], s[0:1], 64\ns_waitcnt lgkmcnt(0)\ns_mov_b64 exec, 1')
            A.I('s_not_b32 s60, s66\nv_mov_b32 v244, 4\nv_mov_b32 v245, s60\nglobal_atomic_umax v244, v245, s[96:97]')
            for i in range(1,min(n,13)):
                A.I(f'v_mov_b32 v244, {4+4*i}\nv_mov_b32 v245, s{66+2*i}\nglobal_atomic_umax v244, v245, s[96:97]')
            A.I('s_mov_b64 exec, -1')
            A.L(l)
            return
        A.I('s_waitcnt lgkmcnt(0) vmcnt(0)')
        A.I(f's_lshl_b32 s60, s2, 3\ns_add_u32 s60, s60, s32\ns_lshl_b32 s60, s60, 7\ns_add_u32 s60, s60, {hex(OFF_TS)}')
        A.I(f's_add_u32 s96, s4, s60\ns_addc_u32 s97, s5, 0')
        A.I('v_mov_b32 v246, 0')
        for i in range(n):
            A.I(f'v_mov_b32 v244, s{66+2*i}\nv_mov_b32 v245, s{67+2*i}')
            A.I(f'global_store_dwordx2 v246, v[244:245], s[96:97] offset:{8*i}')
            A.I('s_nop 1')
ST=Stamps()
def srd(A,dst,base,off,size):
    if off:
        A.I(f's_add_u32 s{dst}, s{base}, {hex(off)}'); A.I(f's_addc_u32 s{dst+1}, s{base+1}, 0')
    else:
        A.I(f's_mov_b32 s{dst}, s{base}'); A.I(f's_mov_b32 s{dst+1}, s{base+1}')
    A.I(f's_mov_b32 s{dst+2}, {hex(size)}'); A.I(f's_mov_b32 s{dst+3}, 0x20000')
def mf16(A,D,a,b,first):
    A.I(f'v_mfma_f32_16x16x32_bf16 {v(D,4)}, {v(a,4)}, {v(b,4)}, {"0" if first else v(D,4)}')
def mf32(A,D,a,b,first=False):
    A.I(f'v_mfma_f32_32x32x16_bf16 {v(D,16)}, {v(a,4)}, {v(b,4)}, {"0" if first else v(D,16)}')
_lab=[0]
def newlab(p):
    _lab[0]+=1; return f'{p}_{_lab[0]}'
SPIN_MAX=0x20000
def lds_wait(A,vaddr,vtmp,off,val,n=1):
    l=newlab('lw'); d=newlab('ld')
    A.I('s_mov_b32 s58, 0'); A.L(l)
    if n==1:
        A.I(f'ds_read_b32 v{vtmp}, v{vaddr} offset:{off}\ns_waitcnt lgkmcnt(0)')
    else:
        A.I(f'ds_read_b128 {v(vtmp,4)}, v{vaddr} offset:{off}\ns_waitcnt lgkmcnt(0)')
        A.I(f'v_min_u32 v{vtmp}, v{vtmp}, v{vtmp+1}\nv_min_u32 v{vtmp+2}, v{vtmp+2}, v{vtmp+3}\nv_min_u32 v{vtmp}, v{vtmp}, v{vtmp+2}')
    A.I(f'v_readfirstlane_b32 s59, v{vtmp}')
    A.I(f's_cmp_ge_u32 s59, {val}\ns_cbranch_scc1 {d}')
    A.I(f's_add_u32 s58, s58, 1\ns_cmp_lt_u32 s58, {SPIN_MAX}\ns_cbranch_scc1 {l}')
    A.L(d)
def cnt_base(A):
    A.I(f's_add_u32 s62, s4, {hex(OFF_CNT)}\ns_addc_u32 s63, s5, 0')
def arrive(A,sidx,vt):
    cnt_base(A)
    A.I(f's_lshl_b32 s59, s{sidx}, 7\nv_mov_b32 v{vt}, s59\nv_mov_b32 v{vt+1}, 1\ns_mov_b64 exec, 1')
    A.I(f'global_atomic_add v{vt}, v{vt+1}, s[62:63]{SC}')
    A.I('s_mov_b64 exec, -1')
def poll_cnt(A,voff,vexp,vt,nl,first_loaded=False,sleep=0):
    l=newlab('pc'); d=newlab('pd'); c=newlab('pk')
    cnt_base(A)
    A.I(f's_mov_b32 s58, 0\ns_mov_b64 exec, {(1<<nl)-1}')
    if first_loaded: A.I(f's_branch {c}')
    A.L(l)
    A.I(f'global_load_dword v{vt}, v{voff}, s[62:63]{SCP}\ns_waitcnt vmcnt(0)')
    A.L(c)
    A.I(f'v_cmp_ne_u32 vcc, v{vt}, v{vexp}\ns_cbranch_vccz {d}')
    if sleep: A.I(f's_sleep {sleep}')
    A.I(f's_add_u32 s58, s58, 1\ns_cmp_lt_u32 s58, {SPIN_MAX>>4}\ns_cbranch_scc1 {l}')
    A.L(d)
    A.I('s_mov_b64 exec, -1')

def p1_body(A):
    L,half,l32=1,2,3
    vX0,vX1,vW=4,5,6
    vAr=8; vBr=12
    csr=24; ones=28
    AFR=32; BFR=48
    T=80
    RSL=104; RSV=108
    vHo=112
    ACC=128
    vFw=8; fu=12; kb=13; kmask=14; FB=32; FO=48; SV=128; ST2=56; WTr=60; vWTs=76; vWTd=77; CSL=160; RD=20; FP=22
    PB=192
    tile=lambda m,st: ACC+(st>>1)*64+(m*2+(st&1))*16
    A.I(f"""
    v_and_b32 v{L}, 63, v0
    v_and_b32 v{l32}, 31, v0
    v_bfe_u32 v{half}, v0, 5, 1
    s_and_b32 s33, s2, 7
    s_lshr_b32 s34, s2, 3
    s_and_b32 s35, s33, 1
    s_lshl_b32 s35, s35, 3
    s_and_b32 s36, s34, 7
    s_add_u32 s35, s35, s36              ; rb
    s_lshr_b32 s33, s33, 1
    s_lshl_b32 s33, s33, 2
    s_lshr_b32 s34, s34, 3
    s_add_u32 s34, s33, s34              ; cb
    s_and_b32 s36, s32, 3                ; fq (C) / h (H)
    s_lshr_b32 s37, s32, 2               ; sh
    s_lshr_b32 s49, s35, 1               ; s0 (K rotation)
    s_cmp_lt_u32 s32, 4
    s_cbranch_scc1 p1_roleC
    """)
    NST=8
    def spread_into(G,items,lo,hi):
        n=hi-lo
        for j,it in enumerate(items): G[lo+min(j*n//max(len(items),1),n-1)].append(it)
    want=lambda i: i in ((0,1,2,3,4,5,6,7) if 'allB' in EXP else (1,2,3,4,5) if 'bw' in EXP else (() if ('p3steps' in EXP or 's2fine' in EXP) else (0,4)))
    n_st=ST.n
    vq=[]
    srd(A,8,6,0,2048*512*2)
    srd(A,12,28,0,512*1792*2)
    srd(A,16,30,0,512*1792*2)
    mask=0
    for Ln in range(64):
        c=(Ln%16)^((Ln//16)<<2)
        if c<14: mask|=1<<Ln
    A.I(f"""
    s_mov_b32 s50, {hex(mask&0xffffffff)}
    s_mov_b32 s51, {hex(mask>>32)}
    s_lshl_b32 s38, s36, 12              ; h*4096
    v_lshrrev_b32 v{T}, 3, v{L}
    v_lshlrev_b32 v{T}, 16, v{T}
    s_lshl_b32 s60, s35, 2
    s_add_u32 s60, s60, s36
    s_lshl_b32 s60, s60, 10
    v_add_u32 v{T}, s60, v{T}
    v_and_b32 v{T+1}, 7, v{L}
    v_lshrrev_b32 v{T+2}, 4, v{L}
    v_xor_b32 v{T+1}, v{T+1}, v{T+2}
    v_lshl_add_u32 v{vX0}, v{T+1}, 4, v{T}
    v_xor_b32 v{vX1}, 64, v{vX0}
    s_lshl_b32 s60, s36, 4
    v_add_u32 v{T+1}, s60, v{T+2}
    s_movk_i32 s60, 3584
    v_mul_lo_u32 v{T+1}, v{T+1}, s60
    v_and_b32 v{T+3}, 15, v{L}
    v_lshlrev_b32 v{T+2}, 2, v{T+2}
    v_xor_b32 v{T+3}, v{T+3}, v{T+2}
    v_lshl_add_u32 v{vW}, v{T+3}, 4, v{T+1}
    s_mul_i32 s60, s34, 224
    v_add_u32 v{vW}, s60, v{vW}
    """)
    XV='xv' in EXP
    XB=[208,224,240]
    def xload(stage):
        b=XB[stage%3]
        A.I(f's_add_u32 s52, s49, {stage}\ns_and_b32 s52, s52, 7\ns_lshl_b32 s52, s52, 7')
        for i in range(4):
            A.I(f's_add_u32 s60, s52, {i*524288}')
            A.I(f'buffer_load_dwordx4 {v(b+4*i,4)}, v{vX0+(i&1)}, s[8:11], s60 offen'); vq.append(('X',stage))
    def xwrite(stage):
        b=XB[stage%3]
        vwait(('X',stage))
        for i in range(4): A.I(f'ds_write_b128 v{16+stage%3}, {v(b+4*i,4)} offset:{XS+i*1024}')
    def dma(stage):
        slot=SB[stage%3]
        A.I(f's_add_u32 s52, s49, {stage}\ns_and_b32 s52, s52, 7\ns_mul_i32 s53, s52, {64*3584}\ns_lshl_b32 s52, s52, 7')
        for i in range(4):
            if not (XV and stage>=2):
                A.I(f's_add_u32 m0, s38, {slot+XS+i*1024}')
                A.I(f's_add_u32 s60, s52, {i*524288}')
                A.I(f'buffer_load_dwordx4 v{vX0+(i&1)}, s[8:11], s60 offen lds'); vq.append(stage)
            if PACE and stage>1: A.I(f's_sleep {PACE}')
            A.I(f's_add_u32 s60, s53, {i*14336}\ns_mov_b64 exec, s[50:51]')
            for m in range(2):
                A.I(f's_add_u32 m0, s38, {slot+(US if m else GS)+i*1024}\ns_nop 0')
                A.I(f'buffer_load_dwordx4 v{vW}, s[{12+4*m}:{15+4*m}], s60 offen lds'); vq.append(stage)
                if PACE and stage>1: A.I(f's_sleep {PACE}')
            A.I('s_mov_b64 exec, -1')
    VST='vst' in EXP
    RBUF=[112,160,208]; vLW=16
    def gload(stage):
        b=RBUF[stage%3]
        A.I(f's_add_u32 s52, s49, {stage}\ns_and_b32 s52, s52, 7\ns_mul_i32 s53, s52, {64*3584}\ns_lshl_b32 s52, s52, 7')
        for i in range(4):
            A.I(f's_add_u32 s60, s52, {i*524288}')
            A.I(f'buffer_load_dwordx4 {v(b+12*i,4)}, v{vX0+(i&1)}, s[8:11], s60 offen'); vq.append(('L',stage))
            A.I(f's_add_u32 s60, s53, {i*14336}\ns_mov_b64 exec, s[50:51]')
            for m in range(2):
                A.I(f'buffer_load_dwordx4 {v(b+12*i+4+4*m,4)}, v{vW}, s[{12+4*m}:{15+4*m}], s60 offen'); vq.append(('L',stage))
            A.I('s_mov_b64 exec, -1')
    def lwrite(stage):
        b=RBUF[stage%3]; sl=stage%3
        vwait(('L',stage))
        for i in range(4): A.I(f'ds_write_b128 v{vLW+sl}, {v(b+12*i,4)} offset:{XS+i*1024}')
        A.I('s_mov_b64 exec, s[50:51]')
        for i in range(4):
            for m in range(2): A.I(f'ds_write_b128 v{vLW+sl}, {v(b+12*i+4+4*m,4)} offset:{(US if m else GS)+i*1024}')
        A.I('s_mov_b64 exec, -1')
    def vwait(tag,lg=False):
        idx=[k for k,x in enumerate(vq) if x==tag]
        if not idx:
            if lg: A.I('s_waitcnt lgkmcnt(0)')
            return
        N=len(vq)-1-max(idx); del vq[:max(idx)+1]
        A.I(f's_waitcnt vmcnt({min(N,63)})'+(' lgkmcnt(0)' if lg else ''))
    if VST: SV=60
    (gload if VST else dma)(0)
    A.I(f"""
    s_lshl_b32 s33, s34, 3
    s_lshl_b32 s60, s36, 1
    s_add_u32 s33, s33, s60
    s_lshl_b32 s60, s35, 7
    s_add_u32 s64, s60, s33
    v_lshlrev_b32 v{T}, 4, v{L}
    """)
    for n in range(2):
        A.I(f"""s_add_u32 s60, s64, {n}
        s_and_b32 s61, s60, 31
        s_lshl_b32 s61, s61, 6
        s_lshr_b32 s60, s60, 5
        s_add_u32 s60, s60, s61
        s_lshl_b32 s60, s60, 10
        buffer_load_dwordx4 {v(SV+4*n,4)}, v{T}, s[8:11], s60 offen"""); vq.append('row')
    if XV: xload(2)
    (gload if VST else dma)(1)
    if XV:
        xload(3); xload(4)
        A.I(f'v_lshlrev_b32 v16, 4, v{L}\nv_add_u32 v16, s38, v16\nv_add_u32 v17, {SB[1]}, v16\nv_add_u32 v18, {SB[2]}, v16')
    if VST:
        gload(2)
        A.I(f'v_lshlrev_b32 v{vLW}, 4, v{L}\nv_add_u32 v{vLW}, s38, v{vLW}\nv_add_u32 v{vLW+1}, {SB[1]}, v{vLW}\nv_add_u32 v{vLW+2}, {SB[2]}, v{vLW}')
    A.I('s_cmp_lt_u32 s32, 6\ns_cbranch_scc1 p1H_nf')
    A.skip_begin()
    A.I(f"""
    s_and_b32 s39, s32, 1
    s_lshl_b32 s33, s49, 6
    s_lshl_b32 s60, s39, 5
    s_add_u32 s33, s33, s60
    v_add_u32 v{T+2}, s33, v{l32}
    v_cvt_f32_u32 v{fu}, v{T+2}
    v_mul_f32 v{fu}, {f2u(1/512)}, v{fu}
    s_lshl_b32 s33, s34, 4
    v_lshlrev_b32 v{T+3}, 3, v{half}
    v_add_u32 v{T+3}, s33, v{T+3}
    v_cvt_f32_u32 v{kb}, v{T+3}
    v_mov_b32 v{kmask}, 0xffff
    """)
    for b_ in range(2):
        if b_==1: A.I(f'v_add_f32 v{fu}, {f2u(0.125)}, v{fu}\nv_fract_f32 v{fu}, v{fu}')
        A.I(f'v_mul_f32 v{T+4}, v{fu}, v{kb}')
        for j in range(4):
            A.I(f'v_cos_f32 v{T+6}, v{T+4}\nv_sin_f32 v{T+8}, v{T+4}\nv_add_f32 v{T+4}, v{T+4}, v{fu}')
            A.I(f'v_cos_f32 v{T+7}, v{T+4}\nv_sin_f32 v{T+9}, v{T+4}\nv_add_f32 v{T+4}, v{T+4}, v{fu}')
            A.I(f'v_cvt_pk_bf16_f32 v{FB+8*b_+j}, v{T+6}, v{T+7}')
            A.I(f'v_cvt_pk_bf16_f32 v{FB+8*b_+4+j}, -v{T+8}, -v{T+9}')
        A.I(f"""v_and_b32 v{T+5}, 1, v{l32}
        v_lshlrev_b32 v{T+5}, 15, v{T+5}
        v_or_b32 v{T+5}, 0x3f80, v{T+5}
        v_bfi_b32 v{T+5}, v{kmask}, v{T+5}, v{FB+8*b_+4}
        v_cmp_eq_u32 vcc, 0, v{T+3}
        v_cndmask_b32 v{FB+8*b_+4}, v{FB+8*b_+4}, v{T+5}, vcc""")
    A.I(f"""
    s_lshl_b32 s60, s39, 5
    v_add_u32 v{T+2}, s60, v{l32}
    v_and_b32 v{T+3}, 3, v{T+2}
    v_lshlrev_b32 v{T+3}, 2, v{T+3}
    v_add_u32 v{T+4}, 14, v{half}
    v_xor_b32 v{T+3}, v{T+3}, v{T+4}
    v_lshlrev_b32 v{T+3}, 4, v{T+3}
    v_lshl_add_u32 v{T+3}, v{T+2}, 8, v{T+3}
    v_add_u32 v{vFw}, {GS+SB[0]}, v{T+3}
    v_add_u32 v{vFw+1}, {GS+SB[1]}, v{T+3}
    v_add_u32 v{vFw+2}, {GS+SB[2]}, v{T+3}
    """)
    A.skip_end(); A.L('p1H_nf')
    flab=[0]
    def fgen(stage):
        flab[0]+=1; l=f'p1H_fg{flab[0]}'
        A.I(f's_cmp_lt_u32 s32, 6\ns_cbranch_scc1 {l}')
        A.skip_begin()
        slot=stage%3; b_=stage&1; t=(stage>>1)&3; B0=FB+8*b_
        def wr(m,src): A.I(f'ds_write_b128 v{vFw+slot}, {v(src,4)} offset:{m*16384}')
        if t==0:
            wr(0,B0); wr(1,B0+4)
        elif t==2:
            for m in range(2):
                for j in range(4): A.I(f'v_xor_b32 v{FO+4*m+j}, 0x80000000, v{B0+4*m+j}')
                wr(m,FO+4*m)
        else:
            ex=0 if t==1 else 0x80000000
            for m in range(2):
                for j in range(4):
                    own=B0+4*m+j; oth=B0+4*(1-m)+j
                    A.I(f'v_bfi_b32 v{FO+4*m+j}, v{kmask}, v{own}, v{oth}')
                    if m==0: sg=(0 if j%2==0 else 0x80008000)
                    else: sg=(0x80000000 if j%2==0 else 0x8000)
                    sg^=ex
                    if sg: A.I(f'v_xor_b32 v{FO+4*m+j}, {hex(sg)}, v{FO+4*m+j}')
                wr(m,FO+4*m)
        A.skip_end(); A.L(l)
    A.I('s_cmp_lg_u32 s2, 0\ns_cbranch_scc1 p1H_non\ns_cmp_lg_u32 s32, 7\ns_cbranch_scc1 p1H_non')
    A.skip_begin()
    cnt_base(A)
    A.I(f'v_lshlrev_b32 v{T}, 7, v{L}\nv_mov_b32 v{T+1}, 0')
    for j in range(NCNT//64):
        A.I(f'global_store_dword v{T}, v{T+1}, s[62:63]{SC}\nv_add_u32 v{T}, {64*128}, v{T}')
    A.I('s_mov_b64 exec, 1')
    A.I(f's_waitcnt vmcnt(0)\nv_mov_b32 v{T}, 0\nv_mov_b32 v{T+1}, 1\nglobal_store_dword v{T}, v{T+1}, s[54:55]{SC}\ns_mov_b64 exec, -1')
    A.skip_end(); A.L('p1H_non')
    def rowstats():
        U=T+14; S=ST2
        vwait('row')
        for i in range(4):
            for n in range(2):
                u=U+2*n
                A.I(f'v_lshlrev_b32 v{u}, 16, v{SV+4*n+i}\nv_and_b32 v{u+1}, 0xffff0000, v{SV+4*n+i}')
                if i==0: A.I(f'v_add_f32 v{S+2*n}, v{u}, v{u+1}\nv_mul_f32 v{S+2*n+1}, v{u}, v{u}')
                else: A.I(f'v_add_f32 v{S+2*n}, v{S+2*n}, v{u}\nv_fmac_f32 v{S+2*n+1}, v{u}, v{u}\nv_add_f32 v{S+2*n}, v{S+2*n}, v{u+1}')
                A.I(f'v_fmac_f32 v{S+2*n+1}, v{u+1}, v{u+1}')
        for ror in (8,4,2,1):
            for x in range(S,S+4): A.I(f'v_add_f32_dpp v{x}, v{x}, v{x} row_ror:{ror} row_mask:0xf bank_mask:0xf')
        for op in ('v_permlane16_swap_b32','v_permlane32_swap_b32'):
            for k in range(4): A.I(f'v_mov_b32 v{U+k}, v{S+k}')
            for k in range(4): A.I(f'{op} v{S+k}, v{U+k}')
            for k in range(4): A.I(f'v_add_f32 v{S+k}, v{S+k}, v{U+k}')
        A.I(f"""
        v_and_b32 v{U}, 1, v{L}
        v_cmp_eq_u32 vcc, 1, v{U}
        v_cndmask_b32 v{S}, v{S}, v{S+2}, vcc
        v_cndmask_b32 v{S+1}, v{S+1}, v{S+3}, vcc
        v_mul_f32 v{U}, {f2u(1/512)}, v{S}
        v_mul_f32 v{U+1}, {f2u(1/512)}, v{S+1}
        v_fma_f32 v{U+1}, -v{U}, v{U}, v{U+1}
        v_max_f32 v{U+1}, 0, v{U+1}
        v_cvt_pk_bf16_f32 v{U}, v{U}, v{U+1}
        v_and_b32 v{U+1}, 0xffff0000, v{U}
        v_lshlrev_b32 v{U}, 16, v{U}
        v_sub_f32 v{S}, 0, v{U}
        v_add_f32 v{U+1}, {f2u(1e-5)}, v{U+1}
        v_cvt_pk_bf16_f32 v{U+1}, v{U+1}, v{U+1}
        v_and_b32 v{U+1}, 0xffff0000, v{U+1}
        v_sqrt_f32 v{U+1}, v{U+1}
        v_cvt_pk_bf16_f32 v{U+1}, v{U+1}, v{U+1}
        v_and_b32 v{S+1}, 0xffff0000, v{U+1}
        s_lshl_b32 s60, s64, 3
        s_add_u32 s60, s60, {OFF_RS}
        s_add_u32 s62, s4, s60
        s_addc_u32 s63, s5, 0
        v_lshlrev_b32 v{U}, 3, v{L}
        s_mov_b64 exec, 3
        global_store_dwordx2 v{U}, {v(S,2)}, s[62:63]{SC}
        s_mov_b64 exec, -1
        """); vq.append('st')
    WV=128
    wS=76; wD=77
    def wt_job_loads():
        A.I(f"""
        v_and_b32 v{wD}, 255, v0
        v_lshrrev_b32 v{wD}, 4, v{wD}
        s_lshl_b32 s60, s35, 7
        v_add_u32 v{wS}, s60, v{wD}
        v_mul_u32_u24 v{wS}, 257, v{wS}
        v_and_b32 v{wD+1}, 15, v0
        s_lshl_b32 s60, s34, 4
        v_add_u32 v{wD+1}, s60, v{wD+1}
        v_add_u32 v{wS}, v{wS}, v{wD+1}
        v_lshlrev_b32 v{wS}, 1, v{wS}
        s_lshr_b32 s60, s35, 2
        s_lshl_b32 s60, s60, 11
        s_and_b32 s61, s35, 3
        s_lshl_b32 s61, s61, 8
        s_add_u32 s65, s60, s61
        v_lshlrev_b32 v{wD}, 4, v{wD}
        v_add_u32 v{wD}, s65, v{wD}
        v_lshl_add_u32 v{wD}, v{wD+1}, 13, v{wD}
        s_mov_b32 s42, 0x101000
        s_mov_b32 s43, 0x20000
        s_mov_b32 s46, 0x101000
        s_mov_b32 s47, 0x20000
        """)
        for n in range(2):
            for r in range(4):
                A.I(f's_mov_b32 s60, {r*16448+n*8224}')
                A.I(f'buffer_load_short_d16 v{WV+4*n+r}, v{wS}, s[40:43], s60 offen')
                A.I(f'buffer_load_short_d16_hi v{WV+8+4*n+r}, v{wS}, s[44:47], s60 offen'); vq.extend(['wt','wt'])
        A.I('s_cmp_lg_u32 s34, 0\ns_cbranch_scc1 p1H_wt0\ns_cmp_lg_u32 s32, 4\ns_cbranch_scc1 p1H_wt0')
        A.skip_begin()
        A.I(f's_lshl_b32 s60, s35, 7\nv_add_u32 v{wD+1}, s60, v{l32}\nv_mul_u32_u24 v{wD+1}, 257, v{wD+1}\nv_add_u32 v{wD+1}, 256, v{wD+1}\nv_lshlrev_b32 v{wD+1}, 1, v{wD+1}')
        for r in range(4):
            A.I(f's_mov_b32 s60, {r*16448}')
            A.I(f'buffer_load_short_d16 v{WV+16+r}, v{wD+1}, s[40:43], s60 offen')
            A.I(f'buffer_load_short_d16_hi v{WV+20+r}, v{wD+1}, s[44:47], s60 offen')
        A.skip_end(); A.L('p1H_wt0')
    def wt_job_stores():
        vwait('wt')
        srd(A,40,4,OFF_WT,257*8192)
        for n in range(2):
            for r in range(4): A.I(f'v_or_b32 v{WV+4*n+r}, v{WV+4*n+r}, v{WV+8+4*n+r}')
            A.I(f'buffer_store_dwordx4 {v(WV+4*n,4)}, v{wD}, s[40:43], 0 offen offset:{n*1024}{SC}'); vq.append('wst')
        A.I('s_cmp_lg_u32 s34, 0\ns_cbranch_scc1 p1H_wt1\ns_cmp_lg_u32 s32, 4\ns_cbranch_scc1 p1H_wt1')
        A.skip_begin()
        for r in range(4): A.I(f'v_or_b32 v{WV+16+r}, v{WV+16+r}, v{WV+20+r}')
        A.I(f'v_lshrrev_b32 v{wS}, 4, v{l32}\nv_lshlrev_b32 v{wS}, 10, v{wS}\nv_and_b32 v{wD+1}, 15, v{l32}\nv_lshl_add_u32 v{wS}, v{wD+1}, 4, v{wS}')
        A.I(f'v_add_u32 v{wS}, s65, v{wS}\nv_add_u32 v{wS}, 0x200000, v{wS}\ns_mov_b32 exec_hi, 0')
        A.I(f'buffer_store_dwordx4 {v(WV+16,4)}, v{wS}, s[40:43], 0 offen{SC}\ns_mov_b64 exec, -1')
        A.skip_end(); A.L('p1H_wt1')
    def warmup():
        A.I(f"""
        s_bfe_u32 s60, s2, 0x30003            ; n&7
        s_mul_i32 s60, s60, 224
        s_mul_i32 s61, s36, 56
        s_add_u32 s60, s60, s61
        v_add_u32 v{T}, s60, v{L}
        v_lshlrev_b32 v{T}, 10, v{T}
        s_bfe_u32 s60, s2, 0x10002            ; x>>2
        s_lshl_b32 s60, s60, 2
        s_lshr_b32 s61, s2, 6
        s_add_u32 s60, s60, s61               ; db
        s_lshl_b32 s60, s60, 7
        v_add_u32 v{T}, s60, v{T}
        s_mov_b32 s20, s56
        s_mov_b32 s21, s57
        s_mov_b32 s22, {hex(1792*512*2)}
        s_mov_b32 s23, 0x20000
        {'buffer_load_dword v%d, v%d, s[20:23], 0 offen'%(T+2,T) if 'nopfw' not in EXP else 's_nop 0'}
        s_getpc_b64 s[60:61]
        p1H_pc:
        s_add_u32 s60, s60, p1_join-p1H_pc
        s_addc_u32 s61, s61, 0
        s_lshl_b32 s62, s36, 13
        v_lshlrev_b32 v{T+4}, 7, v{L}
        v_add_u32 v{T+4}, s62, v{T+4}
        v_min_u32 v{T+4}, k_done-p1_join, v{T+4}
        v_mov_b32 v{T+5}, s61
        v_add_co_u32 v{T+4}, vcc, s60, v{T+4}
        v_addc_co_u32 v{T+5}, vcc, 0, v{T+5}, vcc
        {'global_load_dword v%d, v[%d:%d], off'%(T+3,T+4,T+5) if 'nopfc' not in EXP else 's_nop 0'}
        """)
        vq.extend(['pf']*(2-('nopfw' in EXP)-('nopfc' in EXP)))
    def warm_filter():
        A.I(f"""
        s_lshl_b32 s60, s35, 7
        s_lshl_b32 s61, s36, 5
        s_add_u32 s60, s60, s61
        v_add_u32 v{T}, s60, v{l32}
        v_mul_u32_u24 v{T}, 514, v{T}
        s_lshl_b32 s60, s34, 5
        v_add_u32 v{T}, s60, v{T}
        v_and_b32 v{T}, -4, v{T}
        s_mov_b32 s42, 0x101000
        s_mov_b32 s43, 0x20000
        s_mov_b32 s46, 0x101000
        s_mov_b32 s47, 0x20000
        s_mov_b32 exec_hi, 0
        buffer_load_dword v{T+2}, v{T}, s[40:43], 0 offen
        s_mov_b64 exec, -1
        s_mov_b32 exec_lo, 0
        buffer_load_dword v{T+3}, v{T}, s[44:47], 0 offen
        s_mov_b64 exec, -1
        """); vq.extend(['pf','pf'])
    def warm_all(cs):
        A.I(f"""
        s_bfe_u32 s60, s2, 0x10002
        s_lshl_b32 s60, s60, 2
        s_lshr_b32 s61, s2, 6
        s_add_u32 s60, s60, s61
        s_lshl_b32 s60, s60, 7
        s_mul_i32 s61, s36, {448*1024}
        s_add_u32 s60, s60, s61
        v_lshlrev_b32 v{T}, 10, v{L}
        s_mov_b32 s20, s56
        s_mov_b32 s21, s57
        s_mov_b32 s22, {hex(1792*512*2)}
        s_mov_b32 s23, 0x20000
        """)
        for c in cs:
            A.I(f's_add_u32 s61, s60, {c*64*1024}\nbuffer_load_dword v{T+2}, v{T}, s[20:23], s61 offen'); vq.append('pf')
    def tlb_warm():
        A.I(f"""
        v_lshlrev_b32 v{T}, 19, v{L}
        v_min_u32 v{T}, {hex(0x1100000)}, v{T}
        global_load_dword v{T+2}, v{T}, s[4:5]
        s_load_dwordx2 s[62:63], s[0:1], 56
        v_and_b32 v{T+1}, 3, v{L}
        v_lshlrev_b32 v{T+1}, 19, v{T+1}
        s_waitcnt lgkmcnt(0)
        global_load_dword v{T+3}, v{T+1}, s[62:63]
        """); vq.extend(['pf','pf'])
    def ready_load():
        A.I(f'v_mov_b32 v{RD+1}, 0\ns_mov_b64 exec, 1\nglobal_load_dword v{RD}, v{RD+1}, s[54:55]{SCP}\ns_mov_b64 exec, -1'); vq.append('non')
    def ready_check():
        l=newlab('nl'); d=newlab('nd')
        A.I(f'v_readfirstlane_b32 s3, v{RD}\ns_cmp_lg_u32 s3, 0\ns_cbranch_scc1 {d}\ns_mov_b32 s58, 0')
        A.L(l)
        A.I(f'global_load_dword v{RD}, v{RD+1}, s[54:55]{SCP}\ns_waitcnt vmcnt(0)\nv_readfirstlane_b32 s3, v{RD}')
        A.I(f's_cmp_lg_u32 s3, 0\ns_cbranch_scc1 {d}\ns_add_u32 s58, s58, 1\ns_cmp_lt_u32 s58, {SPIN_MAX>>4}\ns_cbranch_scc1 {l}')
        A.L(d)
    def rs_loads(q):
        A.I(f"""
        s_lshl_b32 s60, s35, 7
        s_lshl_b32 s61, s37, 6
        s_add_u32 s60, s60, s61
        v_add_u32 v{RSL}, s60, v{l32}
        v_lshlrev_b32 v{RSL+1}, 3, v{RSL}
        s_add_u32 s62, s4, {OFF_RS}
        s_addc_u32 s63, s5, 0
        global_load_dwordx2 {v(RSV,2)}, v{RSL+1}, s[62:63]{SC}
        global_load_dwordx2 {v(RSV+2,2)}, v{RSL+1}, s[62:63] offset:256{SC}
        """); q.extend(['rs','rs'])
    if VST:
        lwrite(0); gload(3); lwrite(1); gload(4)
    for i in range(NST):
        if 'bw' in EXP and i in (1,2,3,4,5): ST.mark(A)
        if VST and i==3: vwait('st')
        vwait(i,True)
        if 'bw' in EXP and i in (1,2,3,4,5): ST.mark(A)
        if i==6:
            A.I('s_cmp_lg_u32 s32, 4\ns_cbranch_scc1 p1H_sq')
            A.skip_begin()
            A.I('s_waitcnt vmcnt(0)' if VST else ('s_waitcnt vmcnt(8)' if XV else 's_waitcnt vmcnt(12)'))
            poll_cnt(A,FP+1,FP+3,FP+2,2,True)
            A.skip_end(); A.L('p1H_sq')
        A.I('s_barrier')
        if want(i): ST.mark(A)
        if i==5:
            A.I(f"""
            s_lshl_b32 s60, s35, 7
            s_add_u32 s61, s34, {C_CS}
            s_lshl_b32 s61, s61, 7
            v_mov_b32 v{FP+1}, s61
            v_mov_b32 v{FP}, s60
            v_cmp_eq_u32 vcc, 0, v{L}
            v_cndmask_b32 v{FP+1}, v{FP+1}, v{FP}, vcc
            v_mov_b32 v{FP+3}, 16
            s_cmp_lg_u32 s32, 4
            s_cbranch_scc1 p1H_sp
            """)
            A.skip_begin()
            cnt_base(A)
            A.I(f's_mov_b64 exec, 3\nglobal_load_dword v{FP+2}, v{FP+1}, s[62:63]{SCP}\ns_mov_b64 exec, -1')
            A.skip_end(); A.L('p1H_sp')
        if i==0: ready_load()
        if i==3:
            A.I('s_cmp_lg_u32 s32, 4\ns_cbranch_scc1 p1H_f0')
            A.skip_begin()
            ready_check()
            arrive(A,35,T+14)
            A.I(f's_add_u32 s61, s34, {C_CS}'); arrive(A,61,T+14)
            A.skip_end(); A.L('p1H_f0')
        if i+2<NST: fgen(i+2)
        if i+2<NST and XV:
            xwrite(i+2)
            if i+5<NST: xload(i+5)
        if i+2<NST and not VST: dma(i+2)
        if i+2<NST and VST:
            lwrite(i+2)
            if i+5<NST: gload(i+5)
        if i==0: rowstats()
        if i==WI and 'nopf' not in EXP: warmup()
        if 'pfall' in EXP and i in (1,2,3,4): warm_all({1:(0,1),2:(2,3),3:(4,5),4:(6,)}[i])
        if i==3 and 'pff' in EXP: warm_filter()
        if i==TI and 'tlb' in EXP: tlb_warm()
        if i==6:
            wt_job_loads()
            rs_loads(vq)
            A.I(f's_lshl_b32 s60, s34, 14\ns_add_u32 s60, s60, {OFF_CSP}\ns_add_u32 s20, s4, s60\ns_addc_u32 s21, s5, 0\nv_and_b32 v{FP}, 255, v0\nv_lshlrev_b32 v{FP}, 2, v{FP}')
            for j4 in range(4):
                if j4>0: A.I(f'v_add_u32 v{FP}, 4096, v{FP}')
                for j in range(4):
                    A.I(f'global_load_dword v{CSL+4*j4+j}, v{FP}, s[20:21] offset:{j*1024}{SC}'); vq.append('csp')
    vwait('csp')
    wt_job_stores()
    X=CSL
    for j in range(8): A.I(f'v_add_f32 v{X+j}, v{X+j}, v{X+8+j}')
    for j in range(4): A.I(f'v_add_f32 v{X+j}, v{X+j}, v{X+4+j}')
    A.I(f'v_add_f32 v{X}, v{X}, v{X+1}\nv_add_f32 v{X+2}, v{X+2}, v{X+3}\nv_add_f32 v{X}, v{X}, v{X+2}')
    A.I(f"""
    v_cvt_pk_bf16_f32 v{X+1}, v{X}, v{X}
    v_and_b32 v{X+1}, 0xffff0000, v{X+1}
    v_sub_f32 v{X+2}, v{X}, v{X+1}
    v_cvt_pk_bf16_f32 v{X}, v{X+1}, v{X+2}
    v_and_b32 v{T}, 255, v0
    v_lshlrev_b32 v{T}, 2, v{T}
    v_add_u32 v{T}, {STAT}, v{T}
    ds_write_b32 v{T}, v{X}
    """)
    ST.mark(A)
    A.I(f"""
    s_lshl_b32 s60, s36, 14
    s_cmp_eq_u32 s36, 3
    s_cselect_b32 s60, {SB[2]}, s60
    v_lshlrev_b32 v{T}, 4, v{L}
    v_add_u32 v{T}, s60, v{T}
    s_waitcnt lgkmcnt(0)
    s_barrier
    """)
    for k in range(16): A.I(f'ds_read_b128 {v(ACC+4*k,4)}, v{T} offset:{k*1024}')
    A.I('s_branch p1_join')
    A.L('p1_roleC'); A.fence()
    ST.n=n_st
    cq=[]; lq=[]
    A.I(f"""
    v_lshrrev_b32 v{T}, 5, v{L}
    v_lshlrev_b32 v{T}, 3, v{T}
    v_bfe_u32 v{T+1}, v{L}, 2, 2
    v_add_u32 v{T}, v{T}, v{T+1}
    v_lshlrev_b32 v{T}, 8, v{T}
    v_bfe_u32 v{T+2}, v{L}, 4, 1
    v_lshlrev_b32 v{T+2}, 1, v{T+2}
    v_bfe_u32 v{T+3}, v{L}, 1, 1
    v_add_u32 v{T+2}, v{T+2}, v{T+3}
    s_lshl_b32 s33, s36, 2
    v_add_u32 v{T+2}, s33, v{T+2}
    v_lshlrev_b32 v{T+1}, 2, v{T+1}
    v_xor_b32 v{T+2}, v{T+2}, v{T+1}
    v_lshl_add_u32 v{T}, v{T+2}, 4, v{T}
    v_and_b32 v{T+3}, 1, v{L}
    v_lshl_add_u32 v{T}, v{T+3}, 3, v{T}
    v_add_u32 v{vAr}, {GS+SB[0]}, v{T}
    v_add_u32 v{vAr+1}, {GS+SB[1]}, v{T}
    v_add_u32 v{vAr+2}, {GS+SB[2]}, v{T}
    v_lshlrev_b32 v{T}, 7, v{l32}
    v_bfe_u32 v{T+1}, v{l32}, 1, 3
    v_xor_b32 v{T+1}, v{T+1}, v{half}
    v_lshl_add_u32 v{T}, v{T+1}, 4, v{T}
    v_mov_b32 v{ones}, 0x3f803f80
    """)
    for sl in range(3):
        for ks in range(4):
            if ks==0: A.I(f'v_add_u32 v{vBr+sl*4}, {SB[sl]+XS}, v{T}')
            else: A.I(f'v_xor_b32 v{vBr+sl*4+ks}, {ks*32}, v{vBr+sl*4}')
    for k in range(4): A.I(f'v_mov_b32 v{csr+k}, 0')
    A.I(f'v_mov_b32 v{T}, {CTRL}\nv_lshl_add_u32 v{T}, v{L}, 2, v{T}\nv_mov_b32 v{T+1}, 0\nds_write_b32 v{T}, v{T+1}')
    A.I(f"""
    s_lshl_b32 s60, s36, 4
    v_and_b32 v{T}, 15, v{L}
    v_add_u32 v{T}, s60, v{T}              ; row
    s_lshl_b32 s60, s49, 6
    v_lshlrev_b32 v{T+1}, 6, v{half}
    v_add_u32 v{T+1}, v{T+1}, v{T}
    v_add_u32 v{T+1}, s60, v{T+1}
    v_and_b32 v{T+1}, 511, v{T+1}          ; d
    v_cvt_f32_u32 v{T+2}, v{T+1}
    v_mul_f32 v{T+2}, {f2u(1/512)}, v{T+2} ; u
    v_bfe_u32 v{T+3}, v{L}, 4, 1           ; ch
    s_lshl_b32 s60, s34, 4
    v_lshlrev_b32 v{T+4}, 3, v{T+3}
    v_add_u32 v{T+4}, s60, v{T+4}          ; k0
    v_cvt_f32_u32 v{T+5}, v{T+4}
    v_mul_f32 v{T+5}, v{T+5}, v{T+2}       ; angle
    """)
    for j in range(4):
        A.I(f'v_cos_f32 v{T+6}, v{T+5}\nv_sin_f32 v{T+8}, v{T+5}\nv_add_f32 v{T+5}, v{T+5}, v{T+2}')
        A.I(f'v_cos_f32 v{T+7}, v{T+5}\nv_sin_f32 v{T+9}, v{T+5}\nv_add_f32 v{T+5}, v{T+5}, v{T+2}')
        A.I(f'v_cvt_pk_bf16_f32 v{AFR+j}, v{T+6}, v{T+7}')
        A.I(f'v_cvt_pk_bf16_f32 v{AFR+4+j}, -v{T+8}, -v{T+9}')
    A.I(f"""
    v_and_b32 v{T+6}, 1, v{T}
    v_lshlrev_b32 v{T+6}, 15, v{T+6}
    v_or_b32 v{T+6}, 0x3f80, v{T+6}
    v_mov_b32 v{T+7}, 0xffff
    v_bfi_b32 v{T+6}, v{T+7}, v{T+6}, v{AFR+4}
    v_cmp_eq_u32 vcc, 0, v{T+4}
    v_cndmask_b32 v{AFR+4}, v{AFR+4}, v{T+6}, vcc
    v_and_b32 v{T+6}, 3, v{T}
    v_lshlrev_b32 v{T+6}, 2, v{T+6}
    v_add_u32 v{T+7}, 14, v{T+3}
    v_xor_b32 v{T+6}, v{T+6}, v{T+7}
    v_lshlrev_b32 v{T+6}, 4, v{T+6}
    v_lshl_add_u32 v{T+6}, v{T}, 8, v{T+6}
    v_mul_u32_u24 v{T+7}, {SB[1]-SB[0]}, v{half}
    v_add_u32 v{T+6}, v{T+6}, v{T+7}
    v_add_u32 v{T+6}, {GS+SB[0]}, v{T+6}
    ds_write_b128 v{T+6}, {v(AFR,4)}
    ds_write_b128 v{T+6}, {v(AFR+4,4)} offset:16384
    """)
    AS=[32,40,80]; BS=[48,64,88]
    def read_items(stage,ks,fs,sts=(0,1,2,3)):
        slot=stage%3; a=AS[fs]; bb=BS[fs]
        def ra(m):
            def f():
                for rd in range(2):
                    A.I(f'ds_read_b64_tr_b16 {v(a+m*4+rd*2,2)}, v{vAr+slot} offset:{m*16384+ks*4096+rd*1024}'); lq.append(('A',m,stage,ks))
            return f
        def rb(st):
            def f():
                A.I(f'ds_read_b128 {v(bb+st*4,4)}, v{vBr+slot*4+ks} offset:{st*4096}'); lq.append(('B',st,stage,ks))
            return f
        return [ra(0),rb(sts[0]),ra(1)]+[rb(x) for x in sts[1:]]
    def lwait(tags):
        idx=[k for k,x in enumerate(lq) if x in tags]
        if not idx: return
        n=len(lq)-1-max(idx); del lq[:max(idx)+1]
        A.I(f's_waitcnt lgkmcnt({min(n,15)})')
    def compute(stage,ks,fs,first,nxt,extra=None,cs=None,sts=(0,1,2,3)):
        a=AS[fs]; bb=BS[fs]; k=0
        nxt=list(nxt)
        per=[[] for _ in range(2*len(sts))]
        for j,it in enumerate(nxt): per[(j if len(nxt)<=len(per) else (j*len(per))//len(nxt))].append(it)
        for st in sts:
            for m in range(2):
                lwait([('A',m,stage,ks),('B',st,stage,ks)])
                mf32(A,tile(m,st),a+m*4,bb+st*4,first)
                for it in per[k]: it()
                if cs is not None: A.I(f'v_dot2c_f32_bf16 v{csr+cs*2+(k>>2)}, v{a+(k>>2)*4+(k&3)}, v{ones}')
                if extra and k in extra: extra[k]()
                k+=1
    def cs_chunks():
        U=104; C=[]
        C.append(lambda: A.I(f"""s_bitcmp1_b32 s35, 0
            s_cselect_b64 vcc, -1, 0
            v_cndmask_b32 v{U}, v{csr}, v{csr+2}, vcc
            v_cndmask_b32 v{U+2}, v{csr+1}, v{csr+3}, vcc"""))
        C.append(lambda: A.I(f"""v_mov_b32 v{U+1}, v{U}
            v_mov_b32 v{U+3}, v{U+2}
            s_lshl_b32 s60, s34, 4
            s_add_u32 s60, s60, s35"""))
        C.append(lambda: A.I(f"""v_permlane32_swap_b32 v{U}, v{U+1}
            v_permlane32_swap_b32 v{U+2}, v{U+3}
            s_lshl_b32 s60, s60, 10
            s_lshl_b32 s61, s36, 7"""))
        C.append(lambda: A.I(f"""v_add_f32 v{U}, v{U}, v{U+1}
            v_add_f32 v{U+2}, v{U+2}, v{U+3}
            s_add_u32 s60, s60, s61
            s_add_u32 s60, s60, {OFF_CSP}"""))
        C.append(lambda: A.I(f"""s_add_u32 s62, s4, s60
            s_addc_u32 s63, s5, 0
            v_lshlrev_b32 v{U+1}, 2, v{l32}
            s_mov_b32 exec_hi, 0
            global_store_dword v{U+1}, v{U}, s[62:63]{SC}
            s_mov_b64 exec, -1"""))
        C.append(lambda: A.I(f"""s_mov_b32 exec_hi, 0
            global_store_dword v{U+1}, v{U+2}, s[62:63] offset:512{SC}
            s_mov_b64 exec, -1"""))
        return C
    for i in range(NST):
        if 'bw' in EXP and i in (1,2,3,4,5): ST.mark(A)
        if i==3: A.I('s_waitcnt vmcnt(0)')
        A.I('s_waitcnt lgkmcnt(0)'); lq.clear()
        if 'bw' in EXP and i in (1,2,3,4,5): ST.mark(A)
        A.I('s_barrier')
        if want(i): ST.mark(A)
        if 'la2' not in EXP:
            fs=lambda st_,ks_: (4*st_+ks_)%3
            r01=read_items(i,0,fs(i,0))+read_items(i,1,fs(i,1))
            if i==0:
                for f in r01: f()
            else:
                compute(i-1,3,fs(i-1,3),False,r01,None,1 if i==1 else None)
            compute(i,0,fs(i,0),i==0,read_items(i,2,fs(i,2)),({6:lambda: rs_loads(cq)} if i==6 else (dict(zip((1,2,3,4,6,7),cs_chunks())) if i==1 else None)),0 if i==0 else None)
            compute(i,1,fs(i,1),False,read_items(i,3,fs(i,3)),None,0 if i==0 else None)
            compute(i,2,fs(i,2),False,[],None,1 if i==0 else None)
            continue
        r0=read_items(i,0,0)
        if i==0:
            for f in r0: f()
        else:
            compute(i-1,3,1,False,r0,None,1 if i==1 else None)
        compute(i,0,0,i==0,read_items(i,1,1),({6:lambda: rs_loads(cq)} if i==6 else (dict(zip((1,2,3,4,6,7),cs_chunks())) if i==1 else None)),0 if i==0 else None)
        compute(i,1,1,False,read_items(i,2,0),None,0 if i==0 else None)
        compute(i,2,0,False,read_items(i,3,1),None,1 if i==0 else None)
    HW=104
    A.I(f"""
    s_lshl_b32 s60, s36, 14
    s_cmp_eq_u32 s36, 3
    s_cselect_b32 s60, {SB[2]}, s60
    v_lshlrev_b32 v{HW}, 4, v{L}
    v_add_u32 v{HW}, s60, v{HW}
    """)
    if 'do7' not in EXP:
        A.I('s_waitcnt lgkmcnt(0)'); lq.clear()
        compute(7,3,((4*7+3)%3 if 'la2' not in EXP else 1),False,[])
        ST.mark(A)
        for k in range(16): A.I(f'ds_write_b128 v{HW}, {v(ACC+64+4*k,4)} offset:{k*1024}')
        A.I('s_waitcnt vmcnt(0) lgkmcnt(0)\ns_barrier')
    else:
        hi=(2,3); lo=(0,1)
        compute(7,0,0,False,read_items(7,1,1,hi),sts=hi)
        compute(7,1,1,False,read_items(7,2,0,hi),sts=hi)
        compute(7,2,0,False,read_items(7,3,1,hi),sts=hi)
        compute(7,3,1,False,read_items(10,0,0,lo),sts=hi)
        def hw(k0,k1):
            def f():
                for k in range(k0,k1):
                    A.I(f'ds_write_b128 v{HW}, {v(ACC+64+4*k,4)} offset:{k*1024}'); lq.append('hw')
            return f
        compute(10,0,0,False,read_items(10,1,1,lo),sts=lo)
        compute(10,1,1,False,read_items(10,2,0,lo),{0:hw(0,4),1:hw(4,8),2:hw(8,12),3:hw(12,16)},sts=lo)
        compute(10,2,0,False,read_items(10,3,1,lo),sts=lo)
        A.I('s_waitcnt lgkmcnt(0)\ns_barrier'); lq.clear()
        compute(10,3,1,False,[],sts=lo)
        ST.mark(A)
        A.I('s_waitcnt vmcnt(0)')
    A.L('p1_join')
    mm=[RSV,RSV+2]; sd=[RSV+1,RSV+3]
    c1p=T+6; c2p=T+14; sd2=T+16; rr=T+18
    c1=-2*0.7978845608028654*math.log2(math.e); c2=c1*0.044715
    FRK=32
    A.I(f"""
    s_lshl_b32 s39, s36, 7
    v_lshlrev_b32 v{T+2}, 2, v{l32}
    v_add_u32 v{T+2}, s39, v{T+2}
    v_add_u32 v{T+2}, {STAT}, v{T+2}
    ds_read_b32 v{T+10}, v{T+2}
    ds_read_b32 v{T+11}, v{T+2} offset:512
    """)
    for k in range(16): A.I(f'v_mov_b32 v{FRK+k}, 0')
    for st in range(2):
        A.I(f"""
        v_rcp_f32 v{rr+st}, v{sd[st]}
        v_mul_f32 v{sd2+st}, v{sd[st]}, v{sd[st]}
        v_mul_f32 v{c1p+st}, {f2u(c1)}, v{rr+st}
        v_mul_f32 v{T+9}, v{rr+st}, v{rr+st}
        v_mul_f32 v{T+9}, v{T+9}, v{rr+st}
        v_mul_f32 v{c2p+st}, {f2u(c2)}, v{T+9}
        """)
    srd(A,20,4,OFF_HP,224*32768)
    srd(A,24,4,OFF_YQ,256*8192)
    A.I(f"""
    v_cvt_pk_bf16_f32 v{T+12}, v{mm[0]}, v{mm[0]}
    v_cvt_pk_bf16_f32 v{T+13}, v{mm[1]}, v{mm[1]}
    v_cmp_gt_u32 vcc, 32, v{L}
    v_cndmask_b32 v{FRK+8}, 0, v{T+12}, vcc
    v_cndmask_b32 v{FRK+12}, 0, v{T+13}, vcc
    s_lshl_b32 s33, s35, 7
    s_lshl_b32 s39, s37, 6
    s_add_u32 s33, s33, s39              ; 128rb+64sh
    v_add_u32 v{T+4}, s33, v{l32}
    v_lshlrev_b32 v{vHo}, 4, v{T+4}
    v_lshl_add_u32 v{vHo}, v{half}, 15, v{vHo}
    v_add_u32 v{vHo+1}, 512, v{vHo}
    s_waitcnt lgkmcnt(0)
    v_cndmask_b32 v{FRK}, 0, v{T+10}, vcc
    v_cndmask_b32 v{FRK+4}, 0, v{T+11}, vcc
    """)
    for m in range(2):
        for b_ in range(2): mf32(A,ACC+(m*2+b_)*16,FRK+m*4,FRK+8+b_*4)
    vPf=114
    A.I('s_cmp_eq_u32 s37, 0\ns_cbranch_scc1 p1_pfC')
    A.I(f's_lshl_b32 s39, s36, 2\nv_mov_b32 v{vPf}, {CTRL}\nv_add_u32 v{vPf}, s39, v{vPf}\nv_mov_b32 v{vPf+1}, 1\nds_write_b32 v{vPf}, v{vPf+1} offset:64')
    A.I('s_branch p1_pfE')
    A.L('p1_pfC')
    srd(A,8,56,0,1792*512*2)
    A.I(f"""
    s_and_b32 s13, s2, 7
    s_lshr_b32 s14, s2, 3
    s_lshr_b32 s13, s13, 2
    s_lshl_b32 s13, s13, 2
    s_lshr_b32 s14, s14, 3
    s_add_u32 s13, s13, s14          ; db
    v_lshrrev_b32 v{vPf+1}, 3, v{L}
    v_bfe_u32 v{vPf+2}, v{L}, 4, 1
    v_lshlrev_b32 v{vPf+2}, 2, v{vPf+2}
    v_and_b32 v{vPf}, 7, v{L}
    v_xor_b32 v{vPf}, v{vPf}, v{vPf+2}
    v_lshlrev_b32 v{vPf}, 4, v{vPf}
    v_lshl_add_u32 v{vPf}, v{vPf+1}, 10, v{vPf}
    s_lshl_b32 s39, s13, 7
    v_add_u32 v{vPf}, s39, v{vPf}
    s_mul_i32 s44, s32, {28*16*1024}
    s_mul_i32 s45, s32, {AREG}
    v_mov_b32 v{vPf+1}, {CTRL}
    """)
    if 'epf' in EXP: lds_wait(A,vPf+1,116,64,1,4)
    A.L('p1_pfE')
    pfl=[0]
    def prefetch(lo,hi):
        if lo>=hi or 'epf' not in EXP: return
        pfl[0]+=1; l=f'p1_pf{pfl[0]}'
        A.I(f's_cmp_lg_u32 s37, 0\ns_cbranch_scc1 {l}')
        A.skip_begin()
        for t in range(lo,hi):
            for j in range(2):
                A.I(f's_add_u32 m0, s45, {t*2048+j*1024}')
                A.I(f's_add_u32 s39, s44, {(t*16+j*8)*1024}')
                A.I(f'buffer_load_dwordx4 v{vPf}, s[8:11], s39 offen lds')
        A.skip_end(); A.L(l)
    A.I('s_nop 7\ns_nop 4')
    Z=T+20
    vH=[vHo,vHo+1]
    GT=lambda st: ACC+st*16
    UT=lambda st: ACC+(2+st)*16
    def hq(q,st,p):
        g=[GT(st)+4*q+r for r in range(4)]; u=[UT(st)+4*q+r for r in range(4)]
        for r in range(4):
            A.I(f'v_mul_f32 v{Z+r}, v{g[r]}, v{g[r]}')
            A.I(f'v_fma_f32 v{Z+r}, v{Z+r}, v{c2p+st}, v{c1p+st}')
            A.I(f'v_mul_f32 v{Z+r}, v{Z+r}, v{g[r]}')
        for r in range(4): A.I(f'v_exp_f32 v{Z+r}, v{Z+r}')
        for r in range(4):
            A.I(f'v_mul_f32 v{g[r]}, v{g[r]}, v{u[r]}')
            A.I(f'v_fma_f32 v{Z+r}, v{Z+r}, v{sd2+st}, v{sd2+st}')
        for r in range(4): A.I(f'v_rcp_f32 v{Z+r}, v{Z+r}')
        for r in range(4): A.I(f'v_mul_f32 v{g[r]}, v{g[r]}, v{Z+r}')
        A.I(f'v_cvt_pk_bf16_f32 v{p}, v{g[0]}, v{g[1]}')
        A.I(f'v_cvt_pk_bf16_f32 v{p+1}, v{g[2]}, v{g[3]}')
    def hpair(q,st,P):
        hq(q,st,P); hq(q+1,st,P+2)
        A.I(f'v_permlane32_swap_b32 v{P}, v{P+2}')
        A.I(f'v_permlane32_swap_b32 v{P+1}, v{P+3}')
        A.I(f'buffer_store_dwordx4 {v(P,4)}, v{vH[st]}, s[20:23], s60 offen{SC}')
    A.I(f's_mul_i32 s61, s34, 14\ns_lshl_b32 s39, s36, 2\ns_add_u32 s61, s61, s39\ns_lshl_b32 s61, s61, 15')
    YT=208
    A.I('s_cmp_lg_u32 s36, 3\ns_cbranch_scc1 p1_noy')
    A.I(f"""
    s_lshl_b32 s39, s37, 12
    s_add_u32 s39, s39, {YSCR}
    v_lshlrev_b32 v{YT}, 10, v{half}
    v_lshl_add_u32 v{YT}, v{l32}, 2, v{YT}
    v_add_u32 v{YT}, s39, v{YT}
    v_lshlrev_b32 v{YT+1}, 4, v{L}
    v_add_u32 v{YT+1}, s39, v{YT+1}
    v_lshrrev_b32 v{YT+2}, 4, v{L}
    v_lshlrev_b32 v{YT+2}, 13, v{YT+2}
    v_and_b32 v{YT+3}, 15, v{L}
    v_lshl_add_u32 v{YT+2}, v{YT+3}, 4, v{YT+2}
    s_lshl_b32 s39, s33, 2
    v_add_u32 v{YT+2}, s39, v{YT+2}
    """)
    for q in (2,3):
        for st in range(2):
            for r in range(4):
                G_=GT(st)+4*q+r; U=UT(st)+4*q+r
                A.I(f'v_mul_f32 v{G_}, v{G_}, v{rr+st}')
                A.I(f'v_mul_f32 v{U}, v{U}, v{rr+st}')
                A.I(f'v_cvt_pk_bf16_f32 v{G_}, v{G_}, v{U}')
                A.I(f'ds_write_b32 v{YT}, v{G_} offset:{(8*(q-2)+r)*256+st*128}')
    A.I('s_waitcnt lgkmcnt(0)')
    for j in range(4): A.I(f'ds_read_b128 {v(YT+4+4*j,4)}, v{YT+1} offset:{j*1024}')
    A.I('s_waitcnt lgkmcnt(0)')
    for j in range(4):
        A.I(f's_lshl_b32 s60, s34, 4\ns_add_u32 s60, s60, {4*j}\ns_lshl_b32 s60, s60, 13')
        A.I(f'buffer_store_dwordx4 {v(YT+4+4*j,4)}, v{YT+2}, s[24:27], s60 offen{SC}')
    A.I('s_mov_b32 s60, s61')
    A.I('s_cmp_lg_u32 s37, 0\ns_cbranch_scc1 p1_y7')
    prefetch(0,9); hpair(0,0,PB); prefetch(9,17); hpair(0,1,PB+4)
    A.I(f's_waitcnt vmcnt({36 if "epf" in EXP else 2})\nv_mov_b32 v{YT}, {CTRL}\nv_mov_b32 v{YT+1}, 1\nds_write_b32 v{YT}, v{YT+1} offset:80')
    A.I('s_branch p1_end')
    A.L('p1_y7')
    hpair(0,0,PB); hpair(0,1,PB+4)
    A.I(f's_waitcnt vmcnt(2)\nv_mov_b32 v{YT}, {CTRL}')
    lds_wait(A,YT,YT+4,80,1,4)
    A.I(f's_add_u32 s61, s34, {C_Y}'); arrive(A,61,YT+2)
    A.I('s_branch p1_end')
    A.L('p1_noy')
    k=0; cuts=[0,6,12,17,17]
    for q in (0,2):
        A.I(f's_add_u32 s60, s61, {q*32768}')
        for st in range(2):
            hpair(q,st,PB+4*(q+st))
            prefetch(cuts[k],cuts[k+1]); k+=1
            if k==2:
                A.I('s_cmp_eq_u32 s37, 0\ns_cbranch_scc1 p1_wf')
                A.I(f's_waitcnt vmcnt(2)\ns_lshl_b32 s39, s36, 2\nv_mov_b32 v{YT}, {CTRL}\nv_add_u32 v{YT}, s39, v{YT}\nv_mov_b32 v{YT+1}, 1\nds_write_b32 v{YT}, v{YT+1} offset:84')
                A.L('p1_wf')
    A.L('p1_end')
    ST.mark(A)

def s2_phase(A):
    L,l,g,vY,vW,fl,fg4=1,2,3,4,5,6,7
    T=184
    Ya=16; Wv=24; C32R=32; C32I=48; C64R=64; C64I=80; T1c=96; T1s=104; T2c=112; T2s=120
    DR=128; DI=136; F=144; E=152
    vC=203
    A.I(f'''
    s_sub_u32 s12, s32, 4
    v_and_b32 v{L}, 63, v0
    v_and_b32 v{l}, 15, v0
    v_bfe_u32 v{g}, v0, 4, 2
    v_mov_b32 v{vC}, {CTRL}
    s_lshl_b32 s33, s34, 4
    s_add_u32 s33, s33, s35          ; column k
    s_mov_b32 s47, 0
    ''')
    srd(A,8,4,OFF_YQ,256*8192)
    srd(A,16,4,OFF_WT,257*8192)
    srd(A,20,4,OFF_ZQ,514*4096)
    A.I(f'''
    s_lshl_b32 s13, s12, 11
    v_lshlrev_b32 v{vY}, 7, v{l}
    v_lshl_add_u32 v{vY}, v{g}, 4, v{vY}
    v_add_u32 v{vY}, s13, v{vY}
    v_lshlrev_b32 v{vW}, 4, v{l}
    v_lshl_add_u32 v{vW}, v{g}, 8, v{vW}
    v_add_u32 v{vW}, s13, v{vW}
    v_cvt_f32_u32 v{fl}, v{l}
    v_lshlrev_b32 v{T}, 2, v{g}
    v_cvt_f32_u32 v{fg4}, v{T}
    s_lshl_b32 s13, s12, 4
    v_cvt_f32_u32 v{T+1}, s13
    ''')
    f16w=T+1
    sc=1.0/(2048*512)
    A.I(f'''
    v_mul_f32 v{T+2}, {f2u(1/32)}, v{fl}
    v_add_f32 v{T+3}, 0.5, v{T+2}
    v_add_f32 v{T+4}, v{f16w}, v{fl}
    v_mul_f32 v{T+7}, {f2u(1/2048)}, v{T+4}
    v_mul_f32 v{T+4}, {f2u(1/64)}, v{T+4}
    v_mul_f32 v{T+5}, {f2u(1/2048)}, v{fl}
    v_add_f32 v{T+6}, {f2u(16/2048)}, v{T+5}
    v_add_f32 v{T+8}, v{f16w}, v{fg4}
    s_mov_b32 s46, {f2u(2*sc)}
    s_cmp_eq_u32 s33, 0
    s_cselect_b32 s46, {f2u(sc)}, s46
    v_mov_b32 v{vC+2}, s46
    ''')
    a_,c_,s_=T+9,T+10,T+11
    def cs_pack(ang,R,I):
        A.I(f'''
        v_cos_f32 v{c_}, v{ang}
        v_sin_f32 v{s_}, v{ang}
        v_cvt_pk_bf16_f32 v{R}, v{c_}, v{s_}
        v_cvt_pk_bf16_f32 v{I}, -v{s_}, v{c_}
        ''')
    fa=T+12
    for t in range(2):
        for q in range(4):
            A.I(f'v_add_f32 v{fa}, {f2u(16*t+q)}, v{fg4}')
            for nt in range(2):
                A.I(f'v_mul_f32 v{a_}, v{fa}, v{T+2+nt}')
                cs_pack(a_, C32R+(t*2+nt)*4+q, C32I+(t*2+nt)*4+q)
    for r in range(4):
        A.I(f'v_add_f32 v{fa}, {f2u(r)}, v{T+8}')
        for nt in range(2):
            A.I(f'''v_mul_f32 v{a_}, v{fa}, v{T+5+nt}
            v_cos_f32 v{T1c+nt*4+r}, v{a_}
            v_sin_f32 v{T1s+nt*4+r}, v{a_}''')
    for tp in range(4):
        for q in range(4):
            A.I(f'v_add_f32 v{fa}, {f2u(16*tp+q)}, v{fg4}')
            A.I(f'v_mul_f32 v{a_}, v{fa}, v{T+4}')
            cs_pack(a_, C64R+tp*4+q, C64I+tp*4+q)
    for it in range(2):
        for r in range(4):
            A.I(f'''v_add_f32 v{fa}, {f2u(16*it+r)}, v{fg4}
            v_mul_f32 v{a_}, v{fa}, v{T+7}
            v_cos_f32 v{T2c+it*4+r}, v{a_}
            v_sin_f32 v{T2s+it*4+r}, v{a_}
            v_mul_f32 v{T2c+it*4+r}, v{T2c+it*4+r}, v{vC+2}
            v_mul_f32 v{T2s+it*4+r}, v{T2s+it*4+r}, v{vC+2}''')
    vLw,vLr=T+13,T+14
    A.I(f'''
    v_lshlrev_b32 v{vLr}, 4, v{L}
    v_add_u32 v{vLr}, {EX}, v{vLr}
    s_lshl_b32 s13, s12, 11
    v_add_u32 v{vLw}, s13, v{vLr}
    s_lshl_b32 s13, s12, 2
    v_add_u32 v{vC+1}, s13, v{vC}
    s_mov_b32 s26, 0x80000000
    s_mov_b32 s27, 0x8000
    ''')
    ST.mark(A)
    A.I('s_waitcnt vmcnt(0)\ns_barrier')
    if 'noprio' not in EXP: A.I('s_setprio 3')
    ST.mark(A)
    A.I('s_cmp_lg_u32 s32, 4\ns_cbranch_scc1 s2_w1')
    A.skip_begin()
    A.I(f's_add_u32 s59, s34, {C_Y}\ns_lshl_b32 s59, s59, 7\nv_mov_b32 v{E}, s59\nv_mov_b32 v{E+1}, 16')
    poll_cnt(A,E,E+1,E+2,1)
    if 'dbg' in EXP:
        A.I(f's_cmp_lg_u32 s2, 9\ns_cbranch_scc1 dbg1')
        A.I(f'v_mov_b32 v{E+4}, v{E}\nv_mov_b32 v{E+5}, v{E+1}\nv_mov_b32 v{E+6}, v{E+2}\nv_mov_b32 v{E+7}, s58\nv_mov_b32 v{E+8}, 32\ns_mov_b64 exec, 1\nglobal_store_dwordx4 v{E+8}, {v(E+4,4)}, s[54:55]\ns_mov_b64 exec, -1')
        A.L('dbg1')
    A.I(f'v_mov_b32 v{E}, 1\nds_write_b32 v{vC}, v{E} offset:8')
    A.skip_end(); A.L('s2_w1')
    lds_wait(A,vC,E,8,1)
    ST.mark(A)
    A.L('s2_col')
    if 'nos2' in EXP: A.I('s_branch s2_skip')
    A.I(f'''
    s_and_b32 s14, s33, 255
    s_lshl_b32 s14, s14, 13
    s_lshl_b32 s15, s33, 13
    s_add_u32 s29, s15, 4096
    buffer_load_dwordx4 {v(Ya,4)}, v{vY}, s[8:11], s14 offen{SC}
    buffer_load_dwordx4 {v(Ya+4,4)}, v{vY}, s[8:11], s14 offen offset:64{SC}
    buffer_load_dwordx4 {v(Wv,4)}, v{vW}, s[16:19], s15 offen{SC}
    buffer_load_dwordx4 {v(Wv+4,4)}, v{vW}, s[16:19], s15 offen offset:1024{SC}
    s_cmp_eq_u32 s33, 256
    s_cselect_b32 s24, 16, 0
    s_and_b32 s25, s33, 255
    s_cmp_eq_u32 s25, 0
    s_cselect_b32 s25, 0xffff, -1
    s_cmp_lg_u32 s33, 0
    s_cbranch_scc1 s2_nx
    s_mov_b32 s60, 0x200000
    buffer_load_dwordx4 {v(208,4)}, v{vW}, s[16:19], s60 offen{SC}
    buffer_load_dwordx4 {v(212,4)}, v{vW}, s[16:19], s60 offen offset:1024{SC}
    s_waitcnt vmcnt(4)
    s_branch s2_ld
    s2_nx:
    s_waitcnt vmcnt(2)
    s2_ld:
    ''')
    for i in range(8): A.I(f'v_mov_b32 v{216+i}, v{Ya+i}')
    A.L('s2_cmp')
    if 's2fine' in EXP: ST.mark(A)
    for i in range(8): A.I(f'v_lshrrev_b32 v{Ya+i}, s24, v{Ya+i}')
    for i in range(8): A.I(f'v_and_b32 v{Ya+i}, s25, v{Ya+i}')
    for nt in range(2):
        for t in range(2): mf16(A,DR+nt*4,Ya+t*4,C32R+(t*2+nt)*4,t==0)
        for t in range(2): mf16(A,DI+nt*4,Ya+t*4,C32I+(t*2+nt)*4,t==0)
    t0,t1=T+15,T+16
    def cmul_pack(dst,xr,xi,c,s,sign):
        A.I(f'v_mul_f32 v{t0}, v{xr}, v{c}')
        A.I(f'v_mul_f32 v{t1}, v{xi}, v{c}')
        if sign<0:
            A.I(f'v_fma_f32 v{t0}, v{xi}, v{s}, v{t0}'); A.I(f'v_fma_f32 v{t1}, -v{xr}, v{s}, v{t1}')
        else:
            A.I(f'v_fma_f32 v{t0}, -v{xi}, v{s}, v{t0}'); A.I(f'v_fma_f32 v{t1}, v{xr}, v{s}, v{t1}')
        A.I(f'v_cvt_pk_bf16_f32 v{dst}, v{t0}, v{t1}')
    def exchange(base,ph):
        for nt in range(2): A.I(f'ds_write_b128 v{vLw}, {v(F+nt*4,4)} offset:{base+nt*1024}')
        A.I(f's_add_u32 s46, s47, {ph}\nv_mov_b32 v{t0}, s46\nds_write_b32 v{vC+1}, v{t0} offset:16')
        lds_wait(A,vC,E,16,'s46',4)
        for tp in range(4):
            for nt in range(2): A.I(f'ds_read_b128 {v(E+(tp*2+nt)*4,4)}, v{vLr} offset:{base+(tp*2+nt)*1024}')
    for nt in range(2):
        for r in range(4): cmul_pack(F+nt*4+r,DR+nt*4+r,DI+nt*4+r,T1c+nt*4+r,T1s+nt*4+r,-1)
    if 's2fine' in EXP: ST.mark(A)
    exchange(0,1)
    if 's2fine' in EXP: ST.mark(A)
    for tp in range(4):
        A.I(f's_waitcnt lgkmcnt({6-2*tp})')
        for nt in range(2):
            mf16(A,DR+nt*4,C64R+tp*4,E+(tp*2+nt)*4,tp==0)
            mf16(A,DI+nt*4,C64I+tp*4,E+(tp*2+nt)*4,tp==0)
    if 's2fine' in EXP: ST.mark(A)
    A.I('s_cmp_eq_u32 s33, 256\ns_cbranch_scc1 s2_nw\ns_waitcnt vmcnt(0)')
    A.L('s2_nw')
    wr,wi=T+17,T+18
    def conj(R,I):
        for i in range(16):
            A.I(f'v_xor_b32 v{R+i}, s26, v{R+i}'); A.I(f'v_xor_b32 v{I+i}, s27, v{I+i}')
    conj(C32R,C32I)
    for nt in range(2):
        for r in range(4):
            A.I(f'v_lshlrev_b32 v{wr}, 16, v{Wv+nt*4+r}')
            A.I(f'v_and_b32 v{wi}, 0xffff0000, v{Wv+nt*4+r}')
            cmul_pack(F+nt*4+r,DR+nt*4+r,DI+nt*4+r,wr,wi,+1)
    conj(C64R,C64I)
    if 's2fine' in EXP: ST.mark(A)
    def publish(kreg_is_256,suf,xd):
        A.I('s_waitcnt vmcnt(0)')
        A.I(f'v_mov_b32 v{t1}, {xd}\nds_write_b32 v{vC+1}, v{t1} offset:32')
        A.I(f's_cmp_lg_u32 s32, 4\ns_cbranch_scc1 s2_w2{suf}')
        A.skip_begin()
        lds_wait(A,vC,224,32,xd,4)
        cnt_base(A)
        if kreg_is_256=='n': A.I(f'v_add_u32 v228, {C_N}, v{L}')
        elif kreg_is_256=='0': A.I(f'v_lshlrev_b32 v228, 3, v{L}\nv_add_u32 v228, {C_Z}, v228')
        else: A.I(f's_and_b32 s46, s33, 7\ns_add_u32 s46, s46, {C_Z}\nv_lshlrev_b32 v228, 3, v{L}\nv_add_u32 v228, s46, v228')
        A.I(f'v_lshlrev_b32 v228, 7, v228\nv_mov_b32 v229, 1')
        A.I(f's_mov_b64 exec, {(1<<ZREP)-1}\nglobal_atomic_add v228, v229, s[62:63]{SC}\ns_mov_b64 exec, -1')
        A.skip_end(); A.L(f's2_w2{suf}')
    exchange(8192,2)
    A.I('s_cmp_lg_u32 s33, 256\ns_cbranch_scc1 s2_np')
    publish('0','c',1)
    A.I('s_barrier')
    A.L('s2_np')
    if 's2fine' in EXP: ST.mark(A)
    for tp in range(4):
        A.I(f's_waitcnt lgkmcnt({6-2*tp})')
        for it in range(2):
            mf16(A,DR+it*4,E+(tp*2+it)*4,C64R+tp*4,tp==0)
            mf16(A,DI+it*4,E+(tp*2+it)*4,C64I+tp*4,tp==0)
    for it in range(2):
        for r in range(4): cmul_pack(F+it*4+r,DR+it*4+r,DI+it*4+r,T2c+it*4+r,T2s+it*4+r,+1)
    for nt in range(2):
        for t in range(2): mf16(A,DR+nt*4,C32R+(t*2+nt)*4,F+t*4,t==0)
        for t in range(2): mf16(A,DI+nt*4,C32I+(t*2+nt)*4,F+t*4,t==0)
    if 's2fine' in EXP: ST.mark(A)
    A.I(f'v_lshrrev_b32 v{t0}, 1, v{vY}')
    for nt in range(2):
        for part,D in ((0,DR),(1,DI)):
            e=E+nt*4+part*2
            A.I(f'v_cvt_pk_bf16_f32 v{e}, v{D+nt*4}, v{D+nt*4+1}\nv_cvt_pk_bf16_f32 v{e+1}, v{D+nt*4+2}, v{D+nt*4+3}')
            A.I(f'buffer_store_dwordx2 {v(e,2)}, v{t0}, s[20:23], s15 offen offset:{32*nt}{SC}' if part==0 else f'buffer_store_dwordx2 {v(e,2)}, v{t0}, s[20:23], s29 offen offset:{32*nt}{SC}')
    A.I('s_cmp_eq_u32 s33, 0\ns_cbranch_scc1 s2_second')
    A.I('s_cmp_eq_u32 s33, 256\ns_cbranch_scc1 s2_pubn')
    publish('k','a',1)
    A.I('s_barrier')
    A.I('s_branch s2_fin')
    A.L('s2_pubn')
    publish('n','b',2)
    A.I('s_branch s2_fin')
    A.L('s2_second')
    conj(C32R,C32I); conj(C64R,C64I)
    for i in range(8): A.I(f'v_mov_b32 v{Ya+i}, v{216+i}')
    for i in range(8): A.I(f'v_mov_b32 v{Wv+i}, v{208+i}')
    A.I('s_movk_i32 s33, 256\ns_mov_b32 s15, 0x200000\ns_add_u32 s29, s15, 4096\ns_mov_b32 s24, 16\ns_mov_b32 s25, 0xffff\ns_add_u32 s47, s47, 2\ns_branch s2_cmp')
    A.L('s2_fin')
    A.I('s_setprio 0')
    ST.mark(A)
    A.I('s_cmp_lg_u32 s32, 4\ns_cbranch_scc1 s2_w3')
    A.skip_begin()
    A.I(f's_and_b32 s46, s2, {ZREP-1}\ns_lshl_b32 s46, s46, 3\ns_add_u32 s46, s46, {C_Z}\nv_add_u32 v{E}, s46, v{L}\nv_lshlrev_b32 v{E}, 7, v{E}\nv_mov_b32 v{E+1}, 32')
    poll_cnt(A,E,E+1,E+2,8,sleep=2)
    A.I(f'v_mov_b32 v{E}, 1\nds_write_b32 v{vC}, v{E} offset:4')
    A.I(f's_and_b32 s46, s2, {ZREP-1}\ns_add_u32 s46, s46, {C_N}\ns_lshl_b32 s46, s46, 7\nv_mov_b32 v{E}, s46\nv_mov_b32 v{E+1}, 1')
    poll_cnt(A,E,E+1,E+2,1)
    A.I(f'v_mov_b32 v{E}, 1\nds_write_b32 v{vC}, v{E} offset:48')
    A.skip_end(); A.L('s2_w3')
    ST.mark(A)
    A.I('s_waitcnt lgkmcnt(0)\ns_barrier')

def p3_phase(A, nh=28, nz=8):
    NB=NB_
    BR0=112
    NAR=NAR_
    if NAR: NB=8-NAR
    AR=112+NB*8
    NA=NA_; NL=NSL-NA; RB=NB+NL
    BL=[16,240]
    L,half,l32=1,2,3
    vB=4; vZd=5; vZr=6; vX=9; vC=10; vAd=11; vAr=12; vLw=14; vLr=15; vBd=8; vBr=28
    XR2=16; T=24; ACC=32; AF=96; BR=112; ZA=176
    A.I(f"""
    s_load_dwordx2 s[28:29], s[0:1], 56
    s_load_dwordx2 s[30:31], s[0:1], 48
    v_and_b32 v{L}, 63, v0
    v_and_b32 v{l32}, 31, v0
    v_bfe_u32 v{half}, v0, 5, 1
    v_mov_b32 v{vC}, {CTRL}
    s_mov_b32 s12, s32
    s_and_b32 s13, s2, 7
    s_lshr_b32 s14, s2, 3
    s_and_b32 s15, s13, 3
    s_lshl_b32 s15, s15, 3
    s_and_b32 s39, s14, 7
    s_add_u32 s15, s15, s39          ; sb
    s_lshr_b32 s13, s13, 2
    s_lshl_b32 s13, s13, 2
    s_lshr_b32 s14, s14, 3
    s_add_u32 s13, s13, s14          ; db
    s_and_b32 s36, s12, 1
    s_lshr_b32 s37, s12, 1
    v_lshrrev_b32 v{T}, 3, v{L}
    v_bfe_u32 v{T+1}, v{L}, 4, 1
    v_lshlrev_b32 v{T+1}, 2, v{T+1}
    v_and_b32 v{T+2}, 7, v{L}
    v_xor_b32 v{T+2}, v{T+2}, v{T+1}
    v_lshlrev_b32 v{T+2}, 4, v{T+2}           ; c*16
    v_lshl_add_u32 v{vAd}, v{T}, 10, v{T+2}
    s_lshl_b32 s39, s13, 7
    v_add_u32 v{vAd}, s39, v{vAd}
    v_lshl_add_u32 v{vZd}, v{T}, 12, v{T+2}
    s_lshl_b32 s39, s15, 7
    v_add_u32 v{vZd}, s39, v{vZd}
    s_mul_i32 s44, s12, {nh*16*1024}
    s_mul_i32 s45, s12, {AREG}
    s_mul_i32 s52, s12, {nz*16*4096}
    s_waitcnt lgkmcnt(0)
    """)
    srd(A,8,30,0,1792*512*2)
    q=[]
    def dmaA(t):
        for j in range(2):
            A.I(f's_add_u32 m0, s45, {(t%NA)*2048+j*1024}')
            A.I(f's_add_u32 s60, s44, {(t*16+j*8)*1024}')
            A.I(f'buffer_load_dwordx4 v{vAd}, s[8:11], s60 offen lds'); q.append(('A',t))
    def dmaZ(i):
        t=nh+i
        for j in range(2):
            A.I(f's_add_u32 m0, s45, {(t%NA)*2048+j*1024}')
            A.I(f's_add_u32 s60, s52, {(i*16+j*8)*4096}')
            A.I(f'buffer_load_dwordx4 v{vZd}, s[20:23], s60 offen{SC} lds'); q.append(('A',t))
    srd(A,24,6,0,2048*512*2)
    srd(A,16,4,OFF_HP,224*32768)
    srd(A,20,4,OFF_ZQ,514*4096)
    srd(A,40,28,0,2048*512*2)
    A.I(f"""
    s_lshl_b32 s39, s15, 1
    s_add_u32 s39, s39, s37
    s_lshl_b32 s39, s39, 10
    s_lshl_b32 s31, s13, 7
    s_add_u32 s39, s39, s31
    s_lshl_b32 s31, s36, 6
    s_add_u32 s39, s39, s31
    v_lshlrev_b32 v{vX}, 16, v{l32}
    v_lshl_add_u32 v{vX}, v{half}, 3, v{vX}
    v_add_u32 v{vX}, s39, v{vX}
    """)
    ZT=248
    A.I(f"""
    s_lshl_b32 s39, s15, 10
    v_lshlrev_b32 v{vB}, 15, v{half}
    v_lshl_add_u32 v{vB}, v{l32}, 4, v{vB}
    v_add_u32 v{vB}, s39, v{vB}
    s_mul_i32 s46, s12, {nh*65536}
    s_mov_b32 s48, s46
    s_lshl_b32 s39, s15, 10
    v_lshlrev_b32 v{vBd}, 4, v{L}
    v_add_u32 v{vBd}, s39, v{vBd}
    v_lshlrev_b32 v{vBr}, 10, v{half}
    v_lshl_add_u32 v{vBr}, v{l32}, 4, v{vBr}
    v_add_u32 v{vBr}, s45, v{vBr}
    s_lshl_b32 s39, s37, 9
    v_xor_b32 v{vBr+1}, 512, v{vBr}
    v_add_u32 v{vBr}, s39, v{vBr}
    v_subrev_u32 v{vBr+1}, s39, v{vBr+1}
    s_add_u32 s47, s46, 512
    s_sub_u32 s47, s47, s39
    s_add_u32 s46, s46, s39
    v_lshrrev_b32 v{T}, 5, v{L}
    v_lshlrev_b32 v{T}, 3, v{T}
    v_bfe_u32 v{T+1}, v{L}, 2, 2
    v_add_u32 v{T}, v{T}, v{T+1}
    v_lshlrev_b32 v{T}, 7, v{T}              ; row*128
    v_bfe_u32 v{T+2}, v{L}, 4, 1
    v_lshlrev_b32 v{T+2}, 1, v{T+2}
    v_bfe_u32 v{T+3}, v{L}, 1, 1
    v_add_u32 v{T+2}, v{T+2}, v{T+3}         ; chunk within 64B half
    v_bfe_u32 v{T+3}, v{L}, 3, 1
    v_lshlrev_b32 v{T+3}, 2, v{T+3}          ; swizzle bit
    v_xor_b32 v{T+2}, v{T+2}, v{T+3}
    v_lshl_add_u32 v{T}, v{T+2}, 4, v{T}
    v_and_b32 v{T+3}, 1, v{L}
    v_lshl_add_u32 v{T}, v{T+3}, 3, v{T}
    v_add_u32 v{T}, s45, v{T}                ; base for tile index 0
    s_lshl_b32 s39, s36, 6
    v_xor_b32 v{vAr}, s39, v{T}
    v_xor_b32 v{vAr+1}, 64, v{vAr}
    s_lshl_b32 s39, s37, 6
    v_xor_b32 v{vZr}, s39, v{T}
    v_xor_b32 v{vZr+1}, 64, v{vZr}
    s_lshl_b32 s39, s13, 6
    s_lshl_b32 s31, s36, 5
    s_add_u32 s39, s39, s31
    v_add_u32 v{T}, s39, v{l32}
    v_cvt_f32_u32 v{T}, v{T}
    v_mul_f32 v{ZT}, {f2u(1/512)}, v{T}
    s_lshl_b32 s39, s13, 6
    s_xor_b32 s31, s31, 32
    s_add_u32 s39, s39, s31
    v_add_u32 v{T+1}, s39, v{l32}
    v_cvt_f32_u32 v{T+1}, v{T+1}
    v_mul_f32 v{ZT+1}, {f2u(1/512)}, v{T+1}
    s_mul_i32 s39, s12, {nz*8}
    v_lshlrev_b32 v{T+2}, 2, v{half}
    v_add_u32 v{T+2}, s39, v{T+2}
    v_cvt_f32_u32 v{ZT+2}, v{T+2}
    """)
    zitems=[]
    for i in range(nz):
        for qq in range(4):
            def zf(i=i,qq=qq):
                A.I(f'v_add_f32 v{ZT+3}, {f2u(8*i+qq)}, v{ZT+2}')
                for ar in range(2):
                    A.I(f'v_mul_f32 v{ZT+4+ar}, v{ZT+3}, v{ZT+ar}\nv_fract_f32 v{ZT+4+ar}, v{ZT+4+ar}')
                for ar in range(2):
                    A.I(f'v_cos_f32 v{ZT+6}, v{ZT+4+ar}\nv_sin_f32 v{ZT+7}, v{ZT+4+ar}\nv_cvt_pk_bf16_f32 v{ZA+i*8+ar*4+qq}, v{ZT+6}, -v{ZT+7}')
            zitems.append(zf)
    PT=NA-4
    NZ0=10 if 'z0' not in EXP else 0
    for zf in zitems[:NZ0]: zf()
    A.I(f's_waitcnt vmcnt({len(q)})\ns_barrier')
    ST.mark(A)
    A.I('s_cmp_lg_u32 s32, 0\ns_cbranch_scc1 p3_a1')
    A.skip_begin()
    A.I(f's_add_u32 s59, s35, {C_H}'); A.I('s_mov_b32 s61, s59'); arrive(A,61,T)
    A.skip_end(); A.L('p3_a1')
    rest=zitems[NZ0:]
    if 'epf' in EXP:
        for zf in rest: zf()
    else:
        for t in range(NA):
            dmaA(t)
            for zf in rest[(t*len(rest))//NA:((t+1)*len(rest))//NA]: zf()
            if PS_ and t==PS_-1: lds_wait(A,vC,T+4 if False else 240,16,1,4)
            if t==PT:
                A.I(f's_lshr_b32 s59, s15, 1\ns_add_u32 s59, s59, {C_H}\ns_lshl_b32 s59, s59, 7\nv_mov_b32 v{T}, s59\nv_mov_b32 v{T+1}, 16')
                A.I('s_cmp_lg_u32 s32, 0\ns_cbranch_scc1 p3_ap')
                A.skip_begin()
                cnt_base(A)
                A.I(f's_mov_b64 exec, 1\nglobal_load_dword v{T+2}, v{T}, s[62:63]{SCP}\ns_mov_b64 exec, -1')
                A.skip_end(); A.L('p3_ap')
    if NAR:
        idx=[k for k,x in enumerate(q) if x==('A',NAR-1)]
        A.I(f's_waitcnt vmcnt({len(q)-1-max(idx)})'); del q[:max(idx)+1]
        for t in range(NAR):
            for ar in range(2):
                for rd in range(2):
                    A.I(f'ds_read_b64_tr_b16 {v(AR+t*8+ar*4+rd*2,2)}, v{vAr+ar} offset:{(t%NA)*2048+rd*512}')
        A.I('s_waitcnt lgkmcnt(0)')
        for t in range(NAR): dmaA(NA+t)
    ST.mark(A)
    A.I('s_cmp_lg_u32 s32, 0\ns_cbranch_scc1 p3_w1')
    A.skip_begin()
    A.I(f's_waitcnt vmcnt({2*(NA-1-PT)+2*NAR})')
    poll_cnt(A,T,T+1,T+2,1,True)
    A.I(f'v_mov_b32 v{T}, 1\nds_write_b32 v{vC}, v{T}')
    A.skip_end(); A.L('p3_w1')
    lds_wait(A,vC,T,0,1)
    ST.mark(A)
    n=nh+nz
    isL=lambda i: (i%RB)>=NB
    def issueB(i):
        if isL(i):
            sl=NA+(i%RB)-NB
            for j in range(2):
                A.I(f's_add_u32 m0, s45, {sl*2048+j*1024}')
                A.I(f's_add_u32 s60, s48, {j*32768}')
                A.I(f'buffer_load_dwordx4 v{vBd}, s[16:19], s60 offen{SCB} lds')
        else:
            sl=BR+(i%RB)*8
            A.I(f'buffer_load_dwordx4 {v(sl,4)}, v{vB}, s[16:19], s46 offen{SCB}')
            A.I(f'buffer_load_dwordx4 {v(sl+4,4)}, v{vB}, s[16:19], s47 offen{SCB}')
        q.extend([('B',i)]*2)
        A.I('s_add_u32 s46, s46, 65536\ns_add_u32 s47, s47, 65536\ns_add_u32 s48, s48, 65536')
    def readsBL(i):
        sl=NA+(i%RB)-NB; f=BL[i%2]
        for b_ in range(2):
            A.I(f'ds_read_b128 {v(f+4*b_,4)}, v{vBr+b_} offset:{sl*2048}')
    def vwait(*tags):
        idx=[k for k,x in enumerate(q) if x in tags]
        if not idx: return
        N=len(q)-1-max(idx); del q[:max(idx)+1]
        A.I(f's_waitcnt vmcnt({min(N,63)})')
    def reads(t):
        f=AF+(t%2)*8
        if t<nh:
            for ar in range(2):
                for rd in range(2):
                    A.I(f'ds_read_b64_tr_b16 {v(f+ar*4+rd*2,2)}, v{vAr+ar} offset:{(t%NA)*2048+rd*512}')
        else:
            for b_ in range(2):
                for rd in range(2):
                    A.I(f'ds_read_b64_tr_b16 {v(f+b_*4+rd*2,2)}, v{vZr+b_} offset:{(t%NA)*2048+rd*512}')
    nxt=0
    ZAT=nh-4; ZP=ZP_
    for k in range(RB):
        issueB(nxt); nxt+=1
    if not NAR:
        vwait(('A',0)); reads(0)
    for i in range(n):
        tags=[('A',i+1)]
        if i<nh and not isL(i): tags.append(('B',i))
        if i+1<nh and isL(i+1): tags.append(('B',i+1))
        vwait(*tags)
        if 'p3steps' in EXP and i in (0,4,10,17,24): ST.mark(A)
        A.I('s_waitcnt lgkmcnt(0)')
        if i==ZAT:
            ST.mark(A); lds_wait(A,vC,T,4,1); ST.mark(A)
            for z in range(nz): dmaZ(z)
        if i+1<n and not (i+1==nh) and i+1>=NAR: reads(i+1)
        if i+1==nh:
            vwait(('A',nh)); reads(nh)
        if i+1<nh and isL(i+1): readsBL(i+1)
        for brr in range(2):
            for ar in range(2):
                if i<nh:
                    a=(AF+(i%2)*8+ar*4) if i>=NAR else (AR+i*8+ar*4)
                    b_=(BL[i%2]+brr*4) if isL(i) else (BR+(i%RB)*8+brr*4)
                else: a=ZA+(i-nh)*8+ar*4; b_=AF+(i%2)*8+brr*4
                mf32(A,ACC+(ar+2*brr)*16,a,b_,i==0)
        if i==ZP: A.I('s_barrier')
        if i+NA<nh and i>=NAR: dmaA(i+NA)
        while nxt<nh and nxt<=i+RB:
            issueB(nxt); nxt+=1
    for i in range(4):
        A.I(f'buffer_load_dwordx2 {v(XR2+2*i,2)}, v{vX}, s[24:27], 0 offen offset:{16*i}')
    ST.mark(A)
    lds_wait(A,vC,T,48,1)
    A.I(f's_lshl_b32 s39, s15, 6\ns_lshl_b32 s31, s37, 5\ns_add_u32 s39, s39, s31\nv_add_u32 v{T+6}, s39, v{l32}\nv_lshlrev_b32 v{T+6}, 1, v{T+6}\ns_mov_b32 s39, {512*4096}')
    A.I(f'buffer_load_ushort v{T+7}, v{T+6}, s[20:23], s39 offen{SC}')
    A.I(f'v_lshlrev_b32 v{vLw}, 4, v{L}\nv_add_u32 v{vLw}, s45, v{vLw}')
    for j in range(1,4):
        for c in range(4): A.I(f'ds_write_b128 v{vLw}, {v(ACC+j*16+c*4,4)} offset:{(j-1)*4096+c*1024}')
    A.I('s_waitcnt lgkmcnt(0)\ns_barrier')
    for j in range(1,4):
        A.I(f's_xor_b32 s39, s12, {j}\ns_mul_i32 s39, s39, {AREG}\nv_lshlrev_b32 v{vLr}, 4, v{L}\nv_add_u32 v{vLr}, s39, v{vLr}')
        for c in range(4): A.I(f'ds_read_b128 {v(BR+(j-1)*16+c*4,4)}, v{vLr} offset:{(j-1)*4096+c*1024}')
    for j in range(3):
        A.I(f's_waitcnt lgkmcnt({8-4*j})')
        for i in range(16): A.I(f'v_add_f32 v{ACC+i}, v{ACC+i}, v{BR+j*16+i}')
    A.I(f's_waitcnt vmcnt(0)\nv_lshlrev_b32 v{T+7}, 16, v{T+7}')
    for i in range(16): A.I(f'v_{"add" if i%2==0 else "sub"}_f32 v{ACC+i}, v{ACC+i}, v{T+7}')
    for qq in range(4):
        x0,x1=XR2+2*qq,XR2+2*qq+1
        A.I(f"""v_lshlrev_b32 v{T}, 16, v{x0}
        v_and_b32 v{T+1}, 0xffff0000, v{x0}
        v_lshlrev_b32 v{T+2}, 16, v{x1}
        v_and_b32 v{T+3}, 0xffff0000, v{x1}""")
        for r in range(4): A.I(f'v_add_f32 v{ACC+4*qq+r}, v{ACC+4*qq+r}, v{T+r}')
        A.I(f'v_cvt_pk_bf16_f32 v{x0}, v{ACC+4*qq}, v{ACC+4*qq+1}')
        A.I(f'v_cvt_pk_bf16_f32 v{x1}, v{ACC+4*qq+2}, v{ACC+4*qq+3}')
        A.I(f'buffer_store_dwordx2 {v(x0,2)}, v{vX}, s[40:43], 0 offen offset:{16*qq}'+(' sc1' if 'outsc1' in EXP else (' nt' if 'outnt' in EXP else '')))

NAME='parallel_sum__spectral_gfnet__glu_gated_geglu__prompt'
HDR=open('cdna_kernels/'+NAME+'.s.ref').read().split('; Override')[0]
def full():
    A=Asm(); K=NAME+'_kernel'
    A.raw(HDR.rstrip())
    A.raw(f'; @launch grid=(256,1,1) block=(512,1,1) lds={LDS_TOTAL}')
    A.raw('.amdgcn_target "amdgcn-amd-amdhsa--gfx950"\n.text')
    A.raw(f'.globl {K}\n.p2align 8\n.type {K},@function'); A.L(K)
    A.I('s_cmp_ge_u32 s2, 256\ns_cbranch_scc1 k_done')
    if 'scram' in EXP: A.I('s_and_b32 s3, s2, 7\ns_lshl_b32 s3, s3, 5\ns_lshr_b32 s2, s2, 3\ns_or_b32 s2, s2, s3')
    A.I('''s_load_dwordx2 s[4:5], s[0:1], 72
    s_load_dwordx2 s[6:7], s[0:1], 0
    s_load_dwordx2 s[28:29], s[0:1], 32
    s_load_dwordx2 s[30:31], s[0:1], 40
    s_load_dwordx2 s[54:55], s[0:1], 64
    s_load_dwordx2 s[40:41], s[0:1], 8
    s_load_dwordx2 s[44:45], s[0:1], 16
    s_load_dwordx2 s[56:57], s[0:1], 48
    v_lshrrev_b32 v1, 6, v0
    s_nop 0
    v_readfirstlane_b32 s32, v1''')
    if 'pfe' in EXP:
        A.I(f'''s_getpc_b64 s[60:61]
        k_pc:
        v_lshlrev_b32 v4, 5, v0
        v_min_u32 v4, p1_join-k_pc, v4
        v_mov_b32 v5, s61
        v_add_co_u32 v4, vcc, s60, v4
        v_addc_co_u32 v5, vcc, 0, v5, vcc
        global_load_dword v7, v[4:5], off''')
    A.I('s_waitcnt lgkmcnt(0)')
    ST.mark(A)
    p1_body(A)
    if 'p1only' in EXP:
        A.I('s_waitcnt vmcnt(0)'); ST.mark(A); ST.dump(A); A.I('s_endpgm')
    n0=ST.n
    A.I('s_cmp_ge_u32 s32, 4\ns_cbranch_scc1 k_s2')
    A.fence()
    p3_phase(A)
    if STAMP: A.I('s_waitcnt vmcnt(0)')
    ST.mark(A)
    ST.dump(A)
    A.I('s_endpgm')
    A.L('k_s2'); A.fence()
    ST.n=n0
    s2_phase(A)
    ST.mark(A)
    ST.dump(A)
    A.L('k_done'); A.I('s_endpgm')
    txt=A.finalize()
    txt+=f'''.section .rodata,"a"
.p2align 6
.amdhsa_kernel {K}
  .amdhsa_next_free_vgpr 256
  .amdhsa_next_free_sgpr 100
  .amdhsa_accum_offset 256
  .amdhsa_group_segment_fixed_size 0
  .amdhsa_kernarg_size 80
  .amdhsa_user_sgpr_count 2
  .amdhsa_user_sgpr_kernarg_segment_ptr 1
  .amdhsa_system_sgpr_workgroup_id_x 1
  .amdhsa_float_denorm_mode_32 3
.end_amdhsa_kernel
'''
    return txt
if __name__=='__main__':
    if len(sys.argv)>2 and sys.argv[2]=='stamp': STAMP=True
    if len(sys.argv)>3: EXP=set(sys.argv[3].split(','))
    for e in EXP:
        if e.startswith('na'): NA_=int(e[2:])
        if e.startswith('zp'): ZP_=int(e[2:])
        if e.startswith('nb'): NB_=int(e[2:])
        if e.startswith('wi'): WI=int(e[2:])
        if e.startswith('ps'): PS_=int(e[2:])
        if e.startswith('ar'): NAR_=int(e[2:])
        if e.startswith('ti'): TI=int(e[2:])
    if 'pace1' in EXP: PACE=1
    if 'pace2' in EXP: PACE=2
    if 'perm' in EXP: SB[1],SB[2]=SB[2],SB[1]
    if 'sb16' in EXP: SB[1]=49152+4096; SB[2]=98304+8192
    if 'plainB' in EXP: SCB=''
    if 'pollsc1' in EXP: SCP=' sc1'
    if 'nos2' in EXP: pass
    open(sys.argv[1],'w').write(full())
```

```python
import sys, struct, math
from asmlib import *
OFF_HP=0; OFF_ZQ=0x700000; OFF_YQ=0x940000; OFF_WT=0xB40000
OFF_CNT=0x1000000; OFF_RS=0x1018000; OFF_CSP=0x1040000; OFF_TS=0x2000000
C_RS=0; C_CS=16; C_H=32; C_Y=48; C_Z=64; ZREP=16; C_N=64+ZREP*8; NCNT=256
SLOT=49152; XS=0; GS=16384; US=32768
SB=[0,49152,98304]
YSCR=3*SLOT
LDS_TOTAL=163840; CTRL=LDS_TOTAL-256; STAT=CTRL-1024
NSL=17; AREG=NSL*2048
EX=4*AREG
STAMP=False; EXP=set(); PACE=0; NA_=17; ZP_=18; NB_=8; WI=4; PS_=0; NAR_=0; TI=1; NE_=0
SC=' sc1'
SCB=' sc1'
SCP=' sc1'
def f2u(x): return '0x%08x'%struct.unpack('<I',struct.pack('<f',x))[0]
class Stamps:
    def __init__(s): s.n=0
    def mark(s,A):
        if not STAMP or s.n>=15: return
        A.I(f's_{"memtime" if "clk" in EXP else "memrealtime"} s[{66+2*s.n}:{67+2*s.n}]'); s.n+=1
    def dump(s,A,n=None):
        if not STAMP: return
        n=s.n if n is None else n
        if 'diag' in EXP:
            A.I('s_waitcnt lgkmcnt(0) vmcnt(0)')
            l=newlab('dg')
            A.I(f's_cmp_lg_u32 s32, 0\ns_cbranch_scc1 {l}')
            A.I('s_load_dwordx2 s[96:97], s[0:1], 64\ns_waitcnt lgkmcnt(0)\ns_mov_b64 exec, 1')
            A.I('s_not_b32 s60, s66\nv_mov_b32 v244, 4\nv_mov_b32 v245, s60\nglobal_atomic_umax v244, v245, s[96:97]')
            for i in range(1,min(n,13)):
                A.I(f'v_mov_b32 v244, {4+4*i}\nv_mov_b32 v245, s{66+2*i}\nglobal_atomic_umax v244, v245, s[96:97]')
            A.I('s_mov_b64 exec, -1')
            A.L(l)
            return
        A.I('s_waitcnt lgkmcnt(0) vmcnt(0)')
        A.I(f's_lshl_b32 s60, s2, 3\ns_add_u32 s60, s60, s32\ns_lshl_b32 s60, s60, 7\ns_add_u32 s60, s60, {hex(OFF_TS)}')
        A.I(f's_add_u32 s96, s4, s60\ns_addc_u32 s97, s5, 0')
        A.I('v_mov_b32 v246, 0')
        for i in range(n):
            A.I(f'v_mov_b32 v244, s{66+2*i}\nv_mov_b32 v245, s{67+2*i}')
            A.I(f'global_store_dwordx2 v246, v[244:245], s[96:97] offset:{8*i}')
            A.I('s_nop 1')
ST=Stamps()
def srd(A,dst,base,off,size):
    if off:
        A.I(f's_add_u32 s{dst}, s{base}, {hex(off)}'); A.I(f's_addc_u32 s{dst+1}, s{base+1}, 0')
    else:
        A.I(f's_mov_b32 s{dst}, s{base}'); A.I(f's_mov_b32 s{dst+1}, s{base+1}')
    A.I(f's_mov_b32 s{dst+2}, {hex(size)}'); A.I(f's_mov_b32 s{dst+3}, 0x20000')
def mf16(A,D,a,b,first):
    A.I(f'v_mfma_f32_16x16x32_bf16 {v(D,4)}, {v(a,4)}, {v(b,4)}, {"0" if first else v(D,4)}')
def mf32(A,D,a,b,first=False):
    A.I(f'v_mfma_f32_32x32x16_bf16 {v(D,16)}, {v(a,4)}, {v(b,4)}, {"0" if first else v(D,16)}')
_lab=[0]
def newlab(p):
    _lab[0]+=1; return f'{p}_{_lab[0]}'
SPIN_MAX=0x20000
def lds_wait(A,vaddr,vtmp,off,val,n=1):
    l=newlab('lw'); d=newlab('ld')
    A.I('s_mov_b32 s58, 0'); A.L(l)
    if n==1:
        A.I(f'ds_read_b32 v{vtmp}, v{vaddr} offset:{off}\ns_waitcnt lgkmcnt(0)')
    else:
        A.I(f'ds_read_b128 {v(vtmp,4)}, v{vaddr} offset:{off}\ns_waitcnt lgkmcnt(0)')
        A.I(f'v_min_u32 v{vtmp}, v{vtmp}, v{vtmp+1}\nv_min_u32 v{vtmp+2}, v{vtmp+2}, v{vtmp+3}\nv_min_u32 v{vtmp}, v{vtmp}, v{vtmp+2}')
    A.I(f'v_readfirstlane_b32 s59, v{vtmp}')
    A.I(f's_cmp_ge_u32 s59, {val}\ns_cbranch_scc1 {d}')
    A.I(f's_add_u32 s58, s58, 1\ns_cmp_lt_u32 s58, {SPIN_MAX}\ns_cbranch_scc1 {l}')
    A.L(d)
def cnt_base(A):
    A.I(f's_add_u32 s62, s4, {hex(OFF_CNT)}\ns_addc_u32 s63, s5, 0')
def arrive(A,sidx,vt):
    cnt_base(A)
    A.I(f's_lshl_b32 s59, s{sidx}, 7\nv_mov_b32 v{vt}, s59\nv_mov_b32 v{vt+1}, 1\ns_mov_b64 exec, 1')
    A.I(f'global_atomic_add v{vt}, v{vt+1}, s[62:63]{SC}')
    A.I('s_mov_b64 exec, -1')
def poll_cnt(A,voff,vexp,vt,nl,first_loaded=False,sleep=0):
    l=newlab('pc'); d=newlab('pd'); c=newlab('pk')
    cnt_base(A)
    A.I(f's_mov_b32 s58, 0\ns_mov_b64 exec, {(1<<nl)-1}')
    if first_loaded: A.I(f's_branch {c}')
    A.L(l)
    A.I(f'global_load_dword v{vt}, v{voff}, s[62:63]{SCP}\ns_waitcnt vmcnt(0)')
    A.L(c)
    A.I(f'v_cmp_ne_u32 vcc, v{vt}, v{vexp}\ns_cbranch_vccz {d}')
    if sleep: A.I(f's_sleep {sleep}')
    A.I(f's_add_u32 s58, s58, 1\ns_cmp_lt_u32 s58, {SPIN_MAX>>4}\ns_cbranch_scc1 {l}')
    A.L(d)
    A.I('s_mov_b64 exec, -1')

def p1_body(A):
    L,half,l32=1,2,3
    vX0,vX1,vW=4,5,6
    vAr=8; vBr=12
    csr=24; ones=28
    AFR=32; BFR=48
    T=80
    RSL=104; RSV=108
    vHo=112
    ACC=128
    vFw=8; fu=12; kb=13; kmask=14; FB=32; FO=48; SV=128; ST2=56; WTr=60; vWTs=76; vWTd=77; CSL=160; RD=20; FP=22
    PB=192
    tile=lambda m,st: ACC+(st>>1)*64+(m*2+(st&1))*16
    A.I(f"""
    v_and_b32 v{L}, 63, v0
    v_and_b32 v{l32}, 31, v0
    v_bfe_u32 v{half}, v0, 5, 1
    s_and_b32 s33, s2, 7
    s_lshr_b32 s34, s2, 3
    s_and_b32 s35, s33, 1
    s_lshl_b32 s35, s35, 3
    s_and_b32 s36, s34, 7
    s_add_u32 s35, s35, s36              ; rb
    s_lshr_b32 s33, s33, 1
    s_lshl_b32 s33, s33, 2
    s_lshr_b32 s34, s34, 3
    s_add_u32 s34, s33, s34              ; cb
    s_and_b32 s36, s32, 3                ; fq (C) / h (H)
    s_lshr_b32 s37, s32, 2               ; sh
    s_lshr_b32 s49, s35, 1               ; s0 (K rotation)
    s_cmp_lt_u32 s32, 4
    s_cbranch_scc1 p1_roleC
    """)
    NST=8
    def spread_into(G,items,lo,hi):
        n=hi-lo
        for j,it in enumerate(items): G[lo+min(j*n//max(len(items),1),n-1)].append(it)
    want=lambda i: i in ((0,1,2,3,4,5,6,7) if 'allB' in EXP else (1,2,3,4,5) if 'bw' in EXP else (() if ('p3steps' in EXP or 's2fine' in EXP) else (0,4)))
    n_st=ST.n
    vq=[]
    srd(A,8,6,0,2048*512*2)
    srd(A,12,28,0,512*1792*2)
    srd(A,16,30,0,512*1792*2)
    mask=0
    for Ln in range(64):
        c=(Ln%16)^((Ln//16)<<2)
        if c<14: mask|=1<<Ln
    A.I(f"""
    s_mov_b32 s50, {hex(mask&0xffffffff)}
    s_mov_b32 s51, {hex(mask>>32)}
    s_lshl_b32 s38, s36, 12              ; h*4096
    v_lshrrev_b32 v{T}, 3, v{L}
    v_lshlrev_b32 v{T}, 16, v{T}
    s_lshl_b32 s60, s35, 2
    s_add_u32 s60, s60, s36
    s_lshl_b32 s60, s60, 10
    v_add_u32 v{T}, s60, v{T}
    v_and_b32 v{T+1}, 7, v{L}
    v_lshrrev_b32 v{T+2}, 4, v{L}
    v_xor_b32 v{T+1}, v{T+1}, v{T+2}
    v_lshl_add_u32 v{vX0}, v{T+1}, 4, v{T}
    v_xor_b32 v{vX1}, 64, v{vX0}
    s_lshl_b32 s60, s36, 4
    v_add_u32 v{T+1}, s60, v{T+2}
    s_movk_i32 s60, 3584
    v_mul_lo_u32 v{T+1}, v{T+1}, s60
    v_and_b32 v{T+3}, 15, v{L}
    v_lshlrev_b32 v{T+2}, 2, v{T+2}
    v_xor_b32 v{T+3}, v{T+3}, v{T+2}
    v_lshl_add_u32 v{vW}, v{T+3}, 4, v{T+1}
    s_mul_i32 s60, s34, 224
    v_add_u32 v{vW}, s60, v{vW}
    """)
    XV='xv' in EXP
    XB=[208,224,240]
    def xload(stage):
        b=XB[stage%3]
        A.I(f's_add_u32 s52, s49, {stage}\ns_and_b32 s52, s52, 7\ns_lshl_b32 s52, s52, 7')
        for i in range(4):
            A.I(f's_add_u32 s60, s52, {i*524288}')
            A.I(f'buffer_load_dwordx4 {v(b+4*i,4)}, v{vX0+(i&1)}, s[8:11], s60 offen'); vq.append(('X',stage))
    def xwrite(stage):
        b=XB[stage%3]
        vwait(('X',stage))
        for i in range(4): A.I(f'ds_write_b128 v{16+stage%3}, {v(b+4*i,4)} offset:{XS+i*1024}')
    def dma(stage):
        slot=SB[stage%3]
        A.I(f's_add_u32 s52, s49, {stage}\ns_and_b32 s52, s52, 7\ns_mul_i32 s53, s52, {64*3584}\ns_lshl_b32 s52, s52, 7')
        for i in range(4):
            if not (XV and stage>=2):
                A.I(f's_add_u32 m0, s38, {slot+XS+i*1024}')
                A.I(f's_add_u32 s60, s52, {i*524288}')
                A.I(f'buffer_load_dwordx4 v{vX0+(i&1)}, s[8:11], s60 offen lds'); vq.append(stage)
            if PACE and stage>1: A.I(f's_sleep {PACE}')
            A.I(f's_add_u32 s60, s53, {i*14336}\ns_mov_b64 exec, s[50:51]')
            for m in range(2):
                A.I(f's_add_u32 m0, s38, {slot+(US if m else GS)+i*1024}\ns_nop 0')
                A.I(f'buffer_load_dwordx4 v{vW}, s[{12+4*m}:{15+4*m}], s60 offen lds'); vq.append(stage)
                if PACE and stage>1: A.I(f's_sleep {PACE}')
            A.I('s_mov_b64 exec, -1')
    VST='vst' in EXP
    RBUF=[112,160,208]; vLW=16
    def gload(stage):
        b=RBUF[stage%3]
        A.I(f's_add_u32 s52, s49, {stage}\ns_and_b32 s52, s52, 7\ns_mul_i32 s53, s52, {64*3584}\ns_lshl_b32 s52, s52, 7')
        for i in range(4):
            A.I(f's_add_u32 s60, s52, {i*524288}')
            A.I(f'buffer_load_dwordx4 {v(b+12*i,4)}, v{vX0+(i&1)}, s[8:11], s60 offen'); vq.append(('L',stage))
            A.I(f's_add_u32 s60, s53, {i*14336}\ns_mov_b64 exec, s[50:51]')
            for m in range(2):
                A.I(f'buffer_load_dwordx4 {v(b+12*i+4+4*m,4)}, v{vW}, s[{12+4*m}:{15+4*m}], s60 offen'); vq.append(('L',stage))
            A.I('s_mov_b64 exec, -1')
    def lwrite(stage):
        b=RBUF[stage%3]; sl=stage%3
        vwait(('L',stage))
        for i in range(4): A.I(f'ds_write_b128 v{vLW+sl}, {v(b+12*i,4)} offset:{XS+i*1024}')
        A.I('s_mov_b64 exec, s[50:51]')
        for i in range(4):
            for m in range(2): A.I(f'ds_write_b128 v{vLW+sl}, {v(b+12*i+4+4*m,4)} offset:{(US if m else GS)+i*1024}')
        A.I('s_mov_b64 exec, -1')
    def vwait(tag,lg=False):
        idx=[k for k,x in enumerate(vq) if x==tag]
        if not idx:
            if lg: A.I('s_waitcnt lgkmcnt(0)')
            return
        N=len(vq)-1-max(idx); del vq[:max(idx)+1]
        A.I(f's_waitcnt vmcnt({min(N,63)})'+(' lgkmcnt(0)' if lg else ''))
    if VST: SV=60
    (gload if VST else dma)(0)
    A.I(f"""
    s_lshl_b32 s33, s34, 3
    s_lshl_b32 s60, s36, 1
    s_add_u32 s33, s33, s60
    s_lshl_b32 s60, s35, 7
    s_add_u32 s64, s60, s33
    v_lshlrev_b32 v{T}, 4, v{L}
    """)
    for n in range(2):
        A.I(f"""s_add_u32 s60, s64, {n}
        s_and_b32 s61, s60, 31
        s_lshl_b32 s61, s61, 6
        s_lshr_b32 s60, s60, 5
        s_add_u32 s60, s60, s61
        s_lshl_b32 s60, s60, 10
        buffer_load_dwordx4 {v(SV+4*n,4)}, v{T}, s[8:11], s60 offen"""); vq.append('row')
    if XV: xload(2)
    (gload if VST else dma)(1)
    if XV:
        xload(3); xload(4)
        A.I(f'v_lshlrev_b32 v16, 4, v{L}\nv_add_u32 v16, s38, v16\nv_add_u32 v17, {SB[1]}, v16\nv_add_u32 v18, {SB[2]}, v16')
    if VST:
        gload(2)
        A.I(f'v_lshlrev_b32 v{vLW}, 4, v{L}\nv_add_u32 v{vLW}, s38, v{vLW}\nv_add_u32 v{vLW+1}, {SB[1]}, v{vLW}\nv_add_u32 v{vLW+2}, {SB[2]}, v{vLW}')
    A.I('s_cmp_lt_u32 s32, 6\ns_cbranch_scc1 p1H_nf')
    A.skip_begin()
    A.I(f"""
    s_and_b32 s39, s32, 1
    s_lshl_b32 s33, s49, 6
    s_lshl_b32 s60, s39, 5
    s_add_u32 s33, s33, s60
    v_add_u32 v{T+2}, s33, v{l32}
    v_cvt_f32_u32 v{fu}, v{T+2}
    v_mul_f32 v{fu}, {f2u(1/512)}, v{fu}
    s_lshl_b32 s33, s34, 4
    v_lshlrev_b32 v{T+3}, 3, v{half}
    v_add_u32 v{T+3}, s33, v{T+3}
    v_cvt_f32_u32 v{kb}, v{T+3}
    v_mov_b32 v{kmask}, 0xffff
    """)
    for b_ in range(2):
        if b_==1: A.I(f'v_add_f32 v{fu}, {f2u(0.125)}, v{fu}\nv_fract_f32 v{fu}, v{fu}')
        A.I(f'v_mul_f32 v{T+4}, v{fu}, v{kb}')
        for j in range(4):
            A.I(f'v_cos_f32 v{T+6}, v{T+4}\nv_sin_f32 v{T+8}, v{T+4}\nv_add_f32 v{T+4}, v{T+4}, v{fu}')
            A.I(f'v_cos_f32 v{T+7}, v{T+4}\nv_sin_f32 v{T+9}, v{T+4}\nv_add_f32 v{T+4}, v{T+4}, v{fu}')
            A.I(f'v_cvt_pk_bf16_f32 v{FB+8*b_+j}, v{T+6}, v{T+7}')
            A.I(f'v_cvt_pk_bf16_f32 v{FB+8*b_+4+j}, -v{T+8}, -v{T+9}')
        A.I(f"""v_and_b32 v{T+5}, 1, v{l32}
        v_lshlrev_b32 v{T+5}, 15, v{T+5}
        v_or_b32 v{T+5}, 0x3f80, v{T+5}
        v_bfi_b32 v{T+5}, v{kmask}, v{T+5}, v{FB+8*b_+4}
        v_cmp_eq_u32 vcc, 0, v{T+3}
        v_cndmask_b32 v{FB+8*b_+4}, v{FB+8*b_+4}, v{T+5}, vcc""")
    A.I(f"""
    s_lshl_b32 s60, s39, 5
    v_add_u32 v{T+2}, s60, v{l32}
    v_and_b32 v{T+3}, 3, v{T+2}
    v_lshlrev_b32 v{T+3}, 2, v{T+3}
    v_add_u32 v{T+4}, 14, v{half}
    v_xor_b32 v{T+3}, v{T+3}, v{T+4}
    v_lshlrev_b32 v{T+3}, 4, v{T+3}
    v_lshl_add_u32 v{T+3}, v{T+2}, 8, v{T+3}
    v_add_u32 v{vFw}, {GS+SB[0]}, v{T+3}
    v_add_u32 v{vFw+1}, {GS+SB[1]}, v{T+3}
    v_add_u32 v{vFw+2}, {GS+SB[2]}, v{T+3}
    """)
    A.skip_end(); A.L('p1H_nf')
    flab=[0]
    def fgen(stage):
        flab[0]+=1; l=f'p1H_fg{flab[0]}'
        A.I(f's_cmp_lt_u32 s32, 6\ns_cbranch_scc1 {l}')
        A.skip_begin()
        slot=stage%3; b_=stage&1; t=(stage>>1)&3; B0=FB+8*b_
        def wr(m,src): A.I(f'ds_write_b128 v{vFw+slot}, {v(src,4)} offset:{m*16384}')
        if t==0:
            wr(0,B0); wr(1,B0+4)
        elif t==2:
            for m in range(2):
                for j in range(4): A.I(f'v_xor_b32 v{FO+4*m+j}, 0x80000000, v{B0+4*m+j}')
                wr(m,FO+4*m)
        else:
            ex=0 if t==1 else 0x80000000
            for m in range(2):
                for j in range(4):
                    own=B0+4*m+j; oth=B0+4*(1-m)+j
                    A.I(f'v_bfi_b32 v{FO+4*m+j}, v{kmask}, v{own}, v{oth}')
                    if m==0: sg=(0 if j%2==0 else 0x80008000)
                    else: sg=(0x80000000 if j%2==0 else 0x8000)
                    sg^=ex
                    if sg: A.I(f'v_xor_b32 v{FO+4*m+j}, {hex(sg)}, v{FO+4*m+j}')
                wr(m,FO+4*m)
        A.skip_end(); A.L(l)
    A.I('s_cmp_lg_u32 s2, 0\ns_cbranch_scc1 p1H_non\ns_cmp_lg_u32 s32, 7\ns_cbranch_scc1 p1H_non')
    A.skip_begin()
    cnt_base(A)
    A.I(f'v_lshlrev_b32 v{T}, 7, v{L}\nv_mov_b32 v{T+1}, 0')
    for j in range(NCNT//64):
        A.I(f'global_store_dword v{T}, v{T+1}, s[62:63]{SC}\nv_add_u32 v{T}, {64*128}, v{T}')
    A.I('s_mov_b64 exec, 1')
    A.I(f's_waitcnt vmcnt(0)\nv_mov_b32 v{T}, 0\nv_mov_b32 v{T+1}, 1\nglobal_store_dword v{T}, v{T+1}, s[54:55]{SC}\ns_mov_b64 exec, -1')
    A.skip_end(); A.L('p1H_non')
    def rowstats():
        U=T+14; S=ST2
        vwait('row')
        for i in range(4):
            for n in range(2):
                u=U+2*n
                A.I(f'v_lshlrev_b32 v{u}, 16, v{SV+4*n+i}\nv_and_b32 v{u+1}, 0xffff0000, v{SV+4*n+i}')
                if i==0: A.I(f'v_add_f32 v{S+2*n}, v{u}, v{u+1}\nv_mul_f32 v{S+2*n+1}, v{u}, v{u}')
                else: A.I(f'v_add_f32 v{S+2*n}, v{S+2*n}, v{u}\nv_fmac_f32 v{S+2*n+1}, v{u}, v{u}\nv_add_f32 v{S+2*n}, v{S+2*n}, v{u+1}')
                A.I(f'v_fmac_f32 v{S+2*n+1}, v{u+1}, v{u+1}')
        for ror in (8,4,2,1):
            for x in range(S,S+4): A.I(f'v_add_f32_dpp v{x}, v{x}, v{x} row_ror:{ror} row_mask:0xf bank_mask:0xf')
        for op in ('v_permlane16_swap_b32','v_permlane32_swap_b32'):
            for k in range(4): A.I(f'v_mov_b32 v{U+k}, v{S+k}')
            for k in range(4): A.I(f'{op} v{S+k}, v{U+k}')
            for k in range(4): A.I(f'v_add_f32 v{S+k}, v{S+k}, v{U+k}')
        A.I(f"""
        v_and_b32 v{U}, 1, v{L}
        v_cmp_eq_u32 vcc, 1, v{U}
        v_cndmask_b32 v{S}, v{S}, v{S+2}, vcc
        v_cndmask_b32 v{S+1}, v{S+1}, v{S+3}, vcc
        v_mul_f32 v{U}, {f2u(1/512)}, v{S}
        v_mul_f32 v{U+1}, {f2u(1/512)}, v{S+1}
        v_fma_f32 v{U+1}, -v{U}, v{U}, v{U+1}
        v_max_f32 v{U+1}, 0, v{U+1}
        v_cvt_pk_bf16_f32 v{U}, v{U}, v{U+1}
        v_and_b32 v{U+1}, 0xffff0000, v{U}
        v_lshlrev_b32 v{U}, 16, v{U}
        v_sub_f32 v{S}, 0, v{U}
        v_add_f32 v{U+1}, {f2u(1e-5)}, v{U+1}
        v_cvt_pk_bf16_f32 v{U+1}, v{U+1}, v{U+1}
        v_and_b32 v{U+1}, 0xffff0000, v{U+1}
        v_sqrt_f32 v{U+1}, v{U+1}
        v_cvt_pk_bf16_f32 v{U+1}, v{U+1}, v{U+1}
        v_and_b32 v{S+1}, 0xffff0000, v{U+1}
        s_lshl_b32 s60, s64, 3
        s_add_u32 s60, s60, {OFF_RS}
        s_add_u32 s62, s4, s60
        s_addc_u32 s63, s5, 0
        v_lshlrev_b32 v{U}, 3, v{L}
        s_mov_b64 exec, 3
        global_store_dwordx2 v{U}, {v(S,2)}, s[62:63]{SC}
        s_mov_b64 exec, -1
        """); vq.append('st')
    WV=128
    wS=76; wD=77
    def wt_job_loads():
        A.I(f"""
        v_and_b32 v{wD}, 255, v0
        v_lshrrev_b32 v{wD}, 4, v{wD}
        s_lshl_b32 s60, s35, 7
        v_add_u32 v{wS}, s60, v{wD}
        v_mul_u32_u24 v{wS}, 257, v{wS}
        v_and_b32 v{wD+1}, 15, v0
        s_lshl_b32 s60, s34, 4
        v_add_u32 v{wD+1}, s60, v{wD+1}
        v_add_u32 v{wS}, v{wS}, v{wD+1}
        v_lshlrev_b32 v{wS}, 1, v{wS}
        s_lshr_b32 s60, s35, 2
        s_lshl_b32 s60, s60, 11
        s_and_b32 s61, s35, 3
        s_lshl_b32 s61, s61, 8
        s_add_u32 s65, s60, s61
        v_lshlrev_b32 v{wD}, 4, v{wD}
        v_add_u32 v{wD}, s65, v{wD}
        v_lshl_add_u32 v{wD}, v{wD+1}, 13, v{wD}
        s_mov_b32 s42, 0x101000
        s_mov_b32 s43, 0x20000
        s_mov_b32 s46, 0x101000
        s_mov_b32 s47, 0x20000
        """)
        for n in range(2):
            for r in range(4):
                A.I(f's_mov_b32 s60, {r*16448+n*8224}')
                A.I(f'buffer_load_short_d16 v{WV+4*n+r}, v{wS}, s[40:43], s60 offen')
                A.I(f'buffer_load_short_d16_hi v{WV+8+4*n+r}, v{wS}, s[44:47], s60 offen'); vq.extend(['wt','wt'])
        A.I('s_cmp_lg_u32 s34, 0\ns_cbranch_scc1 p1H_wt0\ns_cmp_lg_u32 s32, 4\ns_cbranch_scc1 p1H_wt0')
        A.skip_begin()
        A.I(f's_lshl_b32 s60, s35, 7\nv_add_u32 v{wD+1}, s60, v{l32}\nv_mul_u32_u24 v{wD+1}, 257, v{wD+1}\nv_add_u32 v{wD+1}, 256, v{wD+1}\nv_lshlrev_b32 v{wD+1}, 1, v{wD+1}')
        for r in range(4):
            A.I(f's_mov_b32 s60, {r*16448}')
            A.I(f'buffer_load_short_d16 v{WV+16+r}, v{wD+1}, s[40:43], s60 offen')
            A.I(f'buffer_load_short_d16_hi v{WV+20+r}, v{wD+1}, s[44:47], s60 offen')
        A.skip_end(); A.L('p1H_wt0')
    def wt_job_stores():
        vwait('wt')
        srd(A,40,4,OFF_WT,257*8192)
        for n in range(2):
            for r in range(4): A.I(f'v_or_b32 v{WV+4*n+r}, v{WV+4*n+r}, v{WV+8+4*n+r}')
            A.I(f'buffer_store_dwordx4 {v(WV+4*n,4)}, v{wD}, s[40:43], 0 offen offset:{n*1024}{SC}'); vq.append('wst')
        A.I('s_cmp_lg_u32 s34, 0\ns_cbranch_scc1 p1H_wt1\ns_cmp_lg_u32 s32, 4\ns_cbranch_scc1 p1H_wt1')
        A.skip_begin()
        for r in range(4): A.I(f'v_or_b32 v{WV+16+r}, v{WV+16+r}, v{WV+20+r}')
        A.I(f'v_lshrrev_b32 v{wS}, 4, v{l32}\nv_lshlrev_b32 v{wS}, 10, v{wS}\nv_and_b32 v{wD+1}, 15, v{l32}\nv_lshl_add_u32 v{wS}, v{wD+1}, 4, v{wS}')
        A.I(f'v_add_u32 v{wS}, s65, v{wS}\nv_add_u32 v{wS}, 0x200000, v{wS}\ns_mov_b32 exec_hi, 0')
        A.I(f'buffer_store_dwordx4 {v(WV+16,4)}, v{wS}, s[40:43], 0 offen{SC}\ns_mov_b64 exec, -1')
        A.skip_end(); A.L('p1H_wt1')
    def warmup():
        A.I(f"""
        s_bfe_u32 s60, s2, 0x30003            ; n&7
        s_mul_i32 s60, s60, 224
        s_mul_i32 s61, s36, 56
        s_add_u32 s60, s60, s61
        v_add_u32 v{T}, s60, v{L}
        v_lshlrev_b32 v{T}, 10, v{T}
        s_bfe_u32 s60, s2, 0x10002            ; x>>2
        s_lshl_b32 s60, s60, 2
        s_lshr_b32 s61, s2, 6
        s_add_u32 s60, s60, s61               ; db
        s_lshl_b32 s60, s60, 7
        v_add_u32 v{T}, s60, v{T}
        s_mov_b32 s20, s56
        s_mov_b32 s21, s57
        s_mov_b32 s22, {hex(1792*512*2)}
        s_mov_b32 s23, 0x20000
        buffer_load_dword v{T+2}, v{T}, s[20:23], 0 offen
        """)
        vq.append('pf')
    def warm_filter():
        A.I(f"""
        s_lshl_b32 s60, s35, 7
        s_lshl_b32 s61, s36, 5
        s_add_u32 s60, s60, s61
        v_add_u32 v{T}, s60, v{l32}
        v_mul_u32_u24 v{T}, 514, v{T}
        s_lshl_b32 s60, s34, 5
        v_add_u32 v{T}, s60, v{T}
        v_and_b32 v{T}, -4, v{T}
        s_mov_b32 s42, 0x101000
        s_mov_b32 s43, 0x20000
        s_mov_b32 s46, 0x101000
        s_mov_b32 s47, 0x20000
        s_mov_b32 exec_hi, 0
        buffer_load_dword v{T+2}, v{T}, s[40:43], 0 offen
        s_mov_b64 exec, -1
        s_mov_b32 exec_lo, 0
        buffer_load_dword v{T+3}, v{T}, s[44:47], 0 offen
        s_mov_b64 exec, -1
        """); vq.extend(['pf','pf'])
    def warm_all(cs):
        A.I(f"""
        s_bfe_u32 s60, s2, 0x10002
        s_lshl_b32 s60, s60, 2
        s_lshr_b32 s61, s2, 6
        s_add_u32 s60, s60, s61
        s_lshl_b32 s60, s60, 7
        s_mul_i32 s61, s36, {448*1024}
        s_add_u32 s60, s60, s61
        v_lshlrev_b32 v{T}, 10, v{L}
        s_mov_b32 s20, s56
        s_mov_b32 s21, s57
        s_mov_b32 s22, {hex(1792*512*2)}
        s_mov_b32 s23, 0x20000
        """)
        for c in cs:
            A.I(f's_add_u32 s61, s60, {c*64*1024}\nbuffer_load_dword v{T+2}, v{T}, s[20:23], s61 offen'); vq.append('pf')
    def tlb_warm():
        A.I(f"""
        v_lshlrev_b32 v{T}, 19, v{L}
        v_min_u32 v{T}, {hex(0x1100000)}, v{T}
        global_load_dword v{T+2}, v{T}, s[4:5]
        s_load_dwordx2 s[62:63], s[0:1], 56
        v_and_b32 v{T+1}, 3, v{L}
        v_lshlrev_b32 v{T+1}, 19, v{T+1}
        s_waitcnt lgkmcnt(0)
        global_load_dword v{T+3}, v{T+1}, s[62:63]
        """); vq.extend(['pf','pf'])
    def ready_load():
        A.I(f'v_mov_b32 v{RD+1}, 0\ns_mov_b64 exec, 1\nglobal_load_dword v{RD}, v{RD+1}, s[54:55]{SCP}\ns_mov_b64 exec, -1'); vq.append('non')
    def ready_check():
        l=newlab('nl'); d=newlab('nd')
        A.I(f'v_readfirstlane_b32 s3, v{RD}\ns_cmp_lg_u32 s3, 0\ns_cbranch_scc1 {d}\ns_mov_b32 s58, 0')
        A.L(l)
        A.I(f'global_load_dword v{RD}, v{RD+1}, s[54:55]{SCP}\ns_waitcnt vmcnt(0)\nv_readfirstlane_b32 s3, v{RD}')
        A.I(f's_cmp_lg_u32 s3, 0\ns_cbranch_scc1 {d}\ns_add_u32 s58, s58, 1\ns_cmp_lt_u32 s58, {SPIN_MAX>>4}\ns_cbranch_scc1 {l}')
        A.L(d)
    def rs_loads(q):
        A.I(f"""
        s_lshl_b32 s60, s35, 7
        s_lshl_b32 s61, s37, 6
        s_add_u32 s60, s60, s61
        v_add_u32 v{RSL}, s60, v{l32}
        v_lshlrev_b32 v{RSL+1}, 3, v{RSL}
        s_add_u32 s62, s4, {OFF_RS}
        s_addc_u32 s63, s5, 0
        global_load_dwordx2 {v(RSV,2)}, v{RSL+1}, s[62:63]{SC}
        global_load_dwordx2 {v(RSV+2,2)}, v{RSL+1}, s[62:63] offset:256{SC}
        """); q.extend(['rs','rs'])
    if VST:
        lwrite(0); gload(3); lwrite(1); gload(4)
    for i in range(NST):
        if 'bw' in EXP and i in (1,2,3,4,5): ST.mark(A)
        if VST and i==3: vwait('st')
        vwait(i,True)
        if 'bw' in EXP and i in (1,2,3,4,5): ST.mark(A)
        if i==6:
            A.I('s_cmp_lg_u32 s32, 4\ns_cbranch_scc1 p1H_sq')
            A.skip_begin()
            A.I('s_waitcnt vmcnt(0)' if VST else ('s_waitcnt vmcnt(8)' if XV else 's_waitcnt vmcnt(12)'))
            poll_cnt(A,FP+1,FP+3,FP+2,2,True)
            A.skip_end(); A.L('p1H_sq')
        A.I('s_barrier')
        if want(i): ST.mark(A)
        if i==5:
            A.I(f"""
            s_lshl_b32 s60, s35, 7
            s_add_u32 s61, s34, {C_CS}
            s_lshl_b32 s61, s61, 7
            v_mov_b32 v{FP+1}, s61
            v_mov_b32 v{FP}, s60
            v_cmp_eq_u32 vcc, 0, v{L}
            v_cndmask_b32 v{FP+1}, v{FP+1}, v{FP}, vcc
            v_mov_b32 v{FP+3}, 16
            s_cmp_lg_u32 s32, 4
            s_cbranch_scc1 p1H_sp
            """)
            A.skip_begin()
            cnt_base(A)
            A.I(f's_mov_b64 exec, 3\nglobal_load_dword v{FP+2}, v{FP+1}, s[62:63]{SCP}\ns_mov_b64 exec, -1')
            A.skip_end(); A.L('p1H_sp')
        if i==0: ready_load()
        if i==3:
            A.I('s_cmp_lg_u32 s32, 4\ns_cbranch_scc1 p1H_f0')
            A.skip_begin()
            ready_check()
            arrive(A,35,T+14)
            A.I(f's_add_u32 s61, s34, {C_CS}'); arrive(A,61,T+14)
            A.skip_end(); A.L('p1H_f0')
        if i+2<NST: fgen(i+2)
        if i+2<NST and XV:
            xwrite(i+2)
            if i+5<NST: xload(i+5)
        if i+2<NST and not VST: dma(i+2)
        if i+2<NST and VST:
            lwrite(i+2)
            if i+5<NST: gload(i+5)
        if i==0: rowstats()
        if i==WI and 'nopf' not in EXP: warmup()
        if 'pfall' in EXP and i in (1,2,3,4): warm_all({1:(0,1),2:(2,3),3:(4,5),4:(6,)}[i])
        if i==3 and 'pff' in EXP: warm_filter()
        if i==TI and 'tlb' in EXP: tlb_warm()
        if i==6:
            wt_job_loads()
            rs_loads(vq)
            A.I(f's_lshl_b32 s60, s34, 14\ns_add_u32 s60, s60, {OFF_CSP}\ns_add_u32 s20, s4, s60\ns_addc_u32 s21, s5, 0\nv_and_b32 v{FP}, 255, v0\nv_lshlrev_b32 v{FP}, 2, v{FP}')
            for j4 in range(4):
                if j4>0: A.I(f'v_add_u32 v{FP}, 4096, v{FP}')
                for j in range(4):
                    A.I(f'global_load_dword v{CSL+4*j4+j}, v{FP}, s[20:21] offset:{j*1024}{SC}'); vq.append('csp')
    vwait('csp')
    wt_job_stores()
    X=CSL
    for j in range(8): A.I(f'v_add_f32 v{X+j}, v{X+j}, v{X+8+j}')
    for j in range(4): A.I(f'v_add_f32 v{X+j}, v{X+j}, v{X+4+j}')
    A.I(f'v_add_f32 v{X}, v{X}, v{X+1}\nv_add_f32 v{X+2}, v{X+2}, v{X+3}\nv_add_f32 v{X}, v{X}, v{X+2}')
    A.I(f"""
    v_cvt_pk_bf16_f32 v{X+1}, v{X}, v{X}
    v_and_b32 v{X+1}, 0xffff0000, v{X+1}
    v_sub_f32 v{X+2}, v{X}, v{X+1}
    v_cvt_pk_bf16_f32 v{X}, v{X+1}, v{X+2}
    v_and_b32 v{T}, 255, v0
    v_lshlrev_b32 v{T}, 2, v{T}
    v_add_u32 v{T}, {STAT}, v{T}
    ds_write_b32 v{T}, v{X}
    """)
    ST.mark(A)
    A.I(f"""
    s_lshl_b32 s60, s36, 14
    s_cmp_eq_u32 s36, 3
    s_cselect_b32 s60, {SB[2]}, s60
    v_lshlrev_b32 v{T}, 4, v{L}
    v_add_u32 v{T}, s60, v{T}
    s_waitcnt lgkmcnt(0)
    s_barrier
    """)
    for k in range(16): A.I(f'ds_read_b128 {v(ACC+4*k,4)}, v{T} offset:{k*1024}')
    A.I('s_branch p1_join')
    A.L('p1_roleC'); A.fence()
    ST.n=n_st
    cq=[]; lq=[]
    A.I(f"""
    v_lshrrev_b32 v{T}, 5, v{L}
    v_lshlrev_b32 v{T}, 3, v{T}
    v_bfe_u32 v{T+1}, v{L}, 2, 2
    v_add_u32 v{T}, v{T}, v{T+1}
    v_lshlrev_b32 v{T}, 8, v{T}
    v_bfe_u32 v{T+2}, v{L}, 4, 1
    v_lshlrev_b32 v{T+2}, 1, v{T+2}
    v_bfe_u32 v{T+3}, v{L}, 1, 1
    v_add_u32 v{T+2}, v{T+2}, v{T+3}
    s_lshl_b32 s33, s36, 2
    v_add_u32 v{T+2}, s33, v{T+2}
    v_lshlrev_b32 v{T+1}, 2, v{T+1}
    v_xor_b32 v{T+2}, v{T+2}, v{T+1}
    v_lshl_add_u32 v{T}, v{T+2}, 4, v{T}
    v_and_b32 v{T+3}, 1, v{L}
    v_lshl_add_u32 v{T}, v{T+3}, 3, v{T}
    v_add_u32 v{vAr}, {GS+SB[0]}, v{T}
    v_add_u32 v{vAr+1}, {GS+SB[1]}, v{T}
    v_add_u32 v{vAr+2}, {GS+SB[2]}, v{T}
    v_lshlrev_b32 v{T}, 7, v{l32}
    v_bfe_u32 v{T+1}, v{l32}, 1, 3
    v_xor_b32 v{T+1}, v{T+1}, v{half}
    v_lshl_add_u32 v{T}, v{T+1}, 4, v{T}
    v_mov_b32 v{ones}, 0x3f803f80
    """)
    for sl in range(3):
        for ks in range(4):
            if ks==0: A.I(f'v_add_u32 v{vBr+sl*4}, {SB[sl]+XS}, v{T}')
            else: A.I(f'v_xor_b32 v{vBr+sl*4+ks}, {ks*32}, v{vBr+sl*4}')
    for k in range(4): A.I(f'v_mov_b32 v{csr+k}, 0')
    A.I(f'v_mov_b32 v{T}, {CTRL}\nv_lshl_add_u32 v{T}, v{L}, 2, v{T}\nv_mov_b32 v{T+1}, 0\nds_write_b32 v{T}, v{T+1}')
    A.I(f"""
    s_lshl_b32 s60, s36, 4
    v_and_b32 v{T}, 15, v{L}
    v_add_u32 v{T}, s60, v{T}              ; row
    s_lshl_b32 s60, s49, 6
    v_lshlrev_b32 v{T+1}, 6, v{half}
    v_add_u32 v{T+1}, v{T+1}, v{T}
    v_add_u32 v{T+1}, s60, v{T+1}
    v_and_b32 v{T+1}, 511, v{T+1}          ; d
    v_cvt_f32_u32 v{T+2}, v{T+1}
    v_mul_f32 v{T+2}, {f2u(1/512)}, v{T+2} ; u
    v_bfe_u32 v{T+3}, v{L}, 4, 1           ; ch
    s_lshl_b32 s60, s34, 4
    v_lshlrev_b32 v{T+4}, 3, v{T+3}
    v_add_u32 v{T+4}, s60, v{T+4}          ; k0
    v_cvt_f32_u32 v{T+5}, v{T+4}
    v_mul_f32 v{T+5}, v{T+5}, v{T+2}       ; angle
    """)
    for j in range(4):
        A.I(f'v_cos_f32 v{T+6}, v{T+5}\nv_sin_f32 v{T+8}, v{T+5}\nv_add_f32 v{T+5}, v{T+5}, v{T+2}')
        A.I(f'v_cos_f32 v{T+7}, v{T+5}\nv_sin_f32 v{T+9}, v{T+5}\nv_add_f32 v{T+5}, v{T+5}, v{T+2}')
        A.I(f'v_cvt_pk_bf16_f32 v{AFR+j}, v{T+6}, v{T+7}')
        A.I(f'v_cvt_pk_bf16_f32 v{AFR+4+j}, -v{T+8}, -v{T+9}')
    A.I(f"""
    v_and_b32 v{T+6}, 1, v{T}
    v_lshlrev_b32 v{T+6}, 15, v{T+6}
    v_or_b32 v{T+6}, 0x3f80, v{T+6}
    v_mov_b32 v{T+7}, 0xffff
    v_bfi_b32 v{T+6}, v{T+7}, v{T+6}, v{AFR+4}
    v_cmp_eq_u32 vcc, 0, v{T+4}
    v_cndmask_b32 v{AFR+4}, v{AFR+4}, v{T+6}, vcc
    v_and_b32 v{T+6}, 3, v{T}
    v_lshlrev_b32 v{T+6}, 2, v{T+6}
    v_add_u32 v{T+7}, 14, v{T+3}
    v_xor_b32 v{T+6}, v{T+6}, v{T+7}
    v_lshlrev_b32 v{T+6}, 4, v{T+6}
    v_lshl_add_u32 v{T+6}, v{T}, 8, v{T+6}
    v_mul_u32_u24 v{T+7}, {SB[1]-SB[0]}, v{half}
    v_add_u32 v{T+6}, v{T+6}, v{T+7}
    v_add_u32 v{T+6}, {GS+SB[0]}, v{T+6}
    ds_write_b128 v{T+6}, {v(AFR,4)}
    ds_write_b128 v{T+6}, {v(AFR+4,4)} offset:16384
    """)
    AS=[32,40,80]; BS=[48,64,88]
    def read_items(stage,ks,fs,sts=(0,1,2,3)):
        slot=stage%3; a=AS[fs]; bb=BS[fs]
        def ra(m):
            def f():
                for rd in range(2):
                    A.I(f'ds_read_b64_tr_b16 {v(a+m*4+rd*2,2)}, v{vAr+slot} offset:{m*16384+ks*4096+rd*1024}'); lq.append(('A',m,stage,ks))
            return f
        def rb(st):
            def f():
                A.I(f'ds_read_b128 {v(bb+st*4,4)}, v{vBr+slot*4+ks} offset:{st*4096}'); lq.append(('B',st,stage,ks))
            return f
        return [ra(0),rb(sts[0]),ra(1)]+[rb(x) for x in sts[1:]]
    def lwait(tags):
        idx=[k for k,x in enumerate(lq) if x in tags]
        if not idx: return
        n=len(lq)-1-max(idx); del lq[:max(idx)+1]
        A.I(f's_waitcnt lgkmcnt({min(n,15)})')
    def compute(stage,ks,fs,first,nxt,extra=None,cs=None,sts=(0,1,2,3)):
        a=AS[fs]; bb=BS[fs]; k=0
        nxt=list(nxt)
        per=[[] for _ in range(2*len(sts))]
        for j,it in enumerate(nxt): per[(j if len(nxt)<=len(per) else (j*len(per))//len(nxt))].append(it)
        for st in sts:
            for m in range(2):
                lwait([('A',m,stage,ks),('B',st,stage,ks)])
                mf32(A,tile(m,st),a+m*4,bb+st*4,first)
                for it in per[k]: it()
                if cs is not None: A.I(f'v_dot2c_f32_bf16 v{csr+cs*2+(k>>2)}, v{a+(k>>2)*4+(k&3)}, v{ones}')
                if extra and k in extra: extra[k]()
                k+=1
    def cs_chunks():
        U=104; C=[]
        C.append(lambda: A.I(f"""s_bitcmp1_b32 s35, 0
            s_cselect_b64 vcc, -1, 0
            v_cndmask_b32 v{U}, v{csr}, v{csr+2}, vcc
            v_cndmask_b32 v{U+2}, v{csr+1}, v{csr+3}, vcc"""))
        C.append(lambda: A.I(f"""v_mov_b32 v{U+1}, v{U}
            v_mov_b32 v{U+3}, v{U+2}
            s_lshl_b32 s60, s34, 4
            s_add_u32 s60, s60, s35"""))
        C.append(lambda: A.I(f"""v_permlane32_swap_b32 v{U}, v{U+1}
            v_permlane32_swap_b32 v{U+2}, v{U+3}
            s_lshl_b32 s60, s60, 10
            s_lshl_b32 s61, s36, 7"""))
        C.append(lambda: A.I(f"""v_add_f32 v{U}, v{U}, v{U+1}
            v_add_f32 v{U+2}, v{U+2}, v{U+3}
            s_add_u32 s60, s60, s61
            s_add_u32 s60, s60, {OFF_CSP}"""))
        C.append(lambda: A.I(f"""s_add_u32 s62, s4, s60
            s_addc_u32 s63, s5, 0
            v_lshlrev_b32 v{U+1}, 2, v{l32}
            s_mov_b32 exec_hi, 0
            global_store_dword v{U+1}, v{U}, s[62:63]{SC}
            s_mov_b64 exec, -1"""))
        C.append(lambda: A.I(f"""s_mov_b32 exec_hi, 0
            global_store_dword v{U+1}, v{U+2}, s[62:63] offset:512{SC}
            s_mov_b64 exec, -1"""))
        return C
    for i in range(NST):
        if 'bw' in EXP and i in (1,2,3,4,5): ST.mark(A)
        if i==3: A.I('s_waitcnt vmcnt(0)')
        A.I('s_waitcnt lgkmcnt(0)'); lq.clear()
        if 'bw' in EXP and i in (1,2,3,4,5): ST.mark(A)
        A.I('s_barrier')
        if want(i): ST.mark(A)
        if 'la2' not in EXP:
            fs=lambda st_,ks_: (4*st_+ks_)%3
            r01=read_items(i,0,fs(i,0))+read_items(i,1,fs(i,1))
            if i==0:
                for f in r01: f()
            else:
                compute(i-1,3,fs(i-1,3),False,r01,None,1 if i==1 else None)
            compute(i,0,fs(i,0),i==0,read_items(i,2,fs(i,2)),({6:lambda: rs_loads(cq)} if i==6 else (dict(zip((1,2,3,4,6,7),cs_chunks())) if i==1 else None)),0 if i==0 else None)
            compute(i,1,fs(i,1),False,read_items(i,3,fs(i,3)),None,0 if i==0 else None)
            compute(i,2,fs(i,2),False,[],None,1 if i==0 else None)
            continue
        r0=read_items(i,0,0)
        if i==0:
            for f in r0: f()
        else:
            compute(i-1,3,1,False,r0,None,1 if i==1 else None)
        compute(i,0,0,i==0,read_items(i,1,1),({6:lambda: rs_loads(cq)} if i==6 else (dict(zip((1,2,3,4,6,7),cs_chunks())) if i==1 else None)),0 if i==0 else None)
        compute(i,1,1,False,read_items(i,2,0),None,0 if i==0 else None)
        compute(i,2,0,False,read_items(i,3,1),None,1 if i==0 else None)
    HW=104
    A.I(f"""
    s_lshl_b32 s60, s36, 14
    s_cmp_eq_u32 s36, 3
    s_cselect_b32 s60, {SB[2]}, s60
    v_lshlrev_b32 v{HW}, 4, v{L}
    v_add_u32 v{HW}, s60, v{HW}
    """)
    if 'do7' not in EXP:
        A.I('s_waitcnt lgkmcnt(0)'); lq.clear()
        compute(7,3,((4*7+3)%3 if 'la2' not in EXP else 1),False,[])
        ST.mark(A)
        for k in range(16): A.I(f'ds_write_b128 v{HW}, {v(ACC+64+4*k,4)} offset:{k*1024}')
        A.I('s_waitcnt vmcnt(0) lgkmcnt(0)\ns_barrier')
    else:
        hi=(2,3); lo=(0,1)
        compute(7,0,0,False,read_items(7,1,1,hi),sts=hi)
        compute(7,1,1,False,read_items(7,2,0,hi),sts=hi)
        compute(7,2,0,False,read_items(7,3,1,hi),sts=hi)
        compute(7,3,1,False,read_items(10,0,0,lo),sts=hi)
        def hw(k0,k1):
            def f():
                for k in range(k0,k1):
                    A.I(f'ds_write_b128 v{HW}, {v(ACC+64+4*k,4)} offset:{k*1024}'); lq.append('hw')
            return f
        compute(10,0,0,False,read_items(10,1,1,lo),sts=lo)
        compute(10,1,1,False,read_items(10,2,0,lo),{0:hw(0,4),1:hw(4,8),2:hw(8,12),3:hw(12,16)},sts=lo)
        compute(10,2,0,False,read_items(10,3,1,lo),sts=lo)
        A.I('s_waitcnt lgkmcnt(0)\ns_barrier'); lq.clear()
        compute(10,3,1,False,[],sts=lo)
        ST.mark(A)
        A.I('s_waitcnt vmcnt(0)')
    A.L('p1_join')
    mm=[RSV,RSV+2]; sd=[RSV+1,RSV+3]
    c1p=T+6; c2p=T+14; sd2=T+16; rr=T+18
    c1=-2*0.7978845608028654*math.log2(math.e); c2=c1*0.044715
    FRK=32
    A.I(f"""
    s_lshl_b32 s39, s36, 7
    v_lshlrev_b32 v{T+2}, 2, v{l32}
    v_add_u32 v{T+2}, s39, v{T+2}
    v_add_u32 v{T+2}, {STAT}, v{T+2}
    ds_read_b32 v{T+10}, v{T+2}
    ds_read_b32 v{T+11}, v{T+2} offset:512
    """)
    for k in range(16): A.I(f'v_mov_b32 v{FRK+k}, 0')
    for st in range(2):
        A.I(f"""
        v_rcp_f32 v{rr+st}, v{sd[st]}
        v_mul_f32 v{sd2+st}, v{sd[st]}, v{sd[st]}
        v_mul_f32 v{c1p+st}, {f2u(c1)}, v{rr+st}
        v_mul_f32 v{T+9}, v{rr+st}, v{rr+st}
        v_mul_f32 v{T+9}, v{T+9}, v{rr+st}
        v_mul_f32 v{c2p+st}, {f2u(c2)}, v{T+9}
        """)
    srd(A,20,4,OFF_HP,224*32768)
    srd(A,24,4,OFF_YQ,256*8192)
    A.I(f"""
    v_cvt_pk_bf16_f32 v{T+12}, v{mm[0]}, v{mm[0]}
    v_cvt_pk_bf16_f32 v{T+13}, v{mm[1]}, v{mm[1]}
    v_cmp_gt_u32 vcc, 32, v{L}
    v_cndmask_b32 v{FRK+8}, 0, v{T+12}, vcc
    v_cndmask_b32 v{FRK+12}, 0, v{T+13}, vcc
    s_lshl_b32 s33, s35, 7
    s_lshl_b32 s39, s37, 6
    s_add_u32 s33, s33, s39              ; 128rb+64sh
    v_add_u32 v{T+4}, s33, v{l32}
    v_lshlrev_b32 v{vHo}, 4, v{T+4}
    v_lshl_add_u32 v{vHo}, v{half}, 15, v{vHo}
    v_add_u32 v{vHo+1}, 512, v{vHo}
    s_waitcnt lgkmcnt(0)
    v_cndmask_b32 v{FRK}, 0, v{T+10}, vcc
    v_cndmask_b32 v{FRK+4}, 0, v{T+11}, vcc
    """)
    for m in range(2):
        for b_ in range(2): mf32(A,ACC+(m*2+b_)*16,FRK+m*4,FRK+8+b_*4)
    vPf=114
    A.I('s_cmp_eq_u32 s37, 0\ns_cbranch_scc1 p1_pfC')
    A.I(f's_lshl_b32 s39, s36, 2\nv_mov_b32 v{vPf}, {CTRL}\nv_add_u32 v{vPf}, s39, v{vPf}\nv_mov_b32 v{vPf+1}, 1\nds_write_b32 v{vPf}, v{vPf+1} offset:64')
    A.I('s_branch p1_pfE')
    A.L('p1_pfC')
    srd(A,8,56,0,1792*512*2)
    A.I(f"""
    s_and_b32 s13, s2, 7
    s_lshr_b32 s14, s2, 3
    s_lshr_b32 s13, s13, 2
    s_lshl_b32 s13, s13, 2
    s_lshr_b32 s14, s14, 3
    s_add_u32 s13, s13, s14          ; db
    v_lshrrev_b32 v{vPf+1}, 3, v{L}
    v_bfe_u32 v{vPf+2}, v{L}, 4, 1
    v_lshlrev_b32 v{vPf+2}, 2, v{vPf+2}
    v_and_b32 v{vPf}, 7, v{L}
    v_xor_b32 v{vPf}, v{vPf}, v{vPf+2}
    v_lshlrev_b32 v{vPf}, 4, v{vPf}
    v_lshl_add_u32 v{vPf}, v{vPf+1}, 10, v{vPf}
    s_lshl_b32 s39, s13, 7
    v_add_u32 v{vPf}, s39, v{vPf}
    s_mul_i32 s44, s32, {28*16*1024}
    s_mul_i32 s45, s32, {AREG}
    v_mov_b32 v{vPf+1}, {CTRL}
    """)
    if 'epf' in EXP: lds_wait(A,vPf+1,116,64,1,4)
    A.L('p1_pfE')
    pfl=[0]
    def prefetch(lo,hi):
        if lo>=hi or 'epf' not in EXP: return
        pfl[0]+=1; l=f'p1_pf{pfl[0]}'
        A.I(f's_cmp_lg_u32 s37, 0\ns_cbranch_scc1 {l}')
        A.skip_begin()
        for t in range(lo,hi):
            for j in range(2):
                A.I(f's_add_u32 m0, s45, {t*2048+j*1024}')
                A.I(f's_add_u32 s39, s44, {(t*16+j*8)*1024}')
                A.I(f'buffer_load_dwordx4 v{vPf}, s[8:11], s39 offen lds')
        A.skip_end(); A.L(l)
    A.I('s_nop 7\ns_nop 4')
    Z=T+20
    vH=[vHo,vHo+1]
    GT=lambda st: ACC+st*16
    UT=lambda st: ACC+(2+st)*16
    def hq(q,st,p):
        g=[GT(st)+4*q+r for r in range(4)]; u=[UT(st)+4*q+r for r in range(4)]
        for r in range(4):
            A.I(f'v_mul_f32 v{Z+r}, v{g[r]}, v{g[r]}')
            A.I(f'v_fma_f32 v{Z+r}, v{Z+r}, v{c2p+st}, v{c1p+st}')
            A.I(f'v_mul_f32 v{Z+r}, v{Z+r}, v{g[r]}')
        for r in range(4): A.I(f'v_exp_f32 v{Z+r}, v{Z+r}')
        for r in range(4):
            A.I(f'v_mul_f32 v{g[r]}, v{g[r]}, v{u[r]}')
            A.I(f'v_fma_f32 v{Z+r}, v{Z+r}, v{sd2+st}, v{sd2+st}')
        for r in range(4): A.I(f'v_rcp_f32 v{Z+r}, v{Z+r}')
        for r in range(4): A.I(f'v_mul_f32 v{g[r]}, v{g[r]}, v{Z+r}')
        A.I(f'v_cvt_pk_bf16_f32 v{p}, v{g[0]}, v{g[1]}')
        A.I(f'v_cvt_pk_bf16_f32 v{p+1}, v{g[2]}, v{g[3]}')
    def hpair(q,st,P):
        hq(q,st,P); hq(q+1,st,P+2)
        A.I(f'v_permlane32_swap_b32 v{P}, v{P+2}')
        A.I(f'v_permlane32_swap_b32 v{P+1}, v{P+3}')
        A.I(f'buffer_store_dwordx4 {v(P,4)}, v{vH[st]}, s[20:23], s60 offen{SC}')
    A.I(f's_mul_i32 s61, s34, 14\ns_lshl_b32 s39, s36, 2\ns_add_u32 s61, s61, s39\ns_lshl_b32 s61, s61, 15')
    YT=208
    A.I('s_cmp_lg_u32 s36, 3\ns_cbranch_scc1 p1_noy')
    A.I(f"""
    s_lshl_b32 s39, s37, 12
    s_add_u32 s39, s39, {YSCR}
    v_lshlrev_b32 v{YT}, 10, v{half}
    v_lshl_add_u32 v{YT}, v{l32}, 2, v{YT}
    v_add_u32 v{YT}, s39, v{YT}
    v_lshlrev_b32 v{YT+1}, 4, v{L}
    v_add_u32 v{YT+1}, s39, v{YT+1}
    v_lshrrev_b32 v{YT+2}, 4, v{L}
    v_lshlrev_b32 v{YT+2}, 13, v{YT+2}
    v_and_b32 v{YT+3}, 15, v{L}
    v_lshl_add_u32 v{YT+2}, v{YT+3}, 4, v{YT+2}
    s_lshl_b32 s39, s33, 2
    v_add_u32 v{YT+2}, s39, v{YT+2}
    """)
    for q in (2,3):
        for st in range(2):
            for r in range(4):
                G_=GT(st)+4*q+r; U=UT(st)+4*q+r
                A.I(f'v_mul_f32 v{G_}, v{G_}, v{rr+st}')
                A.I(f'v_mul_f32 v{U}, v{U}, v{rr+st}')
                A.I(f'v_cvt_pk_bf16_f32 v{G_}, v{G_}, v{U}')
                A.I(f'ds_write_b32 v{YT}, v{G_} offset:{(8*(q-2)+r)*256+st*128}')
    A.I('s_waitcnt lgkmcnt(0)')
    for j in range(4): A.I(f'ds_read_b128 {v(YT+4+4*j,4)}, v{YT+1} offset:{j*1024}')
    A.I('s_waitcnt lgkmcnt(0)')
    for j in range(4):
        A.I(f's_lshl_b32 s60, s34, 4\ns_add_u32 s60, s60, {4*j}\ns_lshl_b32 s60, s60, 13')
        A.I(f'buffer_store_dwordx4 {v(YT+4+4*j,4)}, v{YT+2}, s[24:27], s60 offen{SC}')
    A.I('s_mov_b32 s60, s61')
    A.I('s_cmp_lg_u32 s37, 0\ns_cbranch_scc1 p1_y7')
    prefetch(0,9); hpair(0,0,PB); prefetch(9,17); hpair(0,1,PB+4)
    A.I(f's_waitcnt vmcnt({36 if "epf" in EXP else 2})\nv_mov_b32 v{YT}, {CTRL}\nv_mov_b32 v{YT+1}, 1\nds_write_b32 v{YT}, v{YT+1} offset:80')
    A.I('s_branch p1_end')
    A.L('p1_y7')
    hpair(0,0,PB); hpair(0,1,PB+4)
    A.I(f's_waitcnt vmcnt(2)\nv_mov_b32 v{YT}, {CTRL}')
    lds_wait(A,YT,YT+4,80,1,4)
    A.I(f's_add_u32 s61, s34, {C_Y}'); arrive(A,61,YT+2)
    A.I('s_branch p1_end')
    A.L('p1_noy')
    k=0; cuts=[0,6,12,17,17]
    for q in (0,2):
        A.I(f's_add_u32 s60, s61, {q*32768}')
        for st in range(2):
            hpair(q,st,PB+4*(q+st))
            prefetch(cuts[k],cuts[k+1]); k+=1
            if k==2:
                A.I('s_cmp_eq_u32 s37, 0\ns_cbranch_scc1 p1_wf')
                A.I(f's_waitcnt vmcnt(2)\ns_lshl_b32 s39, s36, 2\nv_mov_b32 v{YT}, {CTRL}\nv_add_u32 v{YT}, s39, v{YT}\nv_mov_b32 v{YT+1}, 1\nds_write_b32 v{YT}, v{YT+1} offset:84')
                A.L('p1_wf')
    A.L('p1_end')
    ST.mark(A)

def s2_phase(A):
    L,l,g,vY,vW,fl,fg4=1,2,3,4,5,6,7
    T=184
    Ya=16; Wv=24; C32R=32; C32I=48; C64R=64; C64I=80; T1c=96; T1s=104; T2c=112; T2s=120
    DR=128; DI=136; F=144; E=152
    vC=203
    A.I(f'''
    s_sub_u32 s12, s32, 4
    v_and_b32 v{L}, 63, v0
    v_and_b32 v{l}, 15, v0
    v_bfe_u32 v{g}, v0, 4, 2
    v_mov_b32 v{vC}, {CTRL}
    s_lshl_b32 s33, s34, 4
    s_add_u32 s33, s33, s35          ; column k
    s_mov_b32 s47, 0
    ''')
    srd(A,8,4,OFF_YQ,256*8192)
    srd(A,16,4,OFF_WT,257*8192)
    srd(A,20,4,OFF_ZQ,514*4096)
    A.I(f'''
    s_lshl_b32 s13, s12, 11
    v_lshlrev_b32 v{vY}, 7, v{l}
    v_lshl_add_u32 v{vY}, v{g}, 4, v{vY}
    v_add_u32 v{vY}, s13, v{vY}
    v_lshlrev_b32 v{vW}, 4, v{l}
    v_lshl_add_u32 v{vW}, v{g}, 8, v{vW}
    v_add_u32 v{vW}, s13, v{vW}
    v_cvt_f32_u32 v{fl}, v{l}
    v_lshlrev_b32 v{T}, 2, v{g}
    v_cvt_f32_u32 v{fg4}, v{T}
    s_lshl_b32 s13, s12, 4
    v_cvt_f32_u32 v{T+1}, s13
    ''')
    f16w=T+1
    sc=1.0/(2048*512)
    A.I(f'''
    v_mul_f32 v{T+2}, {f2u(1/32)}, v{fl}
    v_add_f32 v{T+3}, 0.5, v{T+2}
    v_add_f32 v{T+4}, v{f16w}, v{fl}
    v_mul_f32 v{T+7}, {f2u(1/2048)}, v{T+4}
    v_mul_f32 v{T+4}, {f2u(1/64)}, v{T+4}
    v_mul_f32 v{T+5}, {f2u(1/2048)}, v{fl}
    v_add_f32 v{T+6}, {f2u(16/2048)}, v{T+5}
    v_add_f32 v{T+8}, v{f16w}, v{fg4}
    s_mov_b32 s46, {f2u(2*sc)}
    s_cmp_eq_u32 s33, 0
    s_cselect_b32 s46, {f2u(sc)}, s46
    v_mov_b32 v{vC+2}, s46
    ''')
    a_,c_,s_=T+9,T+10,T+11
    def cs_pack(ang,R,I):
        A.I(f'''
        v_cos_f32 v{c_}, v{ang}
        v_sin_f32 v{s_}, v{ang}
        v_cvt_pk_bf16_f32 v{R}, v{c_}, v{s_}
        v_cvt_pk_bf16_f32 v{I}, -v{s_}, v{c_}
        ''')
    fa=T+12
    for t in range(2):
        for q in range(4):
            A.I(f'v_add_f32 v{fa}, {f2u(16*t+q)}, v{fg4}')
            for nt in range(2):
                A.I(f'v_mul_f32 v{a_}, v{fa}, v{T+2+nt}')
                cs_pack(a_, C32R+(t*2+nt)*4+q, C32I+(t*2+nt)*4+q)
    for r in range(4):
        A.I(f'v_add_f32 v{fa}, {f2u(r)}, v{T+8}')
        for nt in range(2):
            A.I(f'''v_mul_f32 v{a_}, v{fa}, v{T+5+nt}
            v_cos_f32 v{T1c+nt*4+r}, v{a_}
            v_sin_f32 v{T1s+nt*4+r}, v{a_}''')
    for tp in range(4):
        for q in range(4):
            A.I(f'v_add_f32 v{fa}, {f2u(16*tp+q)}, v{fg4}')
            A.I(f'v_mul_f32 v{a_}, v{fa}, v{T+4}')
            cs_pack(a_, C64R+tp*4+q, C64I+tp*4+q)
    for it in range(2):
        for r in range(4):
            A.I(f'''v_add_f32 v{fa}, {f2u(16*it+r)}, v{fg4}
            v_mul_f32 v{a_}, v{fa}, v{T+7}
            v_cos_f32 v{T2c+it*4+r}, v{a_}
            v_sin_f32 v{T2s+it*4+r}, v{a_}
            v_mul_f32 v{T2c+it*4+r}, v{T2c+it*4+r}, v{vC+2}
            v_mul_f32 v{T2s+it*4+r}, v{T2s+it*4+r}, v{vC+2}''')
    vLw,vLr=T+13,T+14
    A.I(f'''
    v_lshlrev_b32 v{vLr}, 4, v{L}
    v_add_u32 v{vLr}, {EX}, v{vLr}
    s_lshl_b32 s13, s12, 11
    v_add_u32 v{vLw}, s13, v{vLr}
    s_lshl_b32 s13, s12, 2
    v_add_u32 v{vC+1}, s13, v{vC}
    s_mov_b32 s26, 0x80000000
    s_mov_b32 s27, 0x8000
    ''')
    ST.mark(A)
    A.I('s_waitcnt vmcnt(0)\ns_barrier')
    if 'noprio' not in EXP: A.I('s_setprio 3')
    ST.mark(A)
    A.I('s_cmp_lg_u32 s32, 4\ns_cbranch_scc1 s2_w1')
    A.skip_begin()
    A.I(f's_add_u32 s59, s34, {C_Y}\ns_lshl_b32 s59, s59, 7\nv_mov_b32 v{E}, s59\nv_mov_b32 v{E+1}, 16')
    poll_cnt(A,E,E+1,E+2,1)
    if 'dbg' in EXP:
        A.I(f's_cmp_lg_u32 s2, 9\ns_cbranch_scc1 dbg1')
        A.I(f'v_mov_b32 v{E+4}, v{E}\nv_mov_b32 v{E+5}, v{E+1}\nv_mov_b32 v{E+6}, v{E+2}\nv_mov_b32 v{E+7}, s58\nv_mov_b32 v{E+8}, 32\ns_mov_b64 exec, 1\nglobal_store_dwordx4 v{E+8}, {v(E+4,4)}, s[54:55]\ns_mov_b64 exec, -1')
        A.L('dbg1')
    A.I(f'v_mov_b32 v{E}, 1\nds_write_b32 v{vC}, v{E} offset:8')
    A.skip_end(); A.L('s2_w1')
    lds_wait(A,vC,E,8,1)
    ST.mark(A)
    A.L('s2_col')
    if 'nos2' in EXP: A.I('s_branch s2_skip')
    A.I(f'''
    s_and_b32 s14, s33, 255
    s_lshl_b32 s14, s14, 13
    s_lshl_b32 s15, s33, 13
    s_add_u32 s29, s15, 4096
    buffer_load_dwordx4 {v(Ya,4)}, v{vY}, s[8:11], s14 offen{SC}
    buffer_load_dwordx4 {v(Ya+4,4)}, v{vY}, s[8:11], s14 offen offset:64{SC}
    buffer_load_dwordx4 {v(Wv,4)}, v{vW}, s[16:19], s15 offen{SC}
    buffer_load_dwordx4 {v(Wv+4,4)}, v{vW}, s[16:19], s15 offen offset:1024{SC}
    s_cmp_eq_u32 s33, 256
    s_cselect_b32 s24, 16, 0
    s_and_b32 s25, s33, 255
    s_cmp_eq_u32 s25, 0
    s_cselect_b32 s25, 0xffff, -1
    s_cmp_lg_u32 s33, 0
    s_cbranch_scc1 s2_nx
    s_mov_b32 s60, 0x200000
    buffer_load_dwordx4 {v(208,4)}, v{vW}, s[16:19], s60 offen{SC}
    buffer_load_dwordx4 {v(212,4)}, v{vW}, s[16:19], s60 offen offset:1024{SC}
    s_waitcnt vmcnt(4)
    s_branch s2_ld
    s2_nx:
    s_waitcnt vmcnt(2)
    s2_ld:
    ''')
    for i in range(8): A.I(f'v_mov_b32 v{216+i}, v{Ya+i}')
    A.L('s2_cmp')
    if 's2fine' in EXP: ST.mark(A)
    for i in range(8): A.I(f'v_lshrrev_b32 v{Ya+i}, s24, v{Ya+i}')
    for i in range(8): A.I(f'v_and_b32 v{Ya+i}, s25, v{Ya+i}')
    for nt in range(2):
        for t in range(2): mf16(A,DR+nt*4,Ya+t*4,C32R+(t*2+nt)*4,t==0)
        for t in range(2): mf16(A,DI+nt*4,Ya+t*4,C32I+(t*2+nt)*4,t==0)
    t0,t1=T+15,T+16
    def cmul_pack(dst,xr,xi,c,s,sign):
        A.I(f'v_mul_f32 v{t0}, v{xr}, v{c}')
        A.I(f'v_mul_f32 v{t1}, v{xi}, v{c}')
        if sign<0:
            A.I(f'v_fma_f32 v{t0}, v{xi}, v{s}, v{t0}'); A.I(f'v_fma_f32 v{t1}, -v{xr}, v{s}, v{t1}')
        else:
            A.I(f'v_fma_f32 v{t0}, -v{xi}, v{s}, v{t0}'); A.I(f'v_fma_f32 v{t1}, v{xr}, v{s}, v{t1}')
        A.I(f'v_cvt_pk_bf16_f32 v{dst}, v{t0}, v{t1}')
    def exchange(base,ph):
        for nt in range(2): A.I(f'ds_write_b128 v{vLw}, {v(F+nt*4,4)} offset:{base+nt*1024}')
        A.I(f's_add_u32 s46, s47, {ph}\nv_mov_b32 v{t0}, s46\nds_write_b32 v{vC+1}, v{t0} offset:16')
        lds_wait(A,vC,E,16,'s46',4)
        for tp in range(4):
            for nt in range(2): A.I(f'ds_read_b128 {v(E+(tp*2+nt)*4,4)}, v{vLr} offset:{base+(tp*2+nt)*1024}')
    for nt in range(2):
        for r in range(4): cmul_pack(F+nt*4+r,DR+nt*4+r,DI+nt*4+r,T1c+nt*4+r,T1s+nt*4+r,-1)
    if 's2fine' in EXP: ST.mark(A)
    exchange(0,1)
    if 's2fine' in EXP: ST.mark(A)
    for tp in range(4):
        A.I(f's_waitcnt lgkmcnt({6-2*tp})')
        for nt in range(2):
            mf16(A,DR+nt*4,C64R+tp*4,E+(tp*2+nt)*4,tp==0)
            mf16(A,DI+nt*4,C64I+tp*4,E+(tp*2+nt)*4,tp==0)
    if 's2fine' in EXP: ST.mark(A)
    A.I('s_cmp_eq_u32 s33, 256\ns_cbranch_scc1 s2_nw\ns_waitcnt vmcnt(0)')
    A.L('s2_nw')
    wr,wi=T+17,T+18
    def conj(R,I):
        for i in range(16):
            A.I(f'v_xor_b32 v{R+i}, s26, v{R+i}'); A.I(f'v_xor_b32 v{I+i}, s27, v{I+i}')
    conj(C32R,C32I)
    for nt in range(2):
        for r in range(4):
            A.I(f'v_lshlrev_b32 v{wr}, 16, v{Wv+nt*4+r}')
            A.I(f'v_and_b32 v{wi}, 0xffff0000, v{Wv+nt*4+r}')
            cmul_pack(F+nt*4+r,DR+nt*4+r,DI+nt*4+r,wr,wi,+1)
    conj(C64R,C64I)
    if 's2fine' in EXP: ST.mark(A)
    def publish(kreg_is_256,suf,xd):
        A.I('s_waitcnt vmcnt(0)')
        A.I(f'v_mov_b32 v{t1}, {xd}\nds_write_b32 v{vC+1}, v{t1} offset:32')
        A.I(f's_cmp_lg_u32 s32, 4\ns_cbranch_scc1 s2_w2{suf}')
        A.skip_begin()
        lds_wait(A,vC,224,32,xd,4)
        cnt_base(A)
        if kreg_is_256=='n': A.I(f'v_add_u32 v228, {C_N}, v{L}')
        elif kreg_is_256=='0': A.I(f'v_lshlrev_b32 v228, 3, v{L}\nv_add_u32 v228, {C_Z}, v228')
        else: A.I(f's_and_b32 s46, s33, 7\ns_add_u32 s46, s46, {C_Z}\nv_lshlrev_b32 v228, 3, v{L}\nv_add_u32 v228, s46, v228')
        A.I(f'v_lshlrev_b32 v228, 7, v228\nv_mov_b32 v229, 1')
        A.I(f's_mov_b64 exec, {(1<<ZREP)-1}\nglobal_atomic_add v228, v229, s[62:63]{SC}\ns_mov_b64 exec, -1')
        A.skip_end(); A.L(f's2_w2{suf}')
    exchange(8192,2)
    A.I('s_cmp_lg_u32 s33, 256\ns_cbranch_scc1 s2_np')
    publish('0','c',1)
    A.I('s_barrier')
    A.L('s2_np')
    if 's2fine' in EXP: ST.mark(A)
    for tp in range(4):
        A.I(f's_waitcnt lgkmcnt({6-2*tp})')
        for it in range(2):
            mf16(A,DR+it*4,E+(tp*2+it)*4,C64R+tp*4,tp==0)
            mf16(A,DI+it*4,E+(tp*2+it)*4,C64I+tp*4,tp==0)
    for it in range(2):
        for r in range(4): cmul_pack(F+it*4+r,DR+it*4+r,DI+it*4+r,T2c+it*4+r,T2s+it*4+r,+1)
    for nt in range(2):
        for t in range(2): mf16(A,DR+nt*4,C32R+(t*2+nt)*4,F+t*4,t==0)
        for t in range(2): mf16(A,DI+nt*4,C32I+(t*2+nt)*4,F+t*4,t==0)
    if 's2fine' in EXP: ST.mark(A)
    A.I(f'v_lshrrev_b32 v{t0}, 1, v{vY}')
    for nt in range(2):
        for part,D in ((0,DR),(1,DI)):
            e=E+nt*4+part*2
            A.I(f'v_cvt_pk_bf16_f32 v{e}, v{D+nt*4}, v{D+nt*4+1}\nv_cvt_pk_bf16_f32 v{e+1}, v{D+nt*4+2}, v{D+nt*4+3}')
            A.I(f'buffer_store_dwordx2 {v(e,2)}, v{t0}, s[20:23], s15 offen offset:{32*nt}{SC}' if part==0 else f'buffer_store_dwordx2 {v(e,2)}, v{t0}, s[20:23], s29 offen offset:{32*nt}{SC}')
    A.I('s_cmp_eq_u32 s33, 0\ns_cbranch_scc1 s2_second')
    A.I('s_cmp_eq_u32 s33, 256\ns_cbranch_scc1 s2_pubn')
    publish('k','a',1)
    A.I('s_barrier')
    A.I('s_branch s2_fin')
    A.L('s2_pubn')
    publish('n','b',2)
    A.I('s_branch s2_fin')
    A.L('s2_second')
    conj(C32R,C32I); conj(C64R,C64I)
    for i in range(8): A.I(f'v_mov_b32 v{Ya+i}, v{216+i}')
    for i in range(8): A.I(f'v_mov_b32 v{Wv+i}, v{208+i}')
    A.I('s_movk_i32 s33, 256\ns_mov_b32 s15, 0x200000\ns_add_u32 s29, s15, 4096\ns_mov_b32 s24, 16\ns_mov_b32 s25, 0xffff\ns_add_u32 s47, s47, 2\ns_branch s2_cmp')
    A.L('s2_fin')
    A.I('s_setprio 0')
    ST.mark(A)
    A.I('s_cmp_lg_u32 s32, 4\ns_cbranch_scc1 s2_w3')
    A.skip_begin()
    A.I(f's_and_b32 s46, s2, {ZREP-1}\ns_lshl_b32 s46, s46, 3\ns_add_u32 s46, s46, {C_Z}\nv_add_u32 v{E}, s46, v{L}\nv_lshlrev_b32 v{E}, 7, v{E}\nv_mov_b32 v{E+1}, 32')
    poll_cnt(A,E,E+1,E+2,8,sleep=2)
    A.I(f'v_mov_b32 v{E}, 1\nds_write_b32 v{vC}, v{E} offset:4')
    A.I(f's_and_b32 s46, s2, {ZREP-1}\ns_add_u32 s46, s46, {C_N}\ns_lshl_b32 s46, s46, 7\nv_mov_b32 v{E}, s46\nv_mov_b32 v{E+1}, 1')
    poll_cnt(A,E,E+1,E+2,1)
    A.I(f'v_mov_b32 v{E}, 1\nds_write_b32 v{vC}, v{E} offset:48')
    A.skip_end(); A.L('s2_w3')
    ST.mark(A)
    A.I('s_waitcnt lgkmcnt(0)\ns_barrier')

def p3_phase(A, nh=28, nz=8):
    NB=NB_
    BR0=112
    NAR=NAR_
    if NAR: NB=8-NAR
    AR=112+NB*8
    NA=NA_; NL=NSL-NA; RB=NB+NL
    BL=[16,240]
    L,half,l32=1,2,3
    vB=4; vZd=5; vZr=6; vX=9; vC=10; vAd=11; vAr=12; vLw=14; vLr=15; vBd=8; vBr=28
    XR2=16; T=24; ACC=32; AF=96; BR=112; ZA=176
    A.I(f"""
    s_load_dwordx2 s[28:29], s[0:1], 56
    s_load_dwordx2 s[30:31], s[0:1], 48
    v_and_b32 v{L}, 63, v0
    v_and_b32 v{l32}, 31, v0
    v_bfe_u32 v{half}, v0, 5, 1
    v_mov_b32 v{vC}, {CTRL}
    s_mov_b32 s12, s32
    s_and_b32 s13, s2, 7
    s_lshr_b32 s14, s2, 3
    s_and_b32 s15, s13, 3
    s_lshl_b32 s15, s15, 3
    s_and_b32 s39, s14, 7
    s_add_u32 s15, s15, s39          ; sb
    s_lshr_b32 s13, s13, 2
    s_lshl_b32 s13, s13, 2
    s_lshr_b32 s14, s14, 3
    s_add_u32 s13, s13, s14          ; db
    s_and_b32 s36, s12, 1
    s_lshr_b32 s37, s12, 1
    v_lshrrev_b32 v{T}, 3, v{L}
    v_bfe_u32 v{T+1}, v{L}, 4, 1
    v_lshlrev_b32 v{T+1}, 2, v{T+1}
    v_and_b32 v{T+2}, 7, v{L}
    v_xor_b32 v{T+2}, v{T+2}, v{T+1}
    v_lshlrev_b32 v{T+2}, 4, v{T+2}           ; c*16
    v_lshl_add_u32 v{vAd}, v{T}, 10, v{T+2}
    s_lshl_b32 s39, s13, 7
    v_add_u32 v{vAd}, s39, v{vAd}
    v_lshl_add_u32 v{vZd}, v{T}, 12, v{T+2}
    s_lshl_b32 s39, s15, 7
    v_add_u32 v{vZd}, s39, v{vZd}
    s_mul_i32 s44, s12, {nh*16*1024}
    s_mul_i32 s45, s12, {AREG}
    s_mul_i32 s52, s12, {nz*16*4096}
    s_waitcnt lgkmcnt(0)
    """)
    srd(A,8,30,0,1792*512*2)
    q=[]
    def dmaA(t):
        for j in range(2):
            A.I(f's_add_u32 m0, s45, {(t%NA)*2048+j*1024}')
            A.I(f's_add_u32 s60, s44, {(t*16+j*8)*1024}')
            A.I(f'buffer_load_dwordx4 v{vAd}, s[8:11], s60 offen lds'); q.append(('A',t))
    def dmaZ(i):
        t=nh+i
        for j in range(2):
            A.I(f's_add_u32 m0, s45, {(t%NA)*2048+j*1024}')
            A.I(f's_add_u32 s60, s52, {(i*16+j*8)*4096}')
            A.I(f'buffer_load_dwordx4 v{vZd}, s[20:23], s60 offen{SC} lds'); q.append(('A',t))
    srd(A,24,6,0,2048*512*2)
    srd(A,16,4,OFF_HP,224*32768)
    srd(A,20,4,OFF_ZQ,514*4096)
    srd(A,40,28,0,2048*512*2)
    A.I(f"""
    s_lshl_b32 s39, s15, 1
    s_add_u32 s39, s39, s37
    s_lshl_b32 s39, s39, 10
    s_lshl_b32 s31, s13, 7
    s_add_u32 s39, s39, s31
    s_lshl_b32 s31, s36, 6
    s_add_u32 s39, s39, s31
    v_lshlrev_b32 v{vX}, 16, v{l32}
    v_lshl_add_u32 v{vX}, v{half}, 3, v{vX}
    v_add_u32 v{vX}, s39, v{vX}
    """)
    ZT=248
    A.I(f"""
    s_lshl_b32 s39, s15, 10
    v_lshlrev_b32 v{vB}, 15, v{half}
    v_lshl_add_u32 v{vB}, v{l32}, 4, v{vB}
    v_add_u32 v{vB}, s39, v{vB}
    s_mul_i32 s46, s12, {nh*65536}
    s_mov_b32 s48, s46
    s_lshl_b32 s39, s15, 10
    v_lshlrev_b32 v{vBd}, 4, v{L}
    v_add_u32 v{vBd}, s39, v{vBd}
    v_lshlrev_b32 v{vBr}, 10, v{half}
    v_lshl_add_u32 v{vBr}, v{l32}, 4, v{vBr}
    v_add_u32 v{vBr}, s45, v{vBr}
    s_lshl_b32 s39, s37, 9
    v_xor_b32 v{vBr+1}, 512, v{vBr}
    v_add_u32 v{vBr}, s39, v{vBr}
    v_subrev_u32 v{vBr+1}, s39, v{vBr+1}
    s_add_u32 s47, s46, 512
    s_sub_u32 s47, s47, s39
    s_add_u32 s46, s46, s39
    v_lshrrev_b32 v{T}, 5, v{L}
    v_lshlrev_b32 v{T}, 3, v{T}
    v_bfe_u32 v{T+1}, v{L}, 2, 2
    v_add_u32 v{T}, v{T}, v{T+1}
    v_lshlrev_b32 v{T}, 7, v{T}              ; row*128
    v_bfe_u32 v{T+2}, v{L}, 4, 1
    v_lshlrev_b32 v{T+2}, 1, v{T+2}
    v_bfe_u32 v{T+3}, v{L}, 1, 1
    v_add_u32 v{T+2}, v{T+2}, v{T+3}         ; chunk within 64B half
    v_bfe_u32 v{T+3}, v{L}, 3, 1
    v_lshlrev_b32 v{T+3}, 2, v{T+3}          ; swizzle bit
    v_xor_b32 v{T+2}, v{T+2}, v{T+3}
    v_lshl_add_u32 v{T}, v{T+2}, 4, v{T}
    v_and_b32 v{T+3}, 1, v{L}
    v_lshl_add_u32 v{T}, v{T+3}, 3, v{T}
    v_add_u32 v{T}, s45, v{T}                ; base for tile index 0
    s_lshl_b32 s39, s36, 6
    v_xor_b32 v{vAr}, s39, v{T}
    v_xor_b32 v{vAr+1}, 64, v{vAr}
    s_lshl_b32 s39, s37, 6
    v_xor_b32 v{vZr}, s39, v{T}
    v_xor_b32 v{vZr+1}, 64, v{vZr}
    s_lshl_b32 s39, s13, 6
    s_lshl_b32 s31, s36, 5
    s_add_u32 s39, s39, s31
    v_add_u32 v{T}, s39, v{l32}
    v_cvt_f32_u32 v{T}, v{T}
    v_mul_f32 v{ZT}, {f2u(1/512)}, v{T}
    s_lshl_b32 s39, s13, 6
    s_xor_b32 s31, s31, 32
    s_add_u32 s39, s39, s31
    v_add_u32 v{T+1}, s39, v{l32}
    v_cvt_f32_u32 v{T+1}, v{T+1}
    v_mul_f32 v{ZT+1}, {f2u(1/512)}, v{T+1}
    s_mul_i32 s39, s12, {nz*8}
    v_lshlrev_b32 v{T+2}, 2, v{half}
    v_add_u32 v{T+2}, s39, v{T+2}
    v_cvt_f32_u32 v{ZT+2}, v{T+2}
    """)
    zitems=[]
    for i in range(nz):
        for qq in range(4):
            def zf(i=i,qq=qq):
                A.I(f'v_add_f32 v{ZT+3}, {f2u(8*i+qq)}, v{ZT+2}')
                for ar in range(2):
                    A.I(f'v_mul_f32 v{ZT+4+ar}, v{ZT+3}, v{ZT+ar}\nv_fract_f32 v{ZT+4+ar}, v{ZT+4+ar}')
                for ar in range(2):
                    A.I(f'v_cos_f32 v{ZT+6}, v{ZT+4+ar}\nv_sin_f32 v{ZT+7}, v{ZT+4+ar}\nv_cvt_pk_bf16_f32 v{ZA+i*8+ar*4+qq}, v{ZT+6}, -v{ZT+7}')
            zitems.append(zf)
    PT=NA-4
    NZ0=10 if 'z0' not in EXP else 0
    NE=NE_
    if NE:
        lds_wait(A,vC,240,64,1,4)
        ne_z=(len(zitems)*NE)//NA
        for t in range(NE):
            dmaA(t)
            for zf in zitems[(t*ne_z)//NE:((t+1)*ne_z)//NE]: zf()
        NZ0=ne_z
    else:
        for zf in zitems[:NZ0]: zf()
    A.I(f's_waitcnt vmcnt({len(q)})\ns_barrier')
    ST.mark(A)
    A.I('s_cmp_lg_u32 s32, 0\ns_cbranch_scc1 p3_a1')
    A.skip_begin()
    A.I(f's_add_u32 s59, s35, {C_H}'); A.I('s_mov_b32 s61, s59'); arrive(A,61,T)
    A.skip_end(); A.L('p3_a1')
    rest=zitems[NZ0:]
    nrem=NA-NE
    for t in range(NE,NA):
        dmaA(t)
        for zf in rest[((t-NE)*len(rest))//nrem:((t-NE+1)*len(rest))//nrem]: zf()
    if nrem==0:
        for zf in rest: zf()
    A.I(f's_lshr_b32 s59, s15, 1\ns_add_u32 s59, s59, {C_H}\ns_lshl_b32 s59, s59, 7\nv_mov_b32 v{T}, s59\nv_mov_b32 v{T+1}, 16')
    if NAR:
        idx=[k for k,x in enumerate(q) if x==('A',NAR-1)]
        A.I(f's_waitcnt vmcnt({len(q)-1-max(idx)})'); del q[:max(idx)+1]
        for t in range(NAR):
            for ar in range(2):
                for rd in range(2):
                    A.I(f'ds_read_b64_tr_b16 {v(AR+t*8+ar*4+rd*2,2)}, v{vAr+ar} offset:{(t%NA)*2048+rd*512}')
        A.I('s_waitcnt lgkmcnt(0)')
        for t in range(NAR): dmaA(NA+t)
    ST.mark(A)
    A.I('s_cmp_lg_u32 s32, 0\ns_cbranch_scc1 p3_w1')
    A.skip_begin()
    poll_cnt(A,T,T+1,T+2,1)
    A.I(f'v_mov_b32 v{T}, 1\nds_write_b32 v{vC}, v{T}')
    A.skip_end(); A.L('p3_w1')
    lds_wait(A,vC,T,0,1)
    ST.mark(A)
    n=nh+nz
    isL=lambda i: (i%RB)>=NB
    def issueB(i):
        if isL(i):
            sl=NA+(i%RB)-NB
            for j in range(2):
                A.I(f's_add_u32 m0, s45, {sl*2048+j*1024}')
                A.I(f's_add_u32 s60, s48, {j*32768}')
                A.I(f'buffer_load_dwordx4 v{vBd}, s[16:19], s60 offen{SCB} lds')
        else:
            sl=BR+(i%RB)*8
            A.I(f'buffer_load_dwordx4 {v(sl,4)}, v{vB}, s[16:19], s46 offen{SCB}')
            A.I(f'buffer_load_dwordx4 {v(sl+4,4)}, v{vB}, s[16:19], s47 offen{SCB}')
        q.extend([('B',i)]*2)
        A.I('s_add_u32 s46, s46, 65536\ns_add_u32 s47, s47, 65536\ns_add_u32 s48, s48, 65536')
    def readsBL(i):
        sl=NA+(i%RB)-NB; f=BL[i%2]
        for b_ in range(2):
            A.I(f'ds_read_b128 {v(f+4*b_,4)}, v{vBr+b_} offset:{sl*2048}')
    def vwait(*tags):
        idx=[k for k,x in enumerate(q) if x in tags]
        if not idx: return
        N=len(q)-1-max(idx); del q[:max(idx)+1]
        A.I(f's_waitcnt vmcnt({min(N,63)})')
    def reads(t):
        f=AF+(t%2)*8
        if t<nh:
            for ar in range(2):
                for rd in range(2):
                    A.I(f'ds_read_b64_tr_b16 {v(f+ar*4+rd*2,2)}, v{vAr+ar} offset:{(t%NA)*2048+rd*512}')
        else:
            for b_ in range(2):
                for rd in range(2):
                    A.I(f'ds_read_b64_tr_b16 {v(f+b_*4+rd*2,2)}, v{vZr+b_} offset:{(t%NA)*2048+rd*512}')
    nxt=0
    ZAT=nh-4; ZP=ZP_
    for k in range(RB):
        issueB(nxt); nxt+=1
    if not NAR:
        vwait(('A',0)); reads(0)
    for i in range(n):
        tags=[('A',i+1)]
        if i<nh and not isL(i): tags.append(('B',i))
        if i+1<nh and isL(i+1): tags.append(('B',i+1))
        vwait(*tags)
        if 'p3steps' in EXP and i in (0,4,10,17,24): ST.mark(A)
        A.I('s_waitcnt lgkmcnt(0)')
        if i==ZAT:
            ST.mark(A); lds_wait(A,vC,T,4,1); ST.mark(A)
            for z in range(nz): dmaZ(z)
        if i+1<n and not (i+1==nh) and i+1>=NAR: reads(i+1)
        if i+1==nh:
            vwait(('A',nh)); reads(nh)
        if i+1<nh and isL(i+1): readsBL(i+1)
        for brr in range(2):
            for ar in range(2):
                if i<nh:
                    a=(AF+(i%2)*8+ar*4) if i>=NAR else (AR+i*8+ar*4)
                    b_=(BL[i%2]+brr*4) if isL(i) else (BR+(i%RB)*8+brr*4)
                else: a=ZA+(i-nh)*8+ar*4; b_=AF+(i%2)*8+brr*4
                mf32(A,ACC+(ar+2*brr)*16,a,b_,i==0)
        if i==ZP: A.I('s_barrier')
        if i+NA<nh and i>=NAR: dmaA(i+NA)
        while nxt<nh and nxt<=i+RB:
            issueB(nxt); nxt+=1
    for i in range(4):
        A.I(f'buffer_load_dwordx2 {v(XR2+2*i,2)}, v{vX}, s[24:27], 0 offen offset:{16*i}')
    ST.mark(A)
    lds_wait(A,vC,T,48,1)
    A.I(f's_lshl_b32 s39, s15, 6\ns_lshl_b32 s31, s37, 5\ns_add_u32 s39, s39, s31\nv_add_u32 v{T+6}, s39, v{l32}\nv_lshlrev_b32 v{T+6}, 1, v{T+6}\ns_mov_b32 s39, {512*4096}')
    A.I(f'buffer_load_ushort v{T+7}, v{T+6}, s[20:23], s39 offen{SC}')
    A.I(f'v_lshlrev_b32 v{vLw}, 4, v{L}\nv_add_u32 v{vLw}, s45, v{vLw}')
    for j in range(1,4):
        for c in range(4): A.I(f'ds_write_b128 v{vLw}, {v(ACC+j*16+c*4,4)} offset:{(j-1)*4096+c*1024}')
    A.I('s_waitcnt lgkmcnt(0)\ns_barrier')
    for j in range(1,4):
        A.I(f's_xor_b32 s39, s12, {j}\ns_mul_i32 s39, s39, {AREG}\nv_lshlrev_b32 v{vLr}, 4, v{L}\nv_add_u32 v{vLr}, s39, v{vLr}')
        for c in range(4): A.I(f'ds_read_b128 {v(BR+(j-1)*16+c*4,4)}, v{vLr} offset:{(j-1)*4096+c*1024}')
    for j in range(3):
        A.I(f's_waitcnt lgkmcnt({8-4*j})')
        for i in range(16): A.I(f'v_add_f32 v{ACC+i}, v{ACC+i}, v{BR+j*16+i}')
    A.I(f's_waitcnt vmcnt(0)\nv_lshlrev_b32 v{T+7}, 16, v{T+7}')
    for i in range(16): A.I(f'v_{"add" if i%2==0 else "sub"}_f32 v{ACC+i}, v{ACC+i}, v{T+7}')
    for qq in range(4):
        x0,x1=XR2+2*qq,XR2+2*qq+1
        A.I(f"""v_lshlrev_b32 v{T}, 16, v{x0}
        v_and_b32 v{T+1}, 0xffff0000, v{x0}
        v_lshlrev_b32 v{T+2}, 16, v{x1}
        v_and_b32 v{T+3}, 0xffff0000, v{x1}""")
        for r in range(4): A.I(f'v_add_f32 v{ACC+4*qq+r}, v{ACC+4*qq+r}, v{T+r}')
        A.I(f'v_cvt_pk_bf16_f32 v{x0}, v{ACC+4*qq}, v{ACC+4*qq+1}')
        A.I(f'v_cvt_pk_bf16_f32 v{x1}, v{ACC+4*qq+2}, v{ACC+4*qq+3}')
        A.I(f'buffer_store_dwordx2 {v(x0,2)}, v{vX}, s[40:43], 0 offen offset:{16*qq}'+(' sc1' if 'outsc1' in EXP else (' nt' if 'outnt' in EXP else '')))

NAME='parallel_sum__spectral_gfnet__glu_gated_geglu__prompt'
HDR=open('cdna_kernels/'+NAME+'.s.ref').read().split('; Override')[0]
def full():
    A=Asm(); K=NAME+'_kernel'
    A.raw(HDR.rstrip())
    A.raw(f'; @launch grid=(256,1,1) block=(512,1,1) lds={LDS_TOTAL}')
    A.raw('.amdgcn_target "amdgcn-amd-amdhsa--gfx950"')
    A.raw('''; One persistent launch, 256 workgroups x 8 waves (one per CU), generated by our own script.
;  P1  : [g|u|Y] = x @ [Wgate|Wup|DFT512] per 128x(112+16) tile; waves 0-3 MFMA, waves 4-7 LDS-DMA + cos/sin table;
;        LayerNorm folded in (row stats / column sums exchanged through d_ws, rank-1 MFMA correction), GEGLU epilogue.
;  P3  : waves 0-3: out = x + [h|Z] @ [Wdown;IDFT512] per 64x64 tile, K split over 4 waves, LDS reduction.
;  Cross-workgroup hand-offs: write-through (sc1) stores, counters in d_ws zeroed by workgroup 0 (d_debug[0] = ready).''')
    A.raw('.text')
    A.raw(f'.globl {K}\n.p2align 8\n.type {K},@function'); A.L(K)
    A.I('s_cmp_ge_u32 s2, 256\ns_cbranch_scc1 k_done')
    if 'scram' in EXP: A.I('s_and_b32 s3, s2, 7\ns_lshl_b32 s3, s3, 5\ns_lshr_b32 s2, s2, 3\ns_or_b32 s2, s2, s3')
    A.I('''s_load_dwordx2 s[4:5], s[0:1], 72
    s_load_dwordx2 s[6:7], s[0:1], 0
    s_load_dwordx2 s[28:29], s[0:1], 32
    s_load_dwordx2 s[30:31], s[0:1], 40
    s_load_dwordx2 s[54:55], s[0:1], 64
    s_load_dwordx2 s[40:41], s[0:1], 8
    s_load_dwordx2 s[44:45], s[0:1], 16
    s_load_dwordx2 s[56:57], s[0:1], 48
    v_lshrrev_b32 v1, 6, v0
    s_nop 0
    v_readfirstlane_b32 s32, v1''')
    if 'pfe' in EXP:
        A.I(f'''s_getpc_b64 s[60:61]
        k_pc:
        v_lshlrev_b32 v4, 5, v0
        v_min_u32 v4, p1_join-k_pc, v4
        v_mov_b32 v5, s61
        v_add_co_u32 v4, vcc, s60, v4
        v_addc_co_u32 v5, vcc, 0, v5, vcc
        global_load_dword v7, v[4:5], off''')
    A.I('s_waitcnt lgkmcnt(0)')
    ST.mark(A)
    p1_body(A)
    if 'p1only' in EXP:
        A.I('s_waitcnt vmcnt(0)'); ST.mark(A); ST.dump(A); A.I('s_endpgm')
    n0=ST.n
    A.I('s_cmp_ge_u32 s32, 4\ns_cbranch_scc1 k_s2')
    A.fence()
    p3_phase(A)
    if STAMP: A.I('s_waitcnt vmcnt(0)')
    ST.mark(A)
    ST.dump(A)
    A.I('s_endpgm')
    A.L('k_s2'); A.fence()
    ST.n=n0
    s2_phase(A)
    ST.mark(A)
    ST.dump(A)
    A.L('k_done'); A.I('s_endpgm')
    txt=A.finalize()
    txt+=f'''.section .rodata,"a"
.p2align 6
.amdhsa_kernel {K}
  .amdhsa_next_free_vgpr 256
  .amdhsa_next_free_sgpr 100
  .amdhsa_accum_offset 256
  .amdhsa_group_segment_fixed_size 0
  .amdhsa_kernarg_size 80
  .amdhsa_user_sgpr_count 2
  .amdhsa_user_sgpr_kernarg_segment_ptr 1
  .amdhsa_system_sgpr_workgroup_id_x 1
  .amdhsa_float_denorm_mode_32 3
.end_amdhsa_kernel
'''
    return txt
if __name__=='__main__':
    if len(sys.argv)>2 and sys.argv[2]=='stamp': STAMP=True
    if len(sys.argv)>3: EXP=set(sys.argv[3].split(','))
    for e in EXP:
        if e.startswith('na'): NA_=int(e[2:])
        if e.startswith('zp'): ZP_=int(e[2:])
        if e.startswith('nb'): NB_=int(e[2:])
        if e.startswith('wi'): WI=int(e[2:])
        if e.startswith('ps'): PS_=int(e[2:])
        if e.startswith('ar'): NAR_=int(e[2:])
        if e.startswith('ti'): TI=int(e[2:])
        if e.startswith('ne'): NE_=int(e[2:])
    if 'pace1' in EXP: PACE=1
    if 'pace2' in EXP: PACE=2
    if 'perm' in EXP: SB[1],SB[2]=SB[2],SB[1]
    if 'sb16' in EXP: SB[1]=49152+4096; SB[2]=98304+8192
    if 'plainB' in EXP: SCB=''
    if 'pollsc1' in EXP: SCP=' sc1'
    if 'nos2' in EXP: pass
    open(sys.argv[1],'w').write(full())
```
